```python
import torch

def _softmax(x, axis=-1):
    return torch.softmax(x, dim=axis)
def _gelu(x):
    return torch.nn.functional.gelu(x, approximate="tanh")
def _silu(x):
    return torch.nn.functional.silu(x)
def _sigmoid(x):
    return torch.sigmoid(x)
def _layernorm(x, axis=-1, eps=1e-5):
    m = x.mean(dim=axis, keepdim=True)
    v = x.var(dim=axis, keepdim=True, unbiased=False)
    return (x - m) / torch.sqrt(v + eps)
def _scatter_add(tgt, idx, src, axis=0):
    return tgt.clone().index_add_(axis, idx, src)
def _segment_sum(src, seg, n):
    out = torch.zeros((n,) + src.shape[1:], dtype=src.dtype)
    return out.index_add_(0, seg, src)
def _pad(x, pw):
    flat = tuple(v for pair in reversed(pw) for v in pair)
    return torch.nn.functional.pad(x, flat)

kernel_name = 'sequential_preLN__linear_kernel_hedgehog__dense_activation_squared_relu__prompt'

def setup_inputs():

    _w = (lambda a: (lambda t: t.to(torch.bfloat16) if t.is_floating_point() else t)(torch.as_tensor(a)))
    def _A_setup():
        B, S, D, H = 1, 2048, 512, 32
        Dh = D // H
        return {
            "x": _w((lambda *s: torch.randn(*s, dtype=torch.bfloat16) * 0.05)(B, S, D)),
            "wqkv": _w((lambda *s: torch.randn(*s, dtype=torch.bfloat16) * 0.2)(D, 3 * D)),
            "w_phi": _w((lambda *s: torch.randn(*s, dtype=torch.bfloat16) * 0.2)(H, Dh, Dh) * (Dh ** -0.5)),
            "wo": _w((lambda *s: torch.randn(*s, dtype=torch.bfloat16) * 0.05)(D, D)),
        }
    _A_in = _A_setup()

    def _B_setup():
        B, S, D, F = 1, 2048, 512, 1376
        return {
            "x": _w((lambda *s: torch.randn(*s, dtype=torch.bfloat16) * 0.05)(B, S, D)),
            "w1": _w((lambda *s: torch.randn(*s, dtype=torch.bfloat16) * 0.05)(D, F)),
            "b1": _w((lambda *s: torch.randn(*s, dtype=torch.bfloat16) * 0.4)(F)),
            "w2": _w((lambda *s: torch.randn(*s, dtype=torch.bfloat16) * 0.05)(F, D)),
            "b2": _w((lambda *s: torch.randn(*s, dtype=torch.bfloat16) * 1.6)(D)),
        }
    _B_in = _B_setup()

    return {
        "A_x": _A_in["x"],
        "A_wqkv": _A_in["wqkv"],
        "A_w_phi": _A_in["w_phi"],
        "A_wo": _A_in["wo"],
        "B_x": _B_in["x"],
        "B_w1": _B_in["w1"],
        "B_b1": _B_in["b1"],
        "B_w2": _B_in["w2"],
        "B_b2": _B_in["b2"],
    }

def reference(A_x, A_wqkv, A_w_phi, A_wo, B_x, B_w1, B_b1, B_w2, B_b2):
    def _A_ref(x, wqkv, w_phi, wo):
        B, S, D = x.shape
        H = 32; Dh = D // H
        qkv = (lambda x, *d: x.permute(*d))((x @ wqkv).reshape(B, S, 3, H, Dh), 2, 0, 3, 1, 4)
        q, k, v = qkv[0], qkv[1], qkv[2]
        pq = torch.einsum("bhsd,hdf->bhsf", q, w_phi)
        pk = torch.einsum("bhsd,hdf->bhsf", k, w_phi)
        phi_q = torch.concatenate([_softmax(pq, axis=-1), _softmax(-pq, axis=-1)], axis=-1)
        phi_k = torch.concatenate([_softmax(pk, axis=-1), _softmax(-pk, axis=-1)], axis=-1)
        kv = torch.einsum("bhsf,bhsd->bhfd", phi_k, v)
        z  = torch.einsum("bhsf->bhf", phi_k)
        num = torch.einsum("bhqf,bhfd->bhqd", phi_q, kv)
        den = torch.einsum("bhqf,bhf->bhq", phi_q, z)[..., None] + 1e-6
        o = num / den
        return (lambda x, *d: x.permute(*d))(o, 0, 2, 1, 3).reshape(B, S, D) @ wo

    def _B_ref(x, w1, b1, w2, b2):
        h = torch.einsum("bsd,df->bsf", x, w1) + b1
        zero = torch.zeros_like(h)
        r = torch.where(h > zero, h, zero)
        h = r * r
        out = torch.einsum("bsf,fd->bsd", h, w2) + b2
        return out

    x = A_x
    h = x + _A_ref(_layernorm(x, axis=-1), A_wqkv, A_w_phi, A_wo)
    h2 = h + _B_ref(_layernorm(h, axis=-1), B_w1, B_b1, B_w2, B_b2)
    return h2
```

```python
import re

TRANS = ('v_exp_f32', 'v_log_f32', 'v_rcp_f32', 'v_rsq_f32', 'v_sqrt_f32', 'v_sin_f32', 'v_cos_f32')

_reg_re = re.compile(r'^(-|\|)?([vas])(\d+)\|?$')
_rng_re = re.compile(r'^(-|\|)?([vas])\[(\d+):(\d+)\]\|?$')


def regs_of(tok):
    tok = tok.strip()
    if tok == 'vcc':
        return [('s', 106), ('s', 107)]
    if tok in ('vcc_lo',):
        return [('s', 106)]
    if tok in ('vcc_hi',):
        return [('s', 107)]
    if tok == 'exec':
        return [('s', 126), ('s', 127)]
    if tok == 'm0':
        return [('m', 0)]
    m = _reg_re.match(tok)
    if m:
        return [(m.group(2), int(m.group(3)))]
    m = _rng_re.match(tok)
    if m:
        return [(m.group(2), i) for i in range(int(m.group(3)), int(m.group(4)) + 1)]
    return []


class Ins:
    __slots__ = ('text', 'op', 'cls', 'wr', 'rd', 'srcc', 'ab', 'dpp', 'opsel', 'wide_store', 'lds')

    def __init__(self, text):
        self.text = text
        t = text.split(';')[0].strip()
        parts = t.split(None, 1)
        self.op = op = parts[0]
        rest = parts[1] if len(parts) > 1 else ''
        ops = [o.strip() for o in rest.split(',')] if rest else []
        first_tok = []
        mods = ''
        for o in ops:
            ws = o.split()
            first_tok.append(ws[0] if ws else '')
            mods += ' ' + ' '.join(ws[1:])
        self.dpp = bool(re.search(r'row_|quad_perm|wave_|dpp|bank_mask', rest))
        self.opsel = False
        self.wr, self.rd, self.srcc, self.ab = [], [], [], []
        self.wide_store = False
        self.lds = False
        R = [regs_of(x) for x in first_tok]
        if op.startswith('v_mfma'):
            self.cls = 'mfma'
            self.wr = R[0]
            self.ab = R[1] + R[2]
            self.srcc = R[3]
            self.rd = self.ab + self.srcc
        elif op.startswith('v_'):
            self.cls = 'dot' if op.startswith('v_dot') else ('trans' if any(op.startswith(x) for x in TRANS) else 'valu')
            if 'permlane' in op and 'swap' in op:
                self.wr = R[0] + R[1]
                self.rd = R[0] + R[1]
            elif op == 'v_nop':
                pass
            else:
                self.wr = list(R[0])
                k = 1
                if '_co_' in op or op.startswith('v_div_scale'):
                    self.wr += R[1]
                    k = 2
                for r in R[k:]:
                    self.rd += r
                if op.startswith(('v_fmac', 'v_mac', 'v_dot2c', 'v_dot4c')):
                    self.rd += R[0]
                    self.srcc = R[0]
                if op.startswith('v_dot') and not op.startswith(('v_dot2c', 'v_dot4c')):
                    self.srcc = R[3]
                if ('op_sel' in rest or 'sdwa' in op or 'dst_sel' in rest) and not op.startswith(('v_pk_', 'v_dot')):
                    self.opsel = True
        elif op.startswith('ds_'):
            self.cls = 'ds'
            if op.startswith(('ds_read', 'ds_bpermute', 'ds_permute', 'ds_swizzle')):
                self.wr = R[0]
                for r in R[1:]:
                    self.rd += r
            else:
                for r in R:
                    self.rd += r
        elif op.startswith(('buffer_', 'global_')):
            self.cls = 'vmem'
            self.lds = bool(re.search(r'\blds\b', rest))
            if 'load' in op and not self.lds:
                self.wr = R[0]
                for r in R[1:]:
                    self.rd += r
            else:
                for r in R:
                    self.rd += r
                if 'store' in op and ('x3' in op or 'x4' in op):
                    self.wide_store = R[0]
        elif op.startswith('s_'):
            self.cls = 'salu'
            if op in ('s_nop', 's_waitcnt', 's_barrier', 's_endpgm', 's_branch', 's_setprio') or op.startswith(('s_cbranch', 's_cmp')):
                for r in R:
                    self.rd += r
            else:
                self.wr = R[0] if R else []
                for r in R[1:]:
                    self.rd += r
        else:
            raise ValueError('unknown instr ' + text)


def need(p, c):
    n = 0
    pw = set(p.wr)
    cr = set(c.rd)
    cw = set(c.wr)
    vec = ('valu', 'trans', 'dot')
    if p.cls == 'mfma':
        if c.cls == 'mfma':
            if pw & set(c.ab):
                n = max(n, 8)
            if pw & set(c.srcc):
                n = max(n, 0 if list(c.srcc) == list(p.wr) else 6)
            elif pw & cw:
                n = max(n, 6)
        else:
            if pw & (cr | cw):
                n = max(n, 8)
            if c.cls in vec and set(p.srcc) & cw:
                n = max(n, 3)
    elif p.cls in vec:
        vw = {r for r in pw if r[0] in 'va'}
        sw = {r for r in pw if r[0] == 's'}
        if p.cls == 'dot':
            if vw & (cr | cw):
                if c.op == p.op and not (vw & (cr - set(c.srcc))):
                    pass
                else:
                    n = max(n, 3)
        if c.cls == 'mfma' and vw & cr:
            n = max(n, 2)
        if p.cls == 'trans' and c.cls in ('valu', 'dot') and vw & cr:
            n = max(n, 1)
        if c.cls in vec and vw & cr:
            if c.dpp:
                n = max(n, 2)
            if 'permlane' in c.op:
                n = max(n, 2)
            if c.op.startswith(('v_readlane', 'v_readfirstlane')):
                n = max(n, 1)
            if p.opsel:
                n = max(n, 1)
        if sw:
            if c.cls == 'vmem' and sw & cr:
                n = max(n, 5)
            if c.cls in vec and sw & cr:
                n = max(n, 4 if c.op.startswith(('v_readlane', 'v_writelane')) else 2)
            if ('s', 126) in sw:
                if c.cls == 'mfma':
                    n = max(n, 4)
                if c.cls in vec and c.dpp:
                    n = max(n, 5)
    elif p.cls == 'vmem' and p.wide_store:
        if set(p.wide_store) & cw:
            n = max(n, 2 if c.cls in vec else 1)
    elif p.cls == 'salu':
        if ('m', 0) in pw and c.cls == 'vmem' and c.lds:
            n = max(n, 1)
    return n


class Asm:
    def __init__(self):
        self.out = []
        self.hist = []
        self.pos = 0
        self.vm_issued = 0
        self.nops = 0

    def raw(self, text):
        self.out.append(text)

    def label(self, name):
        self.out.append(name + ':')

    def comment(self, text):
        self.out.append('    ; ' + text)

    def __call__(self, text):
        ins = Ins(text)
        req = 0
        for (p, ppos) in self.hist:
            gap = self.pos - ppos - 1
            nd = need(p, ins)
            if nd > gap:
                req = max(req, nd - gap)
        if ins.op == 's_nop':
            k = int(text.split()[1])
            self.out.append('    ' + text)
            self.pos += k + 1
            return
        if req > 0:
            self.out.append('    s_nop %d' % (req - 1))
            self.pos += req
            self.nops += 1
        self.out.append('    ' + text)
        self.hist.append((ins, self.pos))
        self.pos += 1
        self.hist = [(p, q) for (p, q) in self.hist if self.pos - q <= 12]
        if ins.cls == 'vmem':
            self.vm_issued += 1
            return self.vm_issued
        return None

    def wait_vm(self, seq, extra=''):
        n = self.vm_issued - seq
        assert 0 <= n <= 63, n
        self('s_waitcnt vmcnt(%d)%s' % (n, extra))

    def flush_hazards(self):
        self('s_nop 7')
        self('s_nop 3')

    def text(self):
        return '\n'.join(self.out) + '\n'
```

```python
import sys, os
sys.path.insert(0, os.path.dirname(__file__))
from dsl import Asm

MB = 1 << 20
WS_PHIQ = 0
WS_PART = 4 * MB
WS_KVA = 6 * MB
WS_ZA = 6 * MB + 32768
WS_H = 7 * MB
WS_R = 9 * MB
WS_SIZE = 16 * MB
L2E = '0x3fb8aa3b'
NL2E = '0xbfb8aa3b'


def vr(b, n):
    return 'v[%d:%d]' % (b, b + n - 1)


def srd(a, s, koff, size):
    a('s_load_dwordx2 s[%d:%d], s[0:1], %d' % (s, s + 1, koff))


def srd_fin(a, s, size):
    a('s_and_b32 s%d, s%d, 0xffff' % (s + 1, s + 1))
    a('s_mov_b32 s%d, 0x%x' % (s + 2, size))
    a('s_mov_b32 s%d, 0x00020000' % (s + 3))


def bf16r(a, d, s):
    a('v_cvt_pk_bf16_f32 v%d, v%d, v%d' % (d, s, s))
    a('v_lshlrev_b32 v%d, 16, v%d' % (d, d))


def butterfly(a, items):
    for sw in ('v_permlane16_swap_b32', 'v_permlane32_swap_b32'):
        for (op, r, t) in items:
            a('v_mov_b32 v%d, v%d' % (t, r))
        for (op, r, t) in items:
            a('%s v%d, v%d' % (sw, r, t))
        for (op, r, t) in items:
            a('%s v%d, v%d, v%d' % (op, r, r, t))


def kernel_head(a, name):
    a.raw('.globl %s' % name)
    a.raw('.p2align 8')
    a.raw('.type %s,@function' % name)
    a.label(name)
    a.hist = []


def lane_decomp(a):
    a('v_and_b32 v1, 63, v0')
    a('v_lshrrev_b32 v6, 6, v0')
    a('v_lshrrev_b32 v2, 4, v1')
    a('v_and_b32 v3, 15, v1')
    a('v_readfirstlane_b32 s20, v6')
    a('v_bfe_u32 v4, v1, 2, 2')
    a('v_and_b32 v5, 3, v1')


AF = 64
BUF = (128, 156)
ACC = 184
ST = 208
CS_BASE = 98304


def gemm96_main(a, wstride, seg_off, extra_loads):
    a('s_lshl_b32 s23, s20, 4')
    a('s_add_u32 s24, s21, s23')
    a('v_add_u32 v6, s24, v3')
    a('v_lshlrev_b32 v6, 10, v6')
    a('v_lshl_add_u32 v6, v2, 4, v6')
    a('v_lshrrev_b32 v7, 2, v1')
    a('v_add_u32 v7, s23, v7')
    a('v_mul_u32_u24 v7, 0x%x, v7' % wstride)
    a('v_lshrrev_b32 v15, 5, v1')
    a('v_lshlrev_b32 v15, 1, v15')
    a('v_xor_b32 v15, v15, v5')
    a('v_lshl_add_u32 v7, v15, 4, v7')
    a('v_add_u32 v7, s22, v7')
    a('s_lshl_b32 s25, s20, 10')
    last = []
    for c in range(4):
        for seg in range(3):
            a('s_add_u32 m0, s25, 0x%x' % (c * 24576 + seg * 8192))
            a('s_mov_b32 s30, 0x%x' % (c * 128 * wstride + seg * seg_off))
            a('buffer_load_dwordx4 v7, s[8:11], s30 offen lds')
        for ks in range(4 * c, 4 * c + 4):
            q = a('buffer_load_dwordx4 %s, v6, s[4:7], 0 offen offset:%d' % (vr(AF + 4 * ks, 4), ks * 64))
        last.append(q)
    extra_loads(a)
    a('v_lshl_add_u32 v8, v2, 3, v4')
    a('v_lshlrev_b32 v8, 6, v8')
    a('v_lshl_add_u32 v8, v5, 3, v8')
    a('v_and_b32 v15, 1, v2')
    a('v_lshlrev_b32 v15, 5, v15')
    a('v_xor_b32 v9, 32, v15')
    a('v_add_u32 v9, v8, v9')
    a('v_add_u32 v8, v8, v15')
    a('v_add_u32 v10, 0xc000, v8')
    a('v_add_u32 v11, 0xc000, v9')
    a('s_sub_u32 s26, s20, 6')
    a('s_cmp_lt_u32 s20, 6')
    a('s_cselect_b32 s26, s20, s26')
    a('s_lshr_b32 s27, s26, 1')
    a('s_lshl_b32 s27, s27, 13')
    a('s_and_b32 s28, s26, 1')
    a('s_cmp_eq_u32 s28, 0')
    a('s_cselect_b64 s[28:29], -1, 0')
    a('v_cndmask_b32 v12, v9, v8, s[28:29]')
    a('v_add_u32 v12, s27, v12')
    a('v_add_u32 v13, 0xc000, v12')
    a('v_mov_b32 v14, 0x3f803f80')
    for i in range(6):
        a('v_mov_b32 v%d, 0' % (ST + i))

    def reads(ks):
        b = BUF[ks & 1]
        c = ks >> 2
        base = (8, 9) if c < 2 else (10, 11)
        for t in range(6):
            seg, half = t >> 1, t & 1
            off = (c & 1) * 24576 + seg * 8192 + (ks & 3) * 2048
            for e in range(2):
                a('ds_read_b64_tr_b16 %s, v%d offset:%d' % (vr(b + 4 * t + 2 * e, 2), base[half], off + e * 256))
        off = (c & 1) * 24576 + (ks & 3) * 2048
        for e in range(2):
            a('ds_read_b64_tr_b16 %s, v%d offset:%d' % (vr(b + 24 + 2 * e, 2), 12 if c < 2 else 13, off + e * 256))

    a.wait_vm(last[0])
    a('s_barrier')
    reads(0)
    for ks in range(16):
        if ks + 1 < 16:
            if (ks + 1) % 4 == 0:
                a.wait_vm(last[(ks + 1) // 4])
                a('s_barrier')
            reads(ks + 1)
            a('s_waitcnt lgkmcnt(14)')
        else:
            a('s_waitcnt lgkmcnt(0)')
        b = BUF[ks & 1]
        af = AF + 4 * ks
        dots = []
        for j in range(4):
            dots.append('v_dot2_f32_bf16 v%d, v%d, v14, v%d' % (ST + (j & 1), af + j, ST + (j & 1)))
            dots.append('v_dot2_f32_bf16 v%d, v%d, v%d, v%d' % (ST + 2 + (j & 1), af + j, af + j, ST + 2 + (j & 1)))
            dots.append('v_dot2_f32_bf16 v%d, v%d, v14, v%d' % (ST + 4 + (j & 1), b + 24 + j, ST + 4 + (j & 1)))
        for t in range(6):
            c_op = '0' if ks == 0 else vr(ACC + 4 * t, 4)
            a('v_mfma_f32_16x16x32_bf16 %s, %s, %s, %s' % (vr(ACC + 4 * t, 4), vr(b + 4 * t, 4), vr(af, 4), c_op))
            a(dots[2 * t])
            a(dots[2 * t + 1])
    SUM, SQ, CS = 64, 65, 66
    a('v_add_f32 v%d, v%d, v%d' % (SUM, ST, ST + 1))
    a('v_add_f32 v%d, v%d, v%d' % (SQ, ST + 2, ST + 3))
    a('v_add_f32 v%d, v%d, v%d' % (CS, ST + 4, ST + 5))
    butterfly(a, [('v_add_f32', SUM, 67), ('v_add_f32', SQ, 68), ('v_add_f32', CS, 69)])
    a('s_lshl_b32 s27, s26, 6')
    a('v_lshl_add_u32 v15, v3, 2, s27')
    a('v_add_u32 v15, 0x%x, v15' % CS_BASE)
    a('ds_write_b32 v15, v%d' % CS)
    a('v_mul_f32 v70, 0x3b000000, v%d' % SUM)
    a('v_mul_f32 v71, 0x3b000000, v%d' % SQ)
    a('v_fma_f32 v71, -v70, v70, v71')
    a('v_max_f32 v71, 0, v71')
    bf16r(a, 72, 70)
    bf16r(a, 71, 71)
    a('v_add_f32 v71, 0x3727c5ac, v71')
    bf16r(a, 71, 71)
    a('v_sqrt_f32 v71, v71')
    bf16r(a, 71, 71)
    a('v_rcp_f32 v73, v71')
    a('v_lshlrev_b32 v15, 4, v2')
    a('v_add_u32 v15, 0x%x, v15' % CS_BASE)
    a('s_waitcnt lgkmcnt(0)')
    a('s_barrier')
    for t in range(6):
        a('ds_read_b128 %s, v15 offset:%d' % (vr(76 + 4 * t, 4), t * 64))
    for t in range(6):
        a('s_waitcnt lgkmcnt(%d)' % (5 - t))
        for r in range(4):
            a('v_fma_f32 v%d, -v72, v%d, v%d' % (ACC + 4 * t + r, 76 + 4 * t + r, ACC + 4 * t + r))
        for r in range(4):
            a('v_mul_f32 v%d, v73, v%d' % (ACC + 4 * t + r, ACC + 4 * t + r))


def gen_k1(a):
    kernel_head(a, 'k1_kernel')
    a('s_cmp_ge_u32 s2, 256')
    a('s_cbranch_scc1 k1_exit')
    srd(a, 4, 0, 0)
    srd(a, 8, 8, 0)
    srd(a, 12, 16, 0)
    srd(a, 16, 88, 0)
    lane_decomp(a)
    a('s_and_b32 s30, s2, 7')
    a('s_lshr_b32 s31, s2, 3')
    a('s_lshr_b32 s21, s30, 1')
    a('s_lshl_b32 s21, s21, 2')
    a('s_and_b32 s22, s31, 3')
    a('s_add_u32 s33, s21, s22')
    a('s_and_b32 s21, s30, 1')
    a('s_lshl_b32 s21, s21, 3')
    a('s_lshr_b32 s22, s31, 2')
    a('s_add_u32 s34, s21, s22')
    a('s_lshl_b32 s21, s33, 7')
    a('s_lshl_b32 s22, s34, 6')
    a('s_waitcnt lgkmcnt(0)')
    srd_fin(a, 4, 2048 * 1024)
    srd_fin(a, 8, 512 * 3072)
    srd_fin(a, 12, 16384)
    srd_fin(a, 16, WS_SIZE)

    def extra(a):
        a('v_lshlrev_b32 v22, 7, v2')
        a('v_lshl_add_u32 v22, v3, 1, v22')
        a('s_lshl_b32 s30, s34, 10')
        a('v_add_u32 v22, s30, v22')
        for hh in range(2):
            for j in range(4):
                a('buffer_load_ushort v%d, v22, s[12:15], 0 offen offset:%d' % (28 + 4 * hh + j, hh * 512 + j * 32))
        a('v_lshlrev_b32 v15, 2, v2')
        a('v_sub_u32 v15, v3, v15')
        a('v_mov_b32 v23, 0x3f80')
        a('v_mov_b32 v24, 0x3f800000')
        a('v_cmp_eq_u32 vcc, 0, v15')
        a('v_cndmask_b32 v20, 0, v23, vcc')
        a('v_cmp_eq_u32 vcc, 1, v15')
        a('v_cndmask_b32 v21, 0, v24, vcc')
        a('v_or_b32 v20, v20, v21')
        a('v_cmp_eq_u32 vcc, 2, v15')
        a('v_cndmask_b32 v21, 0, v23, vcc')
        a('v_cmp_eq_u32 vcc, 3, v15')
        a('v_cndmask_b32 v25, 0, v24, vcc')
        a('v_or_b32 v21, v21, v25')

    gemm96_main(a, 3072, 1024, extra)
    for t in range(6):
        a('v_cvt_pk_bf16_f32 v%d, v%d, v%d' % (64 + 2 * t, ACC + 4 * t, ACC + 4 * t + 1))
        a('v_cvt_pk_bf16_f32 v%d, v%d, v%d' % (65 + 2 * t, ACC + 4 * t + 2, ACC + 4 * t + 3))
    a('s_waitcnt vmcnt(0)')
    if os.environ.get('DBG1'):
        a('v_add_u32 v15, s24, v3')
        a('v_lshlrev_b32 v15, 11, v15')
        a('v_lshl_add_u32 v15, v2, 4, v15')
        a('s_lshl_b32 s30, s34, 7')
        for hh in range(2):
            a('buffer_store_dwordx4 %s, v15, s[16:19], s30 offen offset:%d' % (vr(64 + 4 * hh, 4), hh * 64))
        a('s_endpgm')
    for i in range(4):
        a('v_lshl_or_b32 v%d, v%d, 16, v%d' % (16 + i, 29 + 2 * i, 28 + 2 * i))
    PB = 80
    for s in range(4):
        a('v_mfma_f32_16x16x16_bf16 %s, %s, %s, 0' % (vr(PB + 4 * s, 4), vr(16 + 2 * (s & 1), 2), vr(64 + 2 * s, 2)))
    TV = 96
    for hh in range(2):
        a('v_mfma_f32_16x16x16_bf16 %s, %s, v[20:21], 0' % (vr(TV + 4 * hh, 4), vr(64 + 2 * (4 + hh), 2)))
    def T(s, i): return 104 + 16 * s + i
    for s in range(4):
        p = PB + 4 * s
        a('v_cvt_pk_bf16_f32 v%d, v%d, v%d' % (T(s, 2), p, p + 1))
        a('v_cvt_pk_bf16_f32 v%d, v%d, v%d' % (T(s, 3), p + 2, p + 3))
    for s in range(4):
        p = PB + 4 * s
        a('v_lshlrev_b32 v%d, 16, v%d' % (p, T(s, 2)))
        a('v_and_b32 v%d, 0xffff0000, v%d' % (p + 1, T(s, 2)))
        a('v_lshlrev_b32 v%d, 16, v%d' % (p + 2, T(s, 3)))
        a('v_and_b32 v%d, 0xffff0000, v%d' % (p + 3, T(s, 3)))
    for s in range(4):
        p = PB + 4 * s
        a('v_max3_f32 v%d, v%d, v%d, v%d' % (T(s, 0), p, p + 1, p + 2))
        a('v_min3_f32 v%d, v%d, v%d, v%d' % (T(s, 1), p, p + 1, p + 2))
        a('v_max_f32 v%d, v%d, v%d' % (T(s, 0), T(s, 0), p + 3))
        a('v_min_f32 v%d, v%d, v%d' % (T(s, 1), T(s, 1), p + 3))
    it = []
    for s in range(4):
        it += [('v_max_f32', T(s, 0), T(s, 2)), ('v_min_f32', T(s, 1), T(s, 3))]
    butterfly(a, it)
    for s in range(4):
        a('v_mul_f32 v%d, %s, v%d' % (T(s, 0), NL2E, T(s, 0)))
        a('v_mul_f32 v%d, %s, v%d' % (T(s, 1), L2E, T(s, 1)))
    a('v_mov_b32 v26, %s' % L2E)
    for s in range(4):
        p = PB + 4 * s
        for r in range(4):
            a('v_fma_f32 v%d, v%d, v26, v%d' % (T(s, 4 + r), p + r, T(s, 0)))
            a('v_fma_f32 v%d, -v%d, v26, v%d' % (T(s, 8 + r), p + r, T(s, 1)))
    for s in range(4):
        for r in range(8):
            a('v_exp_f32 v%d, v%d' % (T(s, 4 + r), T(s, 4 + r)))
    for s in range(4):
        a('v_add_f32 v%d, v%d, v%d' % (T(s, 0), T(s, 4), T(s, 5)))
        a('v_add_f32 v%d, v%d, v%d' % (T(s, 1), T(s, 8), T(s, 9)))
        a('v_add_f32 v%d, v%d, v%d' % (T(s, 2), T(s, 6), T(s, 7)))
        a('v_add_f32 v%d, v%d, v%d' % (T(s, 3), T(s, 10), T(s, 11)))
    for s in range(4):
        a('v_add_f32 v%d, v%d, v%d' % (T(s, 0), T(s, 0), T(s, 2)))
        a('v_add_f32 v%d, v%d, v%d' % (T(s, 1), T(s, 1), T(s, 3)))
    it = []
    for s in range(4):
        it += [('v_add_f32', T(s, 0), T(s, 2)), ('v_add_f32', T(s, 1), T(s, 3))]
    butterfly(a, it)
    for s in range(4):
        a('v_rcp_f32 v%d, v%d' % (T(s, 0), T(s, 0)))
        a('v_rcp_f32 v%d, v%d' % (T(s, 1), T(s, 1)))
    for s in range(4):
        for r in range(4):
            a('v_mul_f32 v%d, v%d, v%d' % (T(s, 4 + r), T(s, 0), T(s, 4 + r)))
            a('v_mul_f32 v%d, v%d, v%d' % (T(s, 8 + r), T(s, 1), T(s, 8 + r)))
    FB = 168
    for s in range(4):
        for i in range(4):
            a('v_cvt_pk_bf16_f32 v%d, v%d, v%d' % (FB + 4 * s + i, T(s, 4 + 2 * i), T(s, 5 + 2 * i)))
    a('v_add_u32 v15, s24, v3')
    a('v_lshlrev_b32 v15, 11, v15')
    a('v_lshl_add_u32 v15, v2, 4, v15')
    a('s_lshl_b32 s30, s34, 7')
    for hh in range(2):
        a('buffer_store_dwordx4 %s, v15, s[16:19], s30 offen offset:%d' % (vr(FB + 4 * hh, 4), hh * 64))
    for hh in range(2):
        for pm in range(2):
            a('v_mfma_f32_16x16x16_bf16 %s, %s, v[20:21], 0' % (vr(104 + 4 * (2 * hh + pm), 4), vr(FB + 4 * (2 + hh) + 2 * pm, 2)))
    for hh in range(2):
        a('v_cvt_pk_bf16_f32 v%d, v%d, v%d' % (120 + 2 * hh, TV + 4 * hh, TV + 4 * hh + 1))
        a('v_cvt_pk_bf16_f32 v%d, v%d, v%d' % (121 + 2 * hh, TV + 4 * hh + 2, TV + 4 * hh + 3))
    for i in range(4):
        a('v_cvt_pk_bf16_f32 v%d, v%d, v%d' % (124 + 2 * i, 104 + 4 * i, 105 + 4 * i))
        a('v_cvt_pk_bf16_f32 v%d, v%d, v%d' % (125 + 2 * i, 106 + 4 * i, 107 + 4 * i))
    a('v_mov_b32 v15, v14')
    for hh in range(2):
        for pm in range(2):
            a('v_mfma_f32_16x16x16_bf16 %s, %s, %s, 0' % (vr(132 + 4 * (hh * 4 + pm), 4), vr(124 + 2 * (2 * hh + pm), 2), vr(120 + 2 * hh, 2)))
            a('v_mfma_f32_16x16x16_bf16 %s, %s, v[14:15], 0' % (vr(132 + 4 * (hh * 4 + 2 + pm), 4), vr(124 + 2 * (2 * hh + pm), 2)))
    a('s_lshl_b32 s30, s20, 13')
    a('v_lshlrev_b32 v16, 4, v1')
    a('v_add_u32 v16, s30, v16')
    for i in range(8):
        a('ds_write_b128 v16, %s offset:%d' % (vr(132 + 4 * i, 4), i * 1024))
    a('v_lshlrev_b32 v17, 4, v0')
    a('s_waitcnt lgkmcnt(0)')
    a('s_barrier')
    for w in range(8):
        a('ds_read_b128 %s, v17 offset:%d' % (vr(64 + 4 * w, 4), w * 8192))
    for w in range(1, 8):
        a('s_waitcnt lgkmcnt(%d)' % (7 - w))
        for r in range(4):
            a('v_add_f32 v%d, v%d, v%d' % (64 + r, 64 + r, 64 + 4 * w + r))
    a('s_lshl_b32 s30, s33, 17')
    a('s_lshl_b32 s31, s34, 13')
    a('s_add_u32 s30, s30, s31')
    a('s_add_u32 s30, s30, 0x%x' % WS_PART)
    a('buffer_store_dwordx4 v[64:67], v17, s[16:19], s30 offen')
    a.label('k1_exit')
    a('s_endpgm')


def gen_kred(a):
    kernel_head(a, 'kred_kernel')
    a('s_cmp_ge_u32 s2, 128')
    a('s_cbranch_scc1 kred_exit')
    srd(a, 16, 88, 0)
    a('v_lshlrev_b32 v1, 4, v0')
    a('v_lshrrev_b32 v2, 4, v0')
    a('v_lshlrev_b32 v2, 4, v2')
    a('s_lshl_b32 s20, s2, 10')
    a('s_add_u32 s20, s20, 0x%x' % WS_PART)
    a('s_lshr_b32 s21, s2, 2')
    a('s_and_b32 s22, s2, 3')
    a('s_waitcnt lgkmcnt(0)')
    srd_fin(a, 16, WS_SIZE)
    seqs = []
    for rb in range(16):
        seqs.append(a('buffer_load_dwordx4 %s, v1, s[16:19], s20 offen' % vr(8 + 4 * rb, 4)))
        if rb < 15:
            a('s_add_u32 s20, s20, 0x20000')
    a('s_lshl_b32 s23, s21, 10')
    a('s_add_u32 s23, s23, 0x%x' % WS_KVA)
    a('s_lshl_b32 s24, s21, 6')
    a('s_add_u32 s24, s24, 0x%x' % WS_ZA)
    a('s_cmp_lt_u32 s22, 2')
    a('s_cselect_b32 s23, s23, s24')
    a('s_cselect_b64 s[26:27], -1, 0')
    a('s_and_b32 s25, s22, 1')
    a('s_lshl_b32 s25, s25, 3')
    a('s_add_u32 s23, s23, s25')
    a('v_cndmask_b32 v3, v2, v1, s[26:27]')
    for rb in range(1, 16):
        a.wait_vm(seqs[rb])
        for r in range(4):
            a('v_add_f32 v%d, v%d, v%d' % (8 + r, 8 + r, 8 + 4 * rb + r))
    a('v_cvt_pk_bf16_f32 v4, v8, v9')
    a('v_cvt_pk_bf16_f32 v5, v10, v11')
    a('buffer_store_dwordx2 v[4:5], v3, s[16:19], s23 offen')
    a.label('kred_exit')
    a('s_endpgm')


def gen_k2(a):
    kernel_head(a, 'k2_kernel')
    a('s_cmp_ge_u32 s2, 256')
    a('s_cbranch_scc1 k2_exit')
    srd(a, 4, 0, 0)
    srd(a, 8, 24, 0)
    srd(a, 16, 88, 0)
    lane_decomp(a)
    a('s_and_b32 s30, s2, 7')
    a('s_lshr_b32 s31, s2, 3')
    a('s_lshl_b32 s21, s30, 2')
    a('s_and_b32 s22, s31, 3')
    a('s_add_u32 s21, s21, s22')
    a('s_lshr_b32 s22, s31, 2')
    a('s_lshl_b32 s21, s21, 6')
    a('s_lshl_b32 s23, s20, 4')
    a('s_add_u32 s24, s21, s23')
    a('s_lshl_b32 s22, s22, 7')
    a('s_waitcnt lgkmcnt(0)')
    srd_fin(a, 4, 2048 * 1024)
    srd_fin(a, 8, 512 * 1024)
    srd_fin(a, 16, WS_SIZE)
    PQ = 64
    XR = 192
    AC = 200
    WB = (216, 232)
    a('v_lshlrev_b32 v6, 4, v1')
    a('s_lshl_b32 s25, s20, 13')
    for i in range(8):
        a('s_add_u32 m0, s25, 0x%x' % (65536 + i * 1024))
        a('s_add_u32 s30, s25, 0x%x' % (WS_KVA + i * 1024))
        a('buffer_load_dwordx4 v6, s[16:19], s30 offen lds')
    a('s_and_b32 s26, s20, 1')
    a('s_lshl_b32 s26, s26, 10')
    a('s_add_u32 m0, s26, 0x%x' % 98304)
    a('s_add_u32 s30, s26, 0x%x' % WS_ZA)
    q_kv = a('buffer_load_dwordx4 v6, s[16:19], s30 offen lds')
    a('v_add_u32 v7, s24, v3')
    a('v_lshlrev_b32 v7, 11, v7')
    a('v_lshl_add_u32 v7, v2, 4, v7')
    a('v_lshrrev_b32 v8, 3, v1')
    a('v_bfe_u32 v9, v1, 1, 2')
    a('v_bfe_u32 v10, v1, 4, 2')
    a('v_xor_b32 v9, v9, v10')
    a('v_and_b32 v10, 1, v1')
    a('v_lshlrev_b32 v10, 4, v10')
    a('v_lshl_add_u32 v9, v9, 5, v10')
    a('s_lshl_b32 s27, s20, 3')
    a('v_add_u32 v8, s27, v8')
    a('v_lshl_add_u32 v8, v8, 10, v9')
    a('v_add_u32 v8, s22, v8')
    a('s_lshl_b32 s25, s20, 10')
    q_pq = []
    for t in range(16):
        a('buffer_load_dwordx4 %s, v7, s[16:19], 0 offen offset:%d' % (vr(PQ + 8 * t, 4), t * 128))
        q_pq.append(a('buffer_load_dwordx4 %s, v7, s[16:19], 0 offen offset:%d' % (vr(PQ + 8 * t + 4, 4), t * 128 + 64)))
        a('s_add_u32 m0, s25, 0x%x' % (t * 4096))
        a('s_mov_b32 s30, 0x%x' % (t * 32768))
        q_wo = a('buffer_load_dwordx4 v8, s[8:11], s30 offen lds')
    a('v_add_u32 v11, s24, v3')
    a('v_lshlrev_b32 v11, 10, v11')
    a('v_lshl_add_u32 v11, v2, 3, v11')
    a('v_add_u32 v11, s22, v11')
    for nt in range(4):
        q_x = a('buffer_load_dwordx2 %s, v11, s[4:7], 0 offen offset:%d' % (vr(XR + 2 * nt, 2), nt * 32))
    a('v_add_u32 v12, 0x10000, v6')
    a('v_lshlrev_b32 v13, 4, v2')
    a('v_add_u32 v13, 0x18000, v13')
    TB = 250
    a('v_lshl_add_u32 v14, v2, 2, v4')
    a('v_lshlrev_b32 v14, 7, v14')
    a('v_lshl_add_u32 v14, v5, 3, v14')
    a('v_and_b32 v15, 1, v2')
    a('v_lshlrev_b32 v15, 1, v15')
    a('v_lshrrev_b32 v48, 1, v4')
    a('v_or_b32 v15, v15, v48')
    for nt in range(4):
        a('v_xor_b32 v48, %d, v15' % nt)
        a('v_lshl_add_u32 v%d, v48, 5, v14' % (TB + nt))
    KZ = (16, 32)
    ND = (216, 232)

    def reads1(t):
        b = KZ[t & 1]
        for hh in range(2):
            h = 2 * t + hh
            a('ds_read_b128 %s, v12 offset:%d' % (vr(b + 8 * hh, 4), h * 1024))
            a('ds_read_b128 %s, v13 offset:%d' % (vr(b + 8 * hh + 4, 4), h * 64))

    def valu1(t):
        nd = ND[t & 1]
        for hh in range(2):
            n = nd + 8 * hh
            d = n + 4
            T = 48 + 8 * hh
            a('v_cvt_pk_bf16_f32 v%d, v%d, v%d' % (T, d, d))
            a('v_cvt_pk_bf16_f32 v%d, v%d, v%d' % (T + 1, n, n + 1))
            a('v_cvt_pk_bf16_f32 v%d, v%d, v%d' % (T + 2, n + 2, n + 3))
            a('v_lshlrev_b32 v%d, 16, v%d' % (T, T))
            a('v_add_f32 v%d, 0x358637bd, v%d' % (T, T))
            a('v_cvt_pk_bf16_f32 v%d, v%d, v%d' % (T, T, T))
            a('v_lshlrev_b32 v%d, 16, v%d' % (T, T))
            a('v_rcp_f32 v%d, v%d' % (T, T))
            a('v_lshlrev_b32 v%d, 16, v%d' % (T + 3, T + 1))
            a('v_and_b32 v%d, 0xffff0000, v%d' % (T + 4, T + 1))
            a('v_lshlrev_b32 v%d, 16, v%d' % (T + 5, T + 2))
            a('v_and_b32 v%d, 0xffff0000, v%d' % (T + 6, T + 2))
            for i in range(4):
                a('v_mul_f32 v%d, v%d, v%d' % (T + 3 + i, T, T + 3 + i))
            a('v_cvt_pk_bf16_f32 v%d, v%d, v%d' % (PQ + 8 * t + 2 * hh, T + 3, T + 4))
            a('v_cvt_pk_bf16_f32 v%d, v%d, v%d' % (PQ + 8 * t + 2 * hh + 1, T + 5, T + 6))

    a.wait_vm(q_kv)
    a('s_barrier')
    reads1(0)
    for t in range(16):
        if t + 1 < 16:
            reads1(t + 1)
            a('s_waitcnt lgkmcnt(4)')
        else:
            a('s_waitcnt lgkmcnt(0)')
        a.wait_vm(q_pq[t])
        b = KZ[t & 1]
        nd = ND[t & 1]
        for hh in range(2):
            a('v_mfma_f32_16x16x32_bf16 %s, %s, %s, 0' % (vr(nd + 8 * hh, 4), vr(b + 8 * hh, 4), vr(PQ + 8 * t + 4 * hh, 4)))
            a('v_mfma_f32_16x16x32_bf16 %s, %s, %s, 0' % (vr(nd + 8 * hh + 4, 4), vr(b + 8 * hh + 4, 4), vr(PQ + 8 * t + 4 * hh, 4)))
        if t > 0:
            valu1(t - 1)
    valu1(15)
    a.wait_vm(q_wo)
    a('s_barrier')

    def reads2(t):
        b = WB[t & 1]
        for nt in range(4):
            for e in range(2):
                a('ds_read_b64_tr_b16 %s, v%d offset:%d' % (vr(b + 4 * nt + 2 * e, 2), TB + nt, t * 4096 + e * 2048))
    reads2(0)
    for t in range(16):
        if t + 1 < 16:
            reads2(t + 1)
            a('s_waitcnt lgkmcnt(8)')
        else:
            a('s_waitcnt lgkmcnt(0)')
        b = WB[t & 1]
        for nt in range(4):
            c_op = '0' if t == 0 else vr(AC + 4 * nt, 4)
            a('v_mfma_f32_16x16x32_bf16 %s, %s, %s, %s' % (vr(AC + 4 * nt, 4), vr(b + 4 * nt, 4), vr(PQ + 8 * t, 4), c_op))
    a.wait_vm(q_x)
    a('s_mov_b32 s30, 0x%x' % WS_H)
    for nt in range(4):
        ac = AC + 4 * nt
        T = 16 + 8 * nt
        a('v_cvt_pk_bf16_f32 v%d, v%d, v%d' % (T, ac, ac + 1))
        a('v_cvt_pk_bf16_f32 v%d, v%d, v%d' % (T + 1, ac + 2, ac + 3))
        a('v_lshlrev_b32 v%d, 16, v%d' % (T + 2, T))
        a('v_and_b32 v%d, 0xffff0000, v%d' % (T + 3, T))
        a('v_lshlrev_b32 v%d, 16, v%d' % (T + 4, T + 1))
        a('v_and_b32 v%d, 0xffff0000, v%d' % (T + 5, T + 1))
        x = XR + 2 * nt
        a('v_lshlrev_b32 v%d, 16, v%d' % (T + 6, x))
        a('v_and_b32 v%d, 0xffff0000, v%d' % (T + 7, x))
        a('v_add_f32 v%d, v%d, v%d' % (T + 2, T + 2, T + 6))
        a('v_add_f32 v%d, v%d, v%d' % (T + 3, T + 3, T + 7))
        a('v_lshlrev_b32 v%d, 16, v%d' % (T + 6, x + 1))
        a('v_and_b32 v%d, 0xffff0000, v%d' % (T + 7, x + 1))
        a('v_add_f32 v%d, v%d, v%d' % (T + 4, T + 4, T + 6))
        a('v_add_f32 v%d, v%d, v%d' % (T + 5, T + 5, T + 7))
        a('v_cvt_pk_bf16_f32 v%d, v%d, v%d' % (T, T + 2, T + 3))
        a('v_cvt_pk_bf16_f32 v%d, v%d, v%d' % (T + 1, T + 4, T + 5))
        a('buffer_store_dwordx2 %s, v11, s[16:19], s30 offen offset:%d' % (vr(T, 2), nt * 32))
    a.label('k2_exit')
    a('s_endpgm')


def gen_k3(a):
    kernel_head(a, 'k3_kernel')
    a('s_cmp_ge_u32 s2, 240')
    a('s_cbranch_scc1 k3_exit')
    srd(a, 4, 88, 0)
    srd(a, 8, 40, 0)
    srd(a, 12, 48, 0)
    srd(a, 16, 88, 0)
    lane_decomp(a)
    a('s_and_b32 s30, s2, 7')
    a('s_lshr_b32 s31, s2, 3')
    a('s_lshl_b32 s21, s30, 1')
    a('s_and_b32 s22, s31, 1')
    a('s_add_u32 s33, s21, s22')
    a('s_lshr_b32 s34, s31, 1')
    a('s_lshl_b32 s21, s33, 7')
    a('s_mul_i32 s22, s34, 192')
    a('s_waitcnt lgkmcnt(0)')
    a('s_add_u32 s4, s4, 0x%x' % WS_H)
    a('s_addc_u32 s5, s5, 0')
    srd_fin(a, 4, 2048 * 1024)
    srd_fin(a, 8, 512 * 2752)
    srd_fin(a, 12, 2752)
    srd_fin(a, 16, WS_SIZE)

    def extra(a):
        a('v_lshlrev_b32 v22, 3, v2')
        a('v_add_u32 v22, s22, v22')
        for t in range(6):
            a('buffer_load_dwordx2 %s, v22, s[12:15], 0 offen offset:%d' % (vr(28 + 2 * t, 2), t * 32))

    gemm96_main(a, 2752, 64, extra)
    a('s_waitcnt vmcnt(0)')
    a('v_add_u32 v15, s24, v3')
    a('v_mul_u32_u24 v15, 0xac0, v15')
    a('v_add_u32 v15, v22, v15')
    a('s_mov_b32 s30, 0x%x' % WS_R)
    for t in range(6):
        if t == 2:
            a('s_cmp_eq_u32 s34, 14')
            a('s_cbranch_scc1 k3_exit')
        ac = ACC + 4 * t
        T = 64 + 8 * t
        b = 28 + 2 * t
        a('v_cvt_pk_bf16_f32 v%d, v%d, v%d' % (T, ac, ac + 1))
        a('v_cvt_pk_bf16_f32 v%d, v%d, v%d' % (T + 1, ac + 2, ac + 3))
        a('v_lshlrev_b32 v%d, 16, v%d' % (T + 2, T))
        a('v_and_b32 v%d, 0xffff0000, v%d' % (T + 3, T))
        a('v_lshlrev_b32 v%d, 16, v%d' % (T + 4, T + 1))
        a('v_and_b32 v%d, 0xffff0000, v%d' % (T + 5, T + 1))
        a('v_lshlrev_b32 v%d, 16, v%d' % (T + 6, b))
        a('v_and_b32 v%d, 0xffff0000, v%d' % (T + 7, b))
        a('v_add_f32 v%d, v%d, v%d' % (T + 2, T + 2, T + 6))
        a('v_add_f32 v%d, v%d, v%d' % (T + 3, T + 3, T + 7))
        a('v_lshlrev_b32 v%d, 16, v%d' % (T + 6, b + 1))
        a('v_and_b32 v%d, 0xffff0000, v%d' % (T + 7, b + 1))
        a('v_add_f32 v%d, v%d, v%d' % (T + 4, T + 4, T + 6))
        a('v_add_f32 v%d, v%d, v%d' % (T + 5, T + 5, T + 7))
        a('v_cvt_pk_bf16_f32 v%d, v%d, v%d' % (T, T + 2, T + 3))
        a('v_cvt_pk_bf16_f32 v%d, v%d, v%d' % (T + 1, T + 4, T + 5))
        a('v_lshlrev_b32 v%d, 16, v%d' % (T + 2, T))
        a('v_and_b32 v%d, 0xffff0000, v%d' % (T + 3, T))
        a('v_lshlrev_b32 v%d, 16, v%d' % (T + 4, T + 1))
        a('v_and_b32 v%d, 0xffff0000, v%d' % (T + 5, T + 1))
        for i in range(4):
            a('v_max_f32 v%d, 0, v%d' % (T + 2 + i, T + 2 + i))
        for i in range(4):
            a('v_mul_f32 v%d, v%d, v%d' % (T + 2 + i, T + 2 + i, T + 2 + i))
        a('v_cvt_pk_bf16_f32 v%d, v%d, v%d' % (T, T + 2, T + 3))
        a('v_cvt_pk_bf16_f32 v%d, v%d, v%d' % (T + 1, T + 4, T + 5))
        a('buffer_store_dwordx2 %s, v15, s[16:19], s30 offen offset:%d' % (vr(T, 2), t * 32))
    a.label('k3_exit')
    a('s_endpgm')


def gen_k4(a):
    kernel_head(a, 'k4_kernel')
    a('s_cmp_ge_u32 s2, 256')
    a('s_cbranch_scc1 k4_exit')
    srd(a, 4, 72, 0)
    srd(a, 8, 56, 0)
    srd(a, 12, 64, 0)
    srd(a, 16, 88, 0)
    lane_decomp(a)
    a('s_and_b32 s30, s2, 7')
    a('s_lshr_b32 s31, s2, 3')
    a('s_lshl_b32 s21, s30, 2')
    a('s_and_b32 s22, s31, 3')
    a('s_add_u32 s21, s21, s22')
    a('s_lshr_b32 s22, s31, 2')
    a('s_lshl_b32 s21, s21, 6')
    a('s_lshl_b32 s23, s20, 4')
    a('s_add_u32 s24, s21, s23')
    a('s_lshl_b32 s22, s22, 7')
    a('s_waitcnt lgkmcnt(0)')
    srd_fin(a, 4, 2048 * 1024)
    srd_fin(a, 8, 1376 * 1024)
    srd_fin(a, 12, 1024)
    srd_fin(a, 16, WS_SIZE)
    AFR = 24
    WB = (196, 212)
    AC = 228
    TB = 244
    HR = 248
    BR = 16
    a('v_add_u32 v7, s24, v3')
    a('v_mul_u32_u24 v7, 0xac0, v7')
    a('v_lshl_add_u32 v7, v2, 4, v7')
    a('v_lshrrev_b32 v8, 3, v1')
    a('v_bfe_u32 v9, v1, 1, 2')
    a('v_bfe_u32 v10, v1, 4, 1')
    a('s_and_b32 s26, s20, 1')
    a('s_lshl_b32 s26, s26, 1')
    a('v_or_b32 v10, s26, v10')
    a('v_xor_b32 v9, v9, v10')
    a('v_and_b32 v10, 1, v1')
    a('v_lshlrev_b32 v10, 4, v10')
    a('v_lshl_add_u32 v9, v9, 5, v10')
    a('s_lshl_b32 s27, s20, 3')
    a('v_add_u32 v8, s27, v8')
    a('v_lshl_add_u32 v8, v8, 10, v9')
    a('v_add_u32 v8, s22, v8')
    a('s_lshl_b32 s25, s20, 10')
    a('s_mov_b32 s31, 0x%x' % WS_R)

    def dma(ks, slot_ks):
        a('s_add_u32 m0, s25, 0x%x' % (slot_ks * 4096))
        a('s_mov_b32 s30, 0x%x' % (ks * 32768))
        return a('buffer_load_dwordx4 v8, s[8:11], s30 offen lds')

    def aload(ks):
        return a('buffer_load_dwordx4 %s, v7, s[16:19], s31 offen offset:%d' % (vr(AFR + 4 * ks, 4), ks * 64))

    q = {}

    def issue_chunk(c):
        n = 8 if c < 5 else 3
        for i in range(n):
            ks = 8 * c + i
            dma(ks, ks if c < 5 else i)
            q[c] = aload(ks)

    for c in range(3):
        issue_chunk(c)
    a('v_lshl_add_u32 v14, v2, 3, v4')
    a('v_lshlrev_b32 v14, 7, v14')
    a('v_lshl_add_u32 v14, v5, 3, v14')
    a('v_and_b32 v15, 1, v2')
    a('v_lshlrev_b32 v15, 1, v15')
    a('v_lshrrev_b32 v13, 1, v4')
    a('v_or_b32 v15, v15, v13')
    for nt in range(4):
        a('v_xor_b32 v13, %d, v15' % nt)
        a('v_lshl_add_u32 v%d, v13, 5, v14' % (TB + nt))
    cur_base = [0]

    def reads(ks):
        slot = ks if ks < 40 else ks - 40
        addr = slot * 4096
        want = (addr // 65536) * 65536
        if want != cur_base[0]:
            d = want - cur_base[0]
            for nt in range(4):
                if d > 0:
                    a('v_add_u32 v%d, 0x%x, v%d' % (TB + nt, d, TB + nt))
                else:
                    a('v_subrev_u32 v%d, 0x%x, v%d' % (TB + nt, -d, TB + nt))
            cur_base[0] = want
        b = WB[ks & 1]
        for nt in range(4):
            for e in range(2):
                a('ds_read_b64_tr_b16 %s, v%d offset:%d' % (vr(b + 4 * nt + 2 * e, 2), TB + nt, addr - want + e * 512))

    a.wait_vm(q[0])
    a('s_barrier')
    reads(0)
    for ks in range(43):
        if ks == 4:
            issue_chunk(3)
        if ks == 12:
            issue_chunk(4)
        if ks == 20:
            a('v_add_u32 v11, s24, v3')
            a('v_lshlrev_b32 v11, 10, v11')
            a('v_lshl_add_u32 v11, v2, 3, v11')
            a('v_add_u32 v11, s22, v11')
            a('s_mov_b32 s30, 0x%x' % WS_H)
            for nt in range(4):
                a('buffer_load_dwordx2 %s, v11, s[16:19], s30 offen offset:%d' % (vr(HR + 2 * nt, 2), nt * 32))
            a('v_lshlrev_b32 v12, 3, v2')
            a('v_add_u32 v12, s22, v12')
            for nt in range(4):
                q_e = a('buffer_load_dwordx2 %s, v12, s[12:15], 0 offen offset:%d' % (vr(BR + 2 * nt, 2), nt * 32))
        if ks + 1 < 43:
            if (ks + 1) % 8 == 0:
                a.wait_vm(q[(ks + 1) // 8])
                a('s_barrier')
                if ks + 1 == 16:
                    issue_chunk(5)
            reads(ks + 1)
            a('s_waitcnt lgkmcnt(8)')
        else:
            a('s_waitcnt lgkmcnt(0)')
        b = WB[ks & 1]
        for nt in range(4):
            c_op = '0' if ks == 0 else vr(AC + 4 * nt, 4)
            a('v_mfma_f32_16x16x32_bf16 %s, %s, %s, %s' % (vr(AC + 4 * nt, 4), vr(b + 4 * nt, 4), vr(AFR + 4 * ks, 4), c_op))
    a('s_waitcnt vmcnt(0)')
    for nt in range(4):
        ac = AC + 4 * nt
        T = 24 + 8 * nt
        b = BR + 2 * nt
        x = HR + 2 * nt
        a('v_cvt_pk_bf16_f32 v%d, v%d, v%d' % (T, ac, ac + 1))
        a('v_cvt_pk_bf16_f32 v%d, v%d, v%d' % (T + 1, ac + 2, ac + 3))
        for (src) in (b, x):
            a('v_lshlrev_b32 v%d, 16, v%d' % (T + 2, T))
            a('v_and_b32 v%d, 0xffff0000, v%d' % (T + 3, T))
            a('v_lshlrev_b32 v%d, 16, v%d' % (T + 4, T + 1))
            a('v_and_b32 v%d, 0xffff0000, v%d' % (T + 5, T + 1))
            a('v_lshlrev_b32 v%d, 16, v%d' % (T + 6, src))
            a('v_and_b32 v%d, 0xffff0000, v%d' % (T + 7, src))
            a('v_add_f32 v%d, v%d, v%d' % (T + 2, T + 2, T + 6))
            a('v_add_f32 v%d, v%d, v%d' % (T + 3, T + 3, T + 7))
            a('v_lshlrev_b32 v%d, 16, v%d' % (T + 6, src + 1))
            a('v_and_b32 v%d, 0xffff0000, v%d' % (T + 7, src + 1))
            a('v_add_f32 v%d, v%d, v%d' % (T + 4, T + 4, T + 6))
            a('v_add_f32 v%d, v%d, v%d' % (T + 5, T + 5, T + 7))
            a('v_cvt_pk_bf16_f32 v%d, v%d, v%d' % (T, T + 2, T + 3))
            a('v_cvt_pk_bf16_f32 v%d, v%d, v%d' % (T + 1, T + 4, T + 5))
        a('buffer_store_dwordx2 %s, v11, s[4:7], 0 offen offset:%d' % (vr(T, 2), nt * 32))
    a.label('k4_exit')
    a('s_endpgm')


def desc(name, vgpr, sgpr=64):
    return '''.amdhsa_kernel %s
  .amdhsa_next_free_vgpr %d
  .amdhsa_next_free_sgpr %d
  .amdhsa_accum_offset %d
  .amdhsa_group_segment_fixed_size 0
  .amdhsa_kernarg_size 96
  .amdhsa_user_sgpr_count 2
  .amdhsa_user_sgpr_kernarg_segment_ptr 1
  .amdhsa_system_sgpr_workgroup_id_x 1
.end_amdhsa_kernel
''' % (name, vgpr, sgpr, vgpr)


KERNELS = [
    ('k1_kernel', gen_k1, 256, 512, 98304 + 512, 216),
    ('kred_kernel', gen_kred, 128, 64, 0, 72),
    ('k2_kernel', gen_k2, 256, 256, 100352, 256),
    ('k3_kernel', gen_k3, 240, 512, 98304 + 512, 216),
    ('k4_kernel', gen_k4, 256, 256, 163840, 256),
]


def build(kernels):
    head = ''
    for (n, g, grid, block, lds, v) in kernels:
        head += '; @launch kernel=%s grid=(%d,1,1) block=(%d,1,1) lds=%d\n' % (n, grid, block, lds)
    head += '.amdgcn_target "amdgcn-amd-amdhsa--gfx950"\n.text\n'
    a = Asm()
    seen = set()
    for (n, g, grid, block, lds, v) in kernels:
        if n in seen:
            continue
        seen.add(n)
        a.vm_issued = 0
        g(a)
    d = '.section .rodata,"a"\n.p2align 6\n'
    seen = set()
    for (n, g, grid, block, lds, v) in kernels:
        if n in seen:
            continue
        seen.add(n)
        d += desc(n, v)
    return head + a.text() + d


if __name__ == '__main__':
    out = sys.argv[1] if len(sys.argv) > 1 else 'cur.s'
    open(out, 'w').write(build(KERNELS))
    print('wrote', out)
```

```python
import sys, os
sys.path.insert(0, os.path.dirname(__file__))
from dsl import Asm

MB = 1 << 20
WS_PHIQ = 0
WS_PART = 4 * MB
WS_KVA = 6 * MB
WS_ZA = 6 * MB + 32768
WS_ST2 = 6 * MB + 524288
WS_H = 7 * MB
WS_R = 9 * MB
WS_SIZE = 16 * MB
L2E = '0x3fb8aa3b'
NL2E = '0xbfb8aa3b'


def vr(b, n):
    return 'v[%d:%d]' % (b, b + n - 1)


def srd(a, s, koff, size):
    a('s_load_dwordx2 s[%d:%d], s[0:1], %d' % (s, s + 1, koff))


def srd_fin(a, s, size):
    a('s_and_b32 s%d, s%d, 0xffff' % (s + 1, s + 1))
    a('s_mov_b32 s%d, 0x%x' % (s + 2, size))
    a('s_mov_b32 s%d, 0x00020000' % (s + 3))


def bf16r(a, d, s):
    a('v_cvt_pk_bf16_f32 v%d, v%d, v%d' % (d, s, s))
    a('v_lshlrev_b32 v%d, 16, v%d' % (d, d))


def butterfly(a, items):
    for sw in ('v_permlane16_swap_b32', 'v_permlane32_swap_b32'):
        for (op, r, t) in items:
            a('v_mov_b32 v%d, v%d' % (t, r))
        for (op, r, t) in items:
            a('%s v%d, v%d' % (sw, r, t))
        for (op, r, t) in items:
            a('%s v%d, v%d, v%d' % (op, r, r, t))


STAMP = os.environ.get('STAMP')
WS_STAMP = 15 * MB


def stamp(a, i):
    if STAMP:
        a('s_memtime s[%d:%d]' % (40 + 2 * i, 41 + 2 * i))


def stamp_real(a, i):
    if STAMP:
        a('s_memrealtime s[%d:%d]' % (40 + 2 * i, 41 + 2 * i))


def stamp_store(a, kidx, n, srd=16):
    if not STAMP:
        return
    a('s_waitcnt lgkmcnt(0)')
    a('s_lshl_b32 s38, s2, 3')
    a('s_add_u32 s38, s38, s20')
    a('s_lshl_b32 s38, s38, 6')
    a('s_add_u32 s38, s38, 0x%x' % (WS_STAMP + kidx * 131072))
    a('v_mov_b32 v0, 0')
    for i in range(n):
        a('v_mov_b32 v1, s%d' % (40 + 2 * i))
        a('buffer_store_dword v1, v0, s[%d:%d], s38 offen offset:%d' % (srd, srd + 3, i * 4))


def kernel_head(a, name):
    a.raw('.globl %s' % name)
    a.raw('.p2align 8')
    a.raw('.type %s,@function' % name)
    a.label(name)
    a.hist = []


def lane_decomp(a):
    a('v_and_b32 v1, 63, v0')
    a('v_lshrrev_b32 v6, 6, v0')
    a('v_lshrrev_b32 v2, 4, v1')
    a('v_and_b32 v3, 15, v1')
    a('v_readfirstlane_b32 s20, v6')
    a('v_bfe_u32 v4, v1, 2, 2')
    a('v_and_b32 v5, 3, v1')


AF = 64
BUF = (128, 156)
ACC = 184
RS, GR, CSA = 208, 212, 216
ONES = 16
ASLOT = 98304


def gemm96_main(a, mode, wstride, seg_off, extra_loads):
    k1 = mode == 'k1'
    a('s_lshl_b32 s23, s20, 4')
    a('s_add_u32 s24, s21, s23')
    a('v_lshrrev_b32 v7, 2, v1')
    a('v_add_u32 v7, s23, v7')
    a('v_mul_u32_u24 v7, 0x%x, v7' % wstride)
    a('v_bfe_u32 v15, v1, %d, 1' % (5 if k1 else 4))
    a('v_lshlrev_b32 v15, 1, v15')
    a('v_xor_b32 v15, v15, v5')
    a('v_lshl_add_u32 v7, v15, 4, v7')
    a('v_add_u32 v7, s22, v7')
    a('s_lshl_b32 s25, s20, 10')
    a('s_lshl_b32 s35, s20, 13')
    a('s_add_u32 s35, s35, 0x%x' % ASLOT)
    if k1:
        for j in range(4):
            a('v_add_u32 v15, %d, v2' % (4 * j))
            a('v_xor_b32 v%d, v15, v3' % (36 + j))
            a('v_add_u32 v15, s24, v15')
            a('v_lshlrev_b32 v15, 10, v15')
            a('v_lshl_add_u32 v%d, v%d, 4, v15' % (36 + j, 36 + j))
    else:
        a('s_lshl_b32 s36, s24, 10')
        a('v_lshlrev_b32 v6, 4, v1')
        a('v_add_u32 v6, s36, v6')

    def bdma(c):
        for seg in range(3):
            a('s_add_u32 m0, s25, 0x%x' % (c * 24576 + seg * 8192))
            a('s_mov_b32 s30, 0x%x' % (c * 128 * wstride + seg * seg_off))
            q = a('buffer_load_dwordx4 v7, s[8:11], s30 offen lds')
        return q

    def aload(c):
        if k1:
            for j in range(4):
                a('s_add_u32 m0, s35, 0x%x' % ((c & 1) * 4096 + j * 1024))
                a('s_mov_b32 s30, 0x%x' % (c * 256))
                q = a('buffer_load_dwordx4 v%d, s[4:7], s30 offen lds' % (36 + j))
        else:
            for ks in range(4 * c, 4 * c + 4):
                a('s_mov_b32 s30, 0x%x' % (ks * 1024))
                q = a('buffer_load_dwordx4 %s, v6, s[4:7], s30 offen' % vr(AF + 4 * ks, 4))
        return q

    last = {}
    bdma(0)
    last[0] = aload(0)
    a('s_barrier')
    bdma(1)
    last[1] = aload(1)
    a('s_barrier')
    bdma(2)
    if not k1:
        last[2] = aload(2)
    bdma(3)
    if not k1:
        last[3] = aload(3)
    extra_loads(a)
    a('v_lshl_add_u32 v8, v2, %d, v4' % (3 if k1 else 2))
    a('v_lshlrev_b32 v8, 6, v8')
    a('v_lshl_add_u32 v8, v5, 3, v8')
    a('v_and_b32 v15, 1, v2')
    a('v_lshlrev_b32 v15, 5, v15')
    a('v_xor_b32 v9, 32, v15')
    a('v_add_u32 v9, v8, v9')
    a('v_add_u32 v8, v8, v15')
    a('v_add_u32 v10, 0xc000, v8')
    a('v_add_u32 v11, 0xc000, v9')
    a('s_sub_u32 s26, s20, 6')
    a('s_cmp_lt_u32 s20, 6')
    a('s_cselect_b32 s26, s20, s26')
    a('s_lshr_b32 s27, s26, 1')
    a('s_lshl_b32 s27, s27, 13')
    a('s_and_b32 s28, s26, 1')
    a('s_cmp_eq_u32 s28, 0')
    a('s_cselect_b64 s[28:29], -1, 0')
    a('v_cndmask_b32 v12, v9, v8, s[28:29]')
    a('v_add_u32 v12, s27, v12')
    a('v_add_u32 v13, 0xc000, v12')
    for i in range(4):
        a('v_mov_b32 v%d, 0x3f803f80' % (ONES + i))
    if k1:
        for kk in range(4):
            a('v_add_u32 v15, %d, v2' % (4 * kk))
            a('v_xor_b32 v15, v15, v3')
            a('v_lshlrev_b32 v15, 4, v15')
            a('v_lshl_add_u32 v15, v3, 8, v15')
            a('v_add_u32 v%d, s35, v15' % (40 + kk))
    eoff = 256 if k1 else 1024
    nrd = 15 if k1 else 14

    def afrag(ks):
        return (44 + 4 * (ks & 1)) if k1 else (AF + 4 * ks)

    def reads(ks):
        b = BUF[ks & 1]
        c = ks >> 2
        base = (8, 9) if c < 2 else (10, 11)
        if k1:
            a('ds_read_b128 %s, v%d offset:%d' % (vr(afrag(ks), 4), 40 + (ks & 3), (c & 1) * 4096))
        for t in range(6):
            seg, half = t >> 1, t & 1
            off = (c & 1) * 24576 + seg * 8192 + (ks & 3) * 2048
            for e in range(2):
                a('ds_read_b64_tr_b16 %s, v%d offset:%d' % (vr(b + 4 * t + 2 * e, 2), base[half], off + e * eoff))
        off = (c & 1) * 24576 + (ks & 3) * 2048
        for e in range(2):
            a('ds_read_b64_tr_b16 %s, v%d offset:%d' % (vr(b + 24 + 2 * e, 2), 12 if c < 2 else 13, off + e * eoff))

    stamp(a, 2)
    a.wait_vm(last[0])
    a('s_barrier')
    stamp(a, 3)
    reads(0)
    for ks in range(16):
        if k1 and ks in (4, 8):
            last[ks // 4 + 1] = aload(ks // 4 + 1)
        if ks + 1 < 16:
            if (ks + 1) % 4 == 0:
                a.wait_vm(last[(ks + 1) // 4])
                a('s_barrier')
                stamp(a, 3 + (ks + 1) // 4)
            reads(ks + 1)
            a('s_waitcnt lgkmcnt(%d)' % nrd)
        else:
            a('s_waitcnt lgkmcnt(0)')
        b = BUF[ks & 1]
        af = afrag(ks)

        def cop(r):
            return '0' if ks == 0 else vr(r, 4)
        for t in range(6):
            a('v_mfma_f32_16x16x32_bf16 %s, %s, %s, %s' % (vr(ACC + 4 * t, 4), vr(b + 4 * t, 4), vr(af, 4), cop(ACC + 4 * t)))
        a('v_mfma_f32_16x16x32_bf16 %s, %s, %s, %s' % (vr(CSA, 4), vr(b + 24, 4), vr(ONES, 4), cop(CSA)))
        if k1:
            a('v_mfma_f32_16x16x32_bf16 %s, %s, %s, %s' % (vr(RS, 4), vr(ONES, 4), vr(af, 4), cop(RS)))
            a('v_mfma_f32_16x16x32_bf16 %s, %s, %s, %s' % (vr(GR, 4), vr(af, 4), vr(af, 4), cop(GR)))
    stamp(a, 7)
    a('v_lshlrev_b32 v15, 4, v2')
    a('v_add_u32 v14, s35, v15')
    a('ds_write_b128 v14, %s' % vr(CSA, 4))
    SUM, SQ = 64, 65
    if k1:
        a('v_cmp_eq_u32 vcc, 1, v5')
        a('v_cndmask_b32 v%d, v%d, v%d, vcc' % (SQ, GR, GR + 1))
        a('v_cmp_eq_u32 vcc, 2, v5')
        a('v_cndmask_b32 v%d, v%d, v%d, vcc' % (SQ, SQ, GR + 2))
        a('v_cmp_eq_u32 vcc, 3, v5')
        a('v_cndmask_b32 v%d, v%d, v%d, vcc' % (SQ, SQ, GR + 3))
        a('v_cmp_eq_u32 vcc, v2, v4')
        a('v_cndmask_b32 v%d, 0, v%d, vcc' % (SQ, SQ))
        a('v_mov_b32 v%d, v%d' % (SUM, RS))
        butterfly(a, [('v_add_f32', SQ, 68)])
    else:
        a('s_waitcnt vmcnt(0)')
        a('v_add_f32 v%d, v60, v62' % SUM)
        a('v_add_f32 v%d, v61, v63' % SQ)
        butterfly(a, [('v_add_f32', SUM, 67), ('v_add_f32', SQ, 68)])
    a('v_mul_f32 v70, 0x3b000000, v%d' % SUM)
    a('v_mul_f32 v71, 0x3b000000, v%d' % SQ)
    a('v_fma_f32 v71, -v70, v70, v71')
    a('v_max_f32 v71, 0, v71')
    bf16r(a, 72, 70)
    bf16r(a, 71, 71)
    a('v_add_f32 v71, 0x3727c5ac, v71')
    bf16r(a, 71, 71)
    a('v_sqrt_f32 v71, v71')
    bf16r(a, 71, 71)
    a('v_rcp_f32 v73, v71')
    a('v_add_u32 v15, 0x%x, v15' % ASLOT)
    a('s_waitcnt lgkmcnt(0)')
    a('s_barrier')
    for t in range(6):
        a('ds_read_b128 %s, v15 offset:%d' % (vr(76 + 4 * t, 4), t * 8192))
    for t in range(6):
        a('s_waitcnt lgkmcnt(%d)' % (5 - t))
        for r in range(4):
            a('v_fma_f32 v%d, -v72, v%d, v%d' % (ACC + 4 * t + r, 76 + 4 * t + r, ACC + 4 * t + r))
        for r in range(4):
            a('v_mul_f32 v%d, v73, v%d' % (ACC + 4 * t + r, ACC + 4 * t + r))


def gen_k1(a):
    kernel_head(a, 'k1_kernel')
    a('s_cmp_ge_u32 s2, 256')
    a('s_cbranch_scc1 k1_exit')
    stamp_real(a, 0)
    stamp(a, 1)
    srd(a, 4, 0, 0)
    srd(a, 8, 8, 0)
    srd(a, 12, 16, 0)
    srd(a, 16, 88, 0)
    lane_decomp(a)
    a('s_and_b32 s30, s2, 7')
    a('s_lshr_b32 s31, s2, 3')
    a('s_lshr_b32 s21, s30, 1')
    a('s_lshl_b32 s21, s21, 2')
    a('s_and_b32 s22, s31, 3')
    a('s_add_u32 s33, s21, s22')
    a('s_and_b32 s21, s30, 1')
    a('s_lshl_b32 s21, s21, 3')
    a('s_lshr_b32 s22, s31, 2')
    a('s_add_u32 s34, s21, s22')
    a('s_lshl_b32 s21, s33, 7')
    a('s_lshl_b32 s22, s34, 6')
    a('s_waitcnt lgkmcnt(0)')
    srd_fin(a, 4, 2048 * 1024)
    srd_fin(a, 8, 512 * 3072)
    srd_fin(a, 12, 16384)
    srd_fin(a, 16, WS_SIZE)

    def extra(a):
        a('v_lshlrev_b32 v22, 7, v2')
        a('v_lshl_add_u32 v22, v3, 1, v22')
        a('s_lshl_b32 s30, s34, 10')
        a('v_add_u32 v22, s30, v22')
        for hh in range(2):
            for j in range(4):
                a('buffer_load_ushort v%d, v22, s[12:15], 0 offen offset:%d' % (28 + 4 * hh + j, hh * 512 + j * 32))
        a('v_lshlrev_b32 v15, 2, v2')
        a('v_sub_u32 v15, v3, v15')
        a('v_mov_b32 v23, 0x3f80')
        a('v_mov_b32 v24, 0x3f800000')
        a('v_cmp_eq_u32 vcc, 0, v15')
        a('v_cndmask_b32 v20, 0, v23, vcc')
        a('v_cmp_eq_u32 vcc, 1, v15')
        a('v_cndmask_b32 v21, 0, v24, vcc')
        a('v_or_b32 v20, v20, v21')
        a('v_cmp_eq_u32 vcc, 2, v15')
        a('v_cndmask_b32 v21, 0, v23, vcc')
        a('v_cmp_eq_u32 vcc, 3, v15')
        a('v_cndmask_b32 v25, 0, v24, vcc')
        a('v_or_b32 v21, v21, v25')

    gemm96_main(a, 'k1', 3072, 1024, extra)
    for t in range(6):
        a('v_cvt_pk_bf16_f32 v%d, v%d, v%d' % (64 + 2 * t, ACC + 4 * t, ACC + 4 * t + 1))
        a('v_cvt_pk_bf16_f32 v%d, v%d, v%d' % (65 + 2 * t, ACC + 4 * t + 2, ACC + 4 * t + 3))
    stamp(a, 8)
    a('s_waitcnt vmcnt(0)')
    if os.environ.get('DBG1'):
        a('v_add_u32 v15, s24, v3')
        a('v_lshlrev_b32 v15, 11, v15')
        a('v_lshl_add_u32 v15, v2, 4, v15')
        a('s_lshl_b32 s30, s34, 7')
        for hh in range(2):
            a('buffer_store_dwordx4 %s, v15, s[16:19], s30 offen offset:%d' % (vr(64 + 4 * hh, 4), hh * 64))
        a('s_endpgm')
    for i in range(4):
        a('v_lshl_or_b32 v%d, v%d, 16, v%d' % (52 + i, 29 + 2 * i, 28 + 2 * i))
    PB = 80
    for s in range(4):
        a('v_mfma_f32_16x16x16_bf16 %s, %s, %s, 0' % (vr(PB + 4 * s, 4), vr(52 + 2 * (s & 1), 2), vr(64 + 2 * s, 2)))
    TV = 96
    for hh in range(2):
        a('v_mfma_f32_16x16x16_bf16 %s, %s, v[20:21], 0' % (vr(TV + 4 * hh, 4), vr(64 + 2 * (4 + hh), 2)))
    def T(s, i): return 104 + 16 * s + i
    for s in range(4):
        p = PB + 4 * s
        a('v_cvt_pk_bf16_f32 v%d, v%d, v%d' % (T(s, 2), p, p + 1))
        a('v_cvt_pk_bf16_f32 v%d, v%d, v%d' % (T(s, 3), p + 2, p + 3))
    for s in range(4):
        p = PB + 4 * s
        a('v_lshlrev_b32 v%d, 16, v%d' % (p, T(s, 2)))
        a('v_and_b32 v%d, 0xffff0000, v%d' % (p + 1, T(s, 2)))
        a('v_lshlrev_b32 v%d, 16, v%d' % (p + 2, T(s, 3)))
        a('v_and_b32 v%d, 0xffff0000, v%d' % (p + 3, T(s, 3)))
    for s in range(4):
        p = PB + 4 * s
        a('v_max3_f32 v%d, v%d, v%d, v%d' % (T(s, 0), p, p + 1, p + 2))
        a('v_min3_f32 v%d, v%d, v%d, v%d' % (T(s, 1), p, p + 1, p + 2))
        a('v_max_f32 v%d, v%d, v%d' % (T(s, 0), T(s, 0), p + 3))
        a('v_min_f32 v%d, v%d, v%d' % (T(s, 1), T(s, 1), p + 3))
    it = []
    for s in range(4):
        it += [('v_max_f32', T(s, 0), T(s, 2)), ('v_min_f32', T(s, 1), T(s, 3))]
    butterfly(a, it)
    for s in range(4):
        a('v_mul_f32 v%d, %s, v%d' % (T(s, 0), NL2E, T(s, 0)))
        a('v_mul_f32 v%d, %s, v%d' % (T(s, 1), L2E, T(s, 1)))
    a('v_mov_b32 v26, %s' % L2E)
    for s in range(4):
        p = PB + 4 * s
        for r in range(4):
            a('v_fma_f32 v%d, v%d, v26, v%d' % (T(s, 4 + r), p + r, T(s, 0)))
            a('v_fma_f32 v%d, -v%d, v26, v%d' % (T(s, 8 + r), p + r, T(s, 1)))
    for s in range(4):
        for r in range(8):
            a('v_exp_f32 v%d, v%d' % (T(s, 4 + r), T(s, 4 + r)))
    for s in range(4):
        a('v_add_f32 v%d, v%d, v%d' % (T(s, 0), T(s, 4), T(s, 5)))
        a('v_add_f32 v%d, v%d, v%d' % (T(s, 1), T(s, 8), T(s, 9)))
        a('v_add_f32 v%d, v%d, v%d' % (T(s, 2), T(s, 6), T(s, 7)))
        a('v_add_f32 v%d, v%d, v%d' % (T(s, 3), T(s, 10), T(s, 11)))
    for s in range(4):
        a('v_add_f32 v%d, v%d, v%d' % (T(s, 0), T(s, 0), T(s, 2)))
        a('v_add_f32 v%d, v%d, v%d' % (T(s, 1), T(s, 1), T(s, 3)))
    it = []
    for s in range(4):
        it += [('v_add_f32', T(s, 0), T(s, 2)), ('v_add_f32', T(s, 1), T(s, 3))]
    butterfly(a, it)
    for s in range(4):
        a('v_rcp_f32 v%d, v%d' % (T(s, 0), T(s, 0)))
        a('v_rcp_f32 v%d, v%d' % (T(s, 1), T(s, 1)))
    for s in range(4):
        for r in range(4):
            a('v_mul_f32 v%d, v%d, v%d' % (T(s, 4 + r), T(s, 0), T(s, 4 + r)))
            a('v_mul_f32 v%d, v%d, v%d' % (T(s, 8 + r), T(s, 1), T(s, 8 + r)))
    FB = 168
    for s in range(4):
        for i in range(4):
            a('v_cvt_pk_bf16_f32 v%d, v%d, v%d' % (FB + 4 * s + i, T(s, 4 + 2 * i), T(s, 5 + 2 * i)))
    a('v_lshlrev_b32 v15, 4, v1')
    a('s_lshl_b32 s30, s24, 11')
    a('s_lshl_b32 s31, s34, 11')
    a('s_add_u32 s30, s30, s31')
    for hh in range(2):
        a('buffer_store_dwordx4 %s, v15, s[16:19], s30 offen offset:%d' % (vr(FB + 4 * hh, 4), hh * 1024))
    for hh in range(2):
        for pm in range(2):
            a('v_mfma_f32_16x16x16_bf16 %s, %s, v[20:21], 0' % (vr(104 + 4 * (2 * hh + pm), 4), vr(FB + 4 * (2 + hh) + 2 * pm, 2)))
    for hh in range(2):
        a('v_cvt_pk_bf16_f32 v%d, v%d, v%d' % (120 + 2 * hh, TV + 4 * hh, TV + 4 * hh + 1))
        a('v_cvt_pk_bf16_f32 v%d, v%d, v%d' % (121 + 2 * hh, TV + 4 * hh + 2, TV + 4 * hh + 3))
    for i in range(4):
        a('v_cvt_pk_bf16_f32 v%d, v%d, v%d' % (124 + 2 * i, 104 + 4 * i, 105 + 4 * i))
        a('v_cvt_pk_bf16_f32 v%d, v%d, v%d' % (125 + 2 * i, 106 + 4 * i, 107 + 4 * i))
    for hh in range(2):
        for pm in range(2):
            a('v_mfma_f32_16x16x16_bf16 %s, %s, %s, 0' % (vr(132 + 4 * (hh * 4 + pm), 4), vr(124 + 2 * (2 * hh + pm), 2), vr(120 + 2 * hh, 2)))
            a('v_mfma_f32_16x16x16_bf16 %s, %s, v[16:17], 0' % (vr(132 + 4 * (hh * 4 + 2 + pm), 4), vr(124 + 2 * (2 * hh + pm), 2)))
    a('s_lshl_b32 s30, s20, 13')
    a('v_lshlrev_b32 v22, 4, v1')
    a('v_add_u32 v22, s30, v22')
    for i in range(8):
        a('ds_write_b128 v22, %s offset:%d' % (vr(132 + 4 * i, 4), i * 1024))
    a('v_lshlrev_b32 v23, 4, v0')
    a('s_waitcnt lgkmcnt(0)')
    a('s_barrier')
    for w in range(8):
        a('ds_read_b128 %s, v23 offset:%d' % (vr(64 + 4 * w, 4), w * 8192))
    for w in range(1, 8):
        a('s_waitcnt lgkmcnt(%d)' % (7 - w))
        for r in range(4):
            a('v_add_f32 v%d, v%d, v%d' % (64 + r, 64 + r, 64 + 4 * w + r))
    a('s_lshl_b32 s30, s33, 17')
    a('s_lshl_b32 s31, s34, 13')
    a('s_add_u32 s30, s30, s31')
    a('s_add_u32 s30, s30, 0x%x' % WS_PART)
    a('buffer_store_dwordx4 v[64:67], v23, s[16:19], s30 offen')
    stamp(a, 9)
    stamp_real(a, 10)
    stamp_store(a, 0, 11)
    a.label('k1_exit')
    a('s_endpgm')


def gen_kred(a):
    kernel_head(a, 'kred_kernel')
    a('s_cmp_ge_u32 s2, 128')
    a('s_cbranch_scc1 kred_exit')
    srd(a, 16, 88, 0)
    a('v_lshlrev_b32 v1, 4, v0')
    a('v_lshrrev_b32 v2, 4, v0')
    a('v_lshlrev_b32 v2, 4, v2')
    a('s_lshl_b32 s20, s2, 10')
    a('s_add_u32 s20, s20, 0x%x' % WS_PART)
    a('s_lshr_b32 s21, s2, 2')
    a('s_and_b32 s22, s2, 3')
    a('s_waitcnt lgkmcnt(0)')
    srd_fin(a, 16, WS_SIZE)
    seqs = []
    for rb in range(16):
        seqs.append(a('buffer_load_dwordx4 %s, v1, s[16:19], s20 offen' % vr(8 + 4 * rb, 4)))
        if rb < 15:
            a('s_add_u32 s20, s20, 0x20000')
    a('s_lshl_b32 s23, s21, 10')
    a('s_add_u32 s23, s23, 0x%x' % WS_KVA)
    a('s_lshl_b32 s24, s21, 6')
    a('s_add_u32 s24, s24, 0x%x' % WS_ZA)
    a('s_cmp_lt_u32 s22, 2')
    a('s_cselect_b32 s23, s23, s24')
    a('s_cselect_b64 s[26:27], -1, 0')
    a('s_and_b32 s25, s22, 1')
    a('s_lshl_b32 s25, s25, 3')
    a('s_add_u32 s23, s23, s25')
    a('v_cndmask_b32 v3, v2, v1, s[26:27]')
    for rb in range(1, 16):
        a.wait_vm(seqs[rb])
        for r in range(4):
            a('v_add_f32 v%d, v%d, v%d' % (8 + r, 8 + r, 8 + 4 * rb + r))
    a('v_cvt_pk_bf16_f32 v4, v8, v9')
    a('v_cvt_pk_bf16_f32 v5, v10, v11')
    a('buffer_store_dwordx2 v[4:5], v3, s[16:19], s23 offen')
    a.label('kred_exit')
    a('s_endpgm')


def gen_k2(a):
    kernel_head(a, 'k2_kernel')
    a('s_cmp_ge_u32 s2, 256')
    a('s_cbranch_scc1 k2_exit')
    srd(a, 4, 0, 0)
    srd(a, 8, 24, 0)
    srd(a, 16, 88, 0)
    lane_decomp(a)
    a('s_and_b32 s30, s2, 7')
    a('s_lshr_b32 s31, s2, 3')
    a('s_lshl_b32 s21, s30, 2')
    a('s_and_b32 s22, s31, 3')
    a('s_add_u32 s21, s21, s22')
    a('s_lshr_b32 s22, s31, 2')
    a('s_lshl_b32 s21, s21, 6')
    a('s_lshl_b32 s23, s20, 4')
    a('s_add_u32 s24, s21, s23')
    a('s_lshl_b32 s22, s22, 7')
    a('s_waitcnt lgkmcnt(0)')
    srd_fin(a, 4, 2048 * 1024)
    srd_fin(a, 8, 512 * 1024)
    srd_fin(a, 16, WS_SIZE)
    PQ = 64
    XR = 192
    AC = 200
    WB = (216, 232)
    a('v_lshlrev_b32 v6, 4, v1')
    a('s_lshl_b32 s25, s20, 13')
    for i in range(8):
        a('s_add_u32 m0, s25, 0x%x' % (65536 + i * 1024))
        a('s_add_u32 s30, s25, 0x%x' % (WS_KVA + i * 1024))
        a('buffer_load_dwordx4 v6, s[16:19], s30 offen lds')
    a('s_and_b32 s26, s20, 1')
    a('s_lshl_b32 s26, s26, 10')
    a('s_add_u32 m0, s26, 0x%x' % 98304)
    a('s_add_u32 s30, s26, 0x%x' % WS_ZA)
    q_kv = a('buffer_load_dwordx4 v6, s[16:19], s30 offen lds')
    a('s_lshl_b32 s30, s24, 11')
    a('v_add_u32 v7, s30, v6')
    a('v_lshrrev_b32 v8, 3, v1')
    a('v_bfe_u32 v9, v1, 1, 2')
    a('v_bfe_u32 v10, v1, 4, 2')
    a('v_xor_b32 v9, v9, v10')
    a('v_and_b32 v10, 1, v1')
    a('v_lshlrev_b32 v10, 4, v10')
    a('v_lshl_add_u32 v9, v9, 5, v10')
    a('s_lshl_b32 s27, s20, 3')
    a('v_add_u32 v8, s27, v8')
    a('v_lshl_add_u32 v8, v8, 10, v9')
    a('v_add_u32 v8, s22, v8')
    a('s_lshl_b32 s25, s20, 10')
    q_pq = []
    for t in range(16):
        a('s_mov_b32 s30, 0x%x' % (t * 2048))
        a('buffer_load_dwordx4 %s, v7, s[16:19], s30 offen' % (vr(PQ + 8 * t, 4)))
        q_pq.append(a('buffer_load_dwordx4 %s, v7, s[16:19], s30 offen offset:1024' % (vr(PQ + 8 * t + 4, 4))))
        a('s_add_u32 m0, s25, 0x%x' % (t * 4096))
        a('s_mov_b32 s30, 0x%x' % (t * 32768))
        q_wo = a('buffer_load_dwordx4 v8, s[8:11], s30 offen lds')
    a('v_add_u32 v11, s24, v3')
    a('v_lshlrev_b32 v11, 10, v11')
    a('v_lshl_add_u32 v11, v2, 3, v11')
    a('v_add_u32 v11, s22, v11')
    for nt in range(4):
        q_x = a('buffer_load_dwordx2 %s, v11, s[4:7], 0 offen offset:%d' % (vr(XR + 2 * nt, 2), nt * 32))
    a('v_add_u32 v12, 0x10000, v6')
    a('v_lshlrev_b32 v13, 4, v2')
    a('v_add_u32 v13, 0x18000, v13')
    TB = 250
    a('v_lshl_add_u32 v14, v2, 2, v4')
    a('v_lshlrev_b32 v14, 7, v14')
    a('v_lshl_add_u32 v14, v5, 3, v14')
    a('v_and_b32 v15, 1, v2')
    a('v_lshlrev_b32 v15, 1, v15')
    a('v_lshrrev_b32 v48, 1, v4')
    a('v_or_b32 v15, v15, v48')
    for nt in range(4):
        a('v_xor_b32 v48, %d, v15' % nt)
        a('v_lshl_add_u32 v%d, v48, 5, v14' % (TB + nt))
    KZ = (16, 32)
    ND = (216, 232)

    def reads1(t):
        b = KZ[t & 1]
        for hh in range(2):
            h = 2 * t + hh
            a('ds_read_b128 %s, v12 offset:%d' % (vr(b + 8 * hh, 4), h * 1024))
            a('ds_read_b128 %s, v13 offset:%d' % (vr(b + 8 * hh + 4, 4), h * 64))

    def valu1(t):
        nd = ND[t & 1]
        for hh in range(2):
            n = nd + 8 * hh
            d = n + 4
            T = 48 + 8 * hh
            a('v_cvt_pk_bf16_f32 v%d, v%d, v%d' % (T, d, d))
            a('v_cvt_pk_bf16_f32 v%d, v%d, v%d' % (T + 1, n, n + 1))
            a('v_cvt_pk_bf16_f32 v%d, v%d, v%d' % (T + 2, n + 2, n + 3))
            a('v_lshlrev_b32 v%d, 16, v%d' % (T, T))
            a('v_add_f32 v%d, 0x358637bd, v%d' % (T, T))
            a('v_cvt_pk_bf16_f32 v%d, v%d, v%d' % (T, T, T))
            a('v_lshlrev_b32 v%d, 16, v%d' % (T, T))
            a('v_rcp_f32 v%d, v%d' % (T, T))
            a('v_lshlrev_b32 v%d, 16, v%d' % (T + 3, T + 1))
            a('v_and_b32 v%d, 0xffff0000, v%d' % (T + 4, T + 1))
            a('v_lshlrev_b32 v%d, 16, v%d' % (T + 5, T + 2))
            a('v_and_b32 v%d, 0xffff0000, v%d' % (T + 6, T + 2))
            for i in range(4):
                a('v_mul_f32 v%d, v%d, v%d' % (T + 3 + i, T, T + 3 + i))
            a('v_cvt_pk_bf16_f32 v%d, v%d, v%d' % (PQ + 8 * t + 2 * hh, T + 3, T + 4))
            a('v_cvt_pk_bf16_f32 v%d, v%d, v%d' % (PQ + 8 * t + 2 * hh + 1, T + 5, T + 6))

    a.wait_vm(q_kv)
    a('s_barrier')
    reads1(0)
    for t in range(16):
        if t + 1 < 16:
            reads1(t + 1)
            a('s_waitcnt lgkmcnt(4)')
        else:
            a('s_waitcnt lgkmcnt(0)')
        a.wait_vm(q_pq[t])
        b = KZ[t & 1]
        nd = ND[t & 1]
        for hh in range(2):
            a('v_mfma_f32_16x16x32_bf16 %s, %s, %s, 0' % (vr(nd + 8 * hh, 4), vr(b + 8 * hh, 4), vr(PQ + 8 * t + 4 * hh, 4)))
            a('v_mfma_f32_16x16x32_bf16 %s, %s, %s, 0' % (vr(nd + 8 * hh + 4, 4), vr(b + 8 * hh + 4, 4), vr(PQ + 8 * t + 4 * hh, 4)))
        if t > 0:
            valu1(t - 1)
    valu1(15)
    a.wait_vm(q_wo)
    a('s_barrier')

    def reads2(t):
        b = WB[t & 1]
        for nt in range(4):
            for e in range(2):
                a('ds_read_b64_tr_b16 %s, v%d offset:%d' % (vr(b + 4 * nt + 2 * e, 2), TB + nt, t * 4096 + e * 2048))
    reads2(0)
    for t in range(16):
        if t + 1 < 16:
            reads2(t + 1)
            a('s_waitcnt lgkmcnt(8)')
        else:
            a('s_waitcnt lgkmcnt(0)')
        b = WB[t & 1]
        for nt in range(4):
            c_op = '0' if t == 0 else vr(AC + 4 * nt, 4)
            a('v_mfma_f32_16x16x32_bf16 %s, %s, %s, %s' % (vr(AC + 4 * nt, 4), vr(b + 4 * nt, 4), vr(PQ + 8 * t, 4), c_op))
    a.wait_vm(q_x)
    a('s_lshl_b32 s30, s24, 10')
    a('s_lshl_b32 s31, s22, 4')
    a('s_add_u32 s30, s30, s31')
    a('s_add_u32 s30, s30, 0x%x' % WS_H)
    OUTR = 56
    S1, S2 = 54, 55
    for nt in range(4):
        ac = AC + 4 * nt
        T = 16 + 8 * nt
        O = OUTR + 2 * nt
        a('v_cvt_pk_bf16_f32 v%d, v%d, v%d' % (T, ac, ac + 1))
        a('v_cvt_pk_bf16_f32 v%d, v%d, v%d' % (T + 1, ac + 2, ac + 3))
        a('v_lshlrev_b32 v%d, 16, v%d' % (T + 2, T))
        a('v_and_b32 v%d, 0xffff0000, v%d' % (T + 3, T))
        a('v_lshlrev_b32 v%d, 16, v%d' % (T + 4, T + 1))
        a('v_and_b32 v%d, 0xffff0000, v%d' % (T + 5, T + 1))
        x = XR + 2 * nt
        a('v_lshlrev_b32 v%d, 16, v%d' % (T + 6, x))
        a('v_and_b32 v%d, 0xffff0000, v%d' % (T + 7, x))
        a('v_add_f32 v%d, v%d, v%d' % (T + 2, T + 2, T + 6))
        a('v_add_f32 v%d, v%d, v%d' % (T + 3, T + 3, T + 7))
        a('v_lshlrev_b32 v%d, 16, v%d' % (T + 6, x + 1))
        a('v_and_b32 v%d, 0xffff0000, v%d' % (T + 7, x + 1))
        a('v_add_f32 v%d, v%d, v%d' % (T + 4, T + 4, T + 6))
        a('v_add_f32 v%d, v%d, v%d' % (T + 5, T + 5, T + 7))
        a('v_cvt_pk_bf16_f32 v%d, v%d, v%d' % (O, T + 2, T + 3))
        a('v_cvt_pk_bf16_f32 v%d, v%d, v%d' % (O + 1, T + 4, T + 5))
        if nt & 1:
            a('buffer_store_dwordx4 %s, v6, s[16:19], s30 offen offset:%d' % (vr(O - 2, 4), (nt >> 1) * 1024))
        a('v_lshlrev_b32 v%d, 16, v%d' % (T + 2, O))
        a('v_and_b32 v%d, 0xffff0000, v%d' % (T + 3, O))
        a('v_lshlrev_b32 v%d, 16, v%d' % (T + 4, O + 1))
        a('v_and_b32 v%d, 0xffff0000, v%d' % (T + 5, O + 1))
        for i in range(4):
            if nt == 0 and i == 0:
                a('v_mov_b32 v%d, v%d' % (S1, T + 2))
                a('v_mul_f32 v%d, v%d, v%d' % (S2, T + 2, T + 2))
            else:
                a('v_add_f32 v%d, v%d, v%d' % (S1, S1, T + 2 + i))
                a('v_fma_f32 v%d, v%d, v%d, v%d' % (S2, T + 2 + i, T + 2 + i, S2))
    butterfly(a, [('v_add_f32', S1, 52), ('v_add_f32', S2, 53)])
    a('v_add_u32 v12, s24, v3')
    a('v_lshlrev_b32 v12, 6, v12')
    a('s_lshr_b32 s31, s22, 4')
    a('s_add_u32 s31, s31, 0x%x' % WS_ST2)
    a('buffer_store_dwordx2 v[54:55], v12, s[16:19], s31 offen')
    a.label('k2_exit')
    a('s_endpgm')


def gen_k3(a):
    kernel_head(a, 'k3_kernel')
    a('s_cmp_ge_u32 s2, 240')
    a('s_cbranch_scc1 k3_exit')
    srd(a, 4, 88, 0)
    srd(a, 8, 40, 0)
    srd(a, 12, 48, 0)
    srd(a, 16, 88, 0)
    lane_decomp(a)
    a('s_and_b32 s30, s2, 7')
    a('s_lshr_b32 s31, s2, 3')
    a('s_lshl_b32 s21, s30, 1')
    a('s_and_b32 s22, s31, 1')
    a('s_add_u32 s33, s21, s22')
    a('s_lshr_b32 s34, s31, 1')
    a('s_lshl_b32 s21, s33, 7')
    a('s_mul_i32 s22, s34, 192')
    a('s_waitcnt lgkmcnt(0)')
    a('s_add_u32 s4, s4, 0x%x' % WS_H)
    a('s_addc_u32 s5, s5, 0')
    srd_fin(a, 4, 2048 * 1024)
    srd_fin(a, 8, 512 * 2752)
    srd_fin(a, 12, 2752)
    srd_fin(a, 16, WS_SIZE)

    def extra(a):
        a('v_lshlrev_b32 v22, 3, v2')
        a('v_add_u32 v22, s22, v22')
        for t in range(6):
            a('buffer_load_dwordx2 %s, v22, s[12:15], 0 offen offset:%d' % (vr(28 + 2 * t, 2), t * 32))
        a('v_add_u32 v23, s24, v3')
        a('v_lshlrev_b32 v23, 6, v23')
        a('v_lshl_add_u32 v23, v2, 4, v23')
        a('s_mov_b32 s30, 0x%x' % WS_ST2)
        a('buffer_load_dwordx4 v[60:63], v23, s[16:19], s30 offen')

    gemm96_main(a, 'k3', 2752, 64, extra)
    a('v_lshlrev_b32 v15, 4, v1')
    a('s_lshr_b32 s30, s24, 4')
    a('s_mul_i32 s30, s30, 43')
    a('s_mul_i32 s31, s34, 3')
    a('s_add_u32 s30, s30, s31')
    a('s_lshl_b32 s30, s30, 10')
    a('s_add_u32 s30, s30, 0x%x' % WS_R)
    for t in range(6):
        if t == 2:
            a('s_cmp_eq_u32 s34, 14')
            a('s_cbranch_scc1 k3_exit')
        ac = ACC + 4 * t
        T = 64 + 8 * t
        b = 28 + 2 * t
        a('v_cvt_pk_bf16_f32 v%d, v%d, v%d' % (T, ac, ac + 1))
        a('v_cvt_pk_bf16_f32 v%d, v%d, v%d' % (T + 1, ac + 2, ac + 3))
        a('v_lshlrev_b32 v%d, 16, v%d' % (T + 2, T))
        a('v_and_b32 v%d, 0xffff0000, v%d' % (T + 3, T))
        a('v_lshlrev_b32 v%d, 16, v%d' % (T + 4, T + 1))
        a('v_and_b32 v%d, 0xffff0000, v%d' % (T + 5, T + 1))
        a('v_lshlrev_b32 v%d, 16, v%d' % (T + 6, b))
        a('v_and_b32 v%d, 0xffff0000, v%d' % (T + 7, b))
        a('v_add_f32 v%d, v%d, v%d' % (T + 2, T + 2, T + 6))
        a('v_add_f32 v%d, v%d, v%d' % (T + 3, T + 3, T + 7))
        a('v_lshlrev_b32 v%d, 16, v%d' % (T + 6, b + 1))
        a('v_and_b32 v%d, 0xffff0000, v%d' % (T + 7, b + 1))
        a('v_add_f32 v%d, v%d, v%d' % (T + 4, T + 4, T + 6))
        a('v_add_f32 v%d, v%d, v%d' % (T + 5, T + 5, T + 7))
        a('v_cvt_pk_bf16_f32 v%d, v%d, v%d' % (T, T + 2, T + 3))
        a('v_cvt_pk_bf16_f32 v%d, v%d, v%d' % (T + 1, T + 4, T + 5))
        a('v_lshlrev_b32 v%d, 16, v%d' % (T + 2, T))
        a('v_and_b32 v%d, 0xffff0000, v%d' % (T + 3, T))
        a('v_lshlrev_b32 v%d, 16, v%d' % (T + 4, T + 1))
        a('v_and_b32 v%d, 0xffff0000, v%d' % (T + 5, T + 1))
        for i in range(4):
            a('v_max_f32 v%d, 0, v%d' % (T + 2 + i, T + 2 + i))
        for i in range(4):
            a('v_mul_f32 v%d, v%d, v%d' % (T + 2 + i, T + 2 + i, T + 2 + i))
        O = 116 + 2 * t
        a('v_cvt_pk_bf16_f32 v%d, v%d, v%d' % (O, T + 2, T + 3))
        a('v_cvt_pk_bf16_f32 v%d, v%d, v%d' % (O + 1, T + 4, T + 5))
        if t & 1:
            a('buffer_store_dwordx4 %s, v15, s[16:19], s30 offen offset:%d' % (vr(O - 2, 4), (t >> 1) * 1024))
    a.label('k3_exit')
    a('s_endpgm')


def gen_k4(a):
    kernel_head(a, 'k4_kernel')
    a('s_cmp_ge_u32 s2, 256')
    a('s_cbranch_scc1 k4_exit')
    srd(a, 4, 72, 0)
    srd(a, 8, 56, 0)
    srd(a, 12, 64, 0)
    srd(a, 16, 88, 0)
    lane_decomp(a)
    a('s_and_b32 s30, s2, 7')
    a('s_lshr_b32 s31, s2, 3')
    a('s_lshl_b32 s21, s30, 2')
    a('s_and_b32 s22, s31, 3')
    a('s_add_u32 s21, s21, s22')
    a('s_lshr_b32 s22, s31, 2')
    a('s_lshl_b32 s21, s21, 6')
    a('s_lshl_b32 s23, s20, 4')
    a('s_add_u32 s24, s21, s23')
    a('s_lshl_b32 s22, s22, 7')
    a('s_waitcnt lgkmcnt(0)')
    srd_fin(a, 4, 2048 * 1024)
    srd_fin(a, 8, 1376 * 1024)
    srd_fin(a, 12, 1024)
    srd_fin(a, 16, WS_SIZE)
    AFR = 24
    WB = (196, 212)
    AC = 228
    TB = 244
    HR = 248
    BR = 16
    a('v_lshlrev_b32 v6, 4, v1')
    a('s_lshr_b32 s30, s24, 4')
    a('s_mul_i32 s30, s30, 43 * 1024')
    a('v_add_u32 v7, s30, v6')
    a('v_lshrrev_b32 v8, 3, v1')
    a('v_bfe_u32 v9, v1, 1, 2')
    a('v_bfe_u32 v10, v1, 4, 2')
    a('v_xor_b32 v9, v9, v10')
    a('v_and_b32 v10, 1, v1')
    a('v_lshlrev_b32 v10, 4, v10')
    a('v_lshl_add_u32 v9, v9, 5, v10')
    a('s_lshl_b32 s27, s20, 3')
    a('v_add_u32 v8, s27, v8')
    a('v_lshl_add_u32 v8, v8, 10, v9')
    a('v_add_u32 v8, s22, v8')
    a('s_lshl_b32 s25, s20, 10')
    a('s_mov_b32 s31, 0x%x' % WS_R)

    def dma(ks, slot_ks):
        a('s_add_u32 m0, s25, 0x%x' % (slot_ks * 4096))
        a('s_mov_b32 s30, 0x%x' % (ks * 32768))
        return a('buffer_load_dwordx4 v8, s[8:11], s30 offen lds')

    def aload(ks):
        a('s_mov_b32 s31, 0x%x' % (WS_R + ks * 1024))
        return a('buffer_load_dwordx4 %s, v7, s[16:19], s31 offen' % (vr(AFR + 4 * ks, 4)))

    q = {}

    def issue_chunk(c):
        n = 8 if c < 5 else 3
        for i in range(n):
            ks = 8 * c + i
            dma(ks, ks if c < 5 else i)
            q[c] = aload(ks)

    for c in range(3):
        issue_chunk(c)
    a('v_lshl_add_u32 v14, v2, 2, v4')
    a('v_lshlrev_b32 v14, 7, v14')
    a('v_lshl_add_u32 v14, v5, 3, v14')
    a('v_and_b32 v15, 1, v2')
    a('v_lshlrev_b32 v15, 1, v15')
    a('v_lshrrev_b32 v13, 1, v4')
    a('v_or_b32 v15, v15, v13')
    for nt in range(4):
        a('v_xor_b32 v13, %d, v15' % nt)
        a('v_lshl_add_u32 v%d, v13, 5, v14' % (TB + nt))
    cur_base = [0]

    def reads(ks):
        slot = ks if ks < 40 else ks - 40
        addr = slot * 4096
        want = (addr // 65536) * 65536
        if want != cur_base[0]:
            d = want - cur_base[0]
            for nt in range(4):
                if d > 0:
                    a('v_add_u32 v%d, 0x%x, v%d' % (TB + nt, d, TB + nt))
                else:
                    a('v_subrev_u32 v%d, 0x%x, v%d' % (TB + nt, -d, TB + nt))
            cur_base[0] = want
        b = WB[ks & 1]
        for nt in range(4):
            for e in range(2):
                a('ds_read_b64_tr_b16 %s, v%d offset:%d' % (vr(b + 4 * nt + 2 * e, 2), TB + nt, addr - want + e * 2048))

    a.wait_vm(q[0])
    a('s_barrier')
    reads(0)
    for ks in range(43):
        if ks == 4:
            issue_chunk(3)
        if ks == 12:
            issue_chunk(4)
        if ks == 20:
            a('v_add_u32 v11, s24, v3')
            a('v_lshlrev_b32 v11, 10, v11')
            a('v_lshl_add_u32 v11, v2, 3, v11')
            a('v_add_u32 v11, s22, v11')
            a('s_lshl_b32 s30, s24, 10')
            a('s_lshl_b32 s31, s22, 4')
            a('s_add_u32 s30, s30, s31')
            a('s_add_u32 s30, s30, 0x%x' % WS_H)
            for j in range(2):
                a('buffer_load_dwordx4 %s, v6, s[16:19], s30 offen offset:%d' % (vr(HR + 4 * j, 4), j * 1024))
            a('v_lshlrev_b32 v12, 3, v2')
            a('v_add_u32 v12, s22, v12')
            for nt in range(4):
                q_e = a('buffer_load_dwordx2 %s, v12, s[12:15], 0 offen offset:%d' % (vr(BR + 2 * nt, 2), nt * 32))
        if ks + 1 < 43:
            if (ks + 1) % 8 == 0:
                a.wait_vm(q[(ks + 1) // 8])
                a('s_barrier')
                if ks + 1 == 16:
                    issue_chunk(5)
            reads(ks + 1)
            a('s_waitcnt lgkmcnt(8)')
        else:
            a('s_waitcnt lgkmcnt(0)')
        b = WB[ks & 1]
        for nt in range(4):
            c_op = '0' if ks == 0 else vr(AC + 4 * nt, 4)
            a('v_mfma_f32_16x16x32_bf16 %s, %s, %s, %s' % (vr(AC + 4 * nt, 4), vr(b + 4 * nt, 4), vr(AFR + 4 * ks, 4), c_op))
    a('s_waitcnt vmcnt(0)')
    for nt in range(4):
        ac = AC + 4 * nt
        T = 24 + 8 * nt
        b = BR + 2 * nt
        x = HR + 2 * nt
        a('v_cvt_pk_bf16_f32 v%d, v%d, v%d' % (T, ac, ac + 1))
        a('v_cvt_pk_bf16_f32 v%d, v%d, v%d' % (T + 1, ac + 2, ac + 3))
        for (src) in (b, x):
            a('v_lshlrev_b32 v%d, 16, v%d' % (T + 2, T))
            a('v_and_b32 v%d, 0xffff0000, v%d' % (T + 3, T))
            a('v_lshlrev_b32 v%d, 16, v%d' % (T + 4, T + 1))
            a('v_and_b32 v%d, 0xffff0000, v%d' % (T + 5, T + 1))
            a('v_lshlrev_b32 v%d, 16, v%d' % (T + 6, src))
            a('v_and_b32 v%d, 0xffff0000, v%d' % (T + 7, src))
            a('v_add_f32 v%d, v%d, v%d' % (T + 2, T + 2, T + 6))
            a('v_add_f32 v%d, v%d, v%d' % (T + 3, T + 3, T + 7))
            a('v_lshlrev_b32 v%d, 16, v%d' % (T + 6, src + 1))
            a('v_and_b32 v%d, 0xffff0000, v%d' % (T + 7, src + 1))
            a('v_add_f32 v%d, v%d, v%d' % (T + 4, T + 4, T + 6))
            a('v_add_f32 v%d, v%d, v%d' % (T + 5, T + 5, T + 7))
            a('v_cvt_pk_bf16_f32 v%d, v%d, v%d' % (T, T + 2, T + 3))
            a('v_cvt_pk_bf16_f32 v%d, v%d, v%d' % (T + 1, T + 4, T + 5))
        a('buffer_store_dwordx2 %s, v11, s[4:7], 0 offen offset:%d' % (vr(T, 2), nt * 32))
    a.label('k4_exit')
    a('s_endpgm')


def desc(name, vgpr, sgpr=64):
    return '''.amdhsa_kernel %s
  .amdhsa_next_free_vgpr %d
  .amdhsa_next_free_sgpr %d
  .amdhsa_accum_offset %d
  .amdhsa_group_segment_fixed_size 0
  .amdhsa_kernarg_size 96
  .amdhsa_user_sgpr_count 2
  .amdhsa_user_sgpr_kernarg_segment_ptr 1
  .amdhsa_system_sgpr_workgroup_id_x 1
.end_amdhsa_kernel
''' % (name, vgpr, sgpr, vgpr)


KERNELS = [
    ('k1_kernel', gen_k1, 256, 512, 163840, 224),
    ('kred_kernel', gen_kred, 128, 64, 0, 72),
    ('k2_kernel', gen_k2, 256, 256, 100352, 256),
    ('k3_kernel', gen_k3, 240, 512, 163840, 224),
    ('k4_kernel', gen_k4, 256, 256, 163840, 256),
]


def build(kernels):
    head = ''
    for (n, g, grid, block, lds, v) in kernels:
        head += '; @launch kernel=%s grid=(%d,1,1) block=(%d,1,1) lds=%d\n' % (n, grid, block, lds)
    head += '.amdgcn_target "amdgcn-amd-amdhsa--gfx950"\n.text\n'
    a = Asm()
    seen = set()
    for (n, g, grid, block, lds, v) in kernels:
        if n in seen:
            continue
        seen.add(n)
        a.vm_issued = 0
        g(a)
    d = '.section .rodata,"a"\n.p2align 6\n'
    seen = set()
    for (n, g, grid, block, lds, v) in kernels:
        if n in seen:
            continue
        seen.add(n)
        d += desc(n, v)
    return head + a.text() + d


if __name__ == '__main__':
    out = sys.argv[1] if len(sys.argv) > 1 else 'cur.s'
    open(out, 'w').write(build(KERNELS))
    print('wrote', out)
```

```python
import sys, os
sys.path.insert(0, os.path.dirname(__file__))
from dsl import Asm

MB = 1 << 20
WS_PHIQ = 0
WS_PART = 4 * MB
WS_KVA = 6 * MB
WS_ZA = 6 * MB + 32768
WS_ST2 = 6 * MB + 524288
WS_H = 7 * MB
WS_R = 9 * MB
WS_SIZE = 16 * MB
L2E = '0x3fb8aa3b'
NL2E = '0xbfb8aa3b'


def vr(b, n):
    return 'v[%d:%d]' % (b, b + n - 1)


def srd(a, s, koff, size):
    a('s_load_dwordx2 s[%d:%d], s[0:1], %d' % (s, s + 1, koff))


def srd_fin(a, s, size):
    a('s_and_b32 s%d, s%d, 0xffff' % (s + 1, s + 1))
    a('s_mov_b32 s%d, 0x%x' % (s + 2, size))
    a('s_mov_b32 s%d, 0x00020000' % (s + 3))


def bf16r(a, d, s):
    a('v_cvt_pk_bf16_f32 v%d, v%d, v%d' % (d, s, s))
    a('v_lshlrev_b32 v%d, 16, v%d' % (d, d))


def butterfly(a, items):
    for sw in ('v_permlane16_swap_b32', 'v_permlane32_swap_b32'):
        for (op, r, t) in items:
            a('v_mov_b32 v%d, v%d' % (t, r))
        for (op, r, t) in items:
            a('%s v%d, v%d' % (sw, r, t))
        for (op, r, t) in items:
            a('%s v%d, v%d, v%d' % (op, r, r, t))


STAMP = os.environ.get('STAMP')
WS_STAMP = 15 * MB


def stamp(a, i):
    if STAMP:
        a('s_memtime s[%d:%d]' % (40 + 2 * i, 41 + 2 * i))


def stamp_real(a, i):
    if STAMP:
        a('s_memrealtime s[%d:%d]' % (40 + 2 * i, 41 + 2 * i))


def stamp_store(a, kidx, n, srd=16):
    if not STAMP:
        return
    a('s_waitcnt lgkmcnt(0)')
    a('s_lshl_b32 s38, s2, 3')
    a('s_add_u32 s38, s38, s20')
    a('s_lshl_b32 s38, s38, 6')
    a('s_add_u32 s38, s38, 0x%x' % (WS_STAMP + kidx * 131072))
    a('v_mov_b32 v0, 0')
    for i in range(n):
        a('v_mov_b32 v1, s%d' % (40 + 2 * i))
        a('buffer_store_dword v1, v0, s[%d:%d], s38 offen offset:%d' % (srd, srd + 3, i * 4))


def kernel_head(a, name):
    a.raw('.globl %s' % name)
    a.raw('.p2align 8')
    a.raw('.type %s,@function' % name)
    a.label(name)
    a.hist = []


def lane_decomp(a):
    a('v_and_b32 v1, 63, v0')
    a('v_lshrrev_b32 v6, 6, v0')
    a('v_lshrrev_b32 v2, 4, v1')
    a('v_and_b32 v3, 15, v1')
    a('v_readfirstlane_b32 s20, v6')
    a('v_bfe_u32 v4, v1, 2, 2')
    a('v_and_b32 v5, 3, v1')


AFB = (48, 56)
BUF = (64, 80)
ACC = 96
RS, GR, CSA = 120, 124, 128
ONES = 16
ASLOT = 98304


def gemm96_producers(a, mode, name, wstride, seg_off):
    k1 = mode == 'k1'
    a.label(name + '_prod')
    a.hist = []
    a('s_cmp_eq_u32 s20, 9')
    a('s_cbranch_scc1 %s_prodA' % name)
    a.vm_issued = 0
    a('v_lshrrev_b32 v7, 2, v1')
    a('v_mul_u32_u24 v7, 0x%x, v7' % wstride)
    a('v_bfe_u32 v15, v1, %d, 1' % (5 if k1 else 4))
    a('v_lshlrev_b32 v15, 1, v15')
    a('v_xor_b32 v15, v15, v5')
    a('v_lshl_add_u32 v7, v15, 4, v7')
    a('v_add_u32 v7, s22, v7')
    last = {}

    def bchunk(c):
        for rg in range(8):
            for seg in range(3):
                a('s_mov_b32 m0, 0x%x' % (c * 24576 + seg * 8192 + rg * 1024))
                a('s_mov_b32 s30, 0x%x' % ((c * 128 + rg * 16) * wstride + seg * seg_off))
                last[c] = a('buffer_load_dwordx4 v7, s[8:11], s30 offen lds')
    bchunk(0)
    bchunk(1)
    for c in range(4):
        a.wait_vm(last[c])
        a('s_barrier')
        if c + 2 < 4:
            bchunk(c + 2)
    a('s_endpgm')
    a.label(name + '_prodA')
    a.hist = []
    a.vm_issued = 0
    if k1:
        for j in range(4):
            a('v_add_u32 v15, %d, v2' % (4 * j))
            a('v_xor_b32 v%d, v15, v3' % (36 + j))
            a('v_add_u32 v15, s21, v15')
            a('v_lshlrev_b32 v15, 10, v15')
            a('v_lshl_add_u32 v%d, v%d, 4, v15' % (36 + j, 36 + j))
    else:
        a('s_lshl_b32 s31, s21, 10')
        a('v_lshlrev_b32 v6, 4, v1')
        a('v_add_u32 v36, s31, v6')
    last = {}

    def achunk(c):
        for rt in range(8):
            if a.vm_issued - achunk.done >= 60:
                a('s_waitcnt vmcnt(40)')
                achunk.done = a.vm_issued - 40
            for j in range(4):
                a('s_mov_b32 m0, 0x%x' % (ASLOT + rt * 8192 + (c & 1) * 4096 + j * 1024))
                if k1:
                    a('s_mov_b32 s30, 0x%x' % (rt * 16384 + c * 256))
                    last[c] = a('buffer_load_dwordx4 v%d, s[4:7], s30 offen lds' % (36 + j))
                else:
                    a('s_mov_b32 s30, 0x%x' % (rt * 16384 + (4 * c + j) * 1024))
                    last[c] = a('buffer_load_dwordx4 v36, s[4:7], s30 offen lds')
    achunk.done = 0
    achunk(0)
    achunk(1)
    for c in range(4):
        a.wait_vm(last[c])
        achunk.done = last[c]
        a('s_barrier')
        if c >= 1 and c + 1 < 4:
            achunk(c + 1)
    if k1:
        a('v_lshlrev_b32 v22, 4, v1')
        a('s_mov_b32 m0, 0x%x' % (ASLOT + 1024))
        a('s_lshl_b32 s30, s34, 10')
        a('buffer_load_dwordx4 v22, s[12:15], s30 offen lds')
        a('s_waitcnt vmcnt(0)')
        a('s_barrier')
    a('s_endpgm')


def gemm96_main(a, mode, extra_loads):
    k1 = mode == 'k1'
    a('s_lshl_b32 s23, s20, 4')
    a('s_add_u32 s24, s21, s23')
    a('s_xor_b32 s37, s24, 16')
    a('s_and_b32 s36, s20, 1')
    a('s_lshl_b32 s35, s20, 13')
    a('s_add_u32 s35, s35, 0x%x' % ASLOT)
    a('s_xor_b32 s39, s35, 0x2000')
    a('v_lshlrev_b32 v6, 4, v1')
    extra_loads(a)
    a('v_lshl_add_u32 v8, v2, %d, v4' % (3 if k1 else 2))
    a('v_lshlrev_b32 v8, 6, v8')
    a('v_lshl_add_u32 v8, v5, 3, v8')
    a('v_and_b32 v15, 1, v2')
    a('v_lshlrev_b32 v15, 5, v15')
    a('s_sub_u32 s26, s20, 6')
    a('s_cmp_lt_u32 s20, 6')
    a('s_cselect_b32 s26, s20, s26')
    a('s_lshr_b32 s27, s26, 1')
    a('s_lshl_b32 s27, s27, 13')
    a('s_lshl_b32 s28, s36, 5')
    a('v_xor_b32 v15, s28, v15')
    a('v_add_u32 v8, v8, v15')
    a('v_add_u32 v10, 0xc000, v8')
    a('v_add_u32 v12, s27, v8')
    a('v_add_u32 v13, 0xc000, v12')
    for i in range(4):
        a('v_mov_b32 v%d, 0x3f803f80' % (ONES + i))
    if k1:
        for kk in range(4):
            a('v_add_u32 v15, %d, v2' % (4 * kk))
            a('v_xor_b32 v15, v15, v3')
            a('v_lshlrev_b32 v15, 4, v15')
            a('v_lshl_add_u32 v15, v3, 8, v15')
            a('v_add_u32 v%d, s35, v15' % (40 + kk))
            a('v_add_u32 v%d, s39, v15' % (44 + kk))
    else:
        a('v_add_u32 v40, s35, v6')
        a('v_add_u32 v44, s39, v6')
    eoff = 256 if k1 else 1024

    def reads(ks):
        b = BUF[ks & 1]
        af = AFB[ks & 1]
        c = ks >> 2
        for p in range(2):
            if k1:
                a('ds_read_b128 %s, v%d offset:%d' % (vr(af + 4 * p, 4), 40 + 4 * p + (ks & 3), (c & 1) * 4096))
            else:
                a('ds_read_b128 %s, v%d offset:%d' % (vr(af + 4 * p, 4), 40 + 4 * p, (c & 1) * 4096 + (ks & 3) * 1024))
        for seg in range(3):
            off = (c & 1) * 24576 + seg * 8192 + (ks & 3) * 2048
            for e in range(2):
                a('ds_read_b64_tr_b16 %s, v%d offset:%d' % (vr(b + 4 * seg + 2 * e, 2), 8 if c < 2 else 10, off + e * eoff))
        off = (c & 1) * 24576 + (ks & 3) * 2048
        for e in range(2):
            a('ds_read_b64_tr_b16 %s, v%d offset:%d' % (vr(b + 12 + 2 * e, 2), 12 if c < 2 else 13, off + e * eoff))

    stamp(a, 2)
    a('s_barrier')
    stamp(a, 3)
    reads(0)
    for ks in range(16):
        if ks + 1 < 16:
            if (ks + 1) % 4 == 0:
                c = (ks + 1) // 4
                a('s_waitcnt lgkmcnt(0)')
                a('s_barrier')
                stamp(a, 3 + c)
            reads(ks + 1)
            a('s_waitcnt lgkmcnt(10)')
        else:
            a('s_waitcnt lgkmcnt(0)')
        b = BUF[ks & 1]
        af = AFB[ks & 1]

        def cop(r):
            return '0' if ks == 0 else vr(r, 4)
        for p in range(2):
            for seg in range(3):
                ac = ACC + 4 * (3 * p + seg)
                a('v_mfma_f32_16x16x32_bf16 %s, %s, %s, %s' % (vr(ac, 4), vr(b + 4 * seg, 4), vr(af + 4 * p, 4), cop(ac)))
        a('v_mfma_f32_16x16x32_bf16 %s, %s, %s, %s' % (vr(CSA, 4), vr(b + 12, 4), vr(ONES, 4), cop(CSA)))
        if k1:
            a('v_mfma_f32_16x16x32_bf16 %s, %s, %s, %s' % (vr(RS, 4), vr(ONES, 4), vr(af, 4), cop(RS)))
            a('v_mfma_f32_16x16x32_bf16 %s, %s, %s, %s' % (vr(GR, 4), vr(af, 4), vr(af, 4), cop(GR)))
    stamp(a, 7)
    a('v_lshlrev_b32 v15, 4, v2')
    a('v_add_u32 v14, s35, v15')
    a('ds_write_b128 v14, %s' % vr(CSA, 4))

    def finish_stats(SUM, SQ, M, RD):
        a('v_mul_f32 v%d, 0x3b000000, v%d' % (SUM, SUM))
        a('v_mul_f32 v%d, 0x3b000000, v%d' % (SQ, SQ))
        a('v_fma_f32 v%d, -v%d, v%d, v%d' % (SQ, SUM, SUM, SQ))
        a('v_max_f32 v%d, 0, v%d' % (SQ, SQ))
        bf16r(a, M, SUM)
        bf16r(a, SQ, SQ)
        a('v_add_f32 v%d, 0x3727c5ac, v%d' % (SQ, SQ))
        bf16r(a, SQ, SQ)
        a('v_sqrt_f32 v%d, v%d' % (SQ, SQ))
        bf16r(a, SQ, SQ)
        a('v_rcp_f32 v%d, v%d' % (RD, SQ))

    if k1:
        SUM, SQ = 48, 49
        a('v_cmp_eq_u32 vcc, 1, v5')
        a('v_cndmask_b32 v%d, v%d, v%d, vcc' % (SQ, GR, GR + 1))
        a('v_cmp_eq_u32 vcc, 2, v5')
        a('v_cndmask_b32 v%d, v%d, v%d, vcc' % (SQ, SQ, GR + 2))
        a('v_cmp_eq_u32 vcc, 3, v5')
        a('v_cndmask_b32 v%d, v%d, v%d, vcc' % (SQ, SQ, GR + 3))
        a('v_cmp_eq_u32 vcc, v2, v4')
        a('v_cndmask_b32 v%d, 0, v%d, vcc' % (SQ, SQ))
        a('v_mov_b32 v%d, v%d' % (SUM, RS))
        butterfly(a, [('v_add_f32', SQ, 52)])
        finish_stats(SUM, SQ, 36, 37)
        a('v_lshlrev_b32 v50, 3, v3')
        a('v_add_u32 v51, s35, v50')
        a('ds_write_b64 v51, v[36:37] offset:256')
        a('v_add_u32 v51, s39, v50')
    else:
        a('s_waitcnt vmcnt(0)')
        a('v_add_f32 v48, v144, v146')
        a('v_add_f32 v49, v145, v147')
        a('v_add_f32 v50, v148, v150')
        a('v_add_f32 v51, v149, v151')
        butterfly(a, [('v_add_f32', 48, 52), ('v_add_f32', 49, 53), ('v_add_f32', 50, 54), ('v_add_f32', 51, 55)])
        finish_stats(48, 49, 36, 37)
        finish_stats(50, 51, 38, 39)
    a('s_lshl_b32 s27, s36, 13')
    a('s_add_u32 s27, s27, 0x%x' % ASLOT)
    a('v_add_u32 v15, s27, v15')
    a('s_waitcnt lgkmcnt(0)')
    a('s_barrier')
    if k1:
        a('ds_read_b64 v[38:39], v51 offset:256')
    for seg in range(3):
        a('ds_read_b128 %s, v15 offset:%d' % (vr(132 + 4 * seg, 4), seg * 16384))
    for p in range(2):
        for seg in range(3):
            if p == 0:
                a('s_waitcnt lgkmcnt(%d)' % (2 - seg))
            ac = ACC + 4 * (3 * p + seg)
            for r in range(4):
                a('v_fma_f32 v%d, -v%d, v%d, v%d' % (ac + r, 36 + 2 * p, 132 + 4 * seg + r, ac + r))
            for r in range(4):
                a('v_mul_f32 v%d, v%d, v%d' % (ac + r, 37 + 2 * p, ac + r))


def gen_k1(a):
    kernel_head(a, 'k1_kernel')
    a('s_cmp_ge_u32 s2, 256')
    a('s_cbranch_scc1 k1_exit')
    stamp_real(a, 0)
    stamp(a, 1)
    srd(a, 4, 0, 0)
    srd(a, 8, 8, 0)
    srd(a, 12, 16, 0)
    srd(a, 16, 88, 0)
    lane_decomp(a)
    a('s_and_b32 s30, s2, 7')
    a('s_lshr_b32 s31, s2, 3')
    a('s_lshr_b32 s21, s30, 1')
    a('s_lshl_b32 s21, s21, 2')
    a('s_and_b32 s22, s31, 3')
    a('s_add_u32 s33, s21, s22')
    a('s_and_b32 s21, s30, 1')
    a('s_lshl_b32 s21, s21, 3')
    a('s_lshr_b32 s22, s31, 2')
    a('s_add_u32 s34, s21, s22')
    a('s_lshl_b32 s21, s33, 7')
    a('s_lshl_b32 s22, s34, 6')
    a('s_waitcnt lgkmcnt(0)')
    srd_fin(a, 4, 2048 * 1024)
    srd_fin(a, 8, 512 * 3072)
    srd_fin(a, 12, 16384)
    srd_fin(a, 16, WS_SIZE)
    a('s_cmp_ge_u32 s20, 8')
    a('s_cbranch_scc1 k1_prod')

    def extra(a):
        a('v_lshlrev_b32 v15, 2, v2')
        a('v_sub_u32 v15, v3, v15')
        a('v_mov_b32 v23, 0x3f80')
        a('v_mov_b32 v24, 0x3f800000')
        a('v_cmp_eq_u32 vcc, 0, v15')
        a('v_cndmask_b32 v20, 0, v23, vcc')
        a('v_cmp_eq_u32 vcc, 1, v15')
        a('v_cndmask_b32 v21, 0, v24, vcc')
        a('v_or_b32 v20, v20, v21')
        a('v_cmp_eq_u32 vcc, 2, v15')
        a('v_cndmask_b32 v21, 0, v23, vcc')
        a('v_cmp_eq_u32 vcc, 3, v15')
        a('v_cndmask_b32 v25, 0, v24, vcc')
        a('v_or_b32 v21, v21, v25')

    gemm96_main(a, 'k1', extra)
    stamp(a, 8)
    a('v_lshl_add_u32 v15, v2, 2, v4')
    a('v_lshlrev_b32 v15, 5, v15')
    a('v_lshl_add_u32 v15, v5, 3, v15')
    a('s_lshl_b32 s30, s36, 9')
    a('s_add_u32 s30, s30, 0x%x' % ASLOT)
    a('v_add_u32 v15, s30, v15')
    a('ds_read_b64_tr_b16 v[26:27], v15 offset:1024')
    PK = 144
    for t in range(6):
        a('v_cvt_pk_bf16_f32 v%d, v%d, v%d' % (PK + 2 * t, ACC + 4 * t, ACC + 4 * t + 1))
        a('v_cvt_pk_bf16_f32 v%d, v%d, v%d' % (PK + 1 + 2 * t, ACC + 4 * t + 2, ACC + 4 * t + 3))
    a('s_waitcnt lgkmcnt(0)')
    PB = 48
    for s in range(4):
        src = PK + 2 * (3 * (s & 1) + (s >> 1))
        a('v_mfma_f32_16x16x16_bf16 %s, v[26:27], %s, 0' % (vr(PB + 4 * s, 4), vr(src, 2)))
    TV = 64
    for p in range(2):
        a('v_mfma_f32_16x16x16_bf16 %s, %s, v[20:21], 0' % (vr(TV + 4 * p, 4), vr(PK + 2 * (3 * p + 2), 2)))

    def T(s, i): return 72 + 12 * s + i
    for s in range(4):
        p = PB + 4 * s
        a('v_cvt_pk_bf16_f32 v%d, v%d, v%d' % (T(s, 2), p, p + 1))
        a('v_cvt_pk_bf16_f32 v%d, v%d, v%d' % (T(s, 3), p + 2, p + 3))
    for s in range(4):
        p = PB + 4 * s
        a('v_lshlrev_b32 v%d, 16, v%d' % (p, T(s, 2)))
        a('v_and_b32 v%d, 0xffff0000, v%d' % (p + 1, T(s, 2)))
        a('v_lshlrev_b32 v%d, 16, v%d' % (p + 2, T(s, 3)))
        a('v_and_b32 v%d, 0xffff0000, v%d' % (p + 3, T(s, 3)))
    for s in range(4):
        p = PB + 4 * s
        a('v_max3_f32 v%d, v%d, v%d, v%d' % (T(s, 0), p, p + 1, p + 2))
        a('v_min3_f32 v%d, v%d, v%d, v%d' % (T(s, 1), p, p + 1, p + 2))
        a('v_max_f32 v%d, v%d, v%d' % (T(s, 0), T(s, 0), p + 3))
        a('v_min_f32 v%d, v%d, v%d' % (T(s, 1), T(s, 1), p + 3))
    it = []
    for s in range(4):
        it += [('v_max_f32', T(s, 0), T(s, 2)), ('v_min_f32', T(s, 1), T(s, 3))]
    butterfly(a, it)
    for s in range(4):
        a('v_mul_f32 v%d, %s, v%d' % (T(s, 0), NL2E, T(s, 0)))
        a('v_mul_f32 v%d, %s, v%d' % (T(s, 1), L2E, T(s, 1)))
    a('v_mov_b32 v28, %s' % L2E)
    for s in range(4):
        p = PB + 4 * s
        for r in range(4):
            a('v_fma_f32 v%d, v%d, v28, v%d' % (T(s, 4 + r), p + r, T(s, 0)))
            a('v_fma_f32 v%d, -v%d, v28, v%d' % (T(s, 8 + r), p + r, T(s, 1)))
    for s in range(4):
        for r in range(8):
            a('v_exp_f32 v%d, v%d' % (T(s, 4 + r), T(s, 4 + r)))
    for s in range(4):
        a('v_add_f32 v%d, v%d, v%d' % (T(s, 0), T(s, 4), T(s, 5)))
        a('v_add_f32 v%d, v%d, v%d' % (T(s, 1), T(s, 8), T(s, 9)))
        a('v_add_f32 v%d, v%d, v%d' % (T(s, 2), T(s, 6), T(s, 7)))
        a('v_add_f32 v%d, v%d, v%d' % (T(s, 3), T(s, 10), T(s, 11)))
    for s in range(4):
        a('v_add_f32 v%d, v%d, v%d' % (T(s, 0), T(s, 0), T(s, 2)))
        a('v_add_f32 v%d, v%d, v%d' % (T(s, 1), T(s, 1), T(s, 3)))
    it = []
    for s in range(4):
        it += [('v_add_f32', T(s, 0), T(s, 2)), ('v_add_f32', T(s, 1), T(s, 3))]
    butterfly(a, it)
    for s in range(4):
        a('v_rcp_f32 v%d, v%d' % (T(s, 0), T(s, 0)))
        a('v_rcp_f32 v%d, v%d' % (T(s, 1), T(s, 1)))
    for s in range(4):
        for r in range(4):
            a('v_mul_f32 v%d, v%d, v%d' % (T(s, 4 + r), T(s, 0), T(s, 4 + r)))
            a('v_mul_f32 v%d, v%d, v%d' % (T(s, 8 + r), T(s, 1), T(s, 8 + r)))
    FB = 120
    for s in range(4):
        for i in range(4):
            a('v_cvt_pk_bf16_f32 v%d, v%d, v%d' % (FB + 4 * s + i, T(s, 4 + 2 * i), T(s, 5 + 2 * i)))
    a('s_lshl_b32 s31, s34, 11')
    a('s_lshl_b32 s27, s36, 10')
    a('s_add_u32 s31, s31, s27')
    for p in range(2):
        a('s_lshl_b32 s30, s%d, 11' % (24 if p == 0 else 37))
        a('s_add_u32 s30, s30, s31')
        a('buffer_store_dwordx4 %s, v6, s[16:19], s30 offen' % (vr(FB + 4 * p, 4)))
    for p in range(2):
        for pm in range(2):
            a('v_mfma_f32_16x16x16_bf16 %s, %s, v[20:21], 0' % (vr(72 + 4 * (2 * p + pm), 4), vr(FB + 4 * (2 + p) + 2 * pm, 2)))
    for p in range(2):
        a('v_cvt_pk_bf16_f32 v%d, v%d, v%d' % (88 + 2 * p, TV + 4 * p, TV + 4 * p + 1))
        a('v_cvt_pk_bf16_f32 v%d, v%d, v%d' % (89 + 2 * p, TV + 4 * p + 2, TV + 4 * p + 3))
    for i in range(4):
        a('v_cvt_pk_bf16_f32 v%d, v%d, v%d' % (92 + 2 * i, 72 + 4 * i, 73 + 4 * i))
        a('v_cvt_pk_bf16_f32 v%d, v%d, v%d' % (93 + 2 * i, 74 + 4 * i, 75 + 4 * i))
    for p in range(2):
        for pm in range(2):
            r1, r2 = 100 + 4 * pm, 100 + 4 * (2 + pm)
            a('v_mfma_f32_16x16x16_bf16 %s, %s, %s, %s' % (vr(r1, 4), vr(92 + 2 * (2 * p + pm), 2), vr(88 + 2 * p, 2), '0' if p == 0 else vr(r1, 4)))
            a('v_mfma_f32_16x16x16_bf16 %s, %s, v[16:17], %s' % (vr(r2, 4), vr(92 + 2 * (2 * p + pm), 2), '0' if p == 0 else vr(r2, 4)))
    a('s_lshl_b32 s30, s20, 12')
    a('v_add_u32 v23, s30, v6')
    for i in range(4):
        a('ds_write_b128 v23, %s offset:%d' % (vr(100 + 4 * i, 4), i * 1024))
    a('v_lshlrev_b32 v24, 4, v0')
    a('s_waitcnt lgkmcnt(0)')
    a('s_barrier')
    for m in range(4):
        a('ds_read_b128 %s, v24 offset:%d' % (vr(48 + 4 * m, 4), m * 8192))
    for m in range(1, 4):
        a('s_waitcnt lgkmcnt(%d)' % (3 - m))
        for r in range(4):
            a('v_add_f32 v%d, v%d, v%d' % (48 + r, 48 + r, 48 + 4 * m + r))
    a('s_lshl_b32 s30, s33, 17')
    a('s_lshl_b32 s31, s34, 13')
    a('s_add_u32 s30, s30, s31')
    a('s_add_u32 s30, s30, 0x%x' % WS_PART)
    a('buffer_store_dwordx4 v[48:51], v24, s[16:19], s30 offen')
    stamp(a, 9)
    stamp_real(a, 10)
    stamp_store(a, 0, 11)
    a.label('k1_exit')
    a('s_endpgm')
    gemm96_producers(a, 'k1', 'k1', 3072, 1024)


def gen_kred(a):
    kernel_head(a, 'kred_kernel')
    a('s_cmp_ge_u32 s2, 128')
    a('s_cbranch_scc1 kred_exit')
    stamp_real(a, 0)
    stamp(a, 1)
    srd(a, 16, 88, 0)
    a('v_lshlrev_b32 v1, 4, v0')
    a('v_lshrrev_b32 v2, 4, v0')
    a('v_lshlrev_b32 v2, 4, v2')
    a('s_lshl_b32 s20, s2, 10')
    a('s_add_u32 s20, s20, 0x%x' % WS_PART)
    a('s_lshr_b32 s21, s2, 2')
    a('s_and_b32 s22, s2, 3')
    a('s_waitcnt lgkmcnt(0)')
    srd_fin(a, 16, WS_SIZE)
    seqs = []
    for rb in range(16):
        seqs.append(a('buffer_load_dwordx4 %s, v1, s[16:19], s20 offen' % vr(8 + 4 * rb, 4)))
        if rb < 15:
            a('s_add_u32 s20, s20, 0x20000')
    a('s_lshl_b32 s23, s21, 10')
    a('s_add_u32 s23, s23, 0x%x' % WS_KVA)
    a('s_lshl_b32 s24, s21, 6')
    a('s_add_u32 s24, s24, 0x%x' % WS_ZA)
    a('s_cmp_lt_u32 s22, 2')
    a('s_cselect_b32 s23, s23, s24')
    a('s_cselect_b64 s[26:27], -1, 0')
    a('s_and_b32 s25, s22, 1')
    a('s_lshl_b32 s25, s25, 3')
    a('s_add_u32 s23, s23, s25')
    a('v_cndmask_b32 v3, v2, v1, s[26:27]')
    for rb in range(1, 16):
        a.wait_vm(seqs[rb])
        for r in range(4):
            a('v_add_f32 v%d, v%d, v%d' % (8 + r, 8 + r, 8 + 4 * rb + r))
    a('v_cvt_pk_bf16_f32 v4, v8, v9')
    a('v_cvt_pk_bf16_f32 v5, v10, v11')
    a('buffer_store_dwordx2 v[4:5], v3, s[16:19], s23 offen')
    if 'kred' == 'kred' and STAMP:
        a('s_mov_b32 s20, 0')
    stamp(a, 9)
    stamp_real(a, 10)
    stamp_store(a, 1, 11)
    a.label('kred_exit')
    a('s_endpgm')


def gen_k2(a):
    kernel_head(a, 'k2_kernel')
    a('s_cmp_ge_u32 s2, 256')
    a('s_cbranch_scc1 k2_exit')
    stamp_real(a, 0)
    stamp(a, 1)
    srd(a, 4, 0, 0)
    srd(a, 8, 24, 0)
    srd(a, 16, 88, 0)
    lane_decomp(a)
    a('s_and_b32 s30, s2, 7')
    a('s_lshr_b32 s31, s2, 3')
    a('s_lshl_b32 s21, s30, 2')
    a('s_and_b32 s22, s31, 3')
    a('s_add_u32 s21, s21, s22')
    a('s_lshr_b32 s22, s31, 2')
    a('s_lshl_b32 s21, s21, 6')
    a('s_lshl_b32 s23, s20, 4')
    a('s_add_u32 s24, s21, s23')
    a('s_lshl_b32 s22, s22, 7')
    a('s_waitcnt lgkmcnt(0)')
    srd_fin(a, 4, 2048 * 1024)
    srd_fin(a, 8, 512 * 1024)
    srd_fin(a, 16, WS_SIZE)
    PQ = 64
    XR = 192
    AC = 200
    WB = (216, 232)
    a('v_lshlrev_b32 v6, 4, v1')
    a('s_lshl_b32 s25, s20, 13')
    for i in range(8):
        a('s_add_u32 m0, s25, 0x%x' % (65536 + i * 1024))
        a('s_add_u32 s30, s25, 0x%x' % (WS_KVA + i * 1024))
        a('buffer_load_dwordx4 v6, s[16:19], s30 offen lds')
    a('s_and_b32 s26, s20, 1')
    a('s_lshl_b32 s26, s26, 10')
    a('s_add_u32 m0, s26, 0x%x' % 98304)
    a('s_add_u32 s30, s26, 0x%x' % WS_ZA)
    q_kv = a('buffer_load_dwordx4 v6, s[16:19], s30 offen lds')
    a('s_lshl_b32 s30, s24, 11')
    a('v_add_u32 v7, s30, v6')
    a('v_lshrrev_b32 v8, 3, v1')
    a('v_bfe_u32 v9, v1, 1, 2')
    a('v_bfe_u32 v10, v1, 4, 2')
    a('v_xor_b32 v9, v9, v10')
    a('v_and_b32 v10, 1, v1')
    a('v_lshlrev_b32 v10, 4, v10')
    a('v_lshl_add_u32 v9, v9, 5, v10')
    a('s_lshl_b32 s27, s20, 3')
    a('v_add_u32 v8, s27, v8')
    a('v_lshl_add_u32 v8, v8, 10, v9')
    a('v_add_u32 v8, s22, v8')
    a('s_lshl_b32 s25, s20, 10')
    q_pq = []
    for t in range(16):
        a('s_mov_b32 s30, 0x%x' % (t * 2048))
        a('buffer_load_dwordx4 %s, v7, s[16:19], s30 offen' % (vr(PQ + 8 * t, 4)))
        q_pq.append(a('buffer_load_dwordx4 %s, v7, s[16:19], s30 offen offset:1024' % (vr(PQ + 8 * t + 4, 4))))
        a('s_add_u32 m0, s25, 0x%x' % (t * 4096))
        a('s_mov_b32 s30, 0x%x' % (t * 32768))
        q_wo = a('buffer_load_dwordx4 v8, s[8:11], s30 offen lds')
    a('v_add_u32 v11, s24, v3')
    a('v_lshlrev_b32 v11, 10, v11')
    a('v_lshl_add_u32 v11, v2, 3, v11')
    a('v_add_u32 v11, s22, v11')
    for nt in range(4):
        q_x = a('buffer_load_dwordx2 %s, v11, s[4:7], 0 offen offset:%d' % (vr(XR + 2 * nt, 2), nt * 32))
    a('v_add_u32 v12, 0x10000, v6')
    a('v_lshlrev_b32 v13, 4, v2')
    a('v_add_u32 v13, 0x18000, v13')
    TB = 250
    a('v_lshl_add_u32 v14, v2, 2, v4')
    a('v_lshlrev_b32 v14, 7, v14')
    a('v_lshl_add_u32 v14, v5, 3, v14')
    a('v_and_b32 v15, 1, v2')
    a('v_lshlrev_b32 v15, 1, v15')
    a('v_lshrrev_b32 v48, 1, v4')
    a('v_or_b32 v15, v15, v48')
    for nt in range(4):
        a('v_xor_b32 v48, %d, v15' % nt)
        a('v_lshl_add_u32 v%d, v48, 5, v14' % (TB + nt))
    KZ = (16, 32)
    ND = (216, 232)

    def reads1(t):
        b = KZ[t & 1]
        for hh in range(2):
            h = 2 * t + hh
            a('ds_read_b128 %s, v12 offset:%d' % (vr(b + 8 * hh, 4), h * 1024))
            a('ds_read_b128 %s, v13 offset:%d' % (vr(b + 8 * hh + 4, 4), h * 64))

    def valu1(t):
        nd = ND[t & 1]
        for hh in range(2):
            n = nd + 8 * hh
            d = n + 4
            T = 48 + 8 * hh
            a('v_cvt_pk_bf16_f32 v%d, v%d, v%d' % (T, d, d))
            a('v_cvt_pk_bf16_f32 v%d, v%d, v%d' % (T + 1, n, n + 1))
            a('v_cvt_pk_bf16_f32 v%d, v%d, v%d' % (T + 2, n + 2, n + 3))
            a('v_lshlrev_b32 v%d, 16, v%d' % (T, T))
            a('v_add_f32 v%d, 0x358637bd, v%d' % (T, T))
            a('v_cvt_pk_bf16_f32 v%d, v%d, v%d' % (T, T, T))
            a('v_lshlrev_b32 v%d, 16, v%d' % (T, T))
            a('v_rcp_f32 v%d, v%d' % (T, T))
            a('v_lshlrev_b32 v%d, 16, v%d' % (T + 3, T + 1))
            a('v_and_b32 v%d, 0xffff0000, v%d' % (T + 4, T + 1))
            a('v_lshlrev_b32 v%d, 16, v%d' % (T + 5, T + 2))
            a('v_and_b32 v%d, 0xffff0000, v%d' % (T + 6, T + 2))
            for i in range(4):
                a('v_mul_f32 v%d, v%d, v%d' % (T + 3 + i, T, T + 3 + i))
            a('v_cvt_pk_bf16_f32 v%d, v%d, v%d' % (PQ + 8 * t + 2 * hh, T + 3, T + 4))
            a('v_cvt_pk_bf16_f32 v%d, v%d, v%d' % (PQ + 8 * t + 2 * hh + 1, T + 5, T + 6))

    stamp(a, 2)
    a.wait_vm(q_kv)
    a('s_barrier')
    stamp(a, 3)
    reads1(0)
    for t in range(16):
        if t + 1 < 16:
            reads1(t + 1)
            a('s_waitcnt lgkmcnt(4)')
        else:
            a('s_waitcnt lgkmcnt(0)')
        a.wait_vm(q_pq[t])
        b = KZ[t & 1]
        nd = ND[t & 1]
        for hh in range(2):
            a('v_mfma_f32_16x16x32_bf16 %s, %s, %s, 0' % (vr(nd + 8 * hh, 4), vr(b + 8 * hh, 4), vr(PQ + 8 * t + 4 * hh, 4)))
            a('v_mfma_f32_16x16x32_bf16 %s, %s, %s, 0' % (vr(nd + 8 * hh + 4, 4), vr(b + 8 * hh + 4, 4), vr(PQ + 8 * t + 4 * hh, 4)))
        if t > 0:
            valu1(t - 1)
    valu1(15)
    stamp(a, 4)
    a.wait_vm(q_wo)
    a('s_barrier')
    stamp(a, 5)

    def reads2(t):
        b = WB[t & 1]
        for nt in range(4):
            for e in range(2):
                a('ds_read_b64_tr_b16 %s, v%d offset:%d' % (vr(b + 4 * nt + 2 * e, 2), TB + nt, t * 4096 + e * 2048))
    reads2(0)
    for t in range(16):
        if t + 1 < 16:
            reads2(t + 1)
            a('s_waitcnt lgkmcnt(8)')
        else:
            a('s_waitcnt lgkmcnt(0)')
        b = WB[t & 1]
        for nt in range(4):
            c_op = '0' if t == 0 else vr(AC + 4 * nt, 4)
            a('v_mfma_f32_16x16x32_bf16 %s, %s, %s, %s' % (vr(AC + 4 * nt, 4), vr(b + 4 * nt, 4), vr(PQ + 8 * t, 4), c_op))
    stamp(a, 6)
    a.wait_vm(q_x)
    stamp(a, 7)
    stamp(a, 8)
    a('s_lshl_b32 s30, s24, 10')
    a('s_lshl_b32 s31, s22, 4')
    a('s_add_u32 s30, s30, s31')
    a('s_add_u32 s30, s30, 0x%x' % WS_H)
    OUTR = 56
    S1, S2 = 54, 55
    for nt in range(4):
        ac = AC + 4 * nt
        T = 16 + 8 * nt
        O = OUTR + 2 * nt
        a('v_cvt_pk_bf16_f32 v%d, v%d, v%d' % (T, ac, ac + 1))
        a('v_cvt_pk_bf16_f32 v%d, v%d, v%d' % (T + 1, ac + 2, ac + 3))
        a('v_lshlrev_b32 v%d, 16, v%d' % (T + 2, T))
        a('v_and_b32 v%d, 0xffff0000, v%d' % (T + 3, T))
        a('v_lshlrev_b32 v%d, 16, v%d' % (T + 4, T + 1))
        a('v_and_b32 v%d, 0xffff0000, v%d' % (T + 5, T + 1))
        x = XR + 2 * nt
        a('v_lshlrev_b32 v%d, 16, v%d' % (T + 6, x))
        a('v_and_b32 v%d, 0xffff0000, v%d' % (T + 7, x))
        a('v_add_f32 v%d, v%d, v%d' % (T + 2, T + 2, T + 6))
        a('v_add_f32 v%d, v%d, v%d' % (T + 3, T + 3, T + 7))
        a('v_lshlrev_b32 v%d, 16, v%d' % (T + 6, x + 1))
        a('v_and_b32 v%d, 0xffff0000, v%d' % (T + 7, x + 1))
        a('v_add_f32 v%d, v%d, v%d' % (T + 4, T + 4, T + 6))
        a('v_add_f32 v%d, v%d, v%d' % (T + 5, T + 5, T + 7))
        a('v_cvt_pk_bf16_f32 v%d, v%d, v%d' % (O, T + 2, T + 3))
        a('v_cvt_pk_bf16_f32 v%d, v%d, v%d' % (O + 1, T + 4, T + 5))
        if nt & 1:
            a('buffer_store_dwordx4 %s, v6, s[16:19], s30 offen offset:%d' % (vr(O - 2, 4), (nt >> 1) * 1024))
        a('v_lshlrev_b32 v%d, 16, v%d' % (T + 2, O))
        a('v_and_b32 v%d, 0xffff0000, v%d' % (T + 3, O))
        a('v_lshlrev_b32 v%d, 16, v%d' % (T + 4, O + 1))
        a('v_and_b32 v%d, 0xffff0000, v%d' % (T + 5, O + 1))
        for i in range(4):
            if nt == 0 and i == 0:
                a('v_mov_b32 v%d, v%d' % (S1, T + 2))
                a('v_mul_f32 v%d, v%d, v%d' % (S2, T + 2, T + 2))
            else:
                a('v_add_f32 v%d, v%d, v%d' % (S1, S1, T + 2 + i))
                a('v_fma_f32 v%d, v%d, v%d, v%d' % (S2, T + 2 + i, T + 2 + i, S2))
    butterfly(a, [('v_add_f32', S1, 52), ('v_add_f32', S2, 53)])
    a('v_add_u32 v12, s24, v3')
    a('v_lshlrev_b32 v12, 6, v12')
    a('s_lshr_b32 s31, s22, 4')
    a('s_add_u32 s31, s31, 0x%x' % WS_ST2)
    a('buffer_store_dwordx2 v[54:55], v12, s[16:19], s31 offen')
    if 'k2' == 'kred' and STAMP:
        a('s_mov_b32 s20, 0')
    stamp(a, 9)
    stamp_real(a, 10)
    stamp_store(a, 2, 11)
    a.label('k2_exit')
    a('s_endpgm')


def gen_k3(a):
    kernel_head(a, 'k3_kernel')
    a('s_cmp_ge_u32 s2, 240')
    a('s_cbranch_scc1 k3_exit')
    stamp_real(a, 0)
    stamp(a, 1)
    srd(a, 4, 88, 0)
    srd(a, 8, 40, 0)
    srd(a, 12, 48, 0)
    srd(a, 16, 88, 0)
    lane_decomp(a)
    a('s_and_b32 s30, s2, 7')
    a('s_lshr_b32 s31, s2, 3')
    a('s_lshl_b32 s21, s30, 1')
    a('s_and_b32 s22, s31, 1')
    a('s_add_u32 s33, s21, s22')
    a('s_lshr_b32 s34, s31, 1')
    a('s_lshl_b32 s21, s33, 7')
    a('s_mul_i32 s22, s34, 192')
    a('s_waitcnt lgkmcnt(0)')
    a('s_add_u32 s4, s4, 0x%x' % WS_H)
    a('s_addc_u32 s5, s5, 0')
    srd_fin(a, 4, 2048 * 1024)
    srd_fin(a, 8, 512 * 2752)
    srd_fin(a, 12, 2752)
    srd_fin(a, 16, WS_SIZE)
    a('s_cmp_ge_u32 s20, 8')
    a('s_cbranch_scc1 k3_prod')

    def extra(a):
        a('v_lshlrev_b32 v22, 3, v2')
        a('s_lshl_b32 s30, s36, 5')
        a('s_add_u32 s30, s30, s22')
        a('v_add_u32 v22, s30, v22')
        for seg in range(3):
            a('buffer_load_dwordx2 %s, v22, s[12:15], 0 offen offset:%d' % (vr(28 + 2 * seg, 2), seg * 64))
        a('s_mov_b32 s30, 0x%x' % WS_ST2)
        for p in range(2):
            a('v_add_u32 v23, s%d, v3' % (24 if p == 0 else 37))
            a('v_lshlrev_b32 v23, 6, v23')
            a('v_lshl_add_u32 v23, v2, 4, v23')
            a('buffer_load_dwordx4 %s, v23, s[16:19], s30 offen' % vr(144 + 4 * p, 4))

    gemm96_main(a, 'k3', extra)
    stamp(a, 8)
    a('v_lshlrev_b32 v15, 4, v1')
    a('s_lshl_b32 s27, s36, 3')
    a('s_mul_i32 s31, s34, 3 * 1024')
    a('s_add_u32 s31, s31, s27')
    a('s_add_u32 s31, s31, 0x%x' % WS_R)
    for p in range(2):
        a('s_lshr_b32 s%d, s%d, 4' % (28 + p, 24 if p == 0 else 37))
        a('s_mul_i32 s%d, s%d, 43 * 1024' % (28 + p, 28 + p))
        a('s_add_u32 s%d, s%d, s31' % (28 + p, 28 + p))
    for seg in range(3):
        if seg == 1:
            a('s_cmp_eq_u32 s34, 14')
            a('s_cbranch_scc1 k3_done')
        b = 28 + 2 * seg
        B = 132 + 4 * seg
        a('v_lshlrev_b32 v%d, 16, v%d' % (B, b))
        a('v_and_b32 v%d, 0xffff0000, v%d' % (B + 1, b))
        a('v_lshlrev_b32 v%d, 16, v%d' % (B + 2, b + 1))
        a('v_and_b32 v%d, 0xffff0000, v%d' % (B + 3, b + 1))
        for p in range(2):
            ac = ACC + 4 * (3 * p + seg)
            T = 48 + 8 * (2 * seg + p)
            a('v_cvt_pk_bf16_f32 v%d, v%d, v%d' % (T, ac, ac + 1))
            a('v_cvt_pk_bf16_f32 v%d, v%d, v%d' % (T + 1, ac + 2, ac + 3))
            a('v_lshlrev_b32 v%d, 16, v%d' % (T + 2, T))
            a('v_and_b32 v%d, 0xffff0000, v%d' % (T + 3, T))
            a('v_lshlrev_b32 v%d, 16, v%d' % (T + 4, T + 1))
            a('v_and_b32 v%d, 0xffff0000, v%d' % (T + 5, T + 1))
            for i in range(4):
                a('v_add_f32 v%d, v%d, v%d' % (T + 2 + i, T + 2 + i, B + i))
            a('v_cvt_pk_bf16_f32 v%d, v%d, v%d' % (T, T + 2, T + 3))
            a('v_cvt_pk_bf16_f32 v%d, v%d, v%d' % (T + 1, T + 4, T + 5))
            a('v_lshlrev_b32 v%d, 16, v%d' % (T + 2, T))
            a('v_and_b32 v%d, 0xffff0000, v%d' % (T + 3, T))
            a('v_lshlrev_b32 v%d, 16, v%d' % (T + 4, T + 1))
            a('v_and_b32 v%d, 0xffff0000, v%d' % (T + 5, T + 1))
            for i in range(4):
                a('v_max_f32 v%d, 0, v%d' % (T + 2 + i, T + 2 + i))
            for i in range(4):
                a('v_mul_f32 v%d, v%d, v%d' % (T + 2 + i, T + 2 + i, T + 2 + i))
            a('v_cvt_pk_bf16_f32 v%d, v%d, v%d' % (T, T + 2, T + 3))
            a('v_cvt_pk_bf16_f32 v%d, v%d, v%d' % (T + 1, T + 4, T + 5))
            a('buffer_store_dwordx2 %s, v15, s[16:19], s%d offen offset:%d' % (vr(T, 2), 28 + p, seg * 1024))
    a.label('k3_done')
    if 'k3' == 'kred' and STAMP:
        a('s_mov_b32 s20, 0')
    stamp(a, 9)
    stamp_real(a, 10)
    stamp_store(a, 3, 11)
    a.label('k3_exit')
    a('s_endpgm')
    gemm96_producers(a, 'k3', 'k3', 2752, 64)


def gen_k4(a):
    kernel_head(a, 'k4_kernel')
    a('s_cmp_ge_u32 s2, 256')
    a('s_cbranch_scc1 k4_exit')
    stamp_real(a, 0)
    stamp(a, 1)
    srd(a, 4, 72, 0)
    srd(a, 8, 56, 0)
    srd(a, 12, 64, 0)
    srd(a, 16, 88, 0)
    lane_decomp(a)
    a('s_and_b32 s30, s2, 7')
    a('s_lshr_b32 s31, s2, 3')
    a('s_lshl_b32 s21, s30, 2')
    a('s_and_b32 s22, s31, 3')
    a('s_add_u32 s21, s21, s22')
    a('s_lshr_b32 s22, s31, 2')
    a('s_lshl_b32 s21, s21, 6')
    a('s_lshl_b32 s23, s20, 4')
    a('s_add_u32 s24, s21, s23')
    a('s_lshl_b32 s22, s22, 7')
    a('s_waitcnt lgkmcnt(0)')
    srd_fin(a, 4, 2048 * 1024)
    srd_fin(a, 8, 1376 * 1024)
    srd_fin(a, 12, 1024)
    srd_fin(a, 16, WS_SIZE)
    AFR = 24
    WB = (196, 212)
    AC = 228
    TB = 244
    HR = 248
    BR = 16
    a('v_lshlrev_b32 v6, 4, v1')
    a('s_lshr_b32 s30, s24, 4')
    a('s_mul_i32 s30, s30, 43 * 1024')
    a('v_add_u32 v7, s30, v6')
    a('v_lshrrev_b32 v8, 3, v1')
    a('v_bfe_u32 v9, v1, 1, 2')
    a('v_bfe_u32 v10, v1, 4, 2')
    a('v_xor_b32 v9, v9, v10')
    a('v_and_b32 v10, 1, v1')
    a('v_lshlrev_b32 v10, 4, v10')
    a('v_lshl_add_u32 v9, v9, 5, v10')
    a('s_lshl_b32 s27, s20, 3')
    a('v_add_u32 v8, s27, v8')
    a('v_lshl_add_u32 v8, v8, 10, v9')
    a('v_add_u32 v8, s22, v8')
    a('s_lshl_b32 s25, s20, 10')
    a('s_mov_b32 s31, 0x%x' % WS_R)

    def dma(ks, slot_ks):
        a('s_add_u32 m0, s25, 0x%x' % (slot_ks * 4096))
        a('s_mov_b32 s30, 0x%x' % (ks * 32768))
        return a('buffer_load_dwordx4 v8, s[8:11], s30 offen lds')

    def aload(ks):
        a('s_mov_b32 s31, 0x%x' % (WS_R + ks * 1024))
        return a('buffer_load_dwordx4 %s, v7, s[16:19], s31 offen' % (vr(AFR + 4 * ks, 4)))

    q = {}

    def issue_chunk(c):
        n = 8 if c < 5 else 3
        for i in range(n):
            ks = 8 * c + i
            dma(ks, ks if c < 5 else i)
            q[c] = aload(ks)

    for c in range(3):
        issue_chunk(c)
    a('v_lshl_add_u32 v14, v2, 2, v4')
    a('v_lshlrev_b32 v14, 7, v14')
    a('v_lshl_add_u32 v14, v5, 3, v14')
    a('v_and_b32 v15, 1, v2')
    a('v_lshlrev_b32 v15, 1, v15')
    a('v_lshrrev_b32 v13, 1, v4')
    a('v_or_b32 v15, v15, v13')
    for nt in range(4):
        a('v_xor_b32 v13, %d, v15' % nt)
        a('v_lshl_add_u32 v%d, v13, 5, v14' % (TB + nt))
    cur_base = [0]

    def reads(ks):
        slot = ks if ks < 40 else ks - 40
        addr = slot * 4096
        want = (addr // 65536) * 65536
        if want != cur_base[0]:
            d = want - cur_base[0]
            for nt in range(4):
                if d > 0:
                    a('v_add_u32 v%d, 0x%x, v%d' % (TB + nt, d, TB + nt))
                else:
                    a('v_subrev_u32 v%d, 0x%x, v%d' % (TB + nt, -d, TB + nt))
            cur_base[0] = want
        b = WB[ks & 1]
        for nt in range(4):
            for e in range(2):
                a('ds_read_b64_tr_b16 %s, v%d offset:%d' % (vr(b + 4 * nt + 2 * e, 2), TB + nt, addr - want + e * 2048))

    stamp(a, 2)
    a.wait_vm(q[0])
    a('s_barrier')
    stamp(a, 3)
    reads(0)
    for ks in range(43):
        if ks == 4:
            issue_chunk(3)
        if ks == 12:
            issue_chunk(4)
        if ks == 20:
            a('v_add_u32 v11, s24, v3')
            a('v_lshlrev_b32 v11, 10, v11')
            a('v_lshl_add_u32 v11, v2, 3, v11')
            a('v_add_u32 v11, s22, v11')
            a('s_lshl_b32 s30, s24, 10')
            a('s_lshl_b32 s31, s22, 4')
            a('s_add_u32 s30, s30, s31')
            a('s_add_u32 s30, s30, 0x%x' % WS_H)
            for j in range(2):
                a('buffer_load_dwordx4 %s, v6, s[16:19], s30 offen offset:%d' % (vr(HR + 4 * j, 4), j * 1024))
            a('v_lshlrev_b32 v12, 3, v2')
            a('v_add_u32 v12, s22, v12')
            for nt in range(4):
                q_e = a('buffer_load_dwordx2 %s, v12, s[12:15], 0 offen offset:%d' % (vr(BR + 2 * nt, 2), nt * 32))
        if ks + 1 < 43:
            if (ks + 1) % 8 == 0:
                a.wait_vm(q[(ks + 1) // 8])
                a('s_barrier')
                if (ks + 1) // 8 < 5:
                    stamp(a, 3 + (ks + 1) // 8)
                if ks + 1 == 16:
                    issue_chunk(5)
            reads(ks + 1)
            a('s_waitcnt lgkmcnt(8)')
        else:
            a('s_waitcnt lgkmcnt(0)')
        b = WB[ks & 1]
        for nt in range(4):
            c_op = '0' if ks == 0 else vr(AC + 4 * nt, 4)
            a('v_mfma_f32_16x16x32_bf16 %s, %s, %s, %s' % (vr(AC + 4 * nt, 4), vr(b + 4 * nt, 4), vr(AFR + 4 * ks, 4), c_op))
    stamp(a, 8)
    a('s_waitcnt vmcnt(0)')
    for nt in range(4):
        ac = AC + 4 * nt
        T = 24 + 8 * nt
        b = BR + 2 * nt
        x = HR + 2 * nt
        a('v_cvt_pk_bf16_f32 v%d, v%d, v%d' % (T, ac, ac + 1))
        a('v_cvt_pk_bf16_f32 v%d, v%d, v%d' % (T + 1, ac + 2, ac + 3))
        for (src) in (b, x):
            a('v_lshlrev_b32 v%d, 16, v%d' % (T + 2, T))
            a('v_and_b32 v%d, 0xffff0000, v%d' % (T + 3, T))
            a('v_lshlrev_b32 v%d, 16, v%d' % (T + 4, T + 1))
            a('v_and_b32 v%d, 0xffff0000, v%d' % (T + 5, T + 1))
            a('v_lshlrev_b32 v%d, 16, v%d' % (T + 6, src))
            a('v_and_b32 v%d, 0xffff0000, v%d' % (T + 7, src))
            a('v_add_f32 v%d, v%d, v%d' % (T + 2, T + 2, T + 6))
            a('v_add_f32 v%d, v%d, v%d' % (T + 3, T + 3, T + 7))
            a('v_lshlrev_b32 v%d, 16, v%d' % (T + 6, src + 1))
            a('v_and_b32 v%d, 0xffff0000, v%d' % (T + 7, src + 1))
            a('v_add_f32 v%d, v%d, v%d' % (T + 4, T + 4, T + 6))
            a('v_add_f32 v%d, v%d, v%d' % (T + 5, T + 5, T + 7))
            a('v_cvt_pk_bf16_f32 v%d, v%d, v%d' % (T, T + 2, T + 3))
            a('v_cvt_pk_bf16_f32 v%d, v%d, v%d' % (T + 1, T + 4, T + 5))
        a('buffer_store_dwordx2 %s, v11, s[4:7], 0 offen offset:%d' % (vr(T, 2), nt * 32))
    if 'k4' == 'kred' and STAMP:
        a('s_mov_b32 s20, 0')
    stamp(a, 9)
    stamp_real(a, 10)
    stamp_store(a, 4, 11)
    a.label('k4_exit')
    a('s_endpgm')


def desc(name, vgpr, sgpr=64):
    return '''.amdhsa_kernel %s
  .amdhsa_next_free_vgpr %d
  .amdhsa_next_free_sgpr %d
  .amdhsa_accum_offset %d
  .amdhsa_group_segment_fixed_size 0
  .amdhsa_kernarg_size 96
  .amdhsa_user_sgpr_count 2
  .amdhsa_user_sgpr_kernarg_segment_ptr 1
  .amdhsa_system_sgpr_workgroup_id_x 1
.end_amdhsa_kernel
''' % (name, vgpr, sgpr, vgpr)


KERNELS = [
    ('k1_kernel', gen_k1, 256, 640, 163840, 160),
    ('kred_kernel', gen_kred, 128, 64, 0, 72),
    ('k2_kernel', gen_k2, 256, 256, 100352, 256),
    ('k3_kernel', gen_k3, 240, 640, 163840, 160),
    ('k4_kernel', gen_k4, 256, 256, 163840, 256),
]


def build(kernels):
    head = ''
    for (n, g, grid, block, lds, v) in kernels:
        head += '; @launch kernel=%s grid=(%d,1,1) block=(%d,1,1) lds=%d\n' % (n, grid, block, lds)
    head += '.amdgcn_target "amdgcn-amd-amdhsa--gfx950"\n.text\n'
    a = Asm()
    seen = set()
    for (n, g, grid, block, lds, v) in kernels:
        if n in seen:
            continue
        seen.add(n)
        a.vm_issued = 0
        g(a)
    d = '.section .rodata,"a"\n.p2align 6\n'
    seen = set()
    for (n, g, grid, block, lds, v) in kernels:
        if n in seen:
            continue
        seen.add(n)
        d += desc(n, v)
    return head + a.text() + d


if __name__ == '__main__':
    out = sys.argv[1] if len(sys.argv) > 1 else 'cur.s'
    open(out, 'w').write(build(KERNELS))
    print('wrote', out)
```

```python
import sys, os
sys.path.insert(0, os.path.dirname(__file__))
from dsl import Asm

MB = 1 << 20
WS_PHIQ = 0
WS_PART = 4 * MB
WS_KVA = 6 * MB
WS_ZA = 6 * MB + 32768
WS_ST2 = 6 * MB + 524288
WS_H = 7 * MB
WS_R = 9 * MB
WS_SIZE = 16 * MB
L2E = '0x3fb8aa3b'
NL2E = '0xbfb8aa3b'


def vr(b, n):
    return 'v[%d:%d]' % (b, b + n - 1)


def srd(a, s, koff, size):
    a('s_load_dwordx2 s[%d:%d], s[0:1], %d' % (s, s + 1, koff))


def srd_fin(a, s, size):
    a('s_and_b32 s%d, s%d, 0xffff' % (s + 1, s + 1))
    a('s_mov_b32 s%d, 0x%x' % (s + 2, size))
    a('s_mov_b32 s%d, 0x00020000' % (s + 3))


def bf16r(a, d, s):
    a('v_cvt_pk_bf16_f32 v%d, v%d, v%d' % (d, s, s))
    a('v_lshlrev_b32 v%d, 16, v%d' % (d, d))


def butterfly(a, items):
    for sw in ('v_permlane16_swap_b32', 'v_permlane32_swap_b32'):
        for (op, r, t) in items:
            a('v_mov_b32 v%d, v%d' % (t, r))
        for (op, r, t) in items:
            a('%s v%d, v%d' % (sw, r, t))
        for (op, r, t) in items:
            a('%s v%d, v%d, v%d' % (op, r, r, t))


STAMP = os.environ.get('STAMP')
PREFETCH = int(os.environ.get('PREFETCH', '1'))
STPOL = os.environ.get('STPOL', '')
WS_STAMP = 15 * MB


def stamp(a, i):
    if STAMP:
        a('s_memtime s[%d:%d]' % (40 + 2 * i, 41 + 2 * i))


def stamp_real(a, i):
    if STAMP:
        a('s_memrealtime s[%d:%d]' % (40 + 2 * i, 41 + 2 * i))


def stamp_store(a, kidx, n, srd=16):
    if not STAMP:
        return
    a('s_waitcnt lgkmcnt(0)')
    a('s_lshl_b32 s38, s2, 3')
    a('s_add_u32 s38, s38, s20')
    a('s_lshl_b32 s38, s38, 6')
    a('s_add_u32 s38, s38, 0x%x' % (WS_STAMP + kidx * 131072))
    a('v_mov_b32 v0, 0')
    for i in range(n):
        a('v_mov_b32 v1, s%d' % (40 + 2 * i))
        a('buffer_store_dword v1, v0, s[%d:%d], s38 offen offset:%d' % (srd, srd + 3, i * 4))


def kernel_head(a, name):
    a.raw('.globl %s' % name)
    a.raw('.p2align 8')
    a.raw('.type %s,@function' % name)
    a.label(name)
    a.hist = []


def lane_decomp(a):
    a('v_and_b32 v1, 63, v0')
    a('v_lshrrev_b32 v6, 6, v0')
    a('v_lshrrev_b32 v2, 4, v1')
    a('v_and_b32 v3, 15, v1')
    a('v_readfirstlane_b32 s20, v6')
    a('v_bfe_u32 v4, v1, 2, 2')
    a('v_and_b32 v5, 3, v1')


AFB = (48, 56)
BUF = (64, 80)
ACC = 96
RS, GR, CSA = 120, 124, 128
ONES = 16
ASLOT = 98304


def gemm96_producers(a, mode, name, wstride, seg_off):
    k1 = mode == 'k1'
    a.label(name + '_prod')
    a.hist = []
    a('s_cmp_eq_u32 s20, 9')
    a('s_cbranch_scc1 %s_prodA' % name)
    a.vm_issued = 0
    a('v_lshrrev_b32 v7, 2, v1')
    a('v_mul_u32_u24 v7, 0x%x, v7' % wstride)
    a('v_bfe_u32 v15, v1, %d, 1' % (5 if k1 else 4))
    a('v_lshlrev_b32 v15, 1, v15')
    a('v_xor_b32 v15, v15, v5')
    a('v_lshl_add_u32 v7, v15, 4, v7')
    a('v_add_u32 v7, s22, v7')
    last = {}

    def bchunk(c):
        for rg in range(8):
            for seg in range(3):
                a('s_mov_b32 m0, 0x%x' % (c * 24576 + seg * 8192 + rg * 1024))
                a('s_mov_b32 s30, 0x%x' % ((c * 128 + rg * 16) * wstride + seg * seg_off))
                last[c] = a('buffer_load_dwordx4 v7, s[8:11], s30 offen lds')
    if k1 and PREFETCH:
        srd(a, 44, 24, 0)
        srd(a, 48, 40, 0)
        srd(a, 52, 56, 0)
    bchunk(0)
    bchunk(1)
    for c in range(4):
        a.wait_vm(last[c])
        a('s_barrier')
        if c + 2 < 4:
            bchunk(c + 2)
        if c == 2 and k1 and PREFETCH:
            a('s_waitcnt lgkmcnt(0)')
            srd_fin(a, 44, 512 * 1024)
            srd_fin(a, 48, 512 * 2752)
            srd_fin(a, 52, 1376 * 1024)
            a('v_lshlrev_b32 v6, 4, v1')
            a('s_lshl_b32 s30, s2, 11')
            a('s_mul_i32 s31, s2, 5504')
            for i in range(2):
                a('buffer_load_dwordx4 %s, v6, s[44:47], s30 offen offset:%d' % (vr(64 + 4 * i, 4), i * 1024))
            for i in range(4):
                a('buffer_load_dwordx4 %s, v6, s[48:51], s31 offen offset:%d' % (vr(72 + 4 * i, 4), i * 1024))
                a('buffer_load_dwordx4 %s, v6, s[52:55], s31 offen offset:%d' % (vr(96 + 4 * i, 4), i * 1024))
            a('s_add_u32 s31, s31, 4096')
            for i in range(2):
                a('buffer_load_dwordx4 %s, v6, s[48:51], s31 offen offset:%d' % (vr(88 + 4 * i, 4), i * 1024))
                a('buffer_load_dwordx4 %s, v6, s[52:55], s31 offen offset:%d' % (vr(112 + 4 * i, 4), i * 1024))
    a('s_waitcnt vmcnt(0)')
    a('s_endpgm')
    a.label(name + '_prodA')
    a.hist = []
    a.vm_issued = 0
    if k1:
        for j in range(4):
            a('v_add_u32 v15, %d, v2' % (4 * j))
            a('v_xor_b32 v%d, v15, v3' % (36 + j))
            a('v_add_u32 v15, s21, v15')
            a('v_lshlrev_b32 v15, 10, v15')
            a('v_lshl_add_u32 v%d, v%d, 4, v15' % (36 + j, 36 + j))
    else:
        a('s_lshl_b32 s31, s21, 10')
        a('v_lshlrev_b32 v6, 4, v1')
        a('v_add_u32 v36, s31, v6')
    last = {}

    def achunk(c):
        for rt in range(8):
            if a.vm_issued - achunk.done >= 60:
                a('s_waitcnt vmcnt(40)')
                achunk.done = a.vm_issued - 40
            for j in range(4):
                a('s_mov_b32 m0, 0x%x' % (ASLOT + rt * 8192 + (c & 1) * 4096 + j * 1024))
                if k1:
                    a('s_mov_b32 s30, 0x%x' % (rt * 16384 + c * 256))
                    last[c] = a('buffer_load_dwordx4 v%d, s[4:7], s30 offen lds' % (36 + j))
                else:
                    a('s_mov_b32 s30, 0x%x' % (rt * 16384 + (4 * c + j) * 1024))
                    last[c] = a('buffer_load_dwordx4 v36, s[4:7], s30 offen lds')
    achunk.done = 0
    achunk(0)
    achunk(1)
    for c in range(4):
        a.wait_vm(last[c])
        achunk.done = last[c]
        a('s_barrier')
        if c >= 1 and c + 1 < 4:
            achunk(c + 1)
    if k1:
        a('v_lshlrev_b32 v22, 4, v1')
        a('s_mov_b32 m0, 0x%x' % (ASLOT + 1024))
        a('s_lshl_b32 s30, s34, 10')
        a('buffer_load_dwordx4 v22, s[12:15], s30 offen lds')
        a('s_waitcnt vmcnt(0)')
        a('s_barrier')
    a('s_endpgm')


def gemm96_main(a, mode, extra_loads):
    k1 = mode == 'k1'
    a('s_lshl_b32 s23, s20, 4')
    a('s_add_u32 s24, s21, s23')
    a('s_xor_b32 s37, s24, 16')
    a('s_and_b32 s36, s20, 1')
    a('s_lshl_b32 s35, s20, 13')
    a('s_add_u32 s35, s35, 0x%x' % ASLOT)
    a('s_xor_b32 s39, s35, 0x2000')
    a('v_lshlrev_b32 v6, 4, v1')
    extra_loads(a)
    a('v_lshl_add_u32 v8, v2, %d, v4' % (3 if k1 else 2))
    a('v_lshlrev_b32 v8, 6, v8')
    a('v_lshl_add_u32 v8, v5, 3, v8')
    a('v_and_b32 v15, 1, v2')
    a('v_lshlrev_b32 v15, 5, v15')
    a('s_sub_u32 s26, s20, 6')
    a('s_cmp_lt_u32 s20, 6')
    a('s_cselect_b32 s26, s20, s26')
    a('s_lshr_b32 s27, s26, 1')
    a('s_lshl_b32 s27, s27, 13')
    a('s_lshl_b32 s28, s36, 5')
    a('v_xor_b32 v15, s28, v15')
    a('v_add_u32 v8, v8, v15')
    a('v_add_u32 v10, 0xc000, v8')
    a('v_add_u32 v12, s27, v8')
    a('v_add_u32 v13, 0xc000, v12')
    for i in range(4):
        a('v_mov_b32 v%d, 0x3f803f80' % (ONES + i))
    if k1:
        for kk in range(4):
            a('v_add_u32 v15, %d, v2' % (4 * kk))
            a('v_xor_b32 v15, v15, v3')
            a('v_lshlrev_b32 v15, 4, v15')
            a('v_lshl_add_u32 v15, v3, 8, v15')
            a('v_add_u32 v%d, s35, v15' % (40 + kk))
            a('v_add_u32 v%d, s39, v15' % (44 + kk))
    else:
        a('v_add_u32 v40, s35, v6')
        a('v_add_u32 v44, s39, v6')
    eoff = 256 if k1 else 1024

    def reads(ks):
        b = BUF[ks & 1]
        af = AFB[ks & 1]
        c = ks >> 2
        for p in range(2):
            if k1:
                a('ds_read_b128 %s, v%d offset:%d' % (vr(af + 4 * p, 4), 40 + 4 * p + (ks & 3), (c & 1) * 4096))
            else:
                a('ds_read_b128 %s, v%d offset:%d' % (vr(af + 4 * p, 4), 40 + 4 * p, (c & 1) * 4096 + (ks & 3) * 1024))
        for seg in range(3):
            off = (c & 1) * 24576 + seg * 8192 + (ks & 3) * 2048
            for e in range(2):
                a('ds_read_b64_tr_b16 %s, v%d offset:%d' % (vr(b + 4 * seg + 2 * e, 2), 8 if c < 2 else 10, off + e * eoff))
        off = (c & 1) * 24576 + (ks & 3) * 2048
        for e in range(2):
            a('ds_read_b64_tr_b16 %s, v%d offset:%d' % (vr(b + 12 + 2 * e, 2), 12 if c < 2 else 13, off + e * eoff))

    stamp(a, 2)
    a('s_barrier')
    stamp(a, 3)
    reads(0)
    for ks in range(16):
        if ks + 1 < 16:
            if (ks + 1) % 4 == 0:
                c = (ks + 1) // 4
                a('s_waitcnt lgkmcnt(0)')
                a('s_barrier')
                stamp(a, 3 + c)
            reads(ks + 1)
            a('s_waitcnt lgkmcnt(10)')
        else:
            a('s_waitcnt lgkmcnt(0)')
        b = BUF[ks & 1]
        af = AFB[ks & 1]

        def cop(r):
            return '0' if ks == 0 else vr(r, 4)
        for p in range(2):
            for seg in range(3):
                ac = ACC + 4 * (3 * p + seg)
                a('v_mfma_f32_16x16x32_bf16 %s, %s, %s, %s' % (vr(ac, 4), vr(b + 4 * seg, 4), vr(af + 4 * p, 4), cop(ac)))
        a('v_mfma_f32_16x16x32_bf16 %s, %s, %s, %s' % (vr(CSA, 4), vr(b + 12, 4), vr(ONES, 4), cop(CSA)))
        if k1:
            a('v_mfma_f32_16x16x32_bf16 %s, %s, %s, %s' % (vr(RS, 4), vr(ONES, 4), vr(af, 4), cop(RS)))
            a('v_mfma_f32_16x16x32_bf16 %s, %s, %s, %s' % (vr(GR, 4), vr(af, 4), vr(af, 4), cop(GR)))
    stamp(a, 7)
    a('v_lshlrev_b32 v15, 4, v2')
    a('v_add_u32 v14, s35, v15')
    a('ds_write_b128 v14, %s' % vr(CSA, 4))

    def finish_stats(SUM, SQ, M, RD):
        a('v_mul_f32 v%d, 0x3b000000, v%d' % (SUM, SUM))
        a('v_mul_f32 v%d, 0x3b000000, v%d' % (SQ, SQ))
        a('v_fma_f32 v%d, -v%d, v%d, v%d' % (SQ, SUM, SUM, SQ))
        a('v_max_f32 v%d, 0, v%d' % (SQ, SQ))
        bf16r(a, M, SUM)
        bf16r(a, SQ, SQ)
        a('v_add_f32 v%d, 0x3727c5ac, v%d' % (SQ, SQ))
        bf16r(a, SQ, SQ)
        a('v_sqrt_f32 v%d, v%d' % (SQ, SQ))
        bf16r(a, SQ, SQ)
        a('v_rcp_f32 v%d, v%d' % (RD, SQ))

    if k1:
        SUM, SQ = 48, 49
        a('v_cmp_eq_u32 vcc, 1, v5')
        a('v_cndmask_b32 v%d, v%d, v%d, vcc' % (SQ, GR, GR + 1))
        a('v_cmp_eq_u32 vcc, 2, v5')
        a('v_cndmask_b32 v%d, v%d, v%d, vcc' % (SQ, SQ, GR + 2))
        a('v_cmp_eq_u32 vcc, 3, v5')
        a('v_cndmask_b32 v%d, v%d, v%d, vcc' % (SQ, SQ, GR + 3))
        a('v_cmp_eq_u32 vcc, v2, v4')
        a('v_cndmask_b32 v%d, 0, v%d, vcc' % (SQ, SQ))
        a('v_mov_b32 v%d, v%d' % (SUM, RS))
        butterfly(a, [('v_add_f32', SQ, 52)])
        finish_stats(SUM, SQ, 36, 37)
        a('v_lshlrev_b32 v50, 3, v3')
        a('v_add_u32 v51, s35, v50')
        a('ds_write_b64 v51, v[36:37] offset:256')
        a('v_add_u32 v51, s39, v50')
    else:
        a('s_waitcnt vmcnt(0)')
        a('v_add_f32 v48, v144, v146')
        a('v_add_f32 v49, v145, v147')
        a('v_add_f32 v50, v148, v150')
        a('v_add_f32 v51, v149, v151')
        butterfly(a, [('v_add_f32', 48, 52), ('v_add_f32', 49, 53), ('v_add_f32', 50, 54), ('v_add_f32', 51, 55)])
        finish_stats(48, 49, 36, 37)
        finish_stats(50, 51, 38, 39)
    a('s_lshl_b32 s27, s36, 13')
    a('s_add_u32 s27, s27, 0x%x' % ASLOT)
    a('v_add_u32 v15, s27, v15')
    a('s_waitcnt lgkmcnt(0)')
    a('s_barrier')
    if k1:
        a('ds_read_b64 v[38:39], v51 offset:256')
    for seg in range(3):
        a('ds_read_b128 %s, v15 offset:%d' % (vr(132 + 4 * seg, 4), seg * 16384))
    for p in range(2):
        for seg in range(3):
            if p == 0:
                a('s_waitcnt lgkmcnt(%d)' % (2 - seg))
            ac = ACC + 4 * (3 * p + seg)
            for r in range(4):
                a('v_fma_f32 v%d, -v%d, v%d, v%d' % (ac + r, 36 + 2 * p, 132 + 4 * seg + r, ac + r))
            for r in range(4):
                a('v_mul_f32 v%d, v%d, v%d' % (ac + r, 37 + 2 * p, ac + r))


def gen_k1(a):
    kernel_head(a, 'k1_kernel')
    a('s_cmp_ge_u32 s2, 256')
    a('s_cbranch_scc1 k1_exit')
    stamp_real(a, 0)
    stamp(a, 1)
    srd(a, 4, 0, 0)
    srd(a, 8, 8, 0)
    srd(a, 12, 16, 0)
    srd(a, 16, 88, 0)
    lane_decomp(a)
    a('s_and_b32 s30, s2, 7')
    a('s_lshr_b32 s31, s2, 3')
    a('s_lshr_b32 s21, s30, 1')
    a('s_lshl_b32 s21, s21, 2')
    a('s_and_b32 s22, s31, 3')
    a('s_add_u32 s33, s21, s22')
    a('s_and_b32 s21, s30, 1')
    a('s_lshl_b32 s21, s21, 3')
    a('s_lshr_b32 s22, s31, 2')
    a('s_add_u32 s34, s21, s22')
    a('s_lshl_b32 s21, s33, 7')
    a('s_lshl_b32 s22, s34, 6')
    a('s_waitcnt lgkmcnt(0)')
    srd_fin(a, 4, 2048 * 1024)
    srd_fin(a, 8, 512 * 3072)
    srd_fin(a, 12, 16384)
    srd_fin(a, 16, WS_SIZE)
    a('s_cmp_ge_u32 s20, 8')
    a('s_cbranch_scc1 k1_prod')

    def extra(a):
        a('v_lshlrev_b32 v15, 2, v2')
        a('v_sub_u32 v15, v3, v15')
        a('v_mov_b32 v23, 0x3f80')
        a('v_mov_b32 v24, 0x3f800000')
        a('v_cmp_eq_u32 vcc, 0, v15')
        a('v_cndmask_b32 v20, 0, v23, vcc')
        a('v_cmp_eq_u32 vcc, 1, v15')
        a('v_cndmask_b32 v21, 0, v24, vcc')
        a('v_or_b32 v20, v20, v21')
        a('v_cmp_eq_u32 vcc, 2, v15')
        a('v_cndmask_b32 v21, 0, v23, vcc')
        a('v_cmp_eq_u32 vcc, 3, v15')
        a('v_cndmask_b32 v25, 0, v24, vcc')
        a('v_or_b32 v21, v21, v25')

    gemm96_main(a, 'k1', extra)
    stamp(a, 8)
    a('v_lshl_add_u32 v15, v2, 2, v4')
    a('v_lshlrev_b32 v15, 5, v15')
    a('v_lshl_add_u32 v15, v5, 3, v15')
    a('s_lshl_b32 s30, s36, 9')
    a('s_add_u32 s30, s30, 0x%x' % ASLOT)
    a('v_add_u32 v15, s30, v15')
    a('ds_read_b64_tr_b16 v[26:27], v15 offset:1024')
    PK = 144
    for t in range(6):
        a('v_cvt_pk_bf16_f32 v%d, v%d, v%d' % (PK + 2 * t, ACC + 4 * t, ACC + 4 * t + 1))
        a('v_cvt_pk_bf16_f32 v%d, v%d, v%d' % (PK + 1 + 2 * t, ACC + 4 * t + 2, ACC + 4 * t + 3))
    a('s_waitcnt lgkmcnt(0)')
    PB = 48
    for s in range(4):
        src = PK + 2 * (3 * (s & 1) + (s >> 1))
        a('v_mfma_f32_16x16x16_bf16 %s, v[26:27], %s, 0' % (vr(PB + 4 * s, 4), vr(src, 2)))
    TV = 64
    for p in range(2):
        a('v_mfma_f32_16x16x16_bf16 %s, %s, v[20:21], 0' % (vr(TV + 4 * p, 4), vr(PK + 2 * (3 * p + 2), 2)))

    def T(s, i): return 72 + 12 * s + i
    for s in range(4):
        p = PB + 4 * s
        a('v_cvt_pk_bf16_f32 v%d, v%d, v%d' % (T(s, 2), p, p + 1))
        a('v_cvt_pk_bf16_f32 v%d, v%d, v%d' % (T(s, 3), p + 2, p + 3))
    for s in range(4):
        p = PB + 4 * s
        a('v_lshlrev_b32 v%d, 16, v%d' % (p, T(s, 2)))
        a('v_and_b32 v%d, 0xffff0000, v%d' % (p + 1, T(s, 2)))
        a('v_lshlrev_b32 v%d, 16, v%d' % (p + 2, T(s, 3)))
        a('v_and_b32 v%d, 0xffff0000, v%d' % (p + 3, T(s, 3)))
    for s in range(4):
        p = PB + 4 * s
        a('v_max3_f32 v%d, v%d, v%d, v%d' % (T(s, 0), p, p + 1, p + 2))
        a('v_min3_f32 v%d, v%d, v%d, v%d' % (T(s, 1), p, p + 1, p + 2))
        a('v_max_f32 v%d, v%d, v%d' % (T(s, 0), T(s, 0), p + 3))
        a('v_min_f32 v%d, v%d, v%d' % (T(s, 1), T(s, 1), p + 3))
    it = []
    for s in range(4):
        it += [('v_max_f32', T(s, 0), T(s, 2)), ('v_min_f32', T(s, 1), T(s, 3))]
    butterfly(a, it)
    for s in range(4):
        a('v_mul_f32 v%d, %s, v%d' % (T(s, 0), NL2E, T(s, 0)))
        a('v_mul_f32 v%d, %s, v%d' % (T(s, 1), L2E, T(s, 1)))
    a('v_mov_b32 v28, %s' % L2E)
    for s in range(4):
        p = PB + 4 * s
        for r in range(4):
            a('v_fma_f32 v%d, v%d, v28, v%d' % (T(s, 4 + r), p + r, T(s, 0)))
            a('v_fma_f32 v%d, -v%d, v28, v%d' % (T(s, 8 + r), p + r, T(s, 1)))
    for s in range(4):
        for r in range(8):
            a('v_exp_f32 v%d, v%d' % (T(s, 4 + r), T(s, 4 + r)))
    for s in range(4):
        a('v_add_f32 v%d, v%d, v%d' % (T(s, 0), T(s, 4), T(s, 5)))
        a('v_add_f32 v%d, v%d, v%d' % (T(s, 1), T(s, 8), T(s, 9)))
        a('v_add_f32 v%d, v%d, v%d' % (T(s, 2), T(s, 6), T(s, 7)))
        a('v_add_f32 v%d, v%d, v%d' % (T(s, 3), T(s, 10), T(s, 11)))
    for s in range(4):
        a('v_add_f32 v%d, v%d, v%d' % (T(s, 0), T(s, 0), T(s, 2)))
        a('v_add_f32 v%d, v%d, v%d' % (T(s, 1), T(s, 1), T(s, 3)))
    it = []
    for s in range(4):
        it += [('v_add_f32', T(s, 0), T(s, 2)), ('v_add_f32', T(s, 1), T(s, 3))]
    butterfly(a, it)
    for s in range(4):
        a('v_rcp_f32 v%d, v%d' % (T(s, 0), T(s, 0)))
        a('v_rcp_f32 v%d, v%d' % (T(s, 1), T(s, 1)))
    for s in range(4):
        for r in range(4):
            a('v_mul_f32 v%d, v%d, v%d' % (T(s, 4 + r), T(s, 0), T(s, 4 + r)))
            a('v_mul_f32 v%d, v%d, v%d' % (T(s, 8 + r), T(s, 1), T(s, 8 + r)))
    FB = 120
    for s in range(4):
        for i in range(4):
            a('v_cvt_pk_bf16_f32 v%d, v%d, v%d' % (FB + 4 * s + i, T(s, 4 + 2 * i), T(s, 5 + 2 * i)))
    a('s_lshl_b32 s31, s34, 11')
    a('s_lshl_b32 s27, s36, 10')
    a('s_add_u32 s31, s31, s27')
    for p in range(2):
        a('s_lshl_b32 s30, s%d, 11' % (24 if p == 0 else 37))
        a('s_add_u32 s30, s30, s31')
        a('buffer_store_dwordx4 %s, v6, s[16:19], s30 offen' % (vr(FB + 4 * p, 4)))
    for p in range(2):
        for pm in range(2):
            a('v_mfma_f32_16x16x16_bf16 %s, %s, v[20:21], 0' % (vr(72 + 4 * (2 * p + pm), 4), vr(FB + 4 * (2 + p) + 2 * pm, 2)))
    for p in range(2):
        a('v_cvt_pk_bf16_f32 v%d, v%d, v%d' % (88 + 2 * p, TV + 4 * p, TV + 4 * p + 1))
        a('v_cvt_pk_bf16_f32 v%d, v%d, v%d' % (89 + 2 * p, TV + 4 * p + 2, TV + 4 * p + 3))
    for i in range(4):
        a('v_cvt_pk_bf16_f32 v%d, v%d, v%d' % (92 + 2 * i, 72 + 4 * i, 73 + 4 * i))
        a('v_cvt_pk_bf16_f32 v%d, v%d, v%d' % (93 + 2 * i, 74 + 4 * i, 75 + 4 * i))
    for p in range(2):
        for pm in range(2):
            r1, r2 = 100 + 4 * pm, 100 + 4 * (2 + pm)
            a('v_mfma_f32_16x16x16_bf16 %s, %s, %s, %s' % (vr(r1, 4), vr(92 + 2 * (2 * p + pm), 2), vr(88 + 2 * p, 2), '0' if p == 0 else vr(r1, 4)))
            a('v_mfma_f32_16x16x16_bf16 %s, %s, v[16:17], %s' % (vr(r2, 4), vr(92 + 2 * (2 * p + pm), 2), '0' if p == 0 else vr(r2, 4)))
    a('s_lshl_b32 s30, s20, 12')
    a('v_add_u32 v23, s30, v6')
    for i in range(4):
        a('ds_write_b128 v23, %s offset:%d' % (vr(100 + 4 * i, 4), i * 1024))
    a('v_lshlrev_b32 v24, 4, v0')
    a('s_waitcnt lgkmcnt(0)')
    a('s_barrier')
    for m in range(4):
        a('ds_read_b128 %s, v24 offset:%d' % (vr(48 + 4 * m, 4), m * 8192))
    for m in range(1, 4):
        a('s_waitcnt lgkmcnt(%d)' % (3 - m))
        for r in range(4):
            a('v_add_f32 v%d, v%d, v%d' % (48 + r, 48 + r, 48 + 4 * m + r))
    a('s_lshl_b32 s30, s33, 17')
    a('s_lshl_b32 s31, s34, 13')
    a('s_add_u32 s30, s30, s31')
    a('s_add_u32 s30, s30, 0x%x' % WS_PART)
    a('buffer_store_dwordx4 v[48:51], v24, s[16:19], s30 offen')
    stamp(a, 9)
    stamp_real(a, 10)
    stamp_store(a, 0, 11)
    a.label('k1_exit')
    a('s_endpgm')
    gemm96_producers(a, 'k1', 'k1', 3072, 1024)


def gen_kred(a):
    kernel_head(a, 'kred_kernel')
    a('s_cmp_ge_u32 s2, 128')
    a('s_cbranch_scc1 kred_exit')
    stamp_real(a, 0)
    stamp(a, 1)
    srd(a, 16, 88, 0)
    a('v_lshlrev_b32 v1, 4, v0')
    a('v_lshrrev_b32 v2, 4, v0')
    a('v_lshlrev_b32 v2, 4, v2')
    a('s_lshl_b32 s20, s2, 10')
    a('s_add_u32 s20, s20, 0x%x' % WS_PART)
    a('s_lshr_b32 s21, s2, 2')
    a('s_and_b32 s22, s2, 3')
    a('s_waitcnt lgkmcnt(0)')
    srd_fin(a, 16, WS_SIZE)
    seqs = []
    for rb in range(16):
        seqs.append(a('buffer_load_dwordx4 %s, v1, s[16:19], s20 offen' % vr(8 + 4 * rb, 4)))
        if rb < 15:
            a('s_add_u32 s20, s20, 0x20000')
    a('s_lshl_b32 s23, s21, 10')
    a('s_add_u32 s23, s23, 0x%x' % WS_KVA)
    a('s_lshl_b32 s24, s21, 6')
    a('s_add_u32 s24, s24, 0x%x' % WS_ZA)
    a('s_cmp_lt_u32 s22, 2')
    a('s_cselect_b32 s23, s23, s24')
    a('s_cselect_b64 s[26:27], -1, 0')
    a('s_and_b32 s25, s22, 1')
    a('s_lshl_b32 s25, s25, 3')
    a('s_add_u32 s23, s23, s25')
    a('v_cndmask_b32 v3, v2, v1, s[26:27]')
    for rb in range(1, 16):
        a.wait_vm(seqs[rb])
        for r in range(4):
            a('v_add_f32 v%d, v%d, v%d' % (8 + r, 8 + r, 8 + 4 * rb + r))
    a('v_cvt_pk_bf16_f32 v4, v8, v9')
    a('v_cvt_pk_bf16_f32 v5, v10, v11')
    a('buffer_store_dwordx2 v[4:5], v3, s[16:19], s23 offen')
    if 'kred' == 'kred' and STAMP:
        a('s_mov_b32 s20, 0')
    stamp(a, 9)
    stamp_real(a, 10)
    stamp_store(a, 1, 11)
    a.label('kred_exit')
    a('s_endpgm')


def gen_k2(a):
    kernel_head(a, 'k2_kernel')
    a('s_cmp_ge_u32 s2, 256')
    a('s_cbranch_scc1 k2_exit')
    stamp_real(a, 0)
    stamp(a, 1)
    srd(a, 4, 0, 0)
    srd(a, 8, 24, 0)
    srd(a, 16, 88, 0)
    lane_decomp(a)
    a('s_and_b32 s30, s2, 7')
    a('s_lshr_b32 s31, s2, 3')
    a('s_lshl_b32 s21, s30, 2')
    a('s_and_b32 s22, s31, 3')
    a('s_add_u32 s21, s21, s22')
    a('s_lshr_b32 s22, s31, 2')
    a('s_lshl_b32 s21, s21, 6')
    a('s_lshl_b32 s23, s20, 4')
    a('s_add_u32 s24, s21, s23')
    a('s_lshl_b32 s22, s22, 7')
    a('s_waitcnt lgkmcnt(0)')
    srd_fin(a, 4, 2048 * 1024)
    srd_fin(a, 8, 512 * 1024)
    srd_fin(a, 16, WS_SIZE)
    PQ = 64
    XR = 192
    AC = 200
    WB = (216, 232)
    a('v_lshlrev_b32 v6, 4, v1')
    a('s_lshl_b32 s25, s20, 13')
    for i in range(8):
        a('s_add_u32 m0, s25, 0x%x' % (65536 + i * 1024))
        a('s_add_u32 s30, s25, 0x%x' % (WS_KVA + i * 1024))
        a('buffer_load_dwordx4 v6, s[16:19], s30 offen lds')
    a('s_and_b32 s26, s20, 1')
    a('s_lshl_b32 s26, s26, 10')
    a('s_add_u32 m0, s26, 0x%x' % 98304)
    a('s_add_u32 s30, s26, 0x%x' % WS_ZA)
    q_kv = a('buffer_load_dwordx4 v6, s[16:19], s30 offen lds')
    a('s_lshl_b32 s30, s24, 11')
    a('v_add_u32 v7, s30, v6')
    a('v_lshrrev_b32 v8, 3, v1')
    a('v_bfe_u32 v9, v1, 1, 2')
    a('v_bfe_u32 v10, v1, 4, 2')
    a('v_xor_b32 v9, v9, v10')
    a('v_and_b32 v10, 1, v1')
    a('v_lshlrev_b32 v10, 4, v10')
    a('v_lshl_add_u32 v9, v9, 5, v10')
    a('s_lshl_b32 s27, s20, 3')
    a('v_add_u32 v8, s27, v8')
    a('v_lshl_add_u32 v8, v8, 10, v9')
    a('v_add_u32 v8, s22, v8')
    a('s_lshl_b32 s25, s20, 10')
    q_pq = []
    for t in range(16):
        a('s_mov_b32 s30, 0x%x' % (t * 2048))
        a('buffer_load_dwordx4 %s, v7, s[16:19], s30 offen' % (vr(PQ + 8 * t, 4)))
        q_pq.append(a('buffer_load_dwordx4 %s, v7, s[16:19], s30 offen offset:1024' % (vr(PQ + 8 * t + 4, 4))))
        a('s_add_u32 m0, s25, 0x%x' % (t * 4096))
        a('s_mov_b32 s30, 0x%x' % (t * 32768))
        q_wo = a('buffer_load_dwordx4 v8, s[8:11], s30 offen lds')
    a('v_add_u32 v11, s24, v3')
    a('v_lshlrev_b32 v11, 10, v11')
    a('v_lshl_add_u32 v11, v2, 3, v11')
    a('v_add_u32 v11, s22, v11')
    for nt in range(4):
        q_x = a('buffer_load_dwordx2 %s, v11, s[4:7], 0 offen offset:%d' % (vr(XR + 2 * nt, 2), nt * 32))
    a('v_add_u32 v12, 0x10000, v6')
    a('v_lshlrev_b32 v13, 4, v2')
    a('v_add_u32 v13, 0x18000, v13')
    TB = 250
    a('v_lshl_add_u32 v14, v2, 2, v4')
    a('v_lshlrev_b32 v14, 7, v14')
    a('v_lshl_add_u32 v14, v5, 3, v14')
    a('v_and_b32 v15, 1, v2')
    a('v_lshlrev_b32 v15, 1, v15')
    a('v_lshrrev_b32 v48, 1, v4')
    a('v_or_b32 v15, v15, v48')
    for nt in range(4):
        a('v_xor_b32 v48, %d, v15' % nt)
        a('v_lshl_add_u32 v%d, v48, 5, v14' % (TB + nt))
    KZ = (16, 32)
    ND = (216, 232)

    def reads1(t):
        b = KZ[t & 1]
        for hh in range(2):
            h = 2 * t + hh
            a('ds_read_b128 %s, v12 offset:%d' % (vr(b + 8 * hh, 4), h * 1024))
            a('ds_read_b128 %s, v13 offset:%d' % (vr(b + 8 * hh + 4, 4), h * 64))

    def valu1(t):
        nd = ND[t & 1]
        for hh in range(2):
            n = nd + 8 * hh
            d = n + 4
            T = 48 + 8 * hh
            a('v_cvt_pk_bf16_f32 v%d, v%d, v%d' % (T, d, d))
            a('v_cvt_pk_bf16_f32 v%d, v%d, v%d' % (T + 1, n, n + 1))
            a('v_cvt_pk_bf16_f32 v%d, v%d, v%d' % (T + 2, n + 2, n + 3))
            a('v_lshlrev_b32 v%d, 16, v%d' % (T, T))
            a('v_add_f32 v%d, 0x358637bd, v%d' % (T, T))
            a('v_cvt_pk_bf16_f32 v%d, v%d, v%d' % (T, T, T))
            a('v_lshlrev_b32 v%d, 16, v%d' % (T, T))
            a('v_rcp_f32 v%d, v%d' % (T, T))
            a('v_lshlrev_b32 v%d, 16, v%d' % (T + 3, T + 1))
            a('v_and_b32 v%d, 0xffff0000, v%d' % (T + 4, T + 1))
            a('v_lshlrev_b32 v%d, 16, v%d' % (T + 5, T + 2))
            a('v_and_b32 v%d, 0xffff0000, v%d' % (T + 6, T + 2))
            for i in range(4):
                a('v_mul_f32 v%d, v%d, v%d' % (T + 3 + i, T, T + 3 + i))
            a('v_cvt_pk_bf16_f32 v%d, v%d, v%d' % (PQ + 8 * t + 2 * hh, T + 3, T + 4))
            a('v_cvt_pk_bf16_f32 v%d, v%d, v%d' % (PQ + 8 * t + 2 * hh + 1, T + 5, T + 6))

    stamp(a, 2)
    a.wait_vm(q_kv)
    a('s_barrier')
    stamp(a, 3)
    reads1(0)
    for t in range(16):
        if t + 1 < 16:
            reads1(t + 1)
            a('s_waitcnt lgkmcnt(4)')
        else:
            a('s_waitcnt lgkmcnt(0)')
        a.wait_vm(q_pq[t])
        b = KZ[t & 1]
        nd = ND[t & 1]
        for hh in range(2):
            a('v_mfma_f32_16x16x32_bf16 %s, %s, %s, 0' % (vr(nd + 8 * hh, 4), vr(b + 8 * hh, 4), vr(PQ + 8 * t + 4 * hh, 4)))
            a('v_mfma_f32_16x16x32_bf16 %s, %s, %s, 0' % (vr(nd + 8 * hh + 4, 4), vr(b + 8 * hh + 4, 4), vr(PQ + 8 * t + 4 * hh, 4)))
        if t > 0:
            valu1(t - 1)
    valu1(15)
    stamp(a, 4)
    a.wait_vm(q_wo)
    a('s_barrier')
    stamp(a, 5)

    def reads2(t):
        b = WB[t & 1]
        for nt in range(4):
            for e in range(2):
                a('ds_read_b64_tr_b16 %s, v%d offset:%d' % (vr(b + 4 * nt + 2 * e, 2), TB + nt, t * 4096 + e * 2048))
    reads2(0)
    for t in range(16):
        if t + 1 < 16:
            reads2(t + 1)
            a('s_waitcnt lgkmcnt(8)')
        else:
            a('s_waitcnt lgkmcnt(0)')
        b = WB[t & 1]
        for nt in range(4):
            c_op = '0' if t == 0 else vr(AC + 4 * nt, 4)
            a('v_mfma_f32_16x16x32_bf16 %s, %s, %s, %s' % (vr(AC + 4 * nt, 4), vr(b + 4 * nt, 4), vr(PQ + 8 * t, 4), c_op))
    stamp(a, 6)
    a.wait_vm(q_x)
    stamp(a, 7)
    stamp(a, 8)
    a('s_lshl_b32 s30, s24, 10')
    a('s_lshl_b32 s31, s22, 4')
    a('s_add_u32 s30, s30, s31')
    a('s_add_u32 s30, s30, 0x%x' % WS_H)
    OUTR = 56
    S1, S2 = 54, 55
    for nt in range(4):
        ac = AC + 4 * nt
        T = 16 + 8 * nt
        O = OUTR + 2 * nt
        a('v_cvt_pk_bf16_f32 v%d, v%d, v%d' % (T, ac, ac + 1))
        a('v_cvt_pk_bf16_f32 v%d, v%d, v%d' % (T + 1, ac + 2, ac + 3))
        a('v_lshlrev_b32 v%d, 16, v%d' % (T + 2, T))
        a('v_and_b32 v%d, 0xffff0000, v%d' % (T + 3, T))
        a('v_lshlrev_b32 v%d, 16, v%d' % (T + 4, T + 1))
        a('v_and_b32 v%d, 0xffff0000, v%d' % (T + 5, T + 1))
        x = XR + 2 * nt
        a('v_lshlrev_b32 v%d, 16, v%d' % (T + 6, x))
        a('v_and_b32 v%d, 0xffff0000, v%d' % (T + 7, x))
        a('v_add_f32 v%d, v%d, v%d' % (T + 2, T + 2, T + 6))
        a('v_add_f32 v%d, v%d, v%d' % (T + 3, T + 3, T + 7))
        a('v_lshlrev_b32 v%d, 16, v%d' % (T + 6, x + 1))
        a('v_and_b32 v%d, 0xffff0000, v%d' % (T + 7, x + 1))
        a('v_add_f32 v%d, v%d, v%d' % (T + 4, T + 4, T + 6))
        a('v_add_f32 v%d, v%d, v%d' % (T + 5, T + 5, T + 7))
        a('v_cvt_pk_bf16_f32 v%d, v%d, v%d' % (O, T + 2, T + 3))
        a('v_cvt_pk_bf16_f32 v%d, v%d, v%d' % (O + 1, T + 4, T + 5))
        if nt & 1:
            a('buffer_store_dwordx4 %s, v6, s[16:19], s30 offen offset:%d' % (vr(O - 2, 4), (nt >> 1) * 1024))
        a('v_lshlrev_b32 v%d, 16, v%d' % (T + 2, O))
        a('v_and_b32 v%d, 0xffff0000, v%d' % (T + 3, O))
        a('v_lshlrev_b32 v%d, 16, v%d' % (T + 4, O + 1))
        a('v_and_b32 v%d, 0xffff0000, v%d' % (T + 5, O + 1))
        for i in range(4):
            if nt == 0 and i == 0:
                a('v_mov_b32 v%d, v%d' % (S1, T + 2))
                a('v_mul_f32 v%d, v%d, v%d' % (S2, T + 2, T + 2))
            else:
                a('v_add_f32 v%d, v%d, v%d' % (S1, S1, T + 2 + i))
                a('v_fma_f32 v%d, v%d, v%d, v%d' % (S2, T + 2 + i, T + 2 + i, S2))
    butterfly(a, [('v_add_f32', S1, 52), ('v_add_f32', S2, 53)])
    a('v_add_u32 v12, s24, v3')
    a('v_lshlrev_b32 v12, 6, v12')
    a('s_lshr_b32 s31, s22, 4')
    a('s_add_u32 s31, s31, 0x%x' % WS_ST2)
    a('buffer_store_dwordx2 v[54:55], v12, s[16:19], s31 offen')
    if 'k2' == 'kred' and STAMP:
        a('s_mov_b32 s20, 0')
    stamp(a, 9)
    stamp_real(a, 10)
    stamp_store(a, 2, 11)
    a.label('k2_exit')
    a('s_endpgm')


def gen_k3(a):
    kernel_head(a, 'k3_kernel')
    a('s_cmp_ge_u32 s2, 240')
    a('s_cbranch_scc1 k3_exit')
    stamp_real(a, 0)
    stamp(a, 1)
    srd(a, 4, 88, 0)
    srd(a, 8, 40, 0)
    srd(a, 12, 48, 0)
    srd(a, 16, 88, 0)
    lane_decomp(a)
    a('s_and_b32 s30, s2, 7')
    a('s_lshr_b32 s31, s2, 3')
    a('s_lshl_b32 s21, s30, 1')
    a('s_and_b32 s22, s31, 1')
    a('s_add_u32 s33, s21, s22')
    a('s_lshr_b32 s34, s31, 1')
    a('s_lshl_b32 s21, s33, 7')
    a('s_mul_i32 s22, s34, 192')
    a('s_waitcnt lgkmcnt(0)')
    a('s_add_u32 s4, s4, 0x%x' % WS_H)
    a('s_addc_u32 s5, s5, 0')
    srd_fin(a, 4, 2048 * 1024)
    srd_fin(a, 8, 512 * 2752)
    srd_fin(a, 12, 2752)
    srd_fin(a, 16, WS_SIZE)
    a('s_cmp_ge_u32 s20, 8')
    a('s_cbranch_scc1 k3_prod')

    def extra(a):
        a('v_lshlrev_b32 v22, 3, v2')
        a('s_lshl_b32 s30, s36, 5')
        a('s_add_u32 s30, s30, s22')
        a('v_add_u32 v22, s30, v22')
        for seg in range(3):
            a('buffer_load_dwordx2 %s, v22, s[12:15], 0 offen offset:%d' % (vr(28 + 2 * seg, 2), seg * 64))
        a('s_mov_b32 s30, 0x%x' % WS_ST2)
        for p in range(2):
            a('v_add_u32 v23, s%d, v3' % (24 if p == 0 else 37))
            a('v_lshlrev_b32 v23, 6, v23')
            a('v_lshl_add_u32 v23, v2, 4, v23')
            a('buffer_load_dwordx4 %s, v23, s[16:19], s30 offen' % vr(144 + 4 * p, 4))

    gemm96_main(a, 'k3', extra)
    stamp(a, 8)
    a('v_lshlrev_b32 v15, 4, v1')
    a('s_lshl_b32 s27, s36, 3')
    a('s_mul_i32 s31, s34, 3 * 1024')
    a('s_add_u32 s31, s31, s27')
    a('s_add_u32 s31, s31, 0x%x' % WS_R)
    for p in range(2):
        a('s_lshr_b32 s%d, s%d, 4' % (28 + p, 24 if p == 0 else 37))
        a('s_mul_i32 s%d, s%d, 43 * 1024' % (28 + p, 28 + p))
        a('s_add_u32 s%d, s%d, s31' % (28 + p, 28 + p))
    for seg in range(3):
        if seg == 1:
            a('s_cmp_eq_u32 s34, 14')
            a('s_cbranch_scc1 k3_done')
        b = 28 + 2 * seg
        B = 132 + 4 * seg
        a('v_lshlrev_b32 v%d, 16, v%d' % (B, b))
        a('v_and_b32 v%d, 0xffff0000, v%d' % (B + 1, b))
        a('v_lshlrev_b32 v%d, 16, v%d' % (B + 2, b + 1))
        a('v_and_b32 v%d, 0xffff0000, v%d' % (B + 3, b + 1))
        for p in range(2):
            ac = ACC + 4 * (3 * p + seg)
            T = 48 + 8 * (2 * seg + p)
            a('v_cvt_pk_bf16_f32 v%d, v%d, v%d' % (T, ac, ac + 1))
            a('v_cvt_pk_bf16_f32 v%d, v%d, v%d' % (T + 1, ac + 2, ac + 3))
            a('v_lshlrev_b32 v%d, 16, v%d' % (T + 2, T))
            a('v_and_b32 v%d, 0xffff0000, v%d' % (T + 3, T))
            a('v_lshlrev_b32 v%d, 16, v%d' % (T + 4, T + 1))
            a('v_and_b32 v%d, 0xffff0000, v%d' % (T + 5, T + 1))
            for i in range(4):
                a('v_add_f32 v%d, v%d, v%d' % (T + 2 + i, T + 2 + i, B + i))
            a('v_cvt_pk_bf16_f32 v%d, v%d, v%d' % (T, T + 2, T + 3))
            a('v_cvt_pk_bf16_f32 v%d, v%d, v%d' % (T + 1, T + 4, T + 5))
            a('v_lshlrev_b32 v%d, 16, v%d' % (T + 2, T))
            a('v_and_b32 v%d, 0xffff0000, v%d' % (T + 3, T))
            a('v_lshlrev_b32 v%d, 16, v%d' % (T + 4, T + 1))
            a('v_and_b32 v%d, 0xffff0000, v%d' % (T + 5, T + 1))
            for i in range(4):
                a('v_max_f32 v%d, 0, v%d' % (T + 2 + i, T + 2 + i))
            for i in range(4):
                a('v_mul_f32 v%d, v%d, v%d' % (T + 2 + i, T + 2 + i, T + 2 + i))
            a('v_cvt_pk_bf16_f32 v%d, v%d, v%d' % (T, T + 2, T + 3))
            a('v_cvt_pk_bf16_f32 v%d, v%d, v%d' % (T + 1, T + 4, T + 5))
            a('buffer_store_dwordx2 %s, v15, s[16:19], s%d offen offset:%d' % (vr(T, 2), 28 + p, seg * 1024))
    a.label('k3_done')
    if 'k3' == 'kred' and STAMP:
        a('s_mov_b32 s20, 0')
    stamp(a, 9)
    stamp_real(a, 10)
    stamp_store(a, 3, 11)
    a.label('k3_exit')
    a('s_endpgm')
    gemm96_producers(a, 'k3', 'k3', 2752, 64)


def gen_k4(a):
    kernel_head(a, 'k4_kernel')
    a('s_cmp_ge_u32 s2, 256')
    a('s_cbranch_scc1 k4_exit')
    stamp_real(a, 0)
    stamp(a, 1)
    srd(a, 4, 72, 0)
    srd(a, 8, 56, 0)
    srd(a, 12, 64, 0)
    srd(a, 16, 88, 0)
    lane_decomp(a)
    a('s_and_b32 s30, s2, 7')
    a('s_lshr_b32 s31, s2, 3')
    a('s_lshl_b32 s21, s30, 2')
    a('s_and_b32 s22, s31, 3')
    a('s_add_u32 s21, s21, s22')
    a('s_lshr_b32 s22, s31, 2')
    a('s_lshl_b32 s21, s21, 6')
    a('s_lshl_b32 s23, s20, 4')
    a('s_add_u32 s24, s21, s23')
    a('s_lshl_b32 s22, s22, 7')
    a('s_waitcnt lgkmcnt(0)')
    srd_fin(a, 4, 2048 * 1024)
    srd_fin(a, 8, 1376 * 1024)
    srd_fin(a, 12, 1024)
    srd_fin(a, 16, WS_SIZE)
    AFR = 24
    WB = (196, 212)
    AC = 228
    TB = 244
    HR = 248
    BR = 16
    a('v_lshlrev_b32 v6, 4, v1')
    a('s_lshr_b32 s30, s24, 4')
    a('s_mul_i32 s30, s30, 43 * 1024')
    a('v_add_u32 v7, s30, v6')
    a('v_lshrrev_b32 v8, 3, v1')
    a('v_bfe_u32 v9, v1, 1, 2')
    a('v_bfe_u32 v10, v1, 4, 2')
    a('v_xor_b32 v9, v9, v10')
    a('v_and_b32 v10, 1, v1')
    a('v_lshlrev_b32 v10, 4, v10')
    a('v_lshl_add_u32 v9, v9, 5, v10')
    a('s_lshl_b32 s27, s20, 3')
    a('v_add_u32 v8, s27, v8')
    a('v_lshl_add_u32 v8, v8, 10, v9')
    a('v_add_u32 v8, s22, v8')
    a('s_lshl_b32 s25, s20, 10')
    a('s_mov_b32 s31, 0x%x' % WS_R)

    def dma(ks, slot_ks):
        a('s_add_u32 m0, s25, 0x%x' % (slot_ks * 4096))
        a('s_mov_b32 s30, 0x%x' % (ks * 32768))
        return a('buffer_load_dwordx4 v8, s[8:11], s30 offen lds')

    def aload(ks):
        a('s_mov_b32 s31, 0x%x' % (WS_R + ks * 1024))
        return a('buffer_load_dwordx4 %s, v7, s[16:19], s31 offen' % (vr(AFR + 4 * ks, 4)))

    q = {}

    def issue_chunk(c):
        n = 8 if c < 5 else 3
        for i in range(n):
            ks = 8 * c + i
            dma(ks, ks if c < 5 else i)
            q[c] = aload(ks)

    for c in range(3):
        issue_chunk(c)
    a('v_lshl_add_u32 v14, v2, 2, v4')
    a('v_lshlrev_b32 v14, 7, v14')
    a('v_lshl_add_u32 v14, v5, 3, v14')
    a('v_and_b32 v15, 1, v2')
    a('v_lshlrev_b32 v15, 1, v15')
    a('v_lshrrev_b32 v13, 1, v4')
    a('v_or_b32 v15, v15, v13')
    for nt in range(4):
        a('v_xor_b32 v13, %d, v15' % nt)
        a('v_lshl_add_u32 v%d, v13, 5, v14' % (TB + nt))
    cur_base = [0]

    def reads(ks):
        slot = ks if ks < 40 else ks - 40
        addr = slot * 4096
        want = (addr // 65536) * 65536
        if want != cur_base[0]:
            d = want - cur_base[0]
            for nt in range(4):
                if d > 0:
                    a('v_add_u32 v%d, 0x%x, v%d' % (TB + nt, d, TB + nt))
                else:
                    a('v_subrev_u32 v%d, 0x%x, v%d' % (TB + nt, -d, TB + nt))
            cur_base[0] = want
        b = WB[ks & 1]
        for nt in range(4):
            for e in range(2):
                a('ds_read_b64_tr_b16 %s, v%d offset:%d' % (vr(b + 4 * nt + 2 * e, 2), TB + nt, addr - want + e * 2048))

    stamp(a, 2)
    a.wait_vm(q[0])
    a('s_barrier')
    stamp(a, 3)
    reads(0)
    for ks in range(43):
        if ks == 4:
            issue_chunk(3)
        if ks == 12:
            issue_chunk(4)
        if ks == 20:
            a('v_add_u32 v11, s24, v3')
            a('v_lshlrev_b32 v11, 10, v11')
            a('v_lshl_add_u32 v11, v2, 3, v11')
            a('v_add_u32 v11, s22, v11')
            a('s_lshl_b32 s30, s24, 10')
            a('s_lshl_b32 s31, s22, 4')
            a('s_add_u32 s30, s30, s31')
            a('s_add_u32 s30, s30, 0x%x' % WS_H)
            for j in range(2):
                a('buffer_load_dwordx4 %s, v6, s[16:19], s30 offen offset:%d' % (vr(HR + 4 * j, 4), j * 1024))
            a('v_lshlrev_b32 v12, 3, v2')
            a('v_add_u32 v12, s22, v12')
            for nt in range(4):
                q_e = a('buffer_load_dwordx2 %s, v12, s[12:15], 0 offen offset:%d' % (vr(BR + 2 * nt, 2), nt * 32))
        if ks + 1 < 43:
            if (ks + 1) % 8 == 0:
                a.wait_vm(q[(ks + 1) // 8])
                a('s_barrier')
                if (ks + 1) // 8 < 5:
                    stamp(a, 3 + (ks + 1) // 8)
                if ks + 1 == 16:
                    issue_chunk(5)
            reads(ks + 1)
            a('s_waitcnt lgkmcnt(8)')
        else:
            a('s_waitcnt lgkmcnt(0)')
        b = WB[ks & 1]
        for nt in range(4):
            c_op = '0' if ks == 0 else vr(AC + 4 * nt, 4)
            a('v_mfma_f32_16x16x32_bf16 %s, %s, %s, %s' % (vr(AC + 4 * nt, 4), vr(b + 4 * nt, 4), vr(AFR + 4 * ks, 4), c_op))
    stamp(a, 8)
    a('s_waitcnt vmcnt(0)')
    for nt in range(4):
        ac = AC + 4 * nt
        T = 24 + 8 * nt
        b = BR + 2 * nt
        x = HR + 2 * nt
        a('v_cvt_pk_bf16_f32 v%d, v%d, v%d' % (T, ac, ac + 1))
        a('v_cvt_pk_bf16_f32 v%d, v%d, v%d' % (T + 1, ac + 2, ac + 3))
        for (src) in (b, x):
            a('v_lshlrev_b32 v%d, 16, v%d' % (T + 2, T))
            a('v_and_b32 v%d, 0xffff0000, v%d' % (T + 3, T))
            a('v_lshlrev_b32 v%d, 16, v%d' % (T + 4, T + 1))
            a('v_and_b32 v%d, 0xffff0000, v%d' % (T + 5, T + 1))
            a('v_lshlrev_b32 v%d, 16, v%d' % (T + 6, src))
            a('v_and_b32 v%d, 0xffff0000, v%d' % (T + 7, src))
            a('v_add_f32 v%d, v%d, v%d' % (T + 2, T + 2, T + 6))
            a('v_add_f32 v%d, v%d, v%d' % (T + 3, T + 3, T + 7))
            a('v_lshlrev_b32 v%d, 16, v%d' % (T + 6, src + 1))
            a('v_and_b32 v%d, 0xffff0000, v%d' % (T + 7, src + 1))
            a('v_add_f32 v%d, v%d, v%d' % (T + 4, T + 4, T + 6))
            a('v_add_f32 v%d, v%d, v%d' % (T + 5, T + 5, T + 7))
            a('v_cvt_pk_bf16_f32 v%d, v%d, v%d' % (T, T + 2, T + 3))
            a('v_cvt_pk_bf16_f32 v%d, v%d, v%d' % (T + 1, T + 4, T + 5))
        a('buffer_store_dwordx2 %s, v11, s[4:7], 0 offen offset:%d' % (vr(T, 2), nt * 32))
    if 'k4' == 'kred' and STAMP:
        a('s_mov_b32 s20, 0')
    stamp(a, 9)
    stamp_real(a, 10)
    stamp_store(a, 4, 11)
    a.label('k4_exit')
    a('s_endpgm')


def desc(name, vgpr, sgpr=64):
    return '''.amdhsa_kernel %s
  .amdhsa_next_free_vgpr %d
  .amdhsa_next_free_sgpr %d
  .amdhsa_accum_offset %d
  .amdhsa_group_segment_fixed_size 0
  .amdhsa_kernarg_size 96
  .amdhsa_user_sgpr_count 2
  .amdhsa_user_sgpr_kernarg_segment_ptr 1
  .amdhsa_system_sgpr_workgroup_id_x 1
.end_amdhsa_kernel
''' % (name, vgpr, sgpr, vgpr)


KERNELS = [
    ('k1_kernel', gen_k1, 256, 640, 163840, 160),
    ('kred_kernel', gen_kred, 128, 64, 0, 72),
    ('k2_kernel', gen_k2, 256, 256, 100352, 256),
    ('k3_kernel', gen_k3, 240, 640, 163840, 160),
    ('k4_kernel', gen_k4, 256, 256, 163840, 256),
]


def build(kernels):
    head = ''
    for (n, g, grid, block, lds, v) in kernels:
        head += '; @launch kernel=%s grid=(%d,1,1) block=(%d,1,1) lds=%d\n' % (n, grid, block, lds)
    head += '.amdgcn_target "amdgcn-amd-amdhsa--gfx950"\n.text\n'
    a = Asm()
    seen = set()
    for (n, g, grid, block, lds, v) in kernels:
        if n in seen:
            continue
        seen.add(n)
        a.vm_issued = 0
        g(a)
    d = '.section .rodata,"a"\n.p2align 6\n'
    seen = set()
    for (n, g, grid, block, lds, v) in kernels:
        if n in seen:
            continue
        seen.add(n)
        d += desc(n, v)
    body = a.text()
    if STPOL:
        import re
        body = re.sub(r'(buffer_store_dwordx[24] [^\n]*)', lambda m: m.group(1) + ' ' + STPOL, body)
    return head + body + d


if __name__ == '__main__':
    out = sys.argv[1] if len(sys.argv) > 1 else 'cur.s'
    open(out, 'w').write(build(KERNELS))
    print('wrote', out)
```

```python
import sys, os
sys.path.insert(0, os.path.dirname(__file__))
from dsl import Asm

MB = 1 << 20
WS_PHIQ = 0
WS_PART = 4 * MB
WS_KVA = 6 * MB
WS_ZA = 6 * MB + 32768
WS_ST2 = 6 * MB + 524288
WS_H = 7 * MB
WS_R = 9 * MB
WS_SIZE = 16 * MB
L2E = '0x3fb8aa3b'
NL2E = '0xbfb8aa3b'


def vr(b, n):
    return 'v[%d:%d]' % (b, b + n - 1)


def srd(a, s, koff, size):
    a('s_load_dwordx2 s[%d:%d], s[0:1], %d' % (s, s + 1, koff))


def srd_fin(a, s, size):
    a('s_and_b32 s%d, s%d, 0xffff' % (s + 1, s + 1))
    a('s_mov_b32 s%d, 0x%x' % (s + 2, size))
    a('s_mov_b32 s%d, 0x00020000' % (s + 3))


def bf16r(a, d, s):
    a('v_cvt_pk_bf16_f32 v%d, v%d, v%d' % (d, s, s))
    a('v_lshlrev_b32 v%d, 16, v%d' % (d, d))


def butterfly(a, items):
    for sw in ('v_permlane16_swap_b32', 'v_permlane32_swap_b32'):
        for (op, r, t) in items:
            a('v_mov_b32 v%d, v%d' % (t, r))
        for (op, r, t) in items:
            a('%s v%d, v%d' % (sw, r, t))
        for (op, r, t) in items:
            a('%s v%d, v%d, v%d' % (op, r, r, t))


STAMP = os.environ.get('STAMP')
PREFETCH = int(os.environ.get('PREFETCH', '1'))
STPOL = os.environ.get('STPOL', '')
WS_STAMP = 15 * MB


def stamp(a, i):
    if STAMP:
        a('s_memtime s[%d:%d]' % (40 + 2 * i, 41 + 2 * i))


def stamp_real(a, i):
    if STAMP:
        a('s_memrealtime s[%d:%d]' % (40 + 2 * i, 41 + 2 * i))


def stamp_store(a, kidx, n, srd=16):
    if not STAMP:
        return
    a('s_waitcnt lgkmcnt(0)')
    a('s_lshl_b32 s38, s2, 3')
    a('s_add_u32 s38, s38, s20')
    a('s_lshl_b32 s38, s38, 6')
    a('s_add_u32 s38, s38, 0x%x' % (WS_STAMP + kidx * 131072))
    a('v_mov_b32 v0, 0')
    for i in range(n):
        a('v_mov_b32 v1, s%d' % (40 + 2 * i))
        a('buffer_store_dword v1, v0, s[%d:%d], s38 offen offset:%d' % (srd, srd + 3, i * 4))


def kernel_head(a, name):
    a.raw('.globl %s' % name)
    a.raw('.p2align 8')
    a.raw('.type %s,@function' % name)
    a.label(name)
    a.hist = []


def lane_decomp(a):
    a('v_and_b32 v1, 63, v0')
    a('v_lshrrev_b32 v6, 6, v0')
    a('v_lshrrev_b32 v2, 4, v1')
    a('v_and_b32 v3, 15, v1')
    a('v_readfirstlane_b32 s20, v6')
    a('v_bfe_u32 v4, v1, 2, 2')
    a('v_and_b32 v5, 3, v1')


AFB = (48, 56)
BUF = (64, 80)
ACC = 96
RS, GR, CSA = 120, 124, 128
ONES = 16
ASLOT = 98304


def gemm96_producers(a, mode, name, wstride, seg_off):
    k1 = mode == 'k1'
    a.label(name + '_prod')
    a.hist = []
    a('s_cmp_eq_u32 s20, 9')
    a('s_cbranch_scc1 %s_prodA' % name)
    a.vm_issued = 0
    a('v_lshrrev_b32 v7, 2, v1')
    a('v_mul_u32_u24 v7, 0x%x, v7' % wstride)
    a('v_bfe_u32 v15, v1, %d, 1' % (5 if k1 else 4))
    a('v_lshlrev_b32 v15, 1, v15')
    a('v_xor_b32 v15, v15, v5')
    a('v_lshl_add_u32 v7, v15, 4, v7')
    a('v_add_u32 v7, s22, v7')
    last = {}

    def bchunk(c):
        for rg in range(8):
            for seg in range(3):
                a('s_mov_b32 m0, 0x%x' % (c * 24576 + seg * 8192 + rg * 1024))
                a('s_mov_b32 s30, 0x%x' % ((c * 128 + rg * 16) * wstride + seg * seg_off))
                last[c] = a('buffer_load_dwordx4 v7, s[8:11], s30 offen lds')
    if k1 and PREFETCH:
        srd(a, 44, 24, 0)
        srd(a, 48, 40, 0)
        srd(a, 52, 56, 0)
    bchunk(0)
    bchunk(1)
    for c in range(4):
        a.wait_vm(last[c])
        a('s_barrier')
        if c + 2 < 4:
            bchunk(c + 2)
        if c == 3 and k1 and PREFETCH:
            a('s_waitcnt lgkmcnt(0)')
            srd_fin(a, 44, 512 * 1024)
            srd_fin(a, 48, 512 * 2752)
            srd_fin(a, 52, 1376 * 1024)
            a('v_lshlrev_b32 v6, 4, v1')
            a('s_lshl_b32 s30, s2, 11')
            a('s_mul_i32 s31, s2, 5504')
            for i in range(2):
                a('buffer_load_dwordx4 %s, v6, s[44:47], s30 offen offset:%d' % (vr(64 + 4 * i, 4), i * 1024))
            for i in range(4):
                a('buffer_load_dwordx4 %s, v6, s[48:51], s31 offen offset:%d' % (vr(72 + 4 * i, 4), i * 1024))
                a('buffer_load_dwordx4 %s, v6, s[52:55], s31 offen offset:%d' % (vr(96 + 4 * i, 4), i * 1024))
            a('s_add_u32 s31, s31, 4096')
            for i in range(2):
                a('buffer_load_dwordx4 %s, v6, s[48:51], s31 offen offset:%d' % (vr(88 + 4 * i, 4), i * 1024))
                a('buffer_load_dwordx4 %s, v6, s[52:55], s31 offen offset:%d' % (vr(112 + 4 * i, 4), i * 1024))
    a('s_waitcnt vmcnt(0)')
    a('s_endpgm')
    a.label(name + '_prodA')
    a.hist = []
    a.vm_issued = 0
    if k1:
        for j in range(4):
            a('v_add_u32 v15, %d, v2' % (4 * j))
            a('v_xor_b32 v%d, v15, v3' % (36 + j))
            a('v_add_u32 v15, s21, v15')
            a('v_lshlrev_b32 v15, 10, v15')
            a('v_lshl_add_u32 v%d, v%d, 4, v15' % (36 + j, 36 + j))
    else:
        a('s_lshl_b32 s31, s21, 10')
        a('v_lshlrev_b32 v6, 4, v1')
        a('v_add_u32 v36, s31, v6')
    last = {}

    def achunk(c):
        for rt in range(8):
            if a.vm_issued - achunk.done >= 60:
                a('s_waitcnt vmcnt(40)')
                achunk.done = a.vm_issued - 40
            for j in range(4):
                a('s_mov_b32 m0, 0x%x' % (ASLOT + rt * 8192 + (c & 1) * 4096 + j * 1024))
                if k1:
                    a('s_mov_b32 s30, 0x%x' % (rt * 16384 + c * 256))
                    last[c] = a('buffer_load_dwordx4 v%d, s[4:7], s30 offen lds' % (36 + j))
                else:
                    a('s_mov_b32 s30, 0x%x' % (rt * 16384 + (4 * c + j) * 1024))
                    last[c] = a('buffer_load_dwordx4 v36, s[4:7], s30 offen lds')
    achunk.done = 0
    achunk(0)
    achunk(1)
    for c in range(4):
        a.wait_vm(last[c])
        achunk.done = last[c]
        a('s_barrier')
        if c >= 1 and c + 1 < 4:
            achunk(c + 1)
    if k1:
        a('v_lshlrev_b32 v22, 4, v1')
        a('s_mov_b32 m0, 0x%x' % (ASLOT + 1024))
        a('s_lshl_b32 s30, s34, 10')
        a('buffer_load_dwordx4 v22, s[12:15], s30 offen lds')
        a('s_waitcnt vmcnt(0)')
        a('s_barrier')
    a('s_endpgm')


def gemm96_main(a, mode, extra_loads):
    k1 = mode == 'k1'
    a('s_lshl_b32 s23, s20, 4')
    a('s_add_u32 s24, s21, s23')
    a('s_xor_b32 s37, s24, 16')
    a('s_and_b32 s36, s20, 1')
    a('s_lshl_b32 s35, s20, 13')
    a('s_add_u32 s35, s35, 0x%x' % ASLOT)
    a('s_xor_b32 s39, s35, 0x2000')
    a('v_lshlrev_b32 v6, 4, v1')
    extra_loads(a)
    a('v_lshl_add_u32 v8, v2, %d, v4' % (3 if k1 else 2))
    a('v_lshlrev_b32 v8, 6, v8')
    a('v_lshl_add_u32 v8, v5, 3, v8')
    a('v_and_b32 v15, 1, v2')
    a('v_lshlrev_b32 v15, 5, v15')
    a('s_sub_u32 s26, s20, 6')
    a('s_cmp_lt_u32 s20, 6')
    a('s_cselect_b32 s26, s20, s26')
    a('s_lshr_b32 s27, s26, 1')
    a('s_lshl_b32 s27, s27, 13')
    a('s_lshl_b32 s28, s36, 5')
    a('v_xor_b32 v15, s28, v15')
    a('v_add_u32 v8, v8, v15')
    a('v_add_u32 v10, 0xc000, v8')
    a('v_add_u32 v12, s27, v8')
    a('v_add_u32 v13, 0xc000, v12')
    for i in range(4):
        a('v_mov_b32 v%d, 0x3f803f80' % (ONES + i))
    if k1:
        for kk in range(4):
            a('v_add_u32 v15, %d, v2' % (4 * kk))
            a('v_xor_b32 v15, v15, v3')
            a('v_lshlrev_b32 v15, 4, v15')
            a('v_lshl_add_u32 v15, v3, 8, v15')
            a('v_add_u32 v%d, s35, v15' % (40 + kk))
            a('v_add_u32 v%d, s39, v15' % (44 + kk))
    else:
        a('v_add_u32 v40, s35, v6')
        a('v_add_u32 v44, s39, v6')
    eoff = 256 if k1 else 1024

    def reads(ks):
        b = BUF[ks & 1]
        af = AFB[ks & 1]
        c = ks >> 2
        for p in range(2):
            if k1:
                a('ds_read_b128 %s, v%d offset:%d' % (vr(af + 4 * p, 4), 40 + 4 * p + (ks & 3), (c & 1) * 4096))
            else:
                a('ds_read_b128 %s, v%d offset:%d' % (vr(af + 4 * p, 4), 40 + 4 * p, (c & 1) * 4096 + (ks & 3) * 1024))
        for seg in range(3):
            off = (c & 1) * 24576 + seg * 8192 + (ks & 3) * 2048
            for e in range(2):
                a('ds_read_b64_tr_b16 %s, v%d offset:%d' % (vr(b + 4 * seg + 2 * e, 2), 8 if c < 2 else 10, off + e * eoff))
        off = (c & 1) * 24576 + (ks & 3) * 2048
        for e in range(2):
            a('ds_read_b64_tr_b16 %s, v%d offset:%d' % (vr(b + 12 + 2 * e, 2), 12 if c < 2 else 13, off + e * eoff))

    stamp(a, 2)
    a('s_barrier')
    stamp(a, 3)
    reads(0)
    for ks in range(16):
        if ks + 1 < 16:
            if (ks + 1) % 4 == 0:
                c = (ks + 1) // 4
                a('s_waitcnt lgkmcnt(0)')
                a('s_barrier')
                stamp(a, 3 + c)
            reads(ks + 1)
            a('s_waitcnt lgkmcnt(10)')
        else:
            a('s_waitcnt lgkmcnt(0)')
        b = BUF[ks & 1]
        af = AFB[ks & 1]

        def cop(r):
            return '0' if ks == 0 else vr(r, 4)
        for p in range(2):
            for seg in range(3):
                ac = ACC + 4 * (3 * p + seg)
                a('v_mfma_f32_16x16x32_bf16 %s, %s, %s, %s' % (vr(ac, 4), vr(b + 4 * seg, 4), vr(af + 4 * p, 4), cop(ac)))
        a('v_mfma_f32_16x16x32_bf16 %s, %s, %s, %s' % (vr(CSA, 4), vr(b + 12, 4), vr(ONES, 4), cop(CSA)))
        if k1:
            a('v_mfma_f32_16x16x32_bf16 %s, %s, %s, %s' % (vr(RS, 4), vr(ONES, 4), vr(af, 4), cop(RS)))
            a('v_mfma_f32_16x16x32_bf16 %s, %s, %s, %s' % (vr(GR, 4), vr(af, 4), vr(af, 4), cop(GR)))
    stamp(a, 7)
    a('v_lshlrev_b32 v15, 4, v2')
    a('v_add_u32 v14, s35, v15')
    a('ds_write_b128 v14, %s' % vr(CSA, 4))

    def finish_stats(SUM, SQ, M, RD):
        a('v_mul_f32 v%d, 0x3b000000, v%d' % (SUM, SUM))
        a('v_mul_f32 v%d, 0x3b000000, v%d' % (SQ, SQ))
        a('v_fma_f32 v%d, -v%d, v%d, v%d' % (SQ, SUM, SUM, SQ))
        a('v_max_f32 v%d, 0, v%d' % (SQ, SQ))
        bf16r(a, M, SUM)
        bf16r(a, SQ, SQ)
        a('v_add_f32 v%d, 0x3727c5ac, v%d' % (SQ, SQ))
        bf16r(a, SQ, SQ)
        a('v_sqrt_f32 v%d, v%d' % (SQ, SQ))
        bf16r(a, SQ, SQ)
        a('v_rcp_f32 v%d, v%d' % (RD, SQ))

    if k1:
        SUM, SQ = 48, 49
        a('v_cmp_eq_u32 vcc, 1, v5')
        a('v_cndmask_b32 v%d, v%d, v%d, vcc' % (SQ, GR, GR + 1))
        a('v_cmp_eq_u32 vcc, 2, v5')
        a('v_cndmask_b32 v%d, v%d, v%d, vcc' % (SQ, SQ, GR + 2))
        a('v_cmp_eq_u32 vcc, 3, v5')
        a('v_cndmask_b32 v%d, v%d, v%d, vcc' % (SQ, SQ, GR + 3))
        a('v_cmp_eq_u32 vcc, v2, v4')
        a('v_cndmask_b32 v%d, 0, v%d, vcc' % (SQ, SQ))
        a('v_mov_b32 v%d, v%d' % (SUM, RS))
        butterfly(a, [('v_add_f32', SQ, 52)])
        finish_stats(SUM, SQ, 36, 37)
        a('v_lshlrev_b32 v50, 3, v3')
        a('v_add_u32 v51, s35, v50')
        a('ds_write_b64 v51, v[36:37] offset:256')
        a('v_add_u32 v51, s39, v50')
    else:
        a('s_waitcnt vmcnt(0)')
        a('v_add_f32 v48, v144, v146')
        a('v_add_f32 v49, v145, v147')
        a('v_add_f32 v50, v148, v150')
        a('v_add_f32 v51, v149, v151')
        butterfly(a, [('v_add_f32', 48, 52), ('v_add_f32', 49, 53), ('v_add_f32', 50, 54), ('v_add_f32', 51, 55)])
        finish_stats(48, 49, 36, 37)
        finish_stats(50, 51, 38, 39)
    a('s_lshl_b32 s27, s36, 13')
    a('s_add_u32 s27, s27, 0x%x' % ASLOT)
    a('v_add_u32 v15, s27, v15')
    a('s_waitcnt lgkmcnt(0)')
    a('s_barrier')
    if k1:
        a('ds_read_b64 v[38:39], v51 offset:256')
    for seg in range(3):
        a('ds_read_b128 %s, v15 offset:%d' % (vr(132 + 4 * seg, 4), seg * 16384))
    for p in range(2):
        for seg in range(3):
            if p == 0:
                a('s_waitcnt lgkmcnt(%d)' % (2 - seg))
            ac = ACC + 4 * (3 * p + seg)
            for r in range(4):
                a('v_fma_f32 v%d, -v%d, v%d, v%d' % (ac + r, 36 + 2 * p, 132 + 4 * seg + r, ac + r))
            for r in range(4):
                a('v_mul_f32 v%d, v%d, v%d' % (ac + r, 37 + 2 * p, ac + r))


def gen_k1(a):
    kernel_head(a, 'k1_kernel')
    a('s_cmp_ge_u32 s2, 256')
    a('s_cbranch_scc1 k1_exit')
    stamp_real(a, 0)
    stamp(a, 1)
    srd(a, 4, 0, 0)
    srd(a, 8, 8, 0)
    srd(a, 12, 16, 0)
    srd(a, 16, 88, 0)
    lane_decomp(a)
    a('s_and_b32 s30, s2, 7')
    a('s_lshr_b32 s31, s2, 3')
    a('s_lshr_b32 s21, s30, 1')
    a('s_lshl_b32 s21, s21, 2')
    a('s_and_b32 s22, s31, 3')
    a('s_add_u32 s33, s21, s22')
    a('s_and_b32 s21, s30, 1')
    a('s_lshl_b32 s21, s21, 3')
    a('s_lshr_b32 s22, s31, 2')
    a('s_add_u32 s34, s21, s22')
    a('s_lshl_b32 s21, s33, 7')
    a('s_lshl_b32 s22, s34, 6')
    a('s_waitcnt lgkmcnt(0)')
    srd_fin(a, 4, 2048 * 1024)
    srd_fin(a, 8, 512 * 3072)
    srd_fin(a, 12, 16384)
    srd_fin(a, 16, WS_SIZE)
    a('s_cmp_ge_u32 s20, 8')
    a('s_cbranch_scc1 k1_prod')

    def extra(a):
        if PREFETCH >= 2:
            a('s_lshl_b32 s30, s2, 2')
            a('s_and_b32 s31, s20, 3')
            a('s_add_u32 s30, s30, s31')
            a('s_cmp_ge_u32 s20, 4')
            a('s_cbranch_scc1 k1_pfw')
            a('v_lshrrev_b32 v15, 5, v1')
            a('v_and_b32 v23, 31, v1')
            a('v_lshlrev_b32 v23, 4, v23')
            a('v_lshl_add_u32 v15, v15, 10, v23')
            a('s_lshl_b32 s30, s30, 11')
            a('buffer_load_dwordx4 v[156:159], v15, s[4:7], s30 offen offset:512')
            a('s_branch k1_pfd')
            a.label('k1_pfw')
            a('s_mul_i32 s30, s30, 768')
            a('s_add_u32 s30, s30, 0x%x' % (256 * 3072))
            a('buffer_load_dwordx4 v[156:159], v6, s[8:11], s30 offen')
            a.label('k1_pfd')
        a('v_lshlrev_b32 v15, 2, v2')
        a('v_sub_u32 v15, v3, v15')
        a('v_mov_b32 v23, 0x3f80')
        a('v_mov_b32 v24, 0x3f800000')
        a('v_cmp_eq_u32 vcc, 0, v15')
        a('v_cndmask_b32 v20, 0, v23, vcc')
        a('v_cmp_eq_u32 vcc, 1, v15')
        a('v_cndmask_b32 v21, 0, v24, vcc')
        a('v_or_b32 v20, v20, v21')
        a('v_cmp_eq_u32 vcc, 2, v15')
        a('v_cndmask_b32 v21, 0, v23, vcc')
        a('v_cmp_eq_u32 vcc, 3, v15')
        a('v_cndmask_b32 v25, 0, v24, vcc')
        a('v_or_b32 v21, v21, v25')

    gemm96_main(a, 'k1', extra)
    stamp(a, 8)
    a('v_lshl_add_u32 v15, v2, 2, v4')
    a('v_lshlrev_b32 v15, 5, v15')
    a('v_lshl_add_u32 v15, v5, 3, v15')
    a('s_lshl_b32 s30, s36, 9')
    a('s_add_u32 s30, s30, 0x%x' % ASLOT)
    a('v_add_u32 v15, s30, v15')
    a('ds_read_b64_tr_b16 v[26:27], v15 offset:1024')
    PK = 144
    for t in range(6):
        a('v_cvt_pk_bf16_f32 v%d, v%d, v%d' % (PK + 2 * t, ACC + 4 * t, ACC + 4 * t + 1))
        a('v_cvt_pk_bf16_f32 v%d, v%d, v%d' % (PK + 1 + 2 * t, ACC + 4 * t + 2, ACC + 4 * t + 3))
    a('s_waitcnt lgkmcnt(0)')
    PB = 48
    for s in range(4):
        src = PK + 2 * (3 * (s & 1) + (s >> 1))
        a('v_mfma_f32_16x16x16_bf16 %s, v[26:27], %s, 0' % (vr(PB + 4 * s, 4), vr(src, 2)))
    TV = 64
    for p in range(2):
        a('v_mfma_f32_16x16x16_bf16 %s, %s, v[20:21], 0' % (vr(TV + 4 * p, 4), vr(PK + 2 * (3 * p + 2), 2)))

    def T(s, i): return 72 + 12 * s + i
    for s in range(4):
        p = PB + 4 * s
        a('v_cvt_pk_bf16_f32 v%d, v%d, v%d' % (T(s, 2), p, p + 1))
        a('v_cvt_pk_bf16_f32 v%d, v%d, v%d' % (T(s, 3), p + 2, p + 3))
    for s in range(4):
        p = PB + 4 * s
        a('v_lshlrev_b32 v%d, 16, v%d' % (p, T(s, 2)))
        a('v_and_b32 v%d, 0xffff0000, v%d' % (p + 1, T(s, 2)))
        a('v_lshlrev_b32 v%d, 16, v%d' % (p + 2, T(s, 3)))
        a('v_and_b32 v%d, 0xffff0000, v%d' % (p + 3, T(s, 3)))
    for s in range(4):
        p = PB + 4 * s
        a('v_max3_f32 v%d, v%d, v%d, v%d' % (T(s, 0), p, p + 1, p + 2))
        a('v_min3_f32 v%d, v%d, v%d, v%d' % (T(s, 1), p, p + 1, p + 2))
        a('v_max_f32 v%d, v%d, v%d' % (T(s, 0), T(s, 0), p + 3))
        a('v_min_f32 v%d, v%d, v%d' % (T(s, 1), T(s, 1), p + 3))
    it = []
    for s in range(4):
        it += [('v_max_f32', T(s, 0), T(s, 2)), ('v_min_f32', T(s, 1), T(s, 3))]
    butterfly(a, it)
    for s in range(4):
        a('v_mul_f32 v%d, %s, v%d' % (T(s, 0), NL2E, T(s, 0)))
        a('v_mul_f32 v%d, %s, v%d' % (T(s, 1), L2E, T(s, 1)))
    a('v_mov_b32 v28, %s' % L2E)
    for s in range(4):
        p = PB + 4 * s
        for r in range(4):
            a('v_fma_f32 v%d, v%d, v28, v%d' % (T(s, 4 + r), p + r, T(s, 0)))
            a('v_fma_f32 v%d, -v%d, v28, v%d' % (T(s, 8 + r), p + r, T(s, 1)))
    for s in range(4):
        for r in range(8):
            a('v_exp_f32 v%d, v%d' % (T(s, 4 + r), T(s, 4 + r)))
    for s in range(4):
        a('v_add_f32 v%d, v%d, v%d' % (T(s, 0), T(s, 4), T(s, 5)))
        a('v_add_f32 v%d, v%d, v%d' % (T(s, 1), T(s, 8), T(s, 9)))
        a('v_add_f32 v%d, v%d, v%d' % (T(s, 2), T(s, 6), T(s, 7)))
        a('v_add_f32 v%d, v%d, v%d' % (T(s, 3), T(s, 10), T(s, 11)))
    for s in range(4):
        a('v_add_f32 v%d, v%d, v%d' % (T(s, 0), T(s, 0), T(s, 2)))
        a('v_add_f32 v%d, v%d, v%d' % (T(s, 1), T(s, 1), T(s, 3)))
    it = []
    for s in range(4):
        it += [('v_add_f32', T(s, 0), T(s, 2)), ('v_add_f32', T(s, 1), T(s, 3))]
    butterfly(a, it)
    for s in range(4):
        a('v_rcp_f32 v%d, v%d' % (T(s, 0), T(s, 0)))
        a('v_rcp_f32 v%d, v%d' % (T(s, 1), T(s, 1)))
    for s in range(4):
        for r in range(4):
            a('v_mul_f32 v%d, v%d, v%d' % (T(s, 4 + r), T(s, 0), T(s, 4 + r)))
            a('v_mul_f32 v%d, v%d, v%d' % (T(s, 8 + r), T(s, 1), T(s, 8 + r)))
    FB = 120
    for s in range(4):
        for i in range(4):
            a('v_cvt_pk_bf16_f32 v%d, v%d, v%d' % (FB + 4 * s + i, T(s, 4 + 2 * i), T(s, 5 + 2 * i)))
    a('s_lshl_b32 s31, s34, 11')
    a('s_lshl_b32 s27, s36, 10')
    a('s_add_u32 s31, s31, s27')
    for p in range(2):
        a('s_lshl_b32 s30, s%d, 11' % (24 if p == 0 else 37))
        a('s_add_u32 s30, s30, s31')
        a('buffer_store_dwordx4 %s, v6, s[16:19], s30 offen' % (vr(FB + 4 * p, 4)))
    for p in range(2):
        for pm in range(2):
            a('v_mfma_f32_16x16x16_bf16 %s, %s, v[20:21], 0' % (vr(72 + 4 * (2 * p + pm), 4), vr(FB + 4 * (2 + p) + 2 * pm, 2)))
    for p in range(2):
        a('v_cvt_pk_bf16_f32 v%d, v%d, v%d' % (88 + 2 * p, TV + 4 * p, TV + 4 * p + 1))
        a('v_cvt_pk_bf16_f32 v%d, v%d, v%d' % (89 + 2 * p, TV + 4 * p + 2, TV + 4 * p + 3))
    for i in range(4):
        a('v_cvt_pk_bf16_f32 v%d, v%d, v%d' % (92 + 2 * i, 72 + 4 * i, 73 + 4 * i))
        a('v_cvt_pk_bf16_f32 v%d, v%d, v%d' % (93 + 2 * i, 74 + 4 * i, 75 + 4 * i))
    for p in range(2):
        for pm in range(2):
            r1, r2 = 100 + 4 * pm, 100 + 4 * (2 + pm)
            a('v_mfma_f32_16x16x16_bf16 %s, %s, %s, %s' % (vr(r1, 4), vr(92 + 2 * (2 * p + pm), 2), vr(88 + 2 * p, 2), '0' if p == 0 else vr(r1, 4)))
            a('v_mfma_f32_16x16x16_bf16 %s, %s, v[16:17], %s' % (vr(r2, 4), vr(92 + 2 * (2 * p + pm), 2), '0' if p == 0 else vr(r2, 4)))
    a('s_lshl_b32 s30, s20, 12')
    a('v_add_u32 v23, s30, v6')
    for i in range(4):
        a('ds_write_b128 v23, %s offset:%d' % (vr(100 + 4 * i, 4), i * 1024))
    a('v_lshlrev_b32 v24, 4, v0')
    a('s_waitcnt lgkmcnt(0)')
    a('s_barrier')
    for m in range(4):
        a('ds_read_b128 %s, v24 offset:%d' % (vr(48 + 4 * m, 4), m * 8192))
    for m in range(1, 4):
        a('s_waitcnt lgkmcnt(%d)' % (3 - m))
        for r in range(4):
            a('v_add_f32 v%d, v%d, v%d' % (48 + r, 48 + r, 48 + 4 * m + r))
    a('s_lshl_b32 s30, s33, 17')
    a('s_lshl_b32 s31, s34, 13')
    a('s_add_u32 s30, s30, s31')
    a('s_add_u32 s30, s30, 0x%x' % WS_PART)
    a('buffer_store_dwordx4 v[48:51], v24, s[16:19], s30 offen')
    stamp(a, 9)
    stamp_real(a, 10)
    stamp_store(a, 0, 11)
    a.label('k1_exit')
    a('s_endpgm')
    gemm96_producers(a, 'k1', 'k1', 3072, 1024)


def gen_kred(a):
    kernel_head(a, 'kred_kernel')
    a('s_cmp_ge_u32 s2, 128')
    a('s_cbranch_scc1 kred_exit')
    stamp_real(a, 0)
    stamp(a, 1)
    srd(a, 16, 88, 0)
    a('v_lshlrev_b32 v1, 4, v0')
    a('v_lshrrev_b32 v2, 4, v0')
    a('v_lshlrev_b32 v2, 4, v2')
    a('s_lshl_b32 s20, s2, 10')
    a('s_add_u32 s20, s20, 0x%x' % WS_PART)
    a('s_lshr_b32 s21, s2, 2')
    a('s_and_b32 s22, s2, 3')
    a('s_waitcnt lgkmcnt(0)')
    srd_fin(a, 16, WS_SIZE)
    seqs = []
    for rb in range(16):
        seqs.append(a('buffer_load_dwordx4 %s, v1, s[16:19], s20 offen' % vr(8 + 4 * rb, 4)))
        if rb < 15:
            a('s_add_u32 s20, s20, 0x20000')
    a('s_lshl_b32 s23, s21, 10')
    a('s_add_u32 s23, s23, 0x%x' % WS_KVA)
    a('s_lshl_b32 s24, s21, 6')
    a('s_add_u32 s24, s24, 0x%x' % WS_ZA)
    a('s_cmp_lt_u32 s22, 2')
    a('s_cselect_b32 s23, s23, s24')
    a('s_cselect_b64 s[26:27], -1, 0')
    a('s_and_b32 s25, s22, 1')
    a('s_lshl_b32 s25, s25, 3')
    a('s_add_u32 s23, s23, s25')
    a('v_cndmask_b32 v3, v2, v1, s[26:27]')
    for rb in range(1, 16):
        a.wait_vm(seqs[rb])
        for r in range(4):
            a('v_add_f32 v%d, v%d, v%d' % (8 + r, 8 + r, 8 + 4 * rb + r))
    a('v_cvt_pk_bf16_f32 v4, v8, v9')
    a('v_cvt_pk_bf16_f32 v5, v10, v11')
    a('buffer_store_dwordx2 v[4:5], v3, s[16:19], s23 offen')
    if 'kred' == 'kred' and STAMP:
        a('s_mov_b32 s20, 0')
    stamp(a, 9)
    stamp_real(a, 10)
    stamp_store(a, 1, 11)
    a.label('kred_exit')
    a('s_endpgm')


def gen_k2(a):
    kernel_head(a, 'k2_kernel')
    a('s_cmp_ge_u32 s2, 256')
    a('s_cbranch_scc1 k2_exit')
    stamp_real(a, 0)
    stamp(a, 1)
    srd(a, 4, 0, 0)
    srd(a, 8, 24, 0)
    srd(a, 16, 88, 0)
    lane_decomp(a)
    a('s_and_b32 s30, s2, 7')
    a('s_lshr_b32 s31, s2, 3')
    a('s_lshl_b32 s21, s30, 2')
    a('s_and_b32 s22, s31, 3')
    a('s_add_u32 s21, s21, s22')
    a('s_lshr_b32 s22, s31, 2')
    a('s_lshl_b32 s21, s21, 6')
    a('s_lshl_b32 s23, s20, 4')
    a('s_add_u32 s24, s21, s23')
    a('s_lshl_b32 s22, s22, 7')
    a('s_waitcnt lgkmcnt(0)')
    srd_fin(a, 4, 2048 * 1024)
    srd_fin(a, 8, 512 * 1024)
    srd_fin(a, 16, WS_SIZE)
    PQ = 64
    XR = 192
    AC = 200
    WB = (216, 232)
    a('v_lshlrev_b32 v6, 4, v1')
    a('s_lshl_b32 s25, s20, 13')
    for i in range(8):
        a('s_add_u32 m0, s25, 0x%x' % (65536 + i * 1024))
        a('s_add_u32 s30, s25, 0x%x' % (WS_KVA + i * 1024))
        a('buffer_load_dwordx4 v6, s[16:19], s30 offen lds')
    a('s_and_b32 s26, s20, 1')
    a('s_lshl_b32 s26, s26, 10')
    a('s_add_u32 m0, s26, 0x%x' % 98304)
    a('s_add_u32 s30, s26, 0x%x' % WS_ZA)
    q_kv = a('buffer_load_dwordx4 v6, s[16:19], s30 offen lds')
    a('s_lshl_b32 s30, s24, 11')
    a('v_add_u32 v7, s30, v6')
    a('v_lshrrev_b32 v8, 3, v1')
    a('v_bfe_u32 v9, v1, 1, 2')
    a('v_bfe_u32 v10, v1, 4, 2')
    a('v_xor_b32 v9, v9, v10')
    a('v_and_b32 v10, 1, v1')
    a('v_lshlrev_b32 v10, 4, v10')
    a('v_lshl_add_u32 v9, v9, 5, v10')
    a('s_lshl_b32 s27, s20, 3')
    a('v_add_u32 v8, s27, v8')
    a('v_lshl_add_u32 v8, v8, 10, v9')
    a('v_add_u32 v8, s22, v8')
    a('s_lshl_b32 s25, s20, 10')
    q_pq = []
    for t in range(16):
        a('s_mov_b32 s30, 0x%x' % (t * 2048))
        a('buffer_load_dwordx4 %s, v7, s[16:19], s30 offen' % (vr(PQ + 8 * t, 4)))
        q_pq.append(a('buffer_load_dwordx4 %s, v7, s[16:19], s30 offen offset:1024' % (vr(PQ + 8 * t + 4, 4))))
        a('s_add_u32 m0, s25, 0x%x' % (t * 4096))
        a('s_mov_b32 s30, 0x%x' % (t * 32768))
        q_wo = a('buffer_load_dwordx4 v8, s[8:11], s30 offen lds')
    a('v_add_u32 v11, s24, v3')
    a('v_lshlrev_b32 v11, 10, v11')
    a('v_lshl_add_u32 v11, v2, 3, v11')
    a('v_add_u32 v11, s22, v11')
    for nt in range(4):
        q_x = a('buffer_load_dwordx2 %s, v11, s[4:7], 0 offen offset:%d' % (vr(XR + 2 * nt, 2), nt * 32))
    a('v_add_u32 v12, 0x10000, v6')
    a('v_lshlrev_b32 v13, 4, v2')
    a('v_add_u32 v13, 0x18000, v13')
    TB = 250
    a('v_lshl_add_u32 v14, v2, 2, v4')
    a('v_lshlrev_b32 v14, 7, v14')
    a('v_lshl_add_u32 v14, v5, 3, v14')
    a('v_and_b32 v15, 1, v2')
    a('v_lshlrev_b32 v15, 1, v15')
    a('v_lshrrev_b32 v48, 1, v4')
    a('v_or_b32 v15, v15, v48')
    for nt in range(4):
        a('v_xor_b32 v48, %d, v15' % nt)
        a('v_lshl_add_u32 v%d, v48, 5, v14' % (TB + nt))
    KZ = (16, 32)
    ND = (216, 232)

    def reads1(t):
        b = KZ[t & 1]
        for hh in range(2):
            h = 2 * t + hh
            a('ds_read_b128 %s, v12 offset:%d' % (vr(b + 8 * hh, 4), h * 1024))
            a('ds_read_b128 %s, v13 offset:%d' % (vr(b + 8 * hh + 4, 4), h * 64))

    def valu1(t):
        nd = ND[t & 1]
        for hh in range(2):
            n = nd + 8 * hh
            d = n + 4
            T = 48 + 8 * hh
            a('v_cvt_pk_bf16_f32 v%d, v%d, v%d' % (T, d, d))
            a('v_cvt_pk_bf16_f32 v%d, v%d, v%d' % (T + 1, n, n + 1))
            a('v_cvt_pk_bf16_f32 v%d, v%d, v%d' % (T + 2, n + 2, n + 3))
            a('v_lshlrev_b32 v%d, 16, v%d' % (T, T))
            a('v_add_f32 v%d, 0x358637bd, v%d' % (T, T))
            a('v_cvt_pk_bf16_f32 v%d, v%d, v%d' % (T, T, T))
            a('v_lshlrev_b32 v%d, 16, v%d' % (T, T))
            a('v_rcp_f32 v%d, v%d' % (T, T))
            a('v_lshlrev_b32 v%d, 16, v%d' % (T + 3, T + 1))
            a('v_and_b32 v%d, 0xffff0000, v%d' % (T + 4, T + 1))
            a('v_lshlrev_b32 v%d, 16, v%d' % (T + 5, T + 2))
            a('v_and_b32 v%d, 0xffff0000, v%d' % (T + 6, T + 2))
            for i in range(4):
                a('v_mul_f32 v%d, v%d, v%d' % (T + 3 + i, T, T + 3 + i))
            a('v_cvt_pk_bf16_f32 v%d, v%d, v%d' % (PQ + 8 * t + 2 * hh, T + 3, T + 4))
            a('v_cvt_pk_bf16_f32 v%d, v%d, v%d' % (PQ + 8 * t + 2 * hh + 1, T + 5, T + 6))

    stamp(a, 2)
    a.wait_vm(q_kv)
    a('s_barrier')
    stamp(a, 3)
    reads1(0)
    for t in range(16):
        if t + 1 < 16:
            reads1(t + 1)
            a('s_waitcnt lgkmcnt(4)')
        else:
            a('s_waitcnt lgkmcnt(0)')
        a.wait_vm(q_pq[t])
        b = KZ[t & 1]
        nd = ND[t & 1]
        for hh in range(2):
            a('v_mfma_f32_16x16x32_bf16 %s, %s, %s, 0' % (vr(nd + 8 * hh, 4), vr(b + 8 * hh, 4), vr(PQ + 8 * t + 4 * hh, 4)))
            a('v_mfma_f32_16x16x32_bf16 %s, %s, %s, 0' % (vr(nd + 8 * hh + 4, 4), vr(b + 8 * hh + 4, 4), vr(PQ + 8 * t + 4 * hh, 4)))
        if t > 0:
            valu1(t - 1)
    valu1(15)
    stamp(a, 4)
    a.wait_vm(q_wo)
    a('s_barrier')
    stamp(a, 5)

    def reads2(t):
        b = WB[t & 1]
        for nt in range(4):
            for e in range(2):
                a('ds_read_b64_tr_b16 %s, v%d offset:%d' % (vr(b + 4 * nt + 2 * e, 2), TB + nt, t * 4096 + e * 2048))
    reads2(0)
    for t in range(16):
        if t + 1 < 16:
            reads2(t + 1)
            a('s_waitcnt lgkmcnt(8)')
        else:
            a('s_waitcnt lgkmcnt(0)')
        b = WB[t & 1]
        for nt in range(4):
            c_op = '0' if t == 0 else vr(AC + 4 * nt, 4)
            a('v_mfma_f32_16x16x32_bf16 %s, %s, %s, %s' % (vr(AC + 4 * nt, 4), vr(b + 4 * nt, 4), vr(PQ + 8 * t, 4), c_op))
    stamp(a, 6)
    a.wait_vm(q_x)
    stamp(a, 7)
    stamp(a, 8)
    a('s_lshl_b32 s30, s24, 10')
    a('s_lshl_b32 s31, s22, 4')
    a('s_add_u32 s30, s30, s31')
    a('s_add_u32 s30, s30, 0x%x' % WS_H)
    OUTR = 56
    S1, S2 = 54, 55
    for nt in range(4):
        ac = AC + 4 * nt
        T = 16 + 8 * nt
        O = OUTR + 2 * nt
        a('v_cvt_pk_bf16_f32 v%d, v%d, v%d' % (T, ac, ac + 1))
        a('v_cvt_pk_bf16_f32 v%d, v%d, v%d' % (T + 1, ac + 2, ac + 3))
        a('v_lshlrev_b32 v%d, 16, v%d' % (T + 2, T))
        a('v_and_b32 v%d, 0xffff0000, v%d' % (T + 3, T))
        a('v_lshlrev_b32 v%d, 16, v%d' % (T + 4, T + 1))
        a('v_and_b32 v%d, 0xffff0000, v%d' % (T + 5, T + 1))
        x = XR + 2 * nt
        a('v_lshlrev_b32 v%d, 16, v%d' % (T + 6, x))
        a('v_and_b32 v%d, 0xffff0000, v%d' % (T + 7, x))
        a('v_add_f32 v%d, v%d, v%d' % (T + 2, T + 2, T + 6))
        a('v_add_f32 v%d, v%d, v%d' % (T + 3, T + 3, T + 7))
        a('v_lshlrev_b32 v%d, 16, v%d' % (T + 6, x + 1))
        a('v_and_b32 v%d, 0xffff0000, v%d' % (T + 7, x + 1))
        a('v_add_f32 v%d, v%d, v%d' % (T + 4, T + 4, T + 6))
        a('v_add_f32 v%d, v%d, v%d' % (T + 5, T + 5, T + 7))
        a('v_cvt_pk_bf16_f32 v%d, v%d, v%d' % (O, T + 2, T + 3))
        a('v_cvt_pk_bf16_f32 v%d, v%d, v%d' % (O + 1, T + 4, T + 5))
        if nt & 1:
            a('buffer_store_dwordx4 %s, v6, s[16:19], s30 offen offset:%d' % (vr(O - 2, 4), (nt >> 1) * 1024))
        a('v_lshlrev_b32 v%d, 16, v%d' % (T + 2, O))
        a('v_and_b32 v%d, 0xffff0000, v%d' % (T + 3, O))
        a('v_lshlrev_b32 v%d, 16, v%d' % (T + 4, O + 1))
        a('v_and_b32 v%d, 0xffff0000, v%d' % (T + 5, O + 1))
        for i in range(4):
            if nt == 0 and i == 0:
                a('v_mov_b32 v%d, v%d' % (S1, T + 2))
                a('v_mul_f32 v%d, v%d, v%d' % (S2, T + 2, T + 2))
            else:
                a('v_add_f32 v%d, v%d, v%d' % (S1, S1, T + 2 + i))
                a('v_fma_f32 v%d, v%d, v%d, v%d' % (S2, T + 2 + i, T + 2 + i, S2))
    butterfly(a, [('v_add_f32', S1, 52), ('v_add_f32', S2, 53)])
    a('v_add_u32 v12, s24, v3')
    a('v_lshlrev_b32 v12, 6, v12')
    a('s_lshr_b32 s31, s22, 4')
    a('s_add_u32 s31, s31, 0x%x' % WS_ST2)
    a('buffer_store_dwordx2 v[54:55], v12, s[16:19], s31 offen')
    if 'k2' == 'kred' and STAMP:
        a('s_mov_b32 s20, 0')
    stamp(a, 9)
    stamp_real(a, 10)
    stamp_store(a, 2, 11)
    a.label('k2_exit')
    a('s_endpgm')


def gen_k3(a):
    kernel_head(a, 'k3_kernel')
    a('s_cmp_ge_u32 s2, 240')
    a('s_cbranch_scc1 k3_exit')
    stamp_real(a, 0)
    stamp(a, 1)
    srd(a, 4, 88, 0)
    srd(a, 8, 40, 0)
    srd(a, 12, 48, 0)
    srd(a, 16, 88, 0)
    lane_decomp(a)
    a('s_and_b32 s30, s2, 7')
    a('s_lshr_b32 s31, s2, 3')
    a('s_lshl_b32 s21, s30, 1')
    a('s_and_b32 s22, s31, 1')
    a('s_add_u32 s33, s21, s22')
    a('s_lshr_b32 s34, s31, 1')
    a('s_lshl_b32 s21, s33, 7')
    a('s_mul_i32 s22, s34, 192')
    a('s_waitcnt lgkmcnt(0)')
    a('s_add_u32 s4, s4, 0x%x' % WS_H)
    a('s_addc_u32 s5, s5, 0')
    srd_fin(a, 4, 2048 * 1024)
    srd_fin(a, 8, 512 * 2752)
    srd_fin(a, 12, 2752)
    srd_fin(a, 16, WS_SIZE)
    a('s_cmp_ge_u32 s20, 8')
    a('s_cbranch_scc1 k3_prod')

    def extra(a):
        a('v_lshlrev_b32 v22, 3, v2')
        a('s_lshl_b32 s30, s36, 5')
        a('s_add_u32 s30, s30, s22')
        a('v_add_u32 v22, s30, v22')
        for seg in range(3):
            a('buffer_load_dwordx2 %s, v22, s[12:15], 0 offen offset:%d' % (vr(28 + 2 * seg, 2), seg * 64))
        a('s_mov_b32 s30, 0x%x' % WS_ST2)
        for p in range(2):
            a('v_add_u32 v23, s%d, v3' % (24 if p == 0 else 37))
            a('v_lshlrev_b32 v23, 6, v23')
            a('v_lshl_add_u32 v23, v2, 4, v23')
            a('buffer_load_dwordx4 %s, v23, s[16:19], s30 offen' % vr(144 + 4 * p, 4))

    gemm96_main(a, 'k3', extra)
    stamp(a, 8)
    a('v_lshlrev_b32 v15, 4, v1')
    a('s_lshl_b32 s27, s36, 3')
    a('s_mul_i32 s31, s34, 3 * 1024')
    a('s_add_u32 s31, s31, s27')
    a('s_add_u32 s31, s31, 0x%x' % WS_R)
    for p in range(2):
        a('s_lshr_b32 s%d, s%d, 4' % (28 + p, 24 if p == 0 else 37))
        a('s_mul_i32 s%d, s%d, 43 * 1024' % (28 + p, 28 + p))
        a('s_add_u32 s%d, s%d, s31' % (28 + p, 28 + p))
    for seg in range(3):
        if seg == 1:
            a('s_cmp_eq_u32 s34, 14')
            a('s_cbranch_scc1 k3_done')
        b = 28 + 2 * seg
        B = 132 + 4 * seg
        a('v_lshlrev_b32 v%d, 16, v%d' % (B, b))
        a('v_and_b32 v%d, 0xffff0000, v%d' % (B + 1, b))
        a('v_lshlrev_b32 v%d, 16, v%d' % (B + 2, b + 1))
        a('v_and_b32 v%d, 0xffff0000, v%d' % (B + 3, b + 1))
        for p in range(2):
            ac = ACC + 4 * (3 * p + seg)
            T = 48 + 8 * (2 * seg + p)
            a('v_cvt_pk_bf16_f32 v%d, v%d, v%d' % (T, ac, ac + 1))
            a('v_cvt_pk_bf16_f32 v%d, v%d, v%d' % (T + 1, ac + 2, ac + 3))
            a('v_lshlrev_b32 v%d, 16, v%d' % (T + 2, T))
            a('v_and_b32 v%d, 0xffff0000, v%d' % (T + 3, T))
            a('v_lshlrev_b32 v%d, 16, v%d' % (T + 4, T + 1))
            a('v_and_b32 v%d, 0xffff0000, v%d' % (T + 5, T + 1))
            for i in range(4):
                a('v_add_f32 v%d, v%d, v%d' % (T + 2 + i, T + 2 + i, B + i))
            a('v_cvt_pk_bf16_f32 v%d, v%d, v%d' % (T, T + 2, T + 3))
            a('v_cvt_pk_bf16_f32 v%d, v%d, v%d' % (T + 1, T + 4, T + 5))
            a('v_lshlrev_b32 v%d, 16, v%d' % (T + 2, T))
            a('v_and_b32 v%d, 0xffff0000, v%d' % (T + 3, T))
            a('v_lshlrev_b32 v%d, 16, v%d' % (T + 4, T + 1))
            a('v_and_b32 v%d, 0xffff0000, v%d' % (T + 5, T + 1))
            for i in range(4):
                a('v_max_f32 v%d, 0, v%d' % (T + 2 + i, T + 2 + i))
            for i in range(4):
                a('v_mul_f32 v%d, v%d, v%d' % (T + 2 + i, T + 2 + i, T + 2 + i))
            a('v_cvt_pk_bf16_f32 v%d, v%d, v%d' % (T, T + 2, T + 3))
            a('v_cvt_pk_bf16_f32 v%d, v%d, v%d' % (T + 1, T + 4, T + 5))
            a('buffer_store_dwordx2 %s, v15, s[16:19], s%d offen offset:%d' % (vr(T, 2), 28 + p, seg * 1024))
    a.label('k3_done')
    if 'k3' == 'kred' and STAMP:
        a('s_mov_b32 s20, 0')
    stamp(a, 9)
    stamp_real(a, 10)
    stamp_store(a, 3, 11)
    a.label('k3_exit')
    a('s_endpgm')
    gemm96_producers(a, 'k3', 'k3', 2752, 64)


def gen_k4(a):
    kernel_head(a, 'k4_kernel')
    a('s_cmp_ge_u32 s2, 256')
    a('s_cbranch_scc1 k4_exit')
    stamp_real(a, 0)
    stamp(a, 1)
    srd(a, 4, 72, 0)
    srd(a, 8, 56, 0)
    srd(a, 12, 64, 0)
    srd(a, 16, 88, 0)
    lane_decomp(a)
    a('s_and_b32 s30, s2, 7')
    a('s_lshr_b32 s31, s2, 3')
    a('s_lshl_b32 s21, s30, 2')
    a('s_and_b32 s22, s31, 3')
    a('s_add_u32 s21, s21, s22')
    a('s_lshr_b32 s22, s31, 2')
    a('s_lshl_b32 s21, s21, 6')
    a('s_lshl_b32 s23, s20, 4')
    a('s_add_u32 s24, s21, s23')
    a('s_lshl_b32 s22, s22, 7')
    a('s_waitcnt lgkmcnt(0)')
    srd_fin(a, 4, 2048 * 1024)
    srd_fin(a, 8, 1376 * 1024)
    srd_fin(a, 12, 1024)
    srd_fin(a, 16, WS_SIZE)
    AFR = 24
    WB = (196, 212)
    AC = 228
    TB = 244
    HR = 248
    BR = 16
    a('v_lshlrev_b32 v6, 4, v1')
    a('s_lshr_b32 s30, s24, 4')
    a('s_mul_i32 s30, s30, 43 * 1024')
    a('v_add_u32 v7, s30, v6')
    a('v_lshrrev_b32 v8, 3, v1')
    a('v_bfe_u32 v9, v1, 1, 2')
    a('v_bfe_u32 v10, v1, 4, 2')
    a('v_xor_b32 v9, v9, v10')
    a('v_and_b32 v10, 1, v1')
    a('v_lshlrev_b32 v10, 4, v10')
    a('v_lshl_add_u32 v9, v9, 5, v10')
    a('s_lshl_b32 s27, s20, 3')
    a('v_add_u32 v8, s27, v8')
    a('v_lshl_add_u32 v8, v8, 10, v9')
    a('v_add_u32 v8, s22, v8')
    a('s_lshl_b32 s25, s20, 10')
    a('s_mov_b32 s31, 0x%x' % WS_R)

    def dma(ks, slot_ks):
        a('s_add_u32 m0, s25, 0x%x' % (slot_ks * 4096))
        a('s_mov_b32 s30, 0x%x' % (ks * 32768))
        return a('buffer_load_dwordx4 v8, s[8:11], s30 offen lds')

    def aload(ks):
        a('s_mov_b32 s31, 0x%x' % (WS_R + ks * 1024))
        return a('buffer_load_dwordx4 %s, v7, s[16:19], s31 offen' % (vr(AFR + 4 * ks, 4)))

    q = {}

    def issue_chunk(c):
        n = 8 if c < 5 else 3
        for i in range(n):
            ks = 8 * c + i
            dma(ks, ks if c < 5 else i)
            q[c] = aload(ks)

    for c in range(3):
        issue_chunk(c)
    a('v_lshl_add_u32 v14, v2, 2, v4')
    a('v_lshlrev_b32 v14, 7, v14')
    a('v_lshl_add_u32 v14, v5, 3, v14')
    a('v_and_b32 v15, 1, v2')
    a('v_lshlrev_b32 v15, 1, v15')
    a('v_lshrrev_b32 v13, 1, v4')
    a('v_or_b32 v15, v15, v13')
    for nt in range(4):
        a('v_xor_b32 v13, %d, v15' % nt)
        a('v_lshl_add_u32 v%d, v13, 5, v14' % (TB + nt))
    cur_base = [0]

    def reads(ks):
        slot = ks if ks < 40 else ks - 40
        addr = slot * 4096
        want = (addr // 65536) * 65536
        if want != cur_base[0]:
            d = want - cur_base[0]
            for nt in range(4):
                if d > 0:
                    a('v_add_u32 v%d, 0x%x, v%d' % (TB + nt, d, TB + nt))
                else:
                    a('v_subrev_u32 v%d, 0x%x, v%d' % (TB + nt, -d, TB + nt))
            cur_base[0] = want
        b = WB[ks & 1]
        for nt in range(4):
            for e in range(2):
                a('ds_read_b64_tr_b16 %s, v%d offset:%d' % (vr(b + 4 * nt + 2 * e, 2), TB + nt, addr - want + e * 2048))

    stamp(a, 2)
    a.wait_vm(q[0])
    a('s_barrier')
    stamp(a, 3)
    reads(0)
    for ks in range(43):
        if ks == 4:
            issue_chunk(3)
        if ks == 12:
            issue_chunk(4)
        if ks == 20:
            a('v_add_u32 v11, s24, v3')
            a('v_lshlrev_b32 v11, 10, v11')
            a('v_lshl_add_u32 v11, v2, 3, v11')
            a('v_add_u32 v11, s22, v11')
            a('s_lshl_b32 s30, s24, 10')
            a('s_lshl_b32 s31, s22, 4')
            a('s_add_u32 s30, s30, s31')
            a('s_add_u32 s30, s30, 0x%x' % WS_H)
            for j in range(2):
                a('buffer_load_dwordx4 %s, v6, s[16:19], s30 offen offset:%d' % (vr(HR + 4 * j, 4), j * 1024))
            a('v_lshlrev_b32 v12, 3, v2')
            a('v_add_u32 v12, s22, v12')
            for nt in range(4):
                q_e = a('buffer_load_dwordx2 %s, v12, s[12:15], 0 offen offset:%d' % (vr(BR + 2 * nt, 2), nt * 32))
        if ks + 1 < 43:
            if (ks + 1) % 8 == 0:
                a.wait_vm(q[(ks + 1) // 8])
                a('s_barrier')
                if (ks + 1) // 8 < 5:
                    stamp(a, 3 + (ks + 1) // 8)
                if ks + 1 == 16:
                    issue_chunk(5)
            reads(ks + 1)
            a('s_waitcnt lgkmcnt(8)')
        else:
            a('s_waitcnt lgkmcnt(0)')
        b = WB[ks & 1]
        for nt in range(4):
            c_op = '0' if ks == 0 else vr(AC + 4 * nt, 4)
            a('v_mfma_f32_16x16x32_bf16 %s, %s, %s, %s' % (vr(AC + 4 * nt, 4), vr(b + 4 * nt, 4), vr(AFR + 4 * ks, 4), c_op))
    stamp(a, 8)
    a('s_waitcnt vmcnt(0)')
    for nt in range(4):
        ac = AC + 4 * nt
        T = 24 + 8 * nt
        b = BR + 2 * nt
        x = HR + 2 * nt
        a('v_cvt_pk_bf16_f32 v%d, v%d, v%d' % (T, ac, ac + 1))
        a('v_cvt_pk_bf16_f32 v%d, v%d, v%d' % (T + 1, ac + 2, ac + 3))
        for (src) in (b, x):
            a('v_lshlrev_b32 v%d, 16, v%d' % (T + 2, T))
            a('v_and_b32 v%d, 0xffff0000, v%d' % (T + 3, T))
            a('v_lshlrev_b32 v%d, 16, v%d' % (T + 4, T + 1))
            a('v_and_b32 v%d, 0xffff0000, v%d' % (T + 5, T + 1))
            a('v_lshlrev_b32 v%d, 16, v%d' % (T + 6, src))
            a('v_and_b32 v%d, 0xffff0000, v%d' % (T + 7, src))
            a('v_add_f32 v%d, v%d, v%d' % (T + 2, T + 2, T + 6))
            a('v_add_f32 v%d, v%d, v%d' % (T + 3, T + 3, T + 7))
            a('v_lshlrev_b32 v%d, 16, v%d' % (T + 6, src + 1))
            a('v_and_b32 v%d, 0xffff0000, v%d' % (T + 7, src + 1))
            a('v_add_f32 v%d, v%d, v%d' % (T + 4, T + 4, T + 6))
            a('v_add_f32 v%d, v%d, v%d' % (T + 5, T + 5, T + 7))
            a('v_cvt_pk_bf16_f32 v%d, v%d, v%d' % (T, T + 2, T + 3))
            a('v_cvt_pk_bf16_f32 v%d, v%d, v%d' % (T + 1, T + 4, T + 5))
        a('buffer_store_dwordx2 %s, v11, s[4:7], 0 offen offset:%d' % (vr(T, 2), nt * 32))
    if 'k4' == 'kred' and STAMP:
        a('s_mov_b32 s20, 0')
    stamp(a, 9)
    stamp_real(a, 10)
    stamp_store(a, 4, 11)
    a.label('k4_exit')
    a('s_endpgm')


def desc(name, vgpr, sgpr=64):
    return '''.amdhsa_kernel %s
  .amdhsa_next_free_vgpr %d
  .amdhsa_next_free_sgpr %d
  .amdhsa_accum_offset %d
  .amdhsa_group_segment_fixed_size 0
  .amdhsa_kernarg_size 96
  .amdhsa_user_sgpr_count 2
  .amdhsa_user_sgpr_kernarg_segment_ptr 1
  .amdhsa_system_sgpr_workgroup_id_x 1
.end_amdhsa_kernel
''' % (name, vgpr, sgpr, vgpr)


KERNELS = [
    ('k1_kernel', gen_k1, 256, 640, 163840, 160),
    ('kred_kernel', gen_kred, 128, 64, 0, 72),
    ('k2_kernel', gen_k2, 256, 256, 100352, 256),
    ('k3_kernel', gen_k3, 240, 640, 163840, 160),
    ('k4_kernel', gen_k4, 256, 256, 163840, 256),
]


def build(kernels):
    head = ''
    for (n, g, grid, block, lds, v) in kernels:
        head += '; @launch kernel=%s grid=(%d,1,1) block=(%d,1,1) lds=%d\n' % (n, grid, block, lds)
    head += '.amdgcn_target "amdgcn-amd-amdhsa--gfx950"\n.text\n'
    a = Asm()
    seen = set()
    for (n, g, grid, block, lds, v) in kernels:
        if n in seen:
            continue
        seen.add(n)
        a.vm_issued = 0
        g(a)
    d = '.section .rodata,"a"\n.p2align 6\n'
    seen = set()
    for (n, g, grid, block, lds, v) in kernels:
        if n in seen:
            continue
        seen.add(n)
        d += desc(n, v)
    body = a.text()
    if STPOL:
        import re
        body = re.sub(r'(buffer_store_dwordx[24] [^\n]*)', lambda m: m.group(1) + ' ' + STPOL, body)
    return head + body + d


if __name__ == '__main__':
    out = sys.argv[1] if len(sys.argv) > 1 else 'cur.s'
    open(out, 'w').write(build(KERNELS))
    print('wrote', out)
```

```python
import sys, os
sys.path.insert(0, os.path.dirname(__file__))
from dsl import Asm

MB = 1 << 20
WS_PQ = 0
WS_O = 2 * MB
WS_PART = 4 * MB
PSTR = 2176
WS_ST2 = 6 * MB
WS_H = 7 * MB
WS_R = 9 * MB
WS_SIZE = 16 * MB
L2E = '0x3fb8aa3b'
NL2E = '0xbfb8aa3b'


def env(n, d):
    return int(os.environ.get(n, d))


STAMP = os.environ.get('STAMP')
EPI = os.environ.get('EPI')
PREFETCH = env('PREFETCH', 2)
PF2 = env('PF2', 0)
WS_STAMP = 15 * MB


def vr(b, n):
    return 'v[%d:%d]' % (b, b + n - 1)


def srd(a, s, koff):
    a('s_load_dwordx2 s[%d:%d], s[0:1], %d' % (s, s + 1, koff))


def srd_fin(a, s, size):
    a('s_and_b32 s%d, s%d, 0xffff' % (s + 1, s + 1))
    a('s_mov_b32 s%d, 0x%x' % (s + 2, size))
    a('s_mov_b32 s%d, 0x00020000' % (s + 3))


def bf16r(a, d, s):
    a('v_cvt_pk_bf16_f32 v%d, v%d, v%d' % (d, s, s))
    a('v_lshlrev_b32 v%d, 16, v%d' % (d, d))


def butterfly(a, items):
    for sw in ('v_permlane16_swap_b32', 'v_permlane32_swap_b32'):
        for (op, r, t) in items:
            a('v_mov_b32 v%d, v%d' % (t, r))
        for (op, r, t) in items:
            a('%s v%d, v%d' % (sw, r, t))
        for (op, r, t) in items:
            a('%s v%d, v%d, v%d' % (op, r, r, t))


def stamp(a, i, epi=False):
    if STAMP and (i in (1, 9) or bool(EPI) == epi):
        a('s_memtime s[%d:%d]' % (40 + 2 * i, 41 + 2 * i))


def stamp_real(a, i):
    if STAMP:
        a('s_memrealtime s[%d:%d]' % (40 + 2 * i, 41 + 2 * i))


def stamp_store(a, kidx, n=11, srd=16):
    if not STAMP:
        return
    stamp(a, 9)
    stamp_real(a, 10)
    a('s_waitcnt lgkmcnt(0)')
    a('s_lshl_b32 s38, s2, 3')
    a('s_add_u32 s38, s38, s20')
    a('s_lshl_b32 s38, s38, 6')
    a('s_add_u32 s38, s38, 0x%x' % (WS_STAMP + kidx * 131072))
    a('v_mov_b32 v0, 0')
    for i in range(n):
        a('v_mov_b32 v1, s%d' % (40 + 2 * i))
        a('buffer_store_dword v1, v0, s[%d:%d], s38 offen offset:%d' % (srd, srd + 3, i * 4))


def kernel_head(a, name, nwg):
    a.raw('.globl %s_kernel' % name)
    a.raw('.p2align 8')
    a.raw('.type %s_kernel,@function' % name)
    a.label(name + '_kernel')
    a.kname = name
    a.hist = []
    a('s_cmp_ge_u32 s2, %d' % nwg)
    a('s_cbranch_scc1 %s_exit' % name)
    stamp_real(a, 0)
    stamp(a, 1)


def lane_decomp(a):
    a('v_and_b32 v1, 63, v0')
    a('v_lshrrev_b32 v6, 6, v0')
    a('v_lshrrev_b32 v2, 4, v1')
    a('v_and_b32 v3, 15, v1')
    a('v_readfirstlane_b32 s20, v6')
    a('v_bfe_u32 v4, v1, 2, 2')
    a('v_and_b32 v5, 3, v1')
    a('v_lshlrev_b32 v6, 4, v1')


def l2_prefetch(a, sr, size, parts=32):
    chunk = (size // parts + 127) // 128 * 128
    if parts <= 32:
        a('s_lshr_b32 s31, s2, 3')
        a('s_mul_i32 s31, s31, %d' % chunk)
    else:
        a('s_mul_i32 s31, s2, %d' % chunk)
    n = (chunk + 1023) // 1024
    for i in range(n):
        if i and i % 4 == 0:
            a('s_add_u32 s31, s31, 4096')
        a('buffer_load_dwordx4 %s, v6, s[%d:%d], s31 offen offset:%d' % (vr(64 + 4 * (i % 8), 4), sr, sr + 3, (i % 4) * 1024))


def mk_groups(nk, spec):
    sz = [int(x) for x in spec.split(',')]
    g, i, k = [], 0, 0
    while k < nk:
        n = min(sz[min(i, len(sz) - 1)], nk - k)
        g.append((k, k + n))
        k += n
        i += 1
    return g


def producer_loop(a, nk, ns, lag, per, issue, groups, early=None, late=None):
    grp = {}
    for j, (lo, hi) in enumerate(groups):
        for i in range(lo, hi):
            grp[i] = j
    last = {}
    issued = 0
    ps = STAMP and os.environ.get('PSTAMP') == a.kname
    if ps:
        a('s_memtime s[44:45]')
    for j, (lo, hi) in enumerate(groups):
        while issued < nk:
            i = issued
            ok = (i < ns or grp[i - ns] + 1 <= j - 1) and (i - lo + 1) * per <= 62 and (i < hi or i < lo + lag)
            if not ok:
                break
            last[i] = issue(i)
            issued += 1
        assert issued >= hi, (j, issued, hi)
        if issued == nk and early:
            early()
            early = None
        if ps and j < 3:
            a('s_memtime s[%d:%d]' % (46 + 4 * j, 47 + 4 * j))
        if hi == nk:
            a('s_waitcnt vmcnt(0)')
        else:
            a.wait_vm(last[hi - 1])
        if ps and j < 3:
            a('s_memtime s[%d:%d]' % (48 + 4 * j, 49 + 4 * j))
        a('s_barrier')
    if late:
        late()
    a('s_waitcnt vmcnt(0)')
    if ps:
        a('s_sub_u32 s20, s20, 8')
        stamp_store(a, 5)
    a('s_endpgm')


def softmax_sets(a, sets, PB, TB, FB, LREG):
    def T(s, i): return TB + 12 * s + i
    S = range(sets)
    for s in S:
        p = PB + 4 * s
        a('v_lshlrev_b32 v%d, 16, v%d' % (p, T(s, 2)))
        a('v_and_b32 v%d, 0xffff0000, v%d' % (p + 1, T(s, 2)))
        a('v_lshlrev_b32 v%d, 16, v%d' % (p + 2, T(s, 3)))
        a('v_and_b32 v%d, 0xffff0000, v%d' % (p + 3, T(s, 3)))
    for s in S:
        p = PB + 4 * s
        a('v_max3_f32 v%d, v%d, v%d, v%d' % (T(s, 0), p, p + 1, p + 2))
        a('v_min3_f32 v%d, v%d, v%d, v%d' % (T(s, 1), p, p + 1, p + 2))
        a('v_max_f32 v%d, v%d, v%d' % (T(s, 0), T(s, 0), p + 3))
        a('v_min_f32 v%d, v%d, v%d' % (T(s, 1), T(s, 1), p + 3))
    it = []
    for s in S:
        it += [('v_max_f32', T(s, 0), T(s, 2)), ('v_min_f32', T(s, 1), T(s, 3))]
    butterfly(a, it)
    for s in S:
        a('v_mul_f32 v%d, %s, v%d' % (T(s, 0), NL2E, T(s, 0)))
        a('v_mul_f32 v%d, %s, v%d' % (T(s, 1), L2E, T(s, 1)))
    a('v_mov_b32 v%d, %s' % (LREG, L2E))
    for s in S:
        p = PB + 4 * s
        for r in range(4):
            a('v_fma_f32 v%d, v%d, v%d, v%d' % (T(s, 4 + r), p + r, LREG, T(s, 0)))
            a('v_fma_f32 v%d, -v%d, v%d, v%d' % (T(s, 8 + r), p + r, LREG, T(s, 1)))
    for s in S:
        for r in range(8):
            a('v_exp_f32 v%d, v%d' % (T(s, 4 + r), T(s, 4 + r)))
    for s in S:
        a('v_add_f32 v%d, v%d, v%d' % (T(s, 0), T(s, 4), T(s, 5)))
        a('v_add_f32 v%d, v%d, v%d' % (T(s, 1), T(s, 8), T(s, 9)))
        a('v_add_f32 v%d, v%d, v%d' % (T(s, 2), T(s, 6), T(s, 7)))
        a('v_add_f32 v%d, v%d, v%d' % (T(s, 3), T(s, 10), T(s, 11)))
    for s in S:
        a('v_add_f32 v%d, v%d, v%d' % (T(s, 0), T(s, 0), T(s, 2)))
        a('v_add_f32 v%d, v%d, v%d' % (T(s, 1), T(s, 1), T(s, 3)))
    it = []
    for s in S:
        it += [('v_add_f32', T(s, 0), T(s, 2)), ('v_add_f32', T(s, 1), T(s, 3))]
    butterfly(a, it)
    for s in S:
        a('v_rcp_f32 v%d, v%d' % (T(s, 0), T(s, 0)))
        a('v_rcp_f32 v%d, v%d' % (T(s, 1), T(s, 1)))
    for s in S:
        for r in range(4):
            a('v_mul_f32 v%d, v%d, v%d' % (T(s, 4 + r), T(s, 0), T(s, 4 + r)))
            a('v_mul_f32 v%d, v%d, v%d' % (T(s, 8 + r), T(s, 1), T(s, 8 + r)))
    for s in S:
        for i in range(4):
            a('v_cvt_pk_bf16_f32 v%d, v%d, v%d' % (FB + 4 * s + i, T(s, 4 + 2 * i), T(s, 5 + 2 * i)))


AFB = (48, 56)
BUF = (64, 80)
ACC = 96
RS, GR, CSA = 120, 124, 128
ONES = 16
SLOT = 14336
VW, VC, VA, VP = 8, 11, 40, 43


def g96_cfg(mode):
    ns = env('NS1', 11) if mode == 'k1' else env('NS3', 10)
    lag = env('LAG1', 5) if mode == 'k1' else env('LAG3', 5)
    return ns, lag


def g96_groups(mode):
    return mk_groups(16, os.environ.get('GR1', '1,1,2') if mode == 'k1' else os.environ.get('GR3', '1,1,2'))


def gemm96_producers(a, mode, name, wstride, seg_off):
    k1 = mode == 'k1'
    ns, lag = g96_cfg(mode)
    XCH = ns * SLOT
    a.label(name + '_prod')
    a.hist = []
    a('s_cmp_lg_u32 s20, 8')
    a('s_cbranch_scc1 %s_prodA' % name)
    a.vm_issued = 0
    a('v_lshrrev_b32 v7, 2, v1')
    a('v_mul_u32_u24 v7, 0x%x, v7' % wstride)
    a('v_bfe_u32 v15, v1, %d, 1' % (5 if k1 else 4))
    a('v_lshlrev_b32 v15, 1, v15')
    a('v_xor_b32 v15, v15, v5')
    a('v_lshl_add_u32 v7, v15, 4, v7')
    a('v_add_u32 v7, s22, v7')
    if k1:
        a('s_mov_b32 m0, 0x%x' % (XCH + 2048))
        a('s_lshl_b32 s30, s34, 10')
        a('buffer_load_dwordx4 v6, s[12:15], s30 offen lds')
        if PREFETCH:
            srd(a, 64, 24)
            srd(a, 68, 40)
            srd(a, 72, 56)
    elif PF2 & 4:
        srd(a, 72, 56)

    def wissue(i):
        for seg in range(3):
            for hf in range(2):
                a('s_mov_b32 m0, 0x%x' % ((i % ns) * SLOT + seg * 2048 + hf * 1024))
                a('s_mov_b32 s30, 0x%x' % ((i * 32 + hf * 16) * wstride + seg * seg_off))
                q = a('buffer_load_dwordx4 v7, s[8:11], s30 offen lds')
        return q

    def after():
        a('s_waitcnt lgkmcnt(0)')
        if k1:
            srd_fin(a, 64, 512 * 1024)
            srd_fin(a, 68, 512 * 2752)
            srd_fin(a, 72, 1376 * 1024)
            l2_prefetch(a, 72, 1376 * 1024, 256)
            l2_prefetch(a, 64, 512 * 1024, 32 if PF2 & 1 else 256)
            if not PF2 & 2:
                l2_prefetch(a, 68, 512 * 2752, 256)
            a('s_barrier')
            if PF2 & 2:
                a('s_waitcnt vmcnt(16)')
                l2_prefetch(a, 68, 512 * 2752, 32)
            a('s_barrier')
        else:
            srd_fin(a, 72, 1376 * 1024)
            a('s_barrier')
            l2_prefetch(a, 72, 1376 * 1024, 30)

    def bias():
        a('s_mov_b32 m0, 0x%x' % (XCH + 2048))
        a('buffer_load_dwordx4 v6, s[12:15], s22 offen lds')
    producer_loop(a, 16, ns, lag, 6, wissue, g96_groups(mode), None if k1 else bias, after if ((k1 and PREFETCH) or (not k1 and PF2 & 4)) else None)
    a.label(name + '_prodA')
    a.hist = []
    a.vm_issued = 0
    a('s_sub_u32 s31, s20, 9')
    a('s_lshl_b32 s32, s31, 12')
    a('s_lshl_b32 s31, s31, 6')
    a('s_add_u32 s31, s31, s21')
    a('s_lshl_b32 s31, s31, 10')
    if k1:
        a('v_lshlrev_b32 v15, 1, v2')
        a('v_mov_b32 v14, 0x78')
        a('v_lshrrev_b32 v15, v15, v14')
        a('v_and_b32 v15, 3, v15')
        a('v_xor_b32 v15, v15, v5')
        a('v_lshrrev_b32 v7, 2, v1')
        a('v_lshlrev_b32 v7, 10, v7')
        a('v_lshl_add_u32 v7, v15, 4, v7')
        a('v_add_u32 v7, s31, v7')
    else:
        a('v_add_u32 v7, s31, v6')

    def aissue(i):
        for rt in range(4):
            a('s_add_u32 m0, s32, 0x%x' % ((i % ns) * SLOT + 6144 + rt * 1024))
            a('s_mov_b32 s30, 0x%x' % (rt * 16384 + i * (64 if k1 else 1024)))
            q = a('buffer_load_dwordx4 v7, s[4:7], s30 offen lds')
        return q

    def st2():
        a('s_lshr_b32 s31, s31, 3')
        a('s_add_u32 s31, s31, 0x%x' % WS_ST2)
        a('s_lshl_b32 s32, s32, 1')
        for j in range(8):
            a('s_add_u32 m0, s32, 0x%x' % (XCH + 4096 + j * 1024))
            a('s_add_u32 s30, s31, 0x%x' % (j * 1024))
            a('buffer_load_dwordx4 v6, s[16:19], s30 offen lds')
    producer_loop(a, 16, ns, lag, 4, aissue, g96_groups(mode), None if k1 else st2)


def gemm96_main(a, mode, extra_loads, late_loads=None):
    k1 = mode == 'k1'
    ns, lag = g96_cfg(mode)
    XCH = ns * SLOT
    BPOS = env('BPOS', 3)
    gstart = set(lo for (lo, hi) in g96_groups(mode))
    a('s_lshl_b32 s23, s20, 4')
    a('s_add_u32 s24, s21, s23')
    a('s_xor_b32 s37, s24, 16')
    a('s_and_b32 s36, s20, 1')
    extra_loads(a)
    a('v_lshl_add_u32 v8, v2, %d, v4' % (3 if k1 else 2))
    a('v_lshlrev_b32 v8, 6, v8')
    a('v_lshl_add_u32 v8, v5, 3, v8')
    a('v_and_b32 v15, 1, v2')
    a('v_lshlrev_b32 v15, 5, v15')
    a('s_sub_u32 s26, s20, 6')
    a('s_cmp_lt_u32 s20, 6')
    a('s_cselect_b32 s26, s20, s26')
    a('s_lshr_b32 s27, s26, 1')
    a('s_lshl_b32 s27, s27, 11')
    a('s_lshl_b32 s28, s36, 5')
    a('v_xor_b32 v15, s28, v15')
    a('v_add_u32 v%d, v8, v15' % VW)
    a('v_add_u32 v%d, s27, v%d' % (VC, VW))
    a('s_lshl_b32 s35, s20, 10')
    a('s_add_u32 s35, s35, 6144')
    if k1:
        a('v_lshlrev_b32 v15, 1, v4')
        a('v_mov_b32 v14, 0x78')
        a('v_lshrrev_b32 v15, v15, v14')
        a('v_and_b32 v15, 3, v15')
        a('v_xor_b32 v15, v15, v2')
        a('v_lshlrev_b32 v15, 4, v15')
        a('v_lshl_add_u32 v15, v3, 6, v15')
        a('v_add_u32 v%d, s35, v15' % VA)
    else:
        a('v_add_u32 v%d, s35, v6' % VA)
    a('v_xor_b32 v%d, 0x400, v%d' % (VP, VA))
    nb = (ns + 3) // 4
    for b in range(1, nb):
        for r in (VW, VC, VA, VP):
            a('v_add_u32 v%d, 0x%x, v%d' % (r + b, b * 4 * SLOT, r))
    for i in range(4):
        a('v_mov_b32 v%d, 0x3f803f80' % (ONES + i))
    eoff = 256 if k1 else 1024

    def reads(ks):
        b = BUF[ks & 1]
        af = AFB[ks & 1]
        sl = ks % ns
        bk, so = sl // 4, (sl % 4) * SLOT
        a('ds_read_b128 %s, v%d offset:%d' % (vr(af, 4), VA + bk, so))
        a('ds_read_b128 %s, v%d offset:%d' % (vr(af + 4, 4), VP + bk, so))
        for seg in range(3):
            for e in range(2):
                a('ds_read_b64_tr_b16 %s, v%d offset:%d' % (vr(b + 4 * seg + 2 * e, 2), VW + bk, so + seg * 2048 + e * eoff))
        for e in range(2):
            a('ds_read_b64_tr_b16 %s, v%d offset:%d' % (vr(b + 12 + 2 * e, 2), VC + bk, so + e * eoff))

    stamp(a, 2)
    a('s_barrier')
    stamp(a, 3)
    reads(0)
    for ks in range(16):
        b = BUF[ks & 1]
        af = AFB[ks & 1]

        def cop(r):
            return '0' if ks == 0 else vr(r, 4)
        mf = []
        for p in range(2):
            for seg in range(3):
                ac = ACC + 4 * (3 * p + seg)
                mf.append('v_mfma_f32_16x16x32_bf16 %s, %s, %s, %s' % (vr(ac, 4), vr(b + 4 * seg, 4), vr(af + 4 * p, 4), cop(ac)))
        mf.append('v_mfma_f32_16x16x32_bf16 %s, %s, %s, %s' % (vr(CSA, 4), vr(b + 12, 4), vr(ONES, 4), cop(CSA)))
        if k1:
            mf.append('v_mfma_f32_16x16x32_bf16 %s, %s, %s, %s' % (vr(RS, 4), vr(ONES, 4), vr(af, 4), cop(RS)))
            mf.append('v_mfma_f32_16x16x32_bf16 %s, %s, %s, %s' % (vr(GR, 4), vr(af, 4), vr(af, 4), cop(GR)))
        a('s_waitcnt lgkmcnt(0)')
        for m in mf[:BPOS]:
            a(m)
        if ks + 1 < 16:
            if ks + 1 in gstart:
                a('s_barrier')
            if (ks + 1) % 4 == 0:
                stamp(a, 3 + (ks + 1) // 4)
            reads(ks + 1)
        if late_loads and ks == 14:
            late_loads(a)
        for m in mf[BPOS:]:
            a(m)
    stamp(a, 7)
    stamp(a, 2, True)
    a('v_lshlrev_b32 v15, 4, v2')
    a('s_lshl_b32 s27, s26, 6')
    a('s_add_u32 s27, s27, 0x%x' % XCH)
    a('v_add_u32 v14, s27, v15')
    a('ds_write_b128 v14, %s' % vr(CSA, 4))

    def finish_stats(SUM, SQ, M, RD):
        a('v_mul_f32 v%d, 0x3b000000, v%d' % (SUM, SUM))
        a('v_mul_f32 v%d, 0x3b000000, v%d' % (SQ, SQ))
        a('v_fma_f32 v%d, -v%d, v%d, v%d' % (SQ, SUM, SUM, SQ))
        a('v_max_f32 v%d, 0, v%d' % (SQ, SQ))
        bf16r(a, M, SUM)
        bf16r(a, SQ, SQ)
        a('v_add_f32 v%d, 0x3727c5ac, v%d' % (SQ, SQ))
        bf16r(a, SQ, SQ)
        a('v_sqrt_f32 v%d, v%d' % (SQ, SQ))
        bf16r(a, SQ, SQ)
        a('v_rcp_f32 v%d, v%d' % (RD, SQ))

    if k1:
        SUM, SQ = 48, 49
        a('v_cmp_eq_u32 vcc, 1, v5')
        a('v_cndmask_b32 v%d, v%d, v%d, vcc' % (SQ, GR, GR + 1))
        a('v_cmp_eq_u32 vcc, 2, v5')
        a('v_cndmask_b32 v%d, v%d, v%d, vcc' % (SQ, SQ, GR + 2))
        a('v_cmp_eq_u32 vcc, 3, v5')
        a('v_cndmask_b32 v%d, v%d, v%d, vcc' % (SQ, SQ, GR + 3))
        a('v_cmp_eq_u32 vcc, v2, v4')
        a('v_cndmask_b32 v%d, 0, v%d, vcc' % (SQ, SQ))
        a('v_mov_b32 v%d, v%d' % (SUM, RS))
        butterfly(a, [('v_add_f32', SQ, 52)])
        finish_stats(SUM, SQ, 36, 37)
        a('s_lshl_b32 s27, s20, 7')
        a('s_add_u32 s27, s27, 0x%x' % (XCH + 512))
        a('v_lshlrev_b32 v50, 3, v3')
        a('v_add_u32 v51, s27, v50')
        a('ds_write_b64 v51, v[36:37]')
        a('v_xor_b32 v51, 0x80, v51')
    else:
        for p in range(2):
            b = 144 + 8 * p
            a('v_add_f32 v%d, v%d, v%d' % (48 + 2 * p, b, b + 2))
            a('v_add_f32 v%d, v%d, v%d' % (49 + 2 * p, b + 1, b + 3))
            a('v_add_f32 v%d, v%d, v%d' % (52 + 2 * p, b + 4, b + 6))
            a('v_add_f32 v%d, v%d, v%d' % (53 + 2 * p, b + 5, b + 7))
        for i in range(4):
            a('v_add_f32 v%d, v%d, v%d' % (48 + i, 48 + i, 52 + i))
        butterfly(a, [('v_add_f32', 48, 52), ('v_add_f32', 49, 53), ('v_add_f32', 50, 54), ('v_add_f32', 51, 55)])
        finish_stats(48, 49, 36, 37)
        finish_stats(50, 51, 38, 39)
    a('s_lshl_b32 s27, s36, 6')
    a('s_add_u32 s27, s27, 0x%x' % XCH)
    a('v_add_u32 v15, s27, v15')
    a('s_waitcnt lgkmcnt(0)')
    a('s_barrier')
    stamp(a, 3, True)
    if k1:
        a('ds_read_b64 v[38:39], v51')
    for seg in range(3):
        a('ds_read_b128 %s, v15 offset:%d' % (vr(132 + 4 * seg, 4), seg * 128))
    for p in range(2):
        for seg in range(3):
            if p == 0:
                a('s_waitcnt lgkmcnt(%d)' % (2 - seg))
            ac = ACC + 4 * (3 * p + seg)
            for r in range(4):
                a('v_fma_f32 v%d, -v%d, v%d, v%d' % (ac + r, 36 + 2 * p, 132 + 4 * seg + r, ac + r))
            for r in range(4):
                a('v_mul_f32 v%d, v%d, v%d' % (ac + r, 37 + 2 * p, ac + r))


def gen_k1(a):
    kernel_head(a, 'k1', 256)
    ns, lag = g96_cfg('k1')
    XCH = ns * SLOT
    srd(a, 4, 0)
    srd(a, 8, 8)
    srd(a, 12, 16)
    srd(a, 16, 88)
    lane_decomp(a)
    a('s_and_b32 s30, s2, 7')
    a('s_lshr_b32 s31, s2, 3')
    a('s_lshr_b32 s21, s30, 1')
    a('s_lshl_b32 s21, s21, 2')
    a('s_and_b32 s22, s31, 3')
    a('s_add_u32 s33, s21, s22')
    a('s_and_b32 s21, s30, 1')
    a('s_lshl_b32 s21, s21, 3')
    a('s_lshr_b32 s22, s31, 2')
    a('s_add_u32 s34, s21, s22')
    a('s_lshl_b32 s21, s33, 7')
    a('s_lshl_b32 s22, s34, 6')
    a('s_waitcnt lgkmcnt(0)')
    srd_fin(a, 4, 2048 * 1024)
    srd_fin(a, 8, 512 * 3072)
    srd_fin(a, 12, 16384)
    srd_fin(a, 16, WS_SIZE)
    a('s_cmp_ge_u32 s20, 8')
    a('s_cbranch_scc1 k1_prod')

    def extra(a):
        if PREFETCH >= 2:
            a('s_lshl_b32 s30, s2, 2')
            a('s_and_b32 s31, s20, 3')
            a('s_add_u32 s30, s30, s31')
            a('s_cmp_ge_u32 s20, 4')
            a('s_cbranch_scc1 k1_pfw')
            a('v_lshrrev_b32 v15, 5, v1')
            a('v_and_b32 v23, 31, v1')
            a('v_lshlrev_b32 v23, 4, v23')
            a('v_lshl_add_u32 v15, v15, 10, v23')
            a('s_lshl_b32 s30, s30, 11')
            a('buffer_load_dwordx4 v[156:159], v15, s[4:7], s30 offen offset:512')
            a('s_branch k1_pfd')
            a.label('k1_pfw')
            a('s_mul_i32 s30, s30, 768')
            a('s_add_u32 s30, s30, 0x%x' % (256 * 3072))
            a('buffer_load_dwordx4 v[156:159], v6, s[8:11], s30 offen')
            a.label('k1_pfd')
        a('v_lshlrev_b32 v15, 2, v2')
        a('v_sub_u32 v15, v3, v15')
        a('v_mov_b32 v23, 0x3f80')
        a('v_mov_b32 v24, 0x3f800000')
        a('v_cmp_eq_u32 vcc, 0, v15')
        a('v_cndmask_b32 v20, 0, v23, vcc')
        a('v_cmp_eq_u32 vcc, 1, v15')
        a('v_cndmask_b32 v21, 0, v24, vcc')
        a('v_or_b32 v20, v20, v21')
        a('v_cmp_eq_u32 vcc, 2, v15')
        a('v_cndmask_b32 v21, 0, v23, vcc')
        a('v_cmp_eq_u32 vcc, 3, v15')
        a('v_cndmask_b32 v25, 0, v24, vcc')
        a('v_or_b32 v21, v21, v25')
        a('v_lshl_add_u32 v22, v2, 2, v4')
        a('v_lshlrev_b32 v22, 5, v22')
        a('v_lshl_add_u32 v22, v5, 3, v22')
        a('s_lshl_b32 s30, s36, 9')
        a('s_add_u32 s30, s30, 0x%x' % (XCH + 2048))
        a('v_add_u32 v22, s30, v22')
        a('v_lshlrev_b32 v23, 3, v1')

    gemm96_main(a, 'k1', extra)
    stamp(a, 8)
    stamp(a, 4, True)
    a('ds_read_b64_tr_b16 v[26:27], v22')
    PK = 144
    for t in range(6):
        a('v_cvt_pk_bf16_f32 v%d, v%d, v%d' % (PK + 2 * t, ACC + 4 * t, ACC + 4 * t + 1))
        a('v_cvt_pk_bf16_f32 v%d, v%d, v%d' % (PK + 1 + 2 * t, ACC + 4 * t + 2, ACC + 4 * t + 3))
    a('s_waitcnt lgkmcnt(0)')
    PB = 48
    for s in range(4):
        src = PK + 2 * (3 * (s & 1) + (1 - (s >> 1)))
        a('v_mfma_f32_16x16x16_bf16 %s, v[26:27], %s, 0' % (vr(PB + 4 * s, 4), vr(src, 2)))
    TV = 64
    for p in range(2):
        a('v_mfma_f32_16x16x16_bf16 %s, %s, v[20:21], 0' % (vr(TV + 4 * p, 4), vr(PK + 2 * (3 * p + 2), 2)))
    TB = 72
    for s in range(4):
        p = PB + 4 * s
        a('v_cvt_pk_bf16_f32 v%d, v%d, v%d' % (TB + 12 * s + 2, p, p + 1))
        a('v_cvt_pk_bf16_f32 v%d, v%d, v%d' % (TB + 12 * s + 3, p + 2, p + 3))
    a('s_lshl_b32 s31, s34, 10')
    a('s_lshl_b32 s27, s36, 9')
    a('s_add_u32 s31, s31, s27')
    for p in range(2):
        a('s_lshl_b32 s30, s%d, 10' % (24 if p == 0 else 37))
        a('s_add_u32 s30, s30, s31')
        a('buffer_store_dwordx2 %s, v23, s[16:19], s30 offen' % (vr(TB + 12 * (2 + p) + 2, 2)))
    FB = 120
    softmax_sets(a, 2, PB, TB, FB, 28)
    stamp(a, 7, True)
    for p in range(2):
        for pm in range(2):
            a('v_mfma_f32_16x16x16_bf16 %s, %s, v[20:21], 0' % (vr(72 + 4 * (2 * p + pm), 4), vr(FB + 4 * p + 2 * pm, 2)))
    for p in range(2):
        a('v_cvt_pk_bf16_f32 v%d, v%d, v%d' % (88 + 2 * p, TV + 4 * p, TV + 4 * p + 1))
        a('v_cvt_pk_bf16_f32 v%d, v%d, v%d' % (89 + 2 * p, TV + 4 * p + 2, TV + 4 * p + 3))
    for i in range(4):
        a('v_cvt_pk_bf16_f32 v%d, v%d, v%d' % (92 + 2 * i, 72 + 4 * i, 73 + 4 * i))
        a('v_cvt_pk_bf16_f32 v%d, v%d, v%d' % (93 + 2 * i, 74 + 4 * i, 75 + 4 * i))
    RB = 128
    for p in range(2):
        for pm in range(2):
            r1, r2 = RB + 4 * pm, RB + 4 * (2 + pm)
            a('v_mfma_f32_16x16x16_bf16 %s, %s, %s, %s' % (vr(r1, 4), vr(92 + 2 * (2 * p + pm), 2), vr(88 + 2 * p, 2), '0' if p == 0 else vr(r1, 4)))
            a('v_mfma_f32_16x16x16_bf16 %s, %s, v[16:17], %s' % (vr(r2, 4), vr(92 + 2 * (2 * p + pm), 2), '0' if p == 0 else vr(r2, 4)))
    a('s_lshl_b32 s30, s20, 12')
    a('v_add_u32 v23, s30, v6')
    for i in range(4):
        a('ds_write_b128 v23, %s offset:%d' % (vr(RB + 4 * i, 4), i * 1024))
    a('v_lshlrev_b32 v24, 4, v0')
    a('s_lshl_b32 s30, s33, 5')
    a('s_lshl_b32 s31, s34, 1')
    a('s_add_u32 s30, s30, s31')
    a('s_lshr_b32 s31, s20, 2')
    a('s_add_u32 s30, s30, s31')
    a('s_mul_i32 s30, s30, %d' % PSTR)
    a('s_add_u32 s30, s30, 0x%x' % WS_PART)
    a('s_and_b32 s31, s20, 3')
    a('s_lshl_b32 s27, s31, 10')
    a('s_lshl_b32 s28, s31, 6')
    a('s_add_u32 s28, s28, %d' % (2048 - 128))
    a('s_cmp_lt_u32 s31, 2')
    a('s_cselect_b32 s27, s27, s28')
    a('s_cselect_b64 s[28:29], -1, 0')
    a('s_add_u32 s30, s30, s27')
    a('v_lshlrev_b32 v25, 4, v2')
    a('v_cndmask_b32 v25, v25, v6, s[28:29]')
    a('s_mov_b32 s26, 0x00010001')
    a('s_mov_b32 s27, 0x00010001')
    a('s_or_b64 s[28:29], s[28:29], s[26:27]')
    a('s_waitcnt lgkmcnt(0)')
    a('s_barrier')
    stamp(a, 8, True)
    for m in range(4):
        a('ds_read_b128 %s, v24 offset:%d' % (vr(48 + 4 * m, 4), m * 8192))
    for m in range(1, 4):
        a('s_waitcnt lgkmcnt(%d)' % (3 - m))
        for r in range(4):
            a('v_add_f32 v%d, v%d, v%d' % (48 + r, 48 + r, 48 + 4 * m + r))
    a('s_mov_b64 exec, s[28:29]')
    a('buffer_store_dwordx4 v[48:51], v25, s[16:19], s30 offen')
    stamp_store(a, 0)
    a.label('k1_exit')
    a('s_endpgm')
    gemm96_producers(a, 'k1', 'k1', 3072, 1024)


def gen_ko(a):
    kernel_head(a, 'ko', 256)
    srd(a, 16, 88)
    lane_decomp(a)
    a('s_and_b32 s30, s2, 7')
    a('s_lshr_b32 s31, s2, 3')
    a('s_and_b32 s21, s30, 1')
    a('s_lshl_b32 s21, s21, 4')
    a('s_and_b32 s22, s31, 15')
    a('s_add_u32 s21, s21, s22')
    a('s_lshr_b32 s22, s30, 1')
    a('s_lshl_b32 s22, s22, 1')
    a('s_lshr_b32 s23, s31, 4')
    a('s_add_u32 s22, s22, s23')
    a('s_lshl_b32 s22, s22, 3')
    a('s_add_u32 s22, s22, s20')
    a('s_lshl_b32 s22, s22, 15')
    a('s_lshl_b32 s23, s21, 9')
    a('s_add_u32 s22, s22, s23')
    a('s_add_u32 s23, s22, 16384')
    a('v_lshlrev_b32 v7, 3, v1')
    a('s_lshr_b32 s24, s20, 1')
    a('s_lshl_b32 s24, s24, 7')
    a('s_add_u32 s24, s24, s21')
    a('s_mul_i32 s24, s24, %d' % PSTR)
    a('s_add_u32 s24, s24, 0x%x' % WS_PART)
    a('s_and_b32 s25, s20, 1')
    a('s_lshl_b32 s26, s25, 10')
    a('s_lshl_b32 s27, s25, 6')
    a('s_add_u32 s26, s26, s24')
    a('s_add_u32 s27, s27, s24')
    a('s_add_u32 s27, s27, 2048')
    a('v_lshlrev_b32 v8, 4, v2')
    a('s_waitcnt lgkmcnt(0)')
    srd_fin(a, 16, WS_SIZE)
    PB, TB, FB = 16, 24, 48
    q_p = []
    for s in range(2):
        q_p.append(a('buffer_load_dwordx2 %s, v7, s[16:19], s%d offen' % (vr(TB + 12 * s + 2, 2), 22 + s)))
    KV, ZZ = 64, 80
    for j in range(4):
        a('buffer_load_dwordx4 %s, v6, s[16:19], s26 offen' % vr(KV + 4 * j, 4))
        q_l = a('buffer_load_dwordx4 %s, v8, s[16:19], s27 offen' % vr(ZZ + 4 * j, 4))
        if j < 3:
            a('s_add_u32 s26, s26, %d' % (32 * PSTR))
            a('s_add_u32 s27, s27, %d' % (32 * PSTR))
    a('s_lshl_b32 s30, s20, 11')
    a('v_add_u32 v9, s30, v6')
    stamp(a, 2)
    a.wait_vm(q_p[1])
    stamp(a, 3)
    softmax_sets(a, 2, PB, TB, FB, 10)
    stamp(a, 4)
    a.wait_vm(q_l)
    stamp(a, 5)
    for B in (KV, ZZ):
        for r in range(4):
            a('v_add_f32 v%d, v%d, v%d' % (B + r, B + r, B + 4 + r))
            a('v_add_f32 v%d, v%d, v%d' % (B + 8 + r, B + 8 + r, B + 12 + r))
        for r in range(4):
            a('v_add_f32 v%d, v%d, v%d' % (B + r, B + r, B + 8 + r))
    a('ds_write_b128 v9, %s' % vr(KV, 4))
    a('ds_write_b128 v9, %s offset:1024' % vr(ZZ, 4))
    a('s_waitcnt lgkmcnt(0)')
    a('s_barrier')
    stamp(a, 6)
    RD = 64
    for t in range(2):
        for kz in range(2):
            for qd in range(4):
                a('ds_read_b128 %s, v6 offset:%d' % (vr(RD + 4 * (8 * t + 4 * kz + qd), 4), (2 * qd + t) * 2048 + kz * 1024))
    OPA = 56
    for t in range(2):
        for kz in range(2):
            i = 2 * t + kz
            B = RD + 16 * i
            a('s_waitcnt lgkmcnt(%d)' % (12 - 4 * i))
            for r in range(4):
                a('v_add_f32 v%d, v%d, v%d' % (B + r, B + r, B + 4 + r))
                a('v_add_f32 v%d, v%d, v%d' % (B + 8 + r, B + 8 + r, B + 12 + r))
            for r in range(4):
                a('v_add_f32 v%d, v%d, v%d' % (B + r, B + r, B + 8 + r))
            a('v_cvt_pk_bf16_f32 v%d, v%d, v%d' % (OPA + 4 * kz + 2 * t, B, B + 1))
            a('v_cvt_pk_bf16_f32 v%d, v%d, v%d' % (OPA + 4 * kz + 2 * t + 1, B + 2, B + 3))
    ND = 64
    for s in range(2):
        a('v_mfma_f32_16x16x32_bf16 %s, %s, %s, 0' % (vr(ND + 8 * s, 4), vr(OPA, 4), vr(FB + 4 * s, 4)))
        a('v_mfma_f32_16x16x32_bf16 %s, %s, %s, 0' % (vr(ND + 8 * s + 4, 4), vr(OPA + 4, 4), vr(FB + 4 * s, 4)))
    stamp(a, 7)
    a('s_add_u32 s22, s22, 0x%x' % WS_O)
    a('s_add_u32 s23, s23, 0x%x' % WS_O)
    for s in range(2):
        n = ND + 8 * s
        d = n + 4
        T = 16 + 8 * s
        a('v_cvt_pk_bf16_f32 v%d, v%d, v%d' % (T, d, d))
        a('v_cvt_pk_bf16_f32 v%d, v%d, v%d' % (T + 1, n, n + 1))
        a('v_cvt_pk_bf16_f32 v%d, v%d, v%d' % (T + 2, n + 2, n + 3))
        a('v_lshlrev_b32 v%d, 16, v%d' % (T, T))
        a('v_add_f32 v%d, 0x358637bd, v%d' % (T, T))
        a('v_cvt_pk_bf16_f32 v%d, v%d, v%d' % (T, T, T))
        a('v_lshlrev_b32 v%d, 16, v%d' % (T, T))
        a('v_rcp_f32 v%d, v%d' % (T, T))
        a('v_lshlrev_b32 v%d, 16, v%d' % (T + 3, T + 1))
        a('v_and_b32 v%d, 0xffff0000, v%d' % (T + 4, T + 1))
        a('v_lshlrev_b32 v%d, 16, v%d' % (T + 5, T + 2))
        a('v_and_b32 v%d, 0xffff0000, v%d' % (T + 6, T + 2))
        for i in range(4):
            a('v_mul_f32 v%d, v%d, v%d' % (T + 3 + i, T, T + 3 + i))
        a('v_cvt_pk_bf16_f32 v%d, v%d, v%d' % (T, T + 3, T + 4))
        a('v_cvt_pk_bf16_f32 v%d, v%d, v%d' % (T + 1, T + 5, T + 6))
        a('buffer_store_dwordx2 %s, v7, s[16:19], s%d offen' % (vr(T, 2), 22 + s))
    stamp(a, 8)
    stamp_store(a, 1)
    a.label('ko_exit')
    a('s_endpgm')


SL2 = 16384


def g64_cfg(mode):
    ns = env('NS2', 8) if mode == 'k2' else env('NS4', 8)
    lag = env('LAG2', 5) if mode == 'k2' else env('LAG4', 5)
    return ns, lag


def g64_groups(mode, nsl):
    return mk_groups(nsl, os.environ.get('GR2', '1') if mode == 'k2' else os.environ.get('GR4', '1'))


def g64_map(a):
    a('s_and_b32 s30, s2, 7')
    a('s_lshr_b32 s31, s2, 3')
    a('s_lshl_b32 s21, s30, 2')
    a('s_and_b32 s22, s31, 3')
    a('s_add_u32 s21, s21, s22')
    a('s_lshr_b32 s22, s31, 2')
    a('s_lshl_b32 s21, s21, 2')
    a('s_lshl_b32 s22, s22, 7')


def gemm64_producers(a, mode, nks, atile, abase):
    name = mode
    ns, lag = g64_cfg(mode)
    nsl = (nks + 1) // 2
    a.label(name + '_prod')
    a.hist = []
    a('s_cmp_lg_u32 s20, 8')
    a('s_cbranch_scc1 %s_prodA' % name)
    a.vm_issued = 0
    a('v_lshrrev_b32 v8, 3, v1')
    a('v_bfe_u32 v9, v1, 1, 2')
    a('v_bfe_u32 v10, v1, 4, 2')
    a('v_xor_b32 v9, v9, v10')
    a('v_and_b32 v10, 1, v1')
    a('v_lshlrev_b32 v10, 4, v10')
    a('v_lshl_add_u32 v9, v9, 5, v10')
    a('v_lshl_add_u32 v8, v8, 10, v9')
    a('v_add_u32 v8, s22, v8')

    def xtile():
        a('v_lshrrev_b32 v9, 3, v1')
        a('v_and_b32 v10, 7, v1')
        a('v_lshlrev_b32 v10, 4, v10')
        a('v_lshl_add_u32 v9, v9, 10, v10')
        a('s_lshl_b32 s31, s21, 14')
        a('s_add_u32 s31, s31, s22')
        for j in range(8):
            a('s_mov_b32 m0, 0x%x' % (ns * SL2 + j * 1024))
            a('s_add_u32 s30, s31, 0x%x' % (j * 8192))
            a('buffer_load_dwordx4 v9, s[4:7], s30 offen lds')

    def wissue(i):
        n = 8 if 2 * i + 1 < nks else 4
        for j in range(n):
            a('s_mov_b32 m0, 0x%x' % ((i % ns) * SL2 + j * 1024))
            a('s_mov_b32 s30, 0x%x' % ((i * 64 + 8 * j) * 1024))
            q = a('buffer_load_dwordx4 v8, s[8:11], s30 offen lds')
        return q
    producer_loop(a, nsl, ns, lag, 8, wissue, g64_groups(mode, nsl), xtile if mode == 'k2' else None)
    a.label(name + '_prodA')
    a.hist = []
    a.vm_issued = 0
    a('s_mul_i32 s31, s21, %d' % atile)
    a('v_add_u32 v7, s31, v6')

    def aissue(i):
        n = 2 if 2 * i + 1 < nks else 1
        for rt in range(4):
            for j in range(n):
                a('s_mov_b32 m0, 0x%x' % ((i % ns) * SL2 + 8192 + rt * 2048 + j * 1024))
                a('s_mov_b32 s30, 0x%x' % (abase + rt * atile + i * 2048 + j * 1024))
                q = a('buffer_load_dwordx4 v7, s[16:19], s30 offen lds')
        return q
    producer_loop(a, nsl, ns, lag, 8, aissue, g64_groups(mode, nsl))


G_AC = 16
G_BUF = (24, 48)
G_TB = 72


def gemm64_main(a, mode, nks, mid, tail=None):
    ns, lag = g64_cfg(mode)
    nsl = (nks + 1) // 2
    k2 = mode == 'k2'
    nb = (ns + 3) // 4
    gstart = set(lo for (lo, hi) in g64_groups(mode, nsl))
    a('s_lshr_b32 s23, s20, 1')
    a('s_add_u32 s24, s21, s23')
    a('s_and_b32 s25, s20, 1')
    a('v_lshl_add_u32 v14, v2, 2, v4')
    a('v_lshlrev_b32 v14, 7, v14')
    a('v_lshl_add_u32 v14, v5, 3, v14')
    a('v_and_b32 v15, 1, v2')
    a('v_lshlrev_b32 v15, 1, v15')
    a('v_lshrrev_b32 v13, 1, v4')
    a('v_or_b32 v15, v15, v13')
    a('s_lshl_b32 s26, s25, 1')
    a('v_xor_b32 v15, s26, v15')
    a('v_lshl_add_u32 v%d, v15, 5, v14' % G_TB)
    a('v_xor_b32 v%d, 32, v%d' % (G_TB + 1, G_TB))
    a('s_lshl_b32 s26, s23, 11')
    a('s_add_u32 s26, s26, 8192')
    if k2:
        a('v_lshlrev_b32 v13, 3, v1')
        a('v_add_u32 v%d, s26, v13' % (G_TB + 6))
    else:
        a('v_add_u32 v%d, s26, v6' % (G_TB + 6))
    for b in range(1, nb):
        a('v_add_u32 v%d, 0x%x, v%d' % (G_TB + 2 * b, b * 65536, G_TB))
        a('v_add_u32 v%d, 0x%x, v%d' % (G_TB + 2 * b + 1, b * 65536, G_TB + 1))
        a('v_add_u32 v%d, 0x%x, v%d' % (G_TB + 6 + b, b * 65536, G_TB + 6))

    def nkk(i):
        return 2 if 2 * i + 1 < nks else 1

    def reads(i):
        B = G_BUF[i & 1]
        sl = i % ns
        bk, so = sl // 4, (sl % 4) * SL2
        for kk in range(nkk(i)):
            if k2:
                a('ds_read_b64 %s, v%d offset:%d' % (vr(B + 16 + 4 * kk, 2), G_TB + 6 + bk, so + kk * 1024))
                a('ds_read_b64 %s, v%d offset:%d' % (vr(B + 18 + 4 * kk, 2), G_TB + 6 + bk, so + kk * 1024 + 512))
            else:
                a('ds_read_b128 %s, v%d offset:%d' % (vr(B + 16 + 4 * kk, 4), G_TB + 6 + bk, so + kk * 1024))
            for nt in range(2):
                for e in range(2):
                    a('ds_read_b64_tr_b16 %s, v%d offset:%d' % (vr(B + 8 * kk + 4 * nt + 2 * e, 2), G_TB + 2 * bk + nt, so + kk * 4096 + e * 2048))
    stamp(a, 2)
    a('s_barrier')
    stamp(a, 3)
    reads(0)
    mid(a)
    for i in range(nsl):
        B = G_BUF[i & 1]
        mf = []
        for kk in range(nkk(i)):
            for nt in range(2):
                c_op = '0' if (i == 0 and kk == 0) else vr(G_AC + 4 * nt, 4)
                mf.append('v_mfma_f32_16x16x32_bf16 %s, %s, %s, %s' % (vr(G_AC + 4 * nt, 4), vr(B + 8 * kk + 4 * nt, 4), vr(B + 16 + 4 * kk, 4), c_op))
        a('s_waitcnt lgkmcnt(0)')
        if i + 1 < nsl:
            if i + 1 in gstart:
                a('s_barrier')
            if (i + 1) % ((nsl + 3) // 4) == 0:
                stamp(a, 3 + (i + 1) // ((nsl + 3) // 4))
            reads(i + 1)
            if tail and i + 2 == nsl:
                tail(a)
        for m in mf:
            a(m)
    stamp(a, 7)


def gen_k2(a):
    kernel_head(a, 'k2', 256)
    srd(a, 4, 0)
    srd(a, 8, 24)
    srd(a, 16, 88)
    lane_decomp(a)
    g64_map(a)
    a('s_waitcnt lgkmcnt(0)')
    srd_fin(a, 4, 2048 * 1024)
    srd_fin(a, 8, 512 * 1024)
    srd_fin(a, 16, WS_SIZE)
    a('s_cmp_ge_u32 s20, 8')
    a('s_cbranch_scc1 k2_prod')
    XR = 84

    def mid(a):
        a('s_lshl_b32 s26, s23, 11')
        a('s_lshl_b32 s27, s25, 6')
        a('s_add_u32 s26, s26, s27')
        a('s_add_u32 s26, s26, 0x%x' % (g64_cfg('k2')[0] * SL2))
        a('v_lshlrev_b32 v11, 7, v3')
        a('v_lshl_add_u32 v11, v2, 3, v11')
        a('v_add_u32 v11, s26, v11')

    def tail(a):
        for nt in range(2):
            a('ds_read_b64 %s, v11 offset:%d' % (vr(XR + 2 * nt, 2), nt * 32))
    gemm64_main(a, 'k2', 16, mid, tail)
    stamp(a, 8)
    a('s_lshl_b32 s30, s24, 14')
    a('s_lshl_b32 s31, s22, 4')
    a('s_add_u32 s30, s30, s31')
    a('s_lshl_b32 s31, s25, 10')
    a('s_add_u32 s30, s30, s31')
    a('s_add_u32 s30, s30, 0x%x' % WS_H)
    OUTR = 56
    S1, S2 = 54, 55
    for nt in range(2):
        ac = G_AC + 4 * nt
        T = 24 + 8 * nt
        O = OUTR + 2 * nt
        a('v_cvt_pk_bf16_f32 v%d, v%d, v%d' % (T, ac, ac + 1))
        a('v_cvt_pk_bf16_f32 v%d, v%d, v%d' % (T + 1, ac + 2, ac + 3))
        a('v_lshlrev_b32 v%d, 16, v%d' % (T + 2, T))
        a('v_and_b32 v%d, 0xffff0000, v%d' % (T + 3, T))
        a('v_lshlrev_b32 v%d, 16, v%d' % (T + 4, T + 1))
        a('v_and_b32 v%d, 0xffff0000, v%d' % (T + 5, T + 1))
        x = XR + 2 * nt
        a('v_lshlrev_b32 v%d, 16, v%d' % (T + 6, x))
        a('v_and_b32 v%d, 0xffff0000, v%d' % (T + 7, x))
        a('v_add_f32 v%d, v%d, v%d' % (T + 2, T + 2, T + 6))
        a('v_add_f32 v%d, v%d, v%d' % (T + 3, T + 3, T + 7))
        a('v_lshlrev_b32 v%d, 16, v%d' % (T + 6, x + 1))
        a('v_and_b32 v%d, 0xffff0000, v%d' % (T + 7, x + 1))
        a('v_add_f32 v%d, v%d, v%d' % (T + 4, T + 4, T + 6))
        a('v_add_f32 v%d, v%d, v%d' % (T + 5, T + 5, T + 7))
        a('v_cvt_pk_bf16_f32 v%d, v%d, v%d' % (O, T + 2, T + 3))
        a('v_cvt_pk_bf16_f32 v%d, v%d, v%d' % (O + 1, T + 4, T + 5))
        if nt & 1:
            a('buffer_store_dwordx4 %s, v6, s[16:19], s30 offen' % (vr(O - 2, 4)))
        a('v_lshlrev_b32 v%d, 16, v%d' % (T + 2, O))
        a('v_and_b32 v%d, 0xffff0000, v%d' % (T + 3, O))
        a('v_lshlrev_b32 v%d, 16, v%d' % (T + 4, O + 1))
        a('v_and_b32 v%d, 0xffff0000, v%d' % (T + 5, O + 1))
        for i in range(4):
            if nt == 0 and i == 0:
                a('v_mov_b32 v%d, v%d' % (S1, T + 2))
                a('v_mul_f32 v%d, v%d, v%d' % (S2, T + 2, T + 2))
            else:
                a('v_add_f32 v%d, v%d, v%d' % (S1, S1, T + 2 + i))
                a('v_fma_f32 v%d, v%d, v%d, v%d' % (S2, T + 2 + i, T + 2 + i, S2))
    butterfly(a, [('v_add_f32', S1, 52), ('v_add_f32', S2, 53)])
    a('v_lshlrev_b32 v12, 4, v3')
    a('s_lshl_b32 s30, s24, 11')
    a('s_lshr_b32 s31, s22, 7')
    a('s_and_b32 s26, s31, 1')
    a('s_lshl_b32 s26, s26, 10')
    a('s_add_u32 s30, s30, s26')
    a('s_lshr_b32 s31, s31, 1')
    a('s_lshl_b32 s31, s31, 8')
    a('s_add_u32 s30, s30, s31')
    a('s_lshl_b32 s31, s25, 3')
    a('s_add_u32 s30, s30, s31')
    a('s_add_u32 s30, s30, 0x%x' % WS_ST2)
    a('buffer_store_dwordx2 v[54:55], v12, s[16:19], s30 offen')
    stamp_store(a, 2)
    a.label('k2_exit')
    a('s_endpgm')
    gemm64_producers(a, 'k2', 16, 16384, WS_O)


def gen_k3(a):
    kernel_head(a, 'k3', 240)
    srd(a, 4, 88)
    srd(a, 8, 40)
    srd(a, 12, 48)
    srd(a, 16, 88)
    lane_decomp(a)
    a('s_and_b32 s30, s2, 7')
    a('s_lshr_b32 s31, s2, 3')
    a('s_lshl_b32 s21, s30, 1')
    a('s_and_b32 s22, s31, 1')
    a('s_add_u32 s33, s21, s22')
    a('s_lshr_b32 s34, s31, 1')
    a('s_lshl_b32 s21, s33, 7')
    a('s_mul_i32 s22, s34, 192')
    a('s_waitcnt lgkmcnt(0)')
    a('s_add_u32 s4, s4, 0x%x' % WS_H)
    a('s_addc_u32 s5, s5, 0')
    srd_fin(a, 4, 2048 * 1024)
    srd_fin(a, 8, 512 * 2752)
    srd_fin(a, 12, 2752)
    srd_fin(a, 16, WS_SIZE)
    a('s_cmp_ge_u32 s20, 8')
    a('s_cbranch_scc1 k3_prod')

    def extra(a):
        pass

    def late(a):
        XCH = g96_cfg('k3')[0] * SLOT
        a('v_lshlrev_b32 v22, 3, v2')
        a('s_lshl_b32 s30, s36, 5')
        a('s_add_u32 s30, s30, 0x%x' % (XCH + 2048))
        a('v_add_u32 v22, s30, v22')
        a('s_lshl_b32 s30, s20, 11')
        a('s_add_u32 s30, s30, 0x%x' % (XCH + 4096))
        a('v_add_u32 v23, s30, v6')
        a('v_xor_b32 v24, 0x800, v23')
        for p in range(2):
            a('ds_read_b128 %s, v%d' % (vr(144 + 8 * p, 4), 23 + p))
            a('ds_read_b128 %s, v%d offset:1024' % (vr(148 + 8 * p, 4), 23 + p))
        for seg in range(3):
            a('ds_read_b64 %s, v22 offset:%d' % (vr(28 + 2 * seg, 2), seg * 64))

    gemm96_main(a, 'k3', extra, late)
    stamp(a, 8)
    a('s_lshl_b32 s27, s36, 3')
    a('s_mul_i32 s31, s34, 3 * 1024')
    a('s_add_u32 s31, s31, s27')
    a('s_add_u32 s31, s31, 0x%x' % WS_R)
    for p in range(2):
        a('s_lshr_b32 s%d, s%d, 4' % (28 + p, 24 if p == 0 else 37))
        a('s_mul_i32 s%d, s%d, 43 * 1024' % (28 + p, 28 + p))
        a('s_add_u32 s%d, s%d, s31' % (28 + p, 28 + p))
    for seg in range(3):
        if seg == 1:
            a('s_cmp_eq_u32 s34, 14')
            a('s_cbranch_scc1 k3_done')
        b = 28 + 2 * seg
        B = 132 + 4 * seg
        a('v_lshlrev_b32 v%d, 16, v%d' % (B, b))
        a('v_and_b32 v%d, 0xffff0000, v%d' % (B + 1, b))
        a('v_lshlrev_b32 v%d, 16, v%d' % (B + 2, b + 1))
        a('v_and_b32 v%d, 0xffff0000, v%d' % (B + 3, b + 1))
        for p in range(2):
            ac = ACC + 4 * (3 * p + seg)
            T = 48 + 8 * (2 * seg + p)
            a('v_cvt_pk_bf16_f32 v%d, v%d, v%d' % (T, ac, ac + 1))
            a('v_cvt_pk_bf16_f32 v%d, v%d, v%d' % (T + 1, ac + 2, ac + 3))
            a('v_lshlrev_b32 v%d, 16, v%d' % (T + 2, T))
            a('v_and_b32 v%d, 0xffff0000, v%d' % (T + 3, T))
            a('v_lshlrev_b32 v%d, 16, v%d' % (T + 4, T + 1))
            a('v_and_b32 v%d, 0xffff0000, v%d' % (T + 5, T + 1))
            for i in range(4):
                a('v_add_f32 v%d, v%d, v%d' % (T + 2 + i, T + 2 + i, B + i))
            a('v_cvt_pk_bf16_f32 v%d, v%d, v%d' % (T, T + 2, T + 3))
            a('v_cvt_pk_bf16_f32 v%d, v%d, v%d' % (T + 1, T + 4, T + 5))
            a('v_lshlrev_b32 v%d, 16, v%d' % (T + 2, T))
            a('v_and_b32 v%d, 0xffff0000, v%d' % (T + 3, T))
            a('v_lshlrev_b32 v%d, 16, v%d' % (T + 4, T + 1))
            a('v_and_b32 v%d, 0xffff0000, v%d' % (T + 5, T + 1))
            for i in range(4):
                a('v_max_f32 v%d, 0, v%d' % (T + 2 + i, T + 2 + i))
            for i in range(4):
                a('v_mul_f32 v%d, v%d, v%d' % (T + 2 + i, T + 2 + i, T + 2 + i))
            a('v_cvt_pk_bf16_f32 v%d, v%d, v%d' % (T, T + 2, T + 3))
            a('v_cvt_pk_bf16_f32 v%d, v%d, v%d' % (T + 1, T + 4, T + 5))
            a('buffer_store_dwordx2 %s, v6, s[16:19], s%d offen offset:%d' % (vr(T, 2), 28 + p, seg * 1024))
    a.label('k3_done')
    stamp_store(a, 3)
    a.label('k3_exit')
    a('s_endpgm')
    gemm96_producers(a, 'k3', 'k3', 2752, 64)


def gen_k4(a):
    kernel_head(a, 'k4', 256)
    srd(a, 4, 72)
    srd(a, 8, 56)
    srd(a, 12, 64)
    srd(a, 16, 88)
    lane_decomp(a)
    g64_map(a)
    a('s_waitcnt lgkmcnt(0)')
    srd_fin(a, 4, 2048 * 1024)
    srd_fin(a, 8, 1376 * 1024)
    srd_fin(a, 12, 1024)
    srd_fin(a, 16, WS_SIZE)
    a('s_cmp_ge_u32 s20, 8')
    a('s_cbranch_scc1 k4_prod')
    HR = 84
    BR = 88

    def mid(a):
        a('s_lshl_b32 s30, s24, 14')
        a('s_lshl_b32 s31, s22, 4')
        a('s_add_u32 s30, s30, s31')
        a('s_lshl_b32 s31, s25, 10')
        a('s_add_u32 s30, s30, s31')
        a('s_add_u32 s30, s30, 0x%x' % WS_H)
        a('buffer_load_dwordx4 %s, v6, s[16:19], s30 offen' % (vr(HR, 4)))
        a('s_lshl_b32 s27, s25, 6')
        a('s_add_u32 s27, s27, s22')
        a('v_lshlrev_b32 v12, 3, v2')
        for nt in range(2):
            a('buffer_load_dwordx2 %s, v12, s[12:15], s27 offen offset:%d' % (vr(BR + 2 * nt, 2), nt * 32))
        a('s_lshl_b32 s26, s24, 14')
        a('s_add_u32 s26, s26, s27')
        a('v_and_b32 v11, 1, v2')
        a('v_lshlrev_b32 v11, 5, v11')
        a('v_lshrrev_b32 v12, 1, v2')
        a('v_lshl_add_u32 v11, v12, 4, v11')
        a('v_lshl_add_u32 v11, v3, 10, v11')
    gemm64_main(a, 'k4', 43, mid)
    a('s_waitcnt vmcnt(0)')
    stamp(a, 8)
    O = 56
    for nt in range(2):
        ac = G_AC + 4 * nt
        T = 24 + 8 * nt
        b = BR + 2 * nt
        x = HR + 2 * nt
        a('v_cvt_pk_bf16_f32 v%d, v%d, v%d' % (T, ac, ac + 1))
        a('v_cvt_pk_bf16_f32 v%d, v%d, v%d' % (T + 1, ac + 2, ac + 3))
        for src in (b, x):
            a('v_lshlrev_b32 v%d, 16, v%d' % (T + 2, T))
            a('v_and_b32 v%d, 0xffff0000, v%d' % (T + 3, T))
            a('v_lshlrev_b32 v%d, 16, v%d' % (T + 4, T + 1))
            a('v_and_b32 v%d, 0xffff0000, v%d' % (T + 5, T + 1))
            a('v_lshlrev_b32 v%d, 16, v%d' % (T + 6, src))
            a('v_and_b32 v%d, 0xffff0000, v%d' % (T + 7, src))
            a('v_add_f32 v%d, v%d, v%d' % (T + 2, T + 2, T + 6))
            a('v_add_f32 v%d, v%d, v%d' % (T + 3, T + 3, T + 7))
            a('v_lshlrev_b32 v%d, 16, v%d' % (T + 6, src + 1))
            a('v_and_b32 v%d, 0xffff0000, v%d' % (T + 7, src + 1))
            a('v_add_f32 v%d, v%d, v%d' % (T + 4, T + 4, T + 6))
            a('v_add_f32 v%d, v%d, v%d' % (T + 5, T + 5, T + 7))
            D = T if src == b else O + 2 * nt
            a('v_cvt_pk_bf16_f32 v%d, v%d, v%d' % (D, T + 2, T + 3))
            a('v_cvt_pk_bf16_f32 v%d, v%d, v%d' % (D + 1, T + 4, T + 5))
    a('v_permlane16_swap_b32 v%d, v%d' % (O, O + 2))
    a('v_permlane16_swap_b32 v%d, v%d' % (O + 1, O + 3))
    a('buffer_store_dwordx4 %s, v11, s[4:7], s26 offen' % vr(O, 4))
    stamp_store(a, 4)
    a.label('k4_exit')
    a('s_endpgm')
    gemm64_producers(a, 'k4', 43, 43 * 1024, WS_R)


def desc(name, vgpr, sgpr=80):
    return '''.amdhsa_kernel %s
  .amdhsa_next_free_vgpr %d
  .amdhsa_next_free_sgpr %d
  .amdhsa_accum_offset %d
  .amdhsa_group_segment_fixed_size 0
  .amdhsa_kernarg_size 96
  .amdhsa_user_sgpr_count 2
  .amdhsa_user_sgpr_kernarg_segment_ptr 1
  .amdhsa_system_sgpr_workgroup_id_x 1
.end_amdhsa_kernel
''' % (name, vgpr, sgpr, vgpr)


def kernels():
    return [
        ('k1_kernel', gen_k1, 256, 704, g96_cfg('k1')[0] * SLOT + 4096, 160),
        ('ko_kernel', gen_ko, 256, 512, 16384, 128),
        ('k2_kernel', gen_k2, 256, 640, g64_cfg('k2')[0] * SL2 + 8192, 96),
        ('k3_kernel', gen_k3, 240, 704, g96_cfg('k3')[0] * SLOT + 4096 + 16384, 160),
        ('k4_kernel', gen_k4, 256, 640, g64_cfg('k4')[0] * SL2, 96),
    ]


def build(kernels):
    head = ''
    for (n, g, grid, block, lds, v) in kernels:
        head += '; @launch kernel=%s grid=(%d,1,1) block=(%d,1,1) lds=%d\n' % (n, grid, block, lds)
    head += '.amdgcn_target "amdgcn-amd-amdhsa--gfx950"\n.text\n'
    a = Asm()
    for (n, g, grid, block, lds, v) in kernels:
        a.vm_issued = 0
        g(a)
    d = '.section .rodata,"a"\n.p2align 6\n'
    for (n, g, grid, block, lds, v) in kernels:
        d += desc(n, v)
    return head + a.text() + d


if __name__ == '__main__':
    out = sys.argv[1] if len(sys.argv) > 1 else 'cur.s'
    open(out, 'w').write(build(kernels()))
    print('wrote', out)
```

```python
import sys, os
sys.path.insert(0, os.path.dirname(__file__))
from dsl import Asm

MB = 1 << 20
WS_PHIQ = 0
WS_PART = 4 * MB
WS_KVA = 6 * MB
WS_ZA = 6 * MB + 32768
WS_ST2 = 6 * MB + 524288
WS_H = 7 * MB
WS_R = 9 * MB
WS_SIZE = 16 * MB
L2E = '0x3fb8aa3b'
NL2E = '0xbfb8aa3b'


def vr(b, n):
    return 'v[%d:%d]' % (b, b + n - 1)


def srd(a, s, koff, size):
    a('s_load_dwordx2 s[%d:%d], s[0:1], %d' % (s, s + 1, koff))


def srd_fin(a, s, size):
    a('s_and_b32 s%d, s%d, 0xffff' % (s + 1, s + 1))
    a('s_mov_b32 s%d, 0x%x' % (s + 2, size))
    a('s_mov_b32 s%d, 0x00020000' % (s + 3))


def bf16r(a, d, s):
    a('v_cvt_pk_bf16_f32 v%d, v%d, v%d' % (d, s, s))
    a('v_lshlrev_b32 v%d, 16, v%d' % (d, d))


def butterfly(a, items):
    for sw in ('v_permlane16_swap_b32', 'v_permlane32_swap_b32'):
        for (op, r, t) in items:
            a('v_mov_b32 v%d, v%d' % (t, r))
        for (op, r, t) in items:
            a('%s v%d, v%d' % (sw, r, t))
        for (op, r, t) in items:
            a('%s v%d, v%d, v%d' % (op, r, r, t))


STAMP = os.environ.get('STAMP')
PREFETCH = int(os.environ.get('PREFETCH', '2'))
STPOL = os.environ.get('STPOL', '')
WS_STAMP = 15 * MB


EPI = os.environ.get('EPI')


def stamp(a, i, epi=False):
    if STAMP and (i in (1, 9) or bool(EPI) == epi):
        a('s_memtime s[%d:%d]' % (40 + 2 * i, 41 + 2 * i))


def stamp_real(a, i):
    if STAMP:
        a('s_memrealtime s[%d:%d]' % (40 + 2 * i, 41 + 2 * i))


def stamp_store(a, kidx, n, srd=16):
    if not STAMP:
        return
    a('s_waitcnt lgkmcnt(0)')
    a('s_lshl_b32 s38, s2, 3')
    a('s_add_u32 s38, s38, s20')
    a('s_lshl_b32 s38, s38, 6')
    a('s_add_u32 s38, s38, 0x%x' % (WS_STAMP + kidx * 131072))
    a('v_mov_b32 v0, 0')
    for i in range(n):
        a('v_mov_b32 v1, s%d' % (40 + 2 * i))
        a('buffer_store_dword v1, v0, s[%d:%d], s38 offen offset:%d' % (srd, srd + 3, i * 4))


def kernel_head(a, name):
    a.raw('.globl %s' % name)
    a.raw('.p2align 8')
    a.raw('.type %s,@function' % name)
    a.label(name)
    a.hist = []


def lane_decomp(a):
    a('v_and_b32 v1, 63, v0')
    a('v_lshrrev_b32 v6, 6, v0')
    a('v_lshrrev_b32 v2, 4, v1')
    a('v_and_b32 v3, 15, v1')
    a('v_readfirstlane_b32 s20, v6')
    a('v_bfe_u32 v4, v1, 2, 2')
    a('v_and_b32 v5, 3, v1')


AFB = (48, 56)
BUF = (64, 80)
ACC = 96
RS, GR, CSA = 120, 124, 128
ONES = 16
ASLOT = 98304


def gemm96_producers(a, mode, name, wstride, seg_off):
    k1 = mode == 'k1'
    a.label(name + '_prod')
    a.hist = []
    a('s_cmp_eq_u32 s20, 9')
    a('s_cbranch_scc1 %s_prodA' % name)
    a.vm_issued = 0
    a('v_lshrrev_b32 v7, 2, v1')
    a('v_mul_u32_u24 v7, 0x%x, v7' % wstride)
    a('v_bfe_u32 v15, v1, %d, 1' % (5 if k1 else 4))
    a('v_lshlrev_b32 v15, 1, v15')
    a('v_xor_b32 v15, v15, v5')
    a('v_lshl_add_u32 v7, v15, 4, v7')
    a('v_add_u32 v7, s22, v7')
    last = {}

    def bchunk(c):
        for rg in range(8):
            for seg in range(3):
                a('s_mov_b32 m0, 0x%x' % (c * 24576 + seg * 8192 + rg * 1024))
                a('s_mov_b32 s30, 0x%x' % ((c * 128 + rg * 16) * wstride + seg * seg_off))
                last[c] = a('buffer_load_dwordx4 v7, s[8:11], s30 offen lds')
    if k1 and PREFETCH:
        srd(a, 44, 24, 0)
        srd(a, 48, 40, 0)
        srd(a, 52, 56, 0)
    bchunk(0)
    bchunk(1)
    for c in range(4):
        a.wait_vm(last[c])
        a('s_barrier')
        if c + 2 < 4:
            bchunk(c + 2)
        if c == 3 and k1 and PREFETCH:
            a('s_waitcnt lgkmcnt(0)')
            srd_fin(a, 44, 512 * 1024)
            srd_fin(a, 48, 512 * 2752)
            srd_fin(a, 52, 1376 * 1024)
            a('v_lshlrev_b32 v6, 4, v1')
            a('s_lshl_b32 s30, s2, 11')
            a('s_mul_i32 s31, s2, 5504')
            for i in range(2):
                a('buffer_load_dwordx4 %s, v6, s[44:47], s30 offen offset:%d' % (vr(64 + 4 * i, 4), i * 1024))
            for i in range(4):
                a('buffer_load_dwordx4 %s, v6, s[48:51], s31 offen offset:%d' % (vr(72 + 4 * i, 4), i * 1024))
                a('buffer_load_dwordx4 %s, v6, s[52:55], s31 offen offset:%d' % (vr(96 + 4 * i, 4), i * 1024))
            a('s_add_u32 s31, s31, 4096')
            for i in range(2):
                a('buffer_load_dwordx4 %s, v6, s[48:51], s31 offen offset:%d' % (vr(88 + 4 * i, 4), i * 1024))
                a('buffer_load_dwordx4 %s, v6, s[52:55], s31 offen offset:%d' % (vr(112 + 4 * i, 4), i * 1024))
    a('s_waitcnt vmcnt(0)')
    a('s_endpgm')
    a.label(name + '_prodA')
    a.hist = []
    a.vm_issued = 0
    if k1:
        for j in range(4):
            a('v_add_u32 v15, %d, v2' % (4 * j))
            a('v_xor_b32 v%d, v15, v3' % (36 + j))
            a('v_add_u32 v15, s21, v15')
            a('v_lshlrev_b32 v15, 10, v15')
            a('v_lshl_add_u32 v%d, v%d, 4, v15' % (36 + j, 36 + j))
    else:
        a('s_lshl_b32 s31, s21, 10')
        a('v_lshlrev_b32 v6, 4, v1')
        a('v_add_u32 v36, s31, v6')
    last = {}

    def achunk(c):
        for rt in range(8):
            if a.vm_issued - achunk.done >= 60:
                a('s_waitcnt vmcnt(40)')
                achunk.done = a.vm_issued - 40
            for j in range(4):
                a('s_mov_b32 m0, 0x%x' % (ASLOT + rt * 8192 + (c & 1) * 4096 + j * 1024))
                if k1:
                    a('s_mov_b32 s30, 0x%x' % (rt * 16384 + c * 256))
                    last[c] = a('buffer_load_dwordx4 v%d, s[4:7], s30 offen lds' % (36 + j))
                else:
                    a('s_mov_b32 s30, 0x%x' % (rt * 16384 + (4 * c + j) * 1024))
                    last[c] = a('buffer_load_dwordx4 v36, s[4:7], s30 offen lds')
    achunk.done = 0
    achunk(0)
    achunk(1)
    for c in range(4):
        a.wait_vm(last[c])
        achunk.done = last[c]
        a('s_barrier')
        if c >= 1 and c + 1 < 4:
            achunk(c + 1)
    if k1:
        a('v_lshlrev_b32 v22, 4, v1')
        a('s_mov_b32 m0, 0x%x' % (ASLOT + 1024))
        a('s_lshl_b32 s30, s34, 10')
        a('buffer_load_dwordx4 v22, s[12:15], s30 offen lds')
        a('s_waitcnt vmcnt(0)')
        a('s_barrier')
    a('s_endpgm')


def gemm96_main(a, mode, extra_loads):
    k1 = mode == 'k1'
    a('s_lshl_b32 s23, s20, 4')
    a('s_add_u32 s24, s21, s23')
    a('s_xor_b32 s37, s24, 16')
    a('s_and_b32 s36, s20, 1')
    a('s_lshl_b32 s35, s20, 13')
    a('s_add_u32 s35, s35, 0x%x' % ASLOT)
    a('s_xor_b32 s39, s35, 0x2000')
    a('v_lshlrev_b32 v6, 4, v1')
    extra_loads(a)
    a('v_lshl_add_u32 v8, v2, %d, v4' % (3 if k1 else 2))
    a('v_lshlrev_b32 v8, 6, v8')
    a('v_lshl_add_u32 v8, v5, 3, v8')
    a('v_and_b32 v15, 1, v2')
    a('v_lshlrev_b32 v15, 5, v15')
    a('s_sub_u32 s26, s20, 6')
    a('s_cmp_lt_u32 s20, 6')
    a('s_cselect_b32 s26, s20, s26')
    a('s_lshr_b32 s27, s26, 1')
    a('s_lshl_b32 s27, s27, 13')
    a('s_lshl_b32 s28, s36, 5')
    a('v_xor_b32 v15, s28, v15')
    a('v_add_u32 v8, v8, v15')
    a('v_add_u32 v10, 0xc000, v8')
    a('v_add_u32 v12, s27, v8')
    a('v_add_u32 v13, 0xc000, v12')
    for i in range(4):
        a('v_mov_b32 v%d, 0x3f803f80' % (ONES + i))
    if k1:
        for kk in range(4):
            a('v_add_u32 v15, %d, v2' % (4 * kk))
            a('v_xor_b32 v15, v15, v3')
            a('v_lshlrev_b32 v15, 4, v15')
            a('v_lshl_add_u32 v15, v3, 8, v15')
            a('v_add_u32 v%d, s35, v15' % (40 + kk))
            a('v_add_u32 v%d, s39, v15' % (44 + kk))
    else:
        a('v_add_u32 v40, s35, v6')
        a('v_add_u32 v44, s39, v6')
    eoff = 256 if k1 else 1024

    def reads(ks):
        b = BUF[ks & 1]
        af = AFB[ks & 1]
        c = ks >> 2
        for p in range(2):
            if k1:
                a('ds_read_b128 %s, v%d offset:%d' % (vr(af + 4 * p, 4), 40 + 4 * p + (ks & 3), (c & 1) * 4096))
            else:
                a('ds_read_b128 %s, v%d offset:%d' % (vr(af + 4 * p, 4), 40 + 4 * p, (c & 1) * 4096 + (ks & 3) * 1024))
        for seg in range(3):
            off = (c & 1) * 24576 + seg * 8192 + (ks & 3) * 2048
            for e in range(2):
                a('ds_read_b64_tr_b16 %s, v%d offset:%d' % (vr(b + 4 * seg + 2 * e, 2), 8 if c < 2 else 10, off + e * eoff))
        off = (c & 1) * 24576 + (ks & 3) * 2048
        for e in range(2):
            a('ds_read_b64_tr_b16 %s, v%d offset:%d' % (vr(b + 12 + 2 * e, 2), 12 if c < 2 else 13, off + e * eoff))

    stamp(a, 2)
    a('s_barrier')
    stamp(a, 3)
    reads(0)
    for ks in range(16):
        if ks + 1 < 16:
            if (ks + 1) % 4 == 0:
                c = (ks + 1) // 4
                a('s_waitcnt lgkmcnt(0)')
                a('s_barrier')
                stamp(a, 3 + c)
            reads(ks + 1)
            a('s_waitcnt lgkmcnt(10)')
        else:
            a('s_waitcnt lgkmcnt(0)')
        b = BUF[ks & 1]
        af = AFB[ks & 1]

        def cop(r):
            return '0' if ks == 0 else vr(r, 4)
        for p in range(2):
            for seg in range(3):
                ac = ACC + 4 * (3 * p + seg)
                a('v_mfma_f32_16x16x32_bf16 %s, %s, %s, %s' % (vr(ac, 4), vr(b + 4 * seg, 4), vr(af + 4 * p, 4), cop(ac)))
        a('v_mfma_f32_16x16x32_bf16 %s, %s, %s, %s' % (vr(CSA, 4), vr(b + 12, 4), vr(ONES, 4), cop(CSA)))
        if k1:
            a('v_mfma_f32_16x16x32_bf16 %s, %s, %s, %s' % (vr(RS, 4), vr(ONES, 4), vr(af, 4), cop(RS)))
            a('v_mfma_f32_16x16x32_bf16 %s, %s, %s, %s' % (vr(GR, 4), vr(af, 4), vr(af, 4), cop(GR)))
    stamp(a, 7)
    stamp(a, 2, True)
    a('v_lshlrev_b32 v15, 4, v2')
    a('v_add_u32 v14, s35, v15')
    a('ds_write_b128 v14, %s' % vr(CSA, 4))

    def finish_stats(SUM, SQ, M, RD):
        a('v_mul_f32 v%d, 0x3b000000, v%d' % (SUM, SUM))
        a('v_mul_f32 v%d, 0x3b000000, v%d' % (SQ, SQ))
        a('v_fma_f32 v%d, -v%d, v%d, v%d' % (SQ, SUM, SUM, SQ))
        a('v_max_f32 v%d, 0, v%d' % (SQ, SQ))
        bf16r(a, M, SUM)
        bf16r(a, SQ, SQ)
        a('v_add_f32 v%d, 0x3727c5ac, v%d' % (SQ, SQ))
        bf16r(a, SQ, SQ)
        a('v_sqrt_f32 v%d, v%d' % (SQ, SQ))
        bf16r(a, SQ, SQ)
        a('v_rcp_f32 v%d, v%d' % (RD, SQ))

    if k1:
        SUM, SQ = 48, 49
        a('v_cmp_eq_u32 vcc, 1, v5')
        a('v_cndmask_b32 v%d, v%d, v%d, vcc' % (SQ, GR, GR + 1))
        a('v_cmp_eq_u32 vcc, 2, v5')
        a('v_cndmask_b32 v%d, v%d, v%d, vcc' % (SQ, SQ, GR + 2))
        a('v_cmp_eq_u32 vcc, 3, v5')
        a('v_cndmask_b32 v%d, v%d, v%d, vcc' % (SQ, SQ, GR + 3))
        a('v_cmp_eq_u32 vcc, v2, v4')
        a('v_cndmask_b32 v%d, 0, v%d, vcc' % (SQ, SQ))
        a('v_mov_b32 v%d, v%d' % (SUM, RS))
        butterfly(a, [('v_add_f32', SQ, 52)])
        finish_stats(SUM, SQ, 36, 37)
        a('v_lshlrev_b32 v50, 3, v3')
        a('v_add_u32 v51, s35, v50')
        a('ds_write_b64 v51, v[36:37] offset:256')
        a('v_add_u32 v51, s39, v50')
    else:
        a('s_waitcnt vmcnt(0)')
        a('v_add_f32 v48, v144, v146')
        a('v_add_f32 v49, v145, v147')
        a('v_add_f32 v50, v148, v150')
        a('v_add_f32 v51, v149, v151')
        butterfly(a, [('v_add_f32', 48, 52), ('v_add_f32', 49, 53), ('v_add_f32', 50, 54), ('v_add_f32', 51, 55)])
        finish_stats(48, 49, 36, 37)
        finish_stats(50, 51, 38, 39)
    a('s_lshl_b32 s27, s36, 13')
    a('s_add_u32 s27, s27, 0x%x' % ASLOT)
    a('v_add_u32 v15, s27, v15')
    a('s_waitcnt lgkmcnt(0)')
    a('s_barrier')
    stamp(a, 3, True)
    if k1:
        a('ds_read_b64 v[38:39], v51 offset:256')
    for seg in range(3):
        a('ds_read_b128 %s, v15 offset:%d' % (vr(132 + 4 * seg, 4), seg * 16384))
    for p in range(2):
        for seg in range(3):
            if p == 0:
                a('s_waitcnt lgkmcnt(%d)' % (2 - seg))
            ac = ACC + 4 * (3 * p + seg)
            for r in range(4):
                a('v_fma_f32 v%d, -v%d, v%d, v%d' % (ac + r, 36 + 2 * p, 132 + 4 * seg + r, ac + r))
            for r in range(4):
                a('v_mul_f32 v%d, v%d, v%d' % (ac + r, 37 + 2 * p, ac + r))


def gen_k1(a):
    kernel_head(a, 'k1_kernel')
    a('s_cmp_ge_u32 s2, 256')
    a('s_cbranch_scc1 k1_exit')
    stamp_real(a, 0)
    stamp(a, 1)
    srd(a, 4, 0, 0)
    srd(a, 8, 8, 0)
    srd(a, 12, 16, 0)
    srd(a, 16, 88, 0)
    lane_decomp(a)
    a('s_and_b32 s30, s2, 7')
    a('s_lshr_b32 s31, s2, 3')
    a('s_lshr_b32 s21, s30, 1')
    a('s_lshl_b32 s21, s21, 2')
    a('s_and_b32 s22, s31, 3')
    a('s_add_u32 s33, s21, s22')
    a('s_and_b32 s21, s30, 1')
    a('s_lshl_b32 s21, s21, 3')
    a('s_lshr_b32 s22, s31, 2')
    a('s_add_u32 s34, s21, s22')
    a('s_lshl_b32 s21, s33, 7')
    a('s_lshl_b32 s22, s34, 6')
    a('s_waitcnt lgkmcnt(0)')
    srd_fin(a, 4, 2048 * 1024)
    srd_fin(a, 8, 512 * 3072)
    srd_fin(a, 12, 16384)
    srd_fin(a, 16, WS_SIZE)
    a('s_cmp_ge_u32 s20, 8')
    a('s_cbranch_scc1 k1_prod')

    def extra(a):
        if PREFETCH >= 2:
            a('s_lshl_b32 s30, s2, 2')
            a('s_and_b32 s31, s20, 3')
            a('s_add_u32 s30, s30, s31')
            a('s_cmp_ge_u32 s20, 4')
            a('s_cbranch_scc1 k1_pfw')
            a('v_lshrrev_b32 v15, 5, v1')
            a('v_and_b32 v23, 31, v1')
            a('v_lshlrev_b32 v23, 4, v23')
            a('v_lshl_add_u32 v15, v15, 10, v23')
            a('s_lshl_b32 s30, s30, 11')
            a('buffer_load_dwordx4 v[156:159], v15, s[4:7], s30 offen offset:512')
            a('s_branch k1_pfd')
            a.label('k1_pfw')
            a('s_mul_i32 s30, s30, 768')
            a('s_add_u32 s30, s30, 0x%x' % (256 * 3072))
            a('buffer_load_dwordx4 v[156:159], v6, s[8:11], s30 offen')
            a.label('k1_pfd')
        a('v_lshlrev_b32 v15, 2, v2')
        a('v_sub_u32 v15, v3, v15')
        a('v_mov_b32 v23, 0x3f80')
        a('v_mov_b32 v24, 0x3f800000')
        a('v_cmp_eq_u32 vcc, 0, v15')
        a('v_cndmask_b32 v20, 0, v23, vcc')
        a('v_cmp_eq_u32 vcc, 1, v15')
        a('v_cndmask_b32 v21, 0, v24, vcc')
        a('v_or_b32 v20, v20, v21')
        a('v_cmp_eq_u32 vcc, 2, v15')
        a('v_cndmask_b32 v21, 0, v23, vcc')
        a('v_cmp_eq_u32 vcc, 3, v15')
        a('v_cndmask_b32 v25, 0, v24, vcc')
        a('v_or_b32 v21, v21, v25')

    gemm96_main(a, 'k1', extra)
    stamp(a, 8)
    stamp(a, 4, True)
    a('v_lshl_add_u32 v15, v2, 2, v4')
    a('v_lshlrev_b32 v15, 5, v15')
    a('v_lshl_add_u32 v15, v5, 3, v15')
    a('s_lshl_b32 s30, s36, 9')
    a('s_add_u32 s30, s30, 0x%x' % ASLOT)
    a('v_add_u32 v15, s30, v15')
    a('ds_read_b64_tr_b16 v[26:27], v15 offset:1024')
    PK = 144
    for t in range(6):
        a('v_cvt_pk_bf16_f32 v%d, v%d, v%d' % (PK + 2 * t, ACC + 4 * t, ACC + 4 * t + 1))
        a('v_cvt_pk_bf16_f32 v%d, v%d, v%d' % (PK + 1 + 2 * t, ACC + 4 * t + 2, ACC + 4 * t + 3))
    a('s_waitcnt lgkmcnt(0)')
    PB = 48
    for s in range(4):
        src = PK + 2 * (3 * (s & 1) + (s >> 1))
        a('v_mfma_f32_16x16x16_bf16 %s, v[26:27], %s, 0' % (vr(PB + 4 * s, 4), vr(src, 2)))
    TV = 64
    for p in range(2):
        a('v_mfma_f32_16x16x16_bf16 %s, %s, v[20:21], 0' % (vr(TV + 4 * p, 4), vr(PK + 2 * (3 * p + 2), 2)))

    def T(s, i): return 72 + 12 * s + i
    for s in range(4):
        p = PB + 4 * s
        a('v_cvt_pk_bf16_f32 v%d, v%d, v%d' % (T(s, 2), p, p + 1))
        a('v_cvt_pk_bf16_f32 v%d, v%d, v%d' % (T(s, 3), p + 2, p + 3))
    for s in range(4):
        p = PB + 4 * s
        a('v_lshlrev_b32 v%d, 16, v%d' % (p, T(s, 2)))
        a('v_and_b32 v%d, 0xffff0000, v%d' % (p + 1, T(s, 2)))
        a('v_lshlrev_b32 v%d, 16, v%d' % (p + 2, T(s, 3)))
        a('v_and_b32 v%d, 0xffff0000, v%d' % (p + 3, T(s, 3)))
    for s in range(4):
        p = PB + 4 * s
        a('v_max3_f32 v%d, v%d, v%d, v%d' % (T(s, 0), p, p + 1, p + 2))
        a('v_min3_f32 v%d, v%d, v%d, v%d' % (T(s, 1), p, p + 1, p + 2))
        a('v_max_f32 v%d, v%d, v%d' % (T(s, 0), T(s, 0), p + 3))
        a('v_min_f32 v%d, v%d, v%d' % (T(s, 1), T(s, 1), p + 3))
    it = []
    for s in range(4):
        it += [('v_max_f32', T(s, 0), T(s, 2)), ('v_min_f32', T(s, 1), T(s, 3))]
    butterfly(a, it)
    stamp(a, 5, True)
    for s in range(4):
        a('v_mul_f32 v%d, %s, v%d' % (T(s, 0), NL2E, T(s, 0)))
        a('v_mul_f32 v%d, %s, v%d' % (T(s, 1), L2E, T(s, 1)))
    a('v_mov_b32 v28, %s' % L2E)
    for s in range(4):
        p = PB + 4 * s
        for r in range(4):
            a('v_fma_f32 v%d, v%d, v28, v%d' % (T(s, 4 + r), p + r, T(s, 0)))
            a('v_fma_f32 v%d, -v%d, v28, v%d' % (T(s, 8 + r), p + r, T(s, 1)))
    for s in range(4):
        for r in range(8):
            a('v_exp_f32 v%d, v%d' % (T(s, 4 + r), T(s, 4 + r)))
    for s in range(4):
        a('v_add_f32 v%d, v%d, v%d' % (T(s, 0), T(s, 4), T(s, 5)))
        a('v_add_f32 v%d, v%d, v%d' % (T(s, 1), T(s, 8), T(s, 9)))
        a('v_add_f32 v%d, v%d, v%d' % (T(s, 2), T(s, 6), T(s, 7)))
        a('v_add_f32 v%d, v%d, v%d' % (T(s, 3), T(s, 10), T(s, 11)))
    for s in range(4):
        a('v_add_f32 v%d, v%d, v%d' % (T(s, 0), T(s, 0), T(s, 2)))
        a('v_add_f32 v%d, v%d, v%d' % (T(s, 1), T(s, 1), T(s, 3)))
    it = []
    for s in range(4):
        it += [('v_add_f32', T(s, 0), T(s, 2)), ('v_add_f32', T(s, 1), T(s, 3))]
    butterfly(a, it)
    stamp(a, 6, True)
    for s in range(4):
        a('v_rcp_f32 v%d, v%d' % (T(s, 0), T(s, 0)))
        a('v_rcp_f32 v%d, v%d' % (T(s, 1), T(s, 1)))
    for s in range(4):
        for r in range(4):
            a('v_mul_f32 v%d, v%d, v%d' % (T(s, 4 + r), T(s, 0), T(s, 4 + r)))
            a('v_mul_f32 v%d, v%d, v%d' % (T(s, 8 + r), T(s, 1), T(s, 8 + r)))
    FB = 120
    for s in range(4):
        for i in range(4):
            a('v_cvt_pk_bf16_f32 v%d, v%d, v%d' % (FB + 4 * s + i, T(s, 4 + 2 * i), T(s, 5 + 2 * i)))
    a('s_lshl_b32 s31, s34, 11')
    a('s_lshl_b32 s27, s36, 10')
    a('s_add_u32 s31, s31, s27')
    for p in range(2):
        a('s_lshl_b32 s30, s%d, 11' % (24 if p == 0 else 37))
        a('s_add_u32 s30, s30, s31')
        a('buffer_store_dwordx4 %s, v6, s[16:19], s30 offen' % (vr(FB + 4 * p, 4)))
    stamp(a, 7, True)
    for p in range(2):
        for pm in range(2):
            a('v_mfma_f32_16x16x16_bf16 %s, %s, v[20:21], 0' % (vr(72 + 4 * (2 * p + pm), 4), vr(FB + 4 * (2 + p) + 2 * pm, 2)))
    for p in range(2):
        a('v_cvt_pk_bf16_f32 v%d, v%d, v%d' % (88 + 2 * p, TV + 4 * p, TV + 4 * p + 1))
        a('v_cvt_pk_bf16_f32 v%d, v%d, v%d' % (89 + 2 * p, TV + 4 * p + 2, TV + 4 * p + 3))
    for i in range(4):
        a('v_cvt_pk_bf16_f32 v%d, v%d, v%d' % (92 + 2 * i, 72 + 4 * i, 73 + 4 * i))
        a('v_cvt_pk_bf16_f32 v%d, v%d, v%d' % (93 + 2 * i, 74 + 4 * i, 75 + 4 * i))
    for p in range(2):
        for pm in range(2):
            r1, r2 = 100 + 4 * pm, 100 + 4 * (2 + pm)
            a('v_mfma_f32_16x16x16_bf16 %s, %s, %s, %s' % (vr(r1, 4), vr(92 + 2 * (2 * p + pm), 2), vr(88 + 2 * p, 2), '0' if p == 0 else vr(r1, 4)))
            a('v_mfma_f32_16x16x16_bf16 %s, %s, v[16:17], %s' % (vr(r2, 4), vr(92 + 2 * (2 * p + pm), 2), '0' if p == 0 else vr(r2, 4)))
    a('s_lshl_b32 s30, s20, 12')
    a('v_add_u32 v23, s30, v6')
    for i in range(4):
        a('ds_write_b128 v23, %s offset:%d' % (vr(100 + 4 * i, 4), i * 1024))
    a('v_lshlrev_b32 v24, 4, v0')
    a('s_waitcnt lgkmcnt(0)')
    a('s_barrier')
    stamp(a, 8, True)
    for m in range(4):
        a('ds_read_b128 %s, v24 offset:%d' % (vr(48 + 4 * m, 4), m * 8192))
    for m in range(1, 4):
        a('s_waitcnt lgkmcnt(%d)' % (3 - m))
        for r in range(4):
            a('v_add_f32 v%d, v%d, v%d' % (48 + r, 48 + r, 48 + 4 * m + r))
    a('s_lshl_b32 s30, s33, 17')
    a('s_lshl_b32 s31, s34, 13')
    a('s_add_u32 s30, s30, s31')
    a('s_add_u32 s30, s30, 0x%x' % WS_PART)
    a('buffer_store_dwordx4 v[48:51], v24, s[16:19], s30 offen')
    stamp(a, 9)
    stamp_real(a, 10)
    stamp_store(a, 0, 11)
    a.label('k1_exit')
    a('s_endpgm')
    gemm96_producers(a, 'k1', 'k1', 3072, 1024)


def gen_kred(a):
    kernel_head(a, 'kred_kernel')
    a('s_cmp_ge_u32 s2, 128')
    a('s_cbranch_scc1 kred_exit')
    stamp_real(a, 0)
    stamp(a, 1)
    srd(a, 16, 88, 0)
    a('v_lshlrev_b32 v1, 4, v0')
    a('v_lshrrev_b32 v2, 4, v0')
    a('v_lshlrev_b32 v2, 4, v2')
    a('s_lshl_b32 s20, s2, 10')
    a('s_add_u32 s20, s20, 0x%x' % WS_PART)
    a('s_lshr_b32 s21, s2, 2')
    a('s_and_b32 s22, s2, 3')
    a('s_waitcnt lgkmcnt(0)')
    srd_fin(a, 16, WS_SIZE)
    seqs = []
    for rb in range(16):
        seqs.append(a('buffer_load_dwordx4 %s, v1, s[16:19], s20 offen' % vr(8 + 4 * rb, 4)))
        if rb < 15:
            a('s_add_u32 s20, s20, 0x20000')
    a('s_lshl_b32 s23, s21, 10')
    a('s_add_u32 s23, s23, 0x%x' % WS_KVA)
    a('s_lshl_b32 s24, s21, 6')
    a('s_add_u32 s24, s24, 0x%x' % WS_ZA)
    a('s_cmp_lt_u32 s22, 2')
    a('s_cselect_b32 s23, s23, s24')
    a('s_cselect_b64 s[26:27], -1, 0')
    a('s_and_b32 s25, s22, 1')
    a('s_lshl_b32 s25, s25, 3')
    a('s_add_u32 s23, s23, s25')
    a('v_cndmask_b32 v3, v2, v1, s[26:27]')
    for rb in range(1, 16):
        a.wait_vm(seqs[rb])
        for r in range(4):
            a('v_add_f32 v%d, v%d, v%d' % (8 + r, 8 + r, 8 + 4 * rb + r))
    a('v_cvt_pk_bf16_f32 v4, v8, v9')
    a('v_cvt_pk_bf16_f32 v5, v10, v11')
    a('buffer_store_dwordx2 v[4:5], v3, s[16:19], s23 offen')
    if 'kred' == 'kred' and STAMP:
        a('s_mov_b32 s20, 0')
    stamp(a, 9)
    stamp_real(a, 10)
    stamp_store(a, 1, 11)
    a.label('kred_exit')
    a('s_endpgm')


def gen_k2(a):
    kernel_head(a, 'k2_kernel')
    a('s_cmp_ge_u32 s2, 256')
    a('s_cbranch_scc1 k2_exit')
    stamp_real(a, 0)
    stamp(a, 1)
    srd(a, 4, 0, 0)
    srd(a, 8, 24, 0)
    srd(a, 16, 88, 0)
    lane_decomp(a)
    a('s_and_b32 s30, s2, 7')
    a('s_lshr_b32 s31, s2, 3')
    a('s_lshl_b32 s21, s30, 2')
    a('s_and_b32 s22, s31, 3')
    a('s_add_u32 s21, s21, s22')
    a('s_lshr_b32 s22, s31, 2')
    a('s_lshl_b32 s21, s21, 6')
    a('s_lshl_b32 s23, s20, 4')
    a('s_add_u32 s24, s21, s23')
    a('s_lshl_b32 s22, s22, 7')
    a('s_waitcnt lgkmcnt(0)')
    srd_fin(a, 4, 2048 * 1024)
    srd_fin(a, 8, 512 * 1024)
    srd_fin(a, 16, WS_SIZE)
    PQ = 64
    XR = 192
    AC = 200
    WB = (216, 232)
    a('v_lshlrev_b32 v6, 4, v1')
    a('s_lshl_b32 s25, s20, 13')
    for i in range(8):
        a('s_add_u32 m0, s25, 0x%x' % (65536 + i * 1024))
        a('s_add_u32 s30, s25, 0x%x' % (WS_KVA + i * 1024))
        a('buffer_load_dwordx4 v6, s[16:19], s30 offen lds')
    a('s_and_b32 s26, s20, 1')
    a('s_lshl_b32 s26, s26, 10')
    a('s_add_u32 m0, s26, 0x%x' % 98304)
    a('s_add_u32 s30, s26, 0x%x' % WS_ZA)
    q_kv = a('buffer_load_dwordx4 v6, s[16:19], s30 offen lds')
    a('s_lshl_b32 s30, s24, 11')
    a('v_add_u32 v7, s30, v6')
    a('v_lshrrev_b32 v8, 3, v1')
    a('v_bfe_u32 v9, v1, 1, 2')
    a('v_bfe_u32 v10, v1, 4, 2')
    a('v_xor_b32 v9, v9, v10')
    a('v_and_b32 v10, 1, v1')
    a('v_lshlrev_b32 v10, 4, v10')
    a('v_lshl_add_u32 v9, v9, 5, v10')
    a('s_lshl_b32 s27, s20, 3')
    a('v_add_u32 v8, s27, v8')
    a('v_lshl_add_u32 v8, v8, 10, v9')
    a('v_add_u32 v8, s22, v8')
    a('s_lshl_b32 s25, s20, 10')
    q_pq = []
    for t in range(16):
        a('s_mov_b32 s30, 0x%x' % (t * 2048))
        a('buffer_load_dwordx4 %s, v7, s[16:19], s30 offen' % (vr(PQ + 8 * t, 4)))
        q_pq.append(a('buffer_load_dwordx4 %s, v7, s[16:19], s30 offen offset:1024' % (vr(PQ + 8 * t + 4, 4))))
        a('s_add_u32 m0, s25, 0x%x' % (t * 4096))
        a('s_mov_b32 s30, 0x%x' % (t * 32768))
        q_wo = a('buffer_load_dwordx4 v8, s[8:11], s30 offen lds')
    a('v_add_u32 v11, s24, v3')
    a('v_lshlrev_b32 v11, 10, v11')
    a('v_lshl_add_u32 v11, v2, 3, v11')
    a('v_add_u32 v11, s22, v11')
    for nt in range(4):
        q_x = a('buffer_load_dwordx2 %s, v11, s[4:7], 0 offen offset:%d' % (vr(XR + 2 * nt, 2), nt * 32))
    a('v_add_u32 v12, 0x10000, v6')
    a('v_lshlrev_b32 v13, 4, v2')
    a('v_add_u32 v13, 0x18000, v13')
    TB = 250
    a('v_lshl_add_u32 v14, v2, 2, v4')
    a('v_lshlrev_b32 v14, 7, v14')
    a('v_lshl_add_u32 v14, v5, 3, v14')
    a('v_and_b32 v15, 1, v2')
    a('v_lshlrev_b32 v15, 1, v15')
    a('v_lshrrev_b32 v48, 1, v4')
    a('v_or_b32 v15, v15, v48')
    for nt in range(4):
        a('v_xor_b32 v48, %d, v15' % nt)
        a('v_lshl_add_u32 v%d, v48, 5, v14' % (TB + nt))
    KZ = (16, 32)
    ND = (216, 232)

    def reads1(t):
        b = KZ[t & 1]
        for hh in range(2):
            h = 2 * t + hh
            a('ds_read_b128 %s, v12 offset:%d' % (vr(b + 8 * hh, 4), h * 1024))
            a('ds_read_b128 %s, v13 offset:%d' % (vr(b + 8 * hh + 4, 4), h * 64))

    def valu1(t):
        nd = ND[t & 1]
        for hh in range(2):
            n = nd + 8 * hh
            d = n + 4
            T = 48 + 8 * hh
            a('v_cvt_pk_bf16_f32 v%d, v%d, v%d' % (T, d, d))
            a('v_cvt_pk_bf16_f32 v%d, v%d, v%d' % (T + 1, n, n + 1))
            a('v_cvt_pk_bf16_f32 v%d, v%d, v%d' % (T + 2, n + 2, n + 3))
            a('v_lshlrev_b32 v%d, 16, v%d' % (T, T))
            a('v_add_f32 v%d, 0x358637bd, v%d' % (T, T))
            a('v_cvt_pk_bf16_f32 v%d, v%d, v%d' % (T, T, T))
            a('v_lshlrev_b32 v%d, 16, v%d' % (T, T))
            a('v_rcp_f32 v%d, v%d' % (T, T))
            a('v_lshlrev_b32 v%d, 16, v%d' % (T + 3, T + 1))
            a('v_and_b32 v%d, 0xffff0000, v%d' % (T + 4, T + 1))
            a('v_lshlrev_b32 v%d, 16, v%d' % (T + 5, T + 2))
            a('v_and_b32 v%d, 0xffff0000, v%d' % (T + 6, T + 2))
            for i in range(4):
                a('v_mul_f32 v%d, v%d, v%d' % (T + 3 + i, T, T + 3 + i))
            a('v_cvt_pk_bf16_f32 v%d, v%d, v%d' % (PQ + 8 * t + 2 * hh, T + 3, T + 4))
            a('v_cvt_pk_bf16_f32 v%d, v%d, v%d' % (PQ + 8 * t + 2 * hh + 1, T + 5, T + 6))

    stamp(a, 2)
    a.wait_vm(q_kv)
    a('s_barrier')
    stamp(a, 3)
    reads1(0)
    for t in range(16):
        if t + 1 < 16:
            reads1(t + 1)
            a('s_waitcnt lgkmcnt(4)')
        else:
            a('s_waitcnt lgkmcnt(0)')
        a.wait_vm(q_pq[t])
        b = KZ[t & 1]
        nd = ND[t & 1]
        for hh in range(2):
            a('v_mfma_f32_16x16x32_bf16 %s, %s, %s, 0' % (vr(nd + 8 * hh, 4), vr(b + 8 * hh, 4), vr(PQ + 8 * t + 4 * hh, 4)))
            a('v_mfma_f32_16x16x32_bf16 %s, %s, %s, 0' % (vr(nd + 8 * hh + 4, 4), vr(b + 8 * hh + 4, 4), vr(PQ + 8 * t + 4 * hh, 4)))
        if t > 0:
            valu1(t - 1)
    valu1(15)
    stamp(a, 4)
    a.wait_vm(q_wo)
    a('s_barrier')
    stamp(a, 5)

    def reads2(t):
        b = WB[t & 1]
        for nt in range(4):
            for e in range(2):
                a('ds_read_b64_tr_b16 %s, v%d offset:%d' % (vr(b + 4 * nt + 2 * e, 2), TB + nt, t * 4096 + e * 2048))
    reads2(0)
    for t in range(16):
        if t + 1 < 16:
            reads2(t + 1)
            a('s_waitcnt lgkmcnt(8)')
        else:
            a('s_waitcnt lgkmcnt(0)')
        b = WB[t & 1]
        for nt in range(4):
            c_op = '0' if t == 0 else vr(AC + 4 * nt, 4)
            a('v_mfma_f32_16x16x32_bf16 %s, %s, %s, %s' % (vr(AC + 4 * nt, 4), vr(b + 4 * nt, 4), vr(PQ + 8 * t, 4), c_op))
    stamp(a, 6)
    a.wait_vm(q_x)
    stamp(a, 7)
    stamp(a, 8)
    a('s_lshl_b32 s30, s24, 10')
    a('s_lshl_b32 s31, s22, 4')
    a('s_add_u32 s30, s30, s31')
    a('s_add_u32 s30, s30, 0x%x' % WS_H)
    OUTR = 56
    S1, S2 = 54, 55
    for nt in range(4):
        ac = AC + 4 * nt
        T = 16 + 8 * nt
        O = OUTR + 2 * nt
        a('v_cvt_pk_bf16_f32 v%d, v%d, v%d' % (T, ac, ac + 1))
        a('v_cvt_pk_bf16_f32 v%d, v%d, v%d' % (T + 1, ac + 2, ac + 3))
        a('v_lshlrev_b32 v%d, 16, v%d' % (T + 2, T))
        a('v_and_b32 v%d, 0xffff0000, v%d' % (T + 3, T))
        a('v_lshlrev_b32 v%d, 16, v%d' % (T + 4, T + 1))
        a('v_and_b32 v%d, 0xffff0000, v%d' % (T + 5, T + 1))
        x = XR + 2 * nt
        a('v_lshlrev_b32 v%d, 16, v%d' % (T + 6, x))
        a('v_and_b32 v%d, 0xffff0000, v%d' % (T + 7, x))
        a('v_add_f32 v%d, v%d, v%d' % (T + 2, T + 2, T + 6))
        a('v_add_f32 v%d, v%d, v%d' % (T + 3, T + 3, T + 7))
        a('v_lshlrev_b32 v%d, 16, v%d' % (T + 6, x + 1))
        a('v_and_b32 v%d, 0xffff0000, v%d' % (T + 7, x + 1))
        a('v_add_f32 v%d, v%d, v%d' % (T + 4, T + 4, T + 6))
        a('v_add_f32 v%d, v%d, v%d' % (T + 5, T + 5, T + 7))
        a('v_cvt_pk_bf16_f32 v%d, v%d, v%d' % (O, T + 2, T + 3))
        a('v_cvt_pk_bf16_f32 v%d, v%d, v%d' % (O + 1, T + 4, T + 5))
        if nt & 1:
            a('buffer_store_dwordx4 %s, v6, s[16:19], s30 offen offset:%d' % (vr(O - 2, 4), (nt >> 1) * 1024))
        a('v_lshlrev_b32 v%d, 16, v%d' % (T + 2, O))
        a('v_and_b32 v%d, 0xffff0000, v%d' % (T + 3, O))
        a('v_lshlrev_b32 v%d, 16, v%d' % (T + 4, O + 1))
        a('v_and_b32 v%d, 0xffff0000, v%d' % (T + 5, O + 1))
        for i in range(4):
            if nt == 0 and i == 0:
                a('v_mov_b32 v%d, v%d' % (S1, T + 2))
                a('v_mul_f32 v%d, v%d, v%d' % (S2, T + 2, T + 2))
            else:
                a('v_add_f32 v%d, v%d, v%d' % (S1, S1, T + 2 + i))
                a('v_fma_f32 v%d, v%d, v%d, v%d' % (S2, T + 2 + i, T + 2 + i, S2))
    butterfly(a, [('v_add_f32', S1, 52), ('v_add_f32', S2, 53)])
    a('v_add_u32 v12, s24, v3')
    a('v_lshlrev_b32 v12, 6, v12')
    a('s_lshr_b32 s31, s22, 4')
    a('s_add_u32 s31, s31, 0x%x' % WS_ST2)
    a('buffer_store_dwordx2 v[54:55], v12, s[16:19], s31 offen')
    if 'k2' == 'kred' and STAMP:
        a('s_mov_b32 s20, 0')
    stamp(a, 9)
    stamp_real(a, 10)
    stamp_store(a, 2, 11)
    a.label('k2_exit')
    a('s_endpgm')


def gen_k3(a):
    kernel_head(a, 'k3_kernel')
    a('s_cmp_ge_u32 s2, 240')
    a('s_cbranch_scc1 k3_exit')
    stamp_real(a, 0)
    stamp(a, 1)
    srd(a, 4, 88, 0)
    srd(a, 8, 40, 0)
    srd(a, 12, 48, 0)
    srd(a, 16, 88, 0)
    lane_decomp(a)
    a('s_and_b32 s30, s2, 7')
    a('s_lshr_b32 s31, s2, 3')
    a('s_lshl_b32 s21, s30, 1')
    a('s_and_b32 s22, s31, 1')
    a('s_add_u32 s33, s21, s22')
    a('s_lshr_b32 s34, s31, 1')
    a('s_lshl_b32 s21, s33, 7')
    a('s_mul_i32 s22, s34, 192')
    a('s_waitcnt lgkmcnt(0)')
    a('s_add_u32 s4, s4, 0x%x' % WS_H)
    a('s_addc_u32 s5, s5, 0')
    srd_fin(a, 4, 2048 * 1024)
    srd_fin(a, 8, 512 * 2752)
    srd_fin(a, 12, 2752)
    srd_fin(a, 16, WS_SIZE)
    a('s_cmp_ge_u32 s20, 8')
    a('s_cbranch_scc1 k3_prod')

    def extra(a):
        a('v_lshlrev_b32 v22, 3, v2')
        a('s_lshl_b32 s30, s36, 5')
        a('s_add_u32 s30, s30, s22')
        a('v_add_u32 v22, s30, v22')
        for seg in range(3):
            a('buffer_load_dwordx2 %s, v22, s[12:15], 0 offen offset:%d' % (vr(28 + 2 * seg, 2), seg * 64))
        a('s_mov_b32 s30, 0x%x' % WS_ST2)
        for p in range(2):
            a('v_add_u32 v23, s%d, v3' % (24 if p == 0 else 37))
            a('v_lshlrev_b32 v23, 6, v23')
            a('v_lshl_add_u32 v23, v2, 4, v23')
            a('buffer_load_dwordx4 %s, v23, s[16:19], s30 offen' % vr(144 + 4 * p, 4))

    gemm96_main(a, 'k3', extra)
    stamp(a, 8)
    a('v_lshlrev_b32 v15, 4, v1')
    a('s_lshl_b32 s27, s36, 3')
    a('s_mul_i32 s31, s34, 3 * 1024')
    a('s_add_u32 s31, s31, s27')
    a('s_add_u32 s31, s31, 0x%x' % WS_R)
    for p in range(2):
        a('s_lshr_b32 s%d, s%d, 4' % (28 + p, 24 if p == 0 else 37))
        a('s_mul_i32 s%d, s%d, 43 * 1024' % (28 + p, 28 + p))
        a('s_add_u32 s%d, s%d, s31' % (28 + p, 28 + p))
    for seg in range(3):
        if seg == 1:
            a('s_cmp_eq_u32 s34, 14')
            a('s_cbranch_scc1 k3_done')
        b = 28 + 2 * seg
        B = 132 + 4 * seg
        a('v_lshlrev_b32 v%d, 16, v%d' % (B, b))
        a('v_and_b32 v%d, 0xffff0000, v%d' % (B + 1, b))
        a('v_lshlrev_b32 v%d, 16, v%d' % (B + 2, b + 1))
        a('v_and_b32 v%d, 0xffff0000, v%d' % (B + 3, b + 1))
        for p in range(2):
            ac = ACC + 4 * (3 * p + seg)
            T = 48 + 8 * (2 * seg + p)
            a('v_cvt_pk_bf16_f32 v%d, v%d, v%d' % (T, ac, ac + 1))
            a('v_cvt_pk_bf16_f32 v%d, v%d, v%d' % (T + 1, ac + 2, ac + 3))
            a('v_lshlrev_b32 v%d, 16, v%d' % (T + 2, T))
            a('v_and_b32 v%d, 0xffff0000, v%d' % (T + 3, T))
            a('v_lshlrev_b32 v%d, 16, v%d' % (T + 4, T + 1))
            a('v_and_b32 v%d, 0xffff0000, v%d' % (T + 5, T + 1))
            for i in range(4):
                a('v_add_f32 v%d, v%d, v%d' % (T + 2 + i, T + 2 + i, B + i))
            a('v_cvt_pk_bf16_f32 v%d, v%d, v%d' % (T, T + 2, T + 3))
            a('v_cvt_pk_bf16_f32 v%d, v%d, v%d' % (T + 1, T + 4, T + 5))
            a('v_lshlrev_b32 v%d, 16, v%d' % (T + 2, T))
            a('v_and_b32 v%d, 0xffff0000, v%d' % (T + 3, T))
            a('v_lshlrev_b32 v%d, 16, v%d' % (T + 4, T + 1))
            a('v_and_b32 v%d, 0xffff0000, v%d' % (T + 5, T + 1))
            for i in range(4):
                a('v_max_f32 v%d, 0, v%d' % (T + 2 + i, T + 2 + i))
            for i in range(4):
                a('v_mul_f32 v%d, v%d, v%d' % (T + 2 + i, T + 2 + i, T + 2 + i))
            a('v_cvt_pk_bf16_f32 v%d, v%d, v%d' % (T, T + 2, T + 3))
            a('v_cvt_pk_bf16_f32 v%d, v%d, v%d' % (T + 1, T + 4, T + 5))
            a('buffer_store_dwordx2 %s, v15, s[16:19], s%d offen offset:%d' % (vr(T, 2), 28 + p, seg * 1024))
    a.label('k3_done')
    if 'k3' == 'kred' and STAMP:
        a('s_mov_b32 s20, 0')
    stamp(a, 9)
    stamp_real(a, 10)
    stamp_store(a, 3, 11)
    a.label('k3_exit')
    a('s_endpgm')
    gemm96_producers(a, 'k3', 'k3', 2752, 64)


def gen_k4(a):
    kernel_head(a, 'k4_kernel')
    a('s_cmp_ge_u32 s2, 256')
    a('s_cbranch_scc1 k4_exit')
    stamp_real(a, 0)
    stamp(a, 1)
    srd(a, 4, 72, 0)
    srd(a, 8, 56, 0)
    srd(a, 12, 64, 0)
    srd(a, 16, 88, 0)
    lane_decomp(a)
    a('s_and_b32 s30, s2, 7')
    a('s_lshr_b32 s31, s2, 3')
    a('s_lshl_b32 s21, s30, 2')
    a('s_and_b32 s22, s31, 3')
    a('s_add_u32 s21, s21, s22')
    a('s_lshr_b32 s22, s31, 2')
    a('s_lshl_b32 s21, s21, 6')
    a('s_lshl_b32 s23, s20, 4')
    a('s_add_u32 s24, s21, s23')
    a('s_lshl_b32 s22, s22, 7')
    a('s_waitcnt lgkmcnt(0)')
    srd_fin(a, 4, 2048 * 1024)
    srd_fin(a, 8, 1376 * 1024)
    srd_fin(a, 12, 1024)
    srd_fin(a, 16, WS_SIZE)
    AFR = 24
    WB = (196, 212)
    AC = 228
    TB = 244
    HR = 248
    BR = 16
    a('v_lshlrev_b32 v6, 4, v1')
    a('s_lshr_b32 s30, s24, 4')
    a('s_mul_i32 s30, s30, 43 * 1024')
    a('v_add_u32 v7, s30, v6')
    a('v_lshrrev_b32 v8, 3, v1')
    a('v_bfe_u32 v9, v1, 1, 2')
    a('v_bfe_u32 v10, v1, 4, 2')
    a('v_xor_b32 v9, v9, v10')
    a('v_and_b32 v10, 1, v1')
    a('v_lshlrev_b32 v10, 4, v10')
    a('v_lshl_add_u32 v9, v9, 5, v10')
    a('s_lshl_b32 s27, s20, 3')
    a('v_add_u32 v8, s27, v8')
    a('v_lshl_add_u32 v8, v8, 10, v9')
    a('v_add_u32 v8, s22, v8')
    a('s_lshl_b32 s25, s20, 10')
    a('s_mov_b32 s31, 0x%x' % WS_R)

    def dma(ks, slot_ks):
        a('s_add_u32 m0, s25, 0x%x' % (slot_ks * 4096))
        a('s_mov_b32 s30, 0x%x' % (ks * 32768))
        return a('buffer_load_dwordx4 v8, s[8:11], s30 offen lds')

    def aload(ks):
        a('s_mov_b32 s31, 0x%x' % (WS_R + ks * 1024))
        return a('buffer_load_dwordx4 %s, v7, s[16:19], s31 offen' % (vr(AFR + 4 * ks, 4)))

    q = {}

    def issue_chunk(c):
        n = 8 if c < 5 else 3
        for i in range(n):
            ks = 8 * c + i
            dma(ks, ks if c < 5 else i)
            q[c] = aload(ks)

    for c in range(3):
        issue_chunk(c)
    a('v_lshl_add_u32 v14, v2, 2, v4')
    a('v_lshlrev_b32 v14, 7, v14')
    a('v_lshl_add_u32 v14, v5, 3, v14')
    a('v_and_b32 v15, 1, v2')
    a('v_lshlrev_b32 v15, 1, v15')
    a('v_lshrrev_b32 v13, 1, v4')
    a('v_or_b32 v15, v15, v13')
    for nt in range(4):
        a('v_xor_b32 v13, %d, v15' % nt)
        a('v_lshl_add_u32 v%d, v13, 5, v14' % (TB + nt))
    cur_base = [0]

    def reads(ks):
        slot = ks if ks < 40 else ks - 40
        addr = slot * 4096
        want = (addr // 65536) * 65536
        if want != cur_base[0]:
            d = want - cur_base[0]
            for nt in range(4):
                if d > 0:
                    a('v_add_u32 v%d, 0x%x, v%d' % (TB + nt, d, TB + nt))
                else:
                    a('v_subrev_u32 v%d, 0x%x, v%d' % (TB + nt, -d, TB + nt))
            cur_base[0] = want
        b = WB[ks & 1]
        for nt in range(4):
            for e in range(2):
                a('ds_read_b64_tr_b16 %s, v%d offset:%d' % (vr(b + 4 * nt + 2 * e, 2), TB + nt, addr - want + e * 2048))

    stamp(a, 2)
    a.wait_vm(q[0])
    a('s_barrier')
    stamp(a, 3)
    reads(0)
    for ks in range(43):
        if ks == 4:
            issue_chunk(3)
        if ks == 12:
            issue_chunk(4)
        if ks == 20:
            a('v_add_u32 v11, s24, v3')
            a('v_lshlrev_b32 v11, 10, v11')
            a('v_lshl_add_u32 v11, v2, 3, v11')
            a('v_add_u32 v11, s22, v11')
            a('s_lshl_b32 s30, s24, 10')
            a('s_lshl_b32 s31, s22, 4')
            a('s_add_u32 s30, s30, s31')
            a('s_add_u32 s30, s30, 0x%x' % WS_H)
            for j in range(2):
                a('buffer_load_dwordx4 %s, v6, s[16:19], s30 offen offset:%d' % (vr(HR + 4 * j, 4), j * 1024))
            a('v_lshlrev_b32 v12, 3, v2')
            a('v_add_u32 v12, s22, v12')
            for nt in range(4):
                q_e = a('buffer_load_dwordx2 %s, v12, s[12:15], 0 offen offset:%d' % (vr(BR + 2 * nt, 2), nt * 32))
        if ks + 1 < 43:
            if (ks + 1) % 8 == 0:
                a.wait_vm(q[(ks + 1) // 8])
                a('s_barrier')
                if (ks + 1) // 8 < 5:
                    stamp(a, 3 + (ks + 1) // 8)
                if ks + 1 == 16:
                    issue_chunk(5)
            reads(ks + 1)
            a('s_waitcnt lgkmcnt(8)')
        else:
            a('s_waitcnt lgkmcnt(0)')
        b = WB[ks & 1]
        for nt in range(4):
            c_op = '0' if ks == 0 else vr(AC + 4 * nt, 4)
            a('v_mfma_f32_16x16x32_bf16 %s, %s, %s, %s' % (vr(AC + 4 * nt, 4), vr(b + 4 * nt, 4), vr(AFR + 4 * ks, 4), c_op))
    stamp(a, 8)
    a('s_waitcnt vmcnt(0)')
    for nt in range(4):
        ac = AC + 4 * nt
        T = 24 + 8 * nt
        b = BR + 2 * nt
        x = HR + 2 * nt
        a('v_cvt_pk_bf16_f32 v%d, v%d, v%d' % (T, ac, ac + 1))
        a('v_cvt_pk_bf16_f32 v%d, v%d, v%d' % (T + 1, ac + 2, ac + 3))
        for (src) in (b, x):
            a('v_lshlrev_b32 v%d, 16, v%d' % (T + 2, T))
            a('v_and_b32 v%d, 0xffff0000, v%d' % (T + 3, T))
            a('v_lshlrev_b32 v%d, 16, v%d' % (T + 4, T + 1))
            a('v_and_b32 v%d, 0xffff0000, v%d' % (T + 5, T + 1))
            a('v_lshlrev_b32 v%d, 16, v%d' % (T + 6, src))
            a('v_and_b32 v%d, 0xffff0000, v%d' % (T + 7, src))
            a('v_add_f32 v%d, v%d, v%d' % (T + 2, T + 2, T + 6))
            a('v_add_f32 v%d, v%d, v%d' % (T + 3, T + 3, T + 7))
            a('v_lshlrev_b32 v%d, 16, v%d' % (T + 6, src + 1))
            a('v_and_b32 v%d, 0xffff0000, v%d' % (T + 7, src + 1))
            a('v_add_f32 v%d, v%d, v%d' % (T + 4, T + 4, T + 6))
            a('v_add_f32 v%d, v%d, v%d' % (T + 5, T + 5, T + 7))
            a('v_cvt_pk_bf16_f32 v%d, v%d, v%d' % (T, T + 2, T + 3))
            a('v_cvt_pk_bf16_f32 v%d, v%d, v%d' % (T + 1, T + 4, T + 5))
        a('buffer_store_dwordx2 %s, v11, s[4:7], 0 offen offset:%d' % (vr(T, 2), nt * 32))
    if 'k4' == 'kred' and STAMP:
        a('s_mov_b32 s20, 0')
    stamp(a, 9)
    stamp_real(a, 10)
    stamp_store(a, 4, 11)
    a.label('k4_exit')
    a('s_endpgm')


def desc(name, vgpr, sgpr=64):
    return '''.amdhsa_kernel %s
  .amdhsa_next_free_vgpr %d
  .amdhsa_next_free_sgpr %d
  .amdhsa_accum_offset %d
  .amdhsa_group_segment_fixed_size 0
  .amdhsa_kernarg_size 96
  .amdhsa_user_sgpr_count 2
  .amdhsa_user_sgpr_kernarg_segment_ptr 1
  .amdhsa_system_sgpr_workgroup_id_x 1
.end_amdhsa_kernel
''' % (name, vgpr, sgpr, vgpr)


KERNELS = [
    ('k1_kernel', gen_k1, 256, 640, 163840, 160),
    ('kred_kernel', gen_kred, 128, 64, 0, 72),
    ('k2_kernel', gen_k2, 256, 256, 100352, 256),
    ('k3_kernel', gen_k3, 240, 640, 163840, 160),
    ('k4_kernel', gen_k4, 256, 256, 163840, 256),
]


def build(kernels):
    head = ''
    for (n, g, grid, block, lds, v) in kernels:
        head += '; @launch kernel=%s grid=(%d,1,1) block=(%d,1,1) lds=%d\n' % (n, grid, block, lds)
    head += '.amdgcn_target "amdgcn-amd-amdhsa--gfx950"\n.text\n'
    a = Asm()
    seen = set()
    for (n, g, grid, block, lds, v) in kernels:
        if n in seen:
            continue
        seen.add(n)
        a.vm_issued = 0
        g(a)
    d = '.section .rodata,"a"\n.p2align 6\n'
    seen = set()
    for (n, g, grid, block, lds, v) in kernels:
        if n in seen:
            continue
        seen.add(n)
        d += desc(n, v)
    body = a.text()
    if STPOL:
        import re
        body = re.sub(r'(buffer_store_dwordx[24] [^\n]*)', lambda m: m.group(1) + ' ' + STPOL, body)
    return head + body + d


if __name__ == '__main__':
    out = sys.argv[1] if len(sys.argv) > 1 else 'cur.s'
    open(out, 'w').write(build(KERNELS))
    print('wrote', out)
```

```python
import sys, os
sys.path.insert(0, os.path.dirname(__file__))
os.environ['STAMP'] = '1'
import gen
from gen import *

def mk(name, body, kidx, nwg):
    def g(a):
        kernel_head(a, name)
        a('s_cmp_ge_u32 s2, %d' % nwg)
        a('s_cbranch_scc1 %s_exit' % name)
        srd(a, 16, 88, 0)
        lane_decomp(a)
        a('s_waitcnt lgkmcnt(0)')
        srd_fin(a, 16, WS_SIZE)
        body(a)
        stamp_real(a, 10)
        stamp_store(a, kidx, 11)
        a.label('%s_exit' % name)
        a('s_endpgm')
    return g

def body(pol, n=32):
    def f(a):
        a('s_and_b32 s30, s2, 7')
        a('s_lshl_b32 s30, s30, 2')
        a('s_lshr_b32 s31, s2, 3')
        a('s_and_b32 s31, s31, 3')
        a('s_add_u32 s30, s30, s31')
        a('s_lshl_b32 s30, s30, 18')
        a('v_lshlrev_b32 v7, 4, v1')
        a('s_mul_i32 s31, s20, %d' % (n * 1024))
        a('v_add_u32 v7, s31, v7')
        a('s_lshl_b32 s25, s20, 13')
        stamp_real(a, 0)
        stamp(a, 1)
        for blk in range(4):
            for i in range(n // 4):
                k = blk * (n // 4) + i
                a('s_add_u32 m0, s25, 0x%x' % ((k & 7) * 1024))
                a('s_add_u32 s31, s30, 0x%x' % (k * 1024))
                a('buffer_load_dwordx4 v7, s[16:19], s31 offen %s lds' % pol)
            stamp(a, 2 + blk)
        a('s_waitcnt vmcnt(%d)' % (3 * n // 4))
        stamp(a, 6)
        a('s_waitcnt vmcnt(%d)' % (n // 2))
        stamp(a, 7)
        a('s_waitcnt vmcnt(%d)' % (n // 4))
        stamp(a, 8)
        a('s_waitcnt vmcnt(0)')
        stamp(a, 9)
    return f

K = []
i = 0
for pol, nwg, blk in (('', 256, 512), ('nt', 256, 512), ('sc1', 256, 512), ('sc0 sc1', 256, 512), ('', 64, 512), ('', 32, 512), ('', 256, 256), ('', 8, 512)):
    n = 'k%d_kernel' % i
    K.append((n, mk(n, body(pol, 32 if blk == 512 else 60), i, nwg), nwg, blk, 65536, 64))
    i += 1
open('mb2.s', 'w').write(build(K))
```

```python
import sys, os
sys.path.insert(0, os.path.dirname(__file__))
from dsl import Asm

MB = 1 << 20
WS_PQ = 0
WS_O = 2 * MB
WS_PART = 4 * MB
PSTR = 2176
WS_ST2 = 6 * MB
WS_H = 7 * MB
WS_R = 9 * MB
WS_SIZE = 16 * MB
L2E = '0x3fb8aa3b'
NL2E = '0xbfb8aa3b'


def env(n, d):
    return int(os.environ.get(n, d))


STAMP = os.environ.get('STAMP')
EPI = os.environ.get('EPI')
PREFETCH = env('PREFETCH', 3)
PF2 = env('PF2', 0)
XP = env('XP', 0)
WS_STAMP = 15 * MB


def vr(b, n):
    return 'v[%d:%d]' % (b, b + n - 1)


def srd(a, s, koff):
    a('s_load_dwordx2 s[%d:%d], s[0:1], %d' % (s, s + 1, koff))


def srd_fin(a, s, size):
    a('s_and_b32 s%d, s%d, 0xffff' % (s + 1, s + 1))
    a('s_mov_b32 s%d, 0x%x' % (s + 2, size))
    a('s_mov_b32 s%d, 0x00020000' % (s + 3))


def bf16r(a, d, s):
    a('v_cvt_pk_bf16_f32 v%d, v%d, v%d' % (d, s, s))
    a('v_lshlrev_b32 v%d, 16, v%d' % (d, d))


def butterfly(a, items):
    for sw in ('v_permlane16_swap_b32', 'v_permlane32_swap_b32'):
        for (op, r, t) in items:
            a('v_mov_b32 v%d, v%d' % (t, r))
        for (op, r, t) in items:
            a('%s v%d, v%d' % (sw, r, t))
        for (op, r, t) in items:
            a('%s v%d, v%d, v%d' % (op, r, r, t))


def stamp(a, i, epi=False):
    if STAMP and (i in (1, 9) or bool(EPI) == epi):
        a('s_memtime s[%d:%d]' % (40 + 2 * i, 41 + 2 * i))


def stamp_real(a, i):
    if STAMP:
        a('s_memrealtime s[%d:%d]' % (40 + 2 * i, 41 + 2 * i))


def stamp_store(a, kidx, n=11, srd=16):
    if not STAMP:
        return
    stamp(a, 9)
    stamp_real(a, 10)
    a('s_waitcnt lgkmcnt(0)')
    a('s_lshl_b32 s38, s2, 3')
    a('s_add_u32 s38, s38, s20')
    a('s_lshl_b32 s38, s38, 6')
    a('s_add_u32 s38, s38, 0x%x' % (WS_STAMP + kidx * 131072))
    a('v_mov_b32 v0, 0')
    for i in range(n):
        a('v_mov_b32 v1, s%d' % (40 + 2 * i))
        a('buffer_store_dword v1, v0, s[%d:%d], s38 offen offset:%d' % (srd, srd + 3, i * 4))


def kernel_head(a, name, nwg):
    a.raw('.globl %s_kernel' % name)
    a.raw('.p2align 8')
    a.raw('.type %s_kernel,@function' % name)
    a.label(name + '_kernel')
    a.kname = name
    a.hist = []
    a('s_cmp_ge_u32 s2, %d' % nwg)
    a('s_cbranch_scc1 %s_exit' % name)
    stamp_real(a, 0)
    stamp(a, 1)


def lane_decomp(a):
    a('v_and_b32 v1, 63, v0')
    a('v_lshrrev_b32 v6, 6, v0')
    a('v_lshrrev_b32 v2, 4, v1')
    a('v_and_b32 v3, 15, v1')
    a('v_readfirstlane_b32 s20, v6')
    a('v_bfe_u32 v4, v1, 2, 2')
    a('v_and_b32 v5, 3, v1')
    a('v_lshlrev_b32 v6, 4, v1')


def l2_prefetch(a, sr, size, parts=32):
    chunk = (size // parts + 127) // 128 * 128
    if parts <= 32:
        a('s_lshr_b32 s31, s2, 3')
        a('s_mul_i32 s31, s31, %d' % chunk)
    else:
        a('s_mul_i32 s31, s2, %d' % chunk)
    n = (chunk + 1023) // 1024
    for i in range(n):
        if i and i % 4 == 0:
            a('s_add_u32 s31, s31, 4096')
        a('buffer_load_dwordx4 %s, v6, s[%d:%d], s31 offen offset:%d' % (vr(64 + 4 * (i % 8), 4), sr, sr + 3, (i % 4) * 1024))


PF3 = env('PF3', 0)


def start_touch(a, sr, size, ncu, reg):
    a('s_lshr_b32 s30, s2, 3')
    a('s_lshl_b32 s30, s30, 3')
    a('s_add_u32 s30, s30, s20')
    a('s_lshl_b32 s30, s30, 10')
    step = ncu * 8 * 1024
    for i in range((size + step - 1) // step):
        if i:
            a('s_add_u32 s30, s30, 0x%x' % step)
        a('buffer_load_dwordx4 %s, v6, s[%d:%d], s30 offen' % (vr(reg, 4), sr, sr + 3))


def line_touch(a, sr, nrows, cbs, reg, pol='', ncu=32):
    per = (nrows + ncu - 1) // ncu
    assert per <= 64
    a('s_cmp_ge_u32 s20, %d' % len(cbs))
    a('s_cbranch_scc1 %s_lt' % a.kname)
    a('s_lshr_b32 s30, s2, 3')
    a('s_mul_i32 s30, s30, %d' % (per * 1024))
    tab = 0
    for i, c in enumerate(cbs):
        tab |= c << (4 * i)
    a('s_lshl_b32 s31, s20, 2')
    a('s_lshr_b32 s31, 0x%x, s31' % tab)
    a('s_and_b32 s31, s31, 7')
    a('s_lshl_b32 s31, s31, 7')
    a('s_add_u32 s30, s30, s31')
    a('v_min_u32 v%d, %d, v1' % (reg + 1, per - 1))
    a('v_lshlrev_b32 v%d, 10, v%d' % (reg + 1, reg + 1))
    a('buffer_load_dword v%d, v%d, s[%d:%d], s30 offen %s' % (reg, reg + 1, sr, sr + 3, pol))
    a.label('%s_lt' % a.kname)


LT = [int(x) for x in os.environ.get('LT', '3').split(',') if x]
LTPOL = os.environ.get('LTPOL', '')


def mk_groups(nk, spec):
    sz = [int(x) for x in spec.split(',')]
    g, i, k = [], 0, 0
    while k < nk:
        n = min(sz[min(i, len(sz) - 1)], nk - k)
        g.append((k, k + n))
        k += n
        i += 1
    return g


def producer_loop(a, nk, ns, lag, per, issue, groups, early=None, late=None):
    grp = {}
    for j, (lo, hi) in enumerate(groups):
        for i in range(lo, hi):
            grp[i] = j
    last = {}
    issued = 0
    ps = STAMP and os.environ.get('PSTAMP') == a.kname
    if ps:
        a('s_memtime s[44:45]')
    for j, (lo, hi) in enumerate(groups):
        while issued < nk:
            i = issued
            lg = min(lag, env('LAG0' + a.kname, lag) + j * env('LAGR', 2))
            ok = (i < ns or grp[i - ns] + 1 <= j - 1) and (i - lo + 1) * per <= 62 and (i < hi or i < lo + lg)
            if not ok:
                break
            last[i] = issue(i)
            issued += 1
        assert issued >= hi, (j, issued, hi)
        if issued == nk and early:
            early()
            early = None
        if ps and j < 3:
            a('s_memtime s[%d:%d]' % (46 + 4 * j, 47 + 4 * j))
        if hi == nk:
            a('s_waitcnt vmcnt(0)')
        else:
            a.wait_vm(last[hi - 1])
        if ps and j < 3:
            a('s_memtime s[%d:%d]' % (48 + 4 * j, 49 + 4 * j))
        a('s_barrier')
    if late:
        late()
    a('s_waitcnt vmcnt(0)')
    if ps:
        a('s_sub_u32 s20, s20, 8')
        stamp_store(a, 5)
    a('s_endpgm')


def softmax_sets(a, sets, PB, TB, FB, LREG):
    def T(s, i): return TB + 12 * s + i
    S = range(sets)
    for s in S:
        p = PB + 4 * s
        a('v_lshlrev_b32 v%d, 16, v%d' % (p, T(s, 2)))
        a('v_and_b32 v%d, 0xffff0000, v%d' % (p + 1, T(s, 2)))
        a('v_lshlrev_b32 v%d, 16, v%d' % (p + 2, T(s, 3)))
        a('v_and_b32 v%d, 0xffff0000, v%d' % (p + 3, T(s, 3)))
    for s in S:
        p = PB + 4 * s
        a('v_max3_f32 v%d, v%d, v%d, v%d' % (T(s, 0), p, p + 1, p + 2))
        a('v_min3_f32 v%d, v%d, v%d, v%d' % (T(s, 1), p, p + 1, p + 2))
        a('v_max_f32 v%d, v%d, v%d' % (T(s, 0), T(s, 0), p + 3))
        a('v_min_f32 v%d, v%d, v%d' % (T(s, 1), T(s, 1), p + 3))
    it = []
    for s in S:
        it += [('v_max_f32', T(s, 0), T(s, 2)), ('v_min_f32', T(s, 1), T(s, 3))]
    butterfly(a, it)
    for s in S:
        a('v_mul_f32 v%d, %s, v%d' % (T(s, 0), NL2E, T(s, 0)))
        a('v_mul_f32 v%d, %s, v%d' % (T(s, 1), L2E, T(s, 1)))
    a('v_mov_b32 v%d, %s' % (LREG, L2E))
    for s in S:
        p = PB + 4 * s
        for r in range(4):
            a('v_fma_f32 v%d, v%d, v%d, v%d' % (T(s, 4 + r), p + r, LREG, T(s, 0)))
            a('v_fma_f32 v%d, -v%d, v%d, v%d' % (T(s, 8 + r), p + r, LREG, T(s, 1)))
    for s in S:
        for r in range(8):
            a('v_exp_f32 v%d, v%d' % (T(s, 4 + r), T(s, 4 + r)))
    for s in S:
        a('v_add_f32 v%d, v%d, v%d' % (T(s, 0), T(s, 4), T(s, 5)))
        a('v_add_f32 v%d, v%d, v%d' % (T(s, 1), T(s, 8), T(s, 9)))
        a('v_add_f32 v%d, v%d, v%d' % (T(s, 2), T(s, 6), T(s, 7)))
        a('v_add_f32 v%d, v%d, v%d' % (T(s, 3), T(s, 10), T(s, 11)))
    for s in S:
        a('v_add_f32 v%d, v%d, v%d' % (T(s, 0), T(s, 0), T(s, 2)))
        a('v_add_f32 v%d, v%d, v%d' % (T(s, 1), T(s, 1), T(s, 3)))
    it = []
    for s in S:
        it += [('v_add_f32', T(s, 0), T(s, 2)), ('v_add_f32', T(s, 1), T(s, 3))]
    butterfly(a, it)
    for s in S:
        a('v_rcp_f32 v%d, v%d' % (T(s, 0), T(s, 0)))
        a('v_rcp_f32 v%d, v%d' % (T(s, 1), T(s, 1)))
    for s in S:
        for r in range(4):
            a('v_mul_f32 v%d, v%d, v%d' % (T(s, 4 + r), T(s, 0), T(s, 4 + r)))
            a('v_mul_f32 v%d, v%d, v%d' % (T(s, 8 + r), T(s, 1), T(s, 8 + r)))
    for s in S:
        for i in range(4):
            a('v_cvt_pk_bf16_f32 v%d, v%d, v%d' % (FB + 4 * s + i, T(s, 4 + 2 * i), T(s, 5 + 2 * i)))


AFB = (48, 56)
BUF = (64, 80)
ACC = 96
RS, GR, CSA = 120, 124, 128
ONES = 16
SLOT = 14336
VW, VC, VA, VP = 8, 11, 40, 43


NPA = env('NPA', 2)


def g96_cfg(mode):
    ns = env('NS1', 11) if mode == 'k1' else env('NS3', 10)
    lag = env('LAG1', 5) if mode == 'k1' else env('LAG3', 5)
    return ns, lag


def g96_groups(mode):
    return mk_groups(16, os.environ.get('GR1', '1,1,2') if mode == 'k1' else os.environ.get('GR3', '1,1,2'))


def gemm96_producers(a, mode, name, wstride, seg_off):
    k1 = mode == 'k1'
    ns, lag = g96_cfg(mode)
    XCH = ns * SLOT
    nt = 8 // NPA
    a.label(name + '_prod')
    a.hist = []
    a('s_cmp_ge_u32 s20, 10')
    a('s_cbranch_scc1 %s_prodA' % name)
    a.vm_issued = 0
    a('s_sub_u32 s35, s20, 8')
    a('s_mul_i32 s31, s35, %d' % (16 * wstride))
    a('s_add_u32 s31, s31, s22')
    a('s_lshl_b32 s32, s35, 10')
    a('v_lshrrev_b32 v7, 2, v1')
    a('v_mul_u32_u24 v7, 0x%x, v7' % wstride)
    a('v_bfe_u32 v15, v1, %d, 1' % (5 if k1 else 4))
    a('v_lshlrev_b32 v15, 1, v15')
    a('v_xor_b32 v15, v15, v5')
    a('v_lshl_add_u32 v7, v15, 4, v7')
    a('v_add_u32 v7, s31, v7')
    if k1:
        a('s_mov_b32 m0, 0x%x' % (XCH + 2048))
        a('s_lshl_b32 s30, s34, 10')
        a('buffer_load_dwordx4 v6, s[12:15], s30 offen lds')
        if PREFETCH:
            srd(a, 64, 24)
            srd(a, 68, 40)
            srd(a, 72, 56)

    def wissue(i):
        for seg in range(3):
            a('s_add_u32 m0, s32, 0x%x' % ((i % ns) * SLOT + seg * 2048))
            a('s_mov_b32 s30, 0x%x' % ((i & 7 if XP & 8 else i) * 32 * wstride + seg * seg_off))
            q = a('buffer_load_dwordx4 v7, s[8:11], s30 offen lds')
        return q

    def after():
        a('s_waitcnt lgkmcnt(0)')
        a('s_cmp_eq_u32 s35, 0')
        a('s_cselect_b32 s68, s72, s68')
        a('s_cselect_b32 s69, s73, s69')
        srd_fin(a, 64, 512 * 1024)
        srd_fin(a, 68, 1376 * 1024)
        l2_prefetch(a, 68, 1376 * 1024, 256)
        a('s_lshl_b32 s31, s2, 11')
        a('s_add_u32 s31, s31, s32')
        a('buffer_load_dwordx4 v[96:99], v6, s[64:67], s31 offen')
        a('s_barrier')
        a('s_barrier')

    def bias():
        a('s_mov_b32 m0, 0x%x' % (XCH + 2048))
        a('buffer_load_dwordx4 v6, s[12:15], s22 offen lds')
    producer_loop(a, 16, ns, lag, 3, wissue, g96_groups(mode), None if k1 else bias, after if (k1 and PREFETCH) else None)
    a.label(name + '_prodA')
    a.hist = []
    a.vm_issued = 0
    a('s_sub_u32 s31, s20, 10')
    a('s_mul_i32 s32, s31, %d' % (nt * 1024))
    a('s_mul_i32 s31, s31, %d' % (nt * 16))
    a('s_add_u32 s31, s31, s21')
    a('s_lshl_b32 s31, s31, 10')
    if k1:
        a('v_lshlrev_b32 v15, 1, v2')
        a('v_mov_b32 v14, 0x78')
        a('v_lshrrev_b32 v15, v15, v14')
        a('v_and_b32 v15, 3, v15')
        a('v_xor_b32 v15, v15, v5')
        a('v_lshrrev_b32 v7, 2, v1')
        a('v_lshlrev_b32 v7, 10, v7')
        a('v_lshl_add_u32 v7, v15, 4, v7')
        a('v_add_u32 v7, s31, v7')
    else:
        a('v_add_u32 v7, s31, v6')

    def aissue(i):
        for rt in range(nt):
            a('s_add_u32 m0, s32, 0x%x' % ((i % ns) * SLOT + 6144 + rt * 1024))
            a('s_mov_b32 s30, 0x%x' % (rt * 16384 + (i & 7 if XP & 16 else i) * (64 if k1 else 1024)))
            q = a('buffer_load_dwordx4 v7, s[4:7], s30 offen lds')
        return q

    def st2():
        a('s_lshr_b32 s31, s31, 3')
        a('s_add_u32 s31, s31, 0x%x' % WS_ST2)
        a('s_lshl_b32 s32, s32, 1')
        for j in range(2 * nt):
            a('s_add_u32 m0, s32, 0x%x' % (XCH + 4096 + j * 1024))
            a('s_add_u32 s30, s31, 0x%x' % (j * 1024))
            a('buffer_load_dwordx4 v6, s[16:19], s30 offen lds')
    producer_loop(a, 16, ns, lag, nt, aissue, g96_groups(mode), None if k1 else st2)


def gemm96_main(a, mode, extra_loads, late_loads=None):
    k1 = mode == 'k1'
    ns, lag = g96_cfg(mode)
    XCH = ns * SLOT
    BPOS = env('BPOS', 3)
    gstart = set(lo for (lo, hi) in g96_groups(mode))
    a('s_lshl_b32 s23, s20, 4')
    a('s_add_u32 s24, s21, s23')
    a('s_xor_b32 s37, s24, 16')
    a('s_and_b32 s36, s20, 1')
    extra_loads(a)
    a('v_lshl_add_u32 v8, v2, %d, v4' % (3 if k1 else 2))
    a('v_lshlrev_b32 v8, 6, v8')
    a('v_lshl_add_u32 v8, v5, 3, v8')
    a('v_and_b32 v15, 1, v2')
    a('v_lshlrev_b32 v15, 5, v15')
    a('s_sub_u32 s26, s20, 6')
    a('s_cmp_lt_u32 s20, 6')
    a('s_cselect_b32 s26, s20, s26')
    a('s_lshr_b32 s27, s26, 1')
    a('s_lshl_b32 s27, s27, 11')
    a('s_lshl_b32 s28, s36, 5')
    a('v_xor_b32 v15, s28, v15')
    a('v_add_u32 v%d, v8, v15' % VW)
    a('v_add_u32 v%d, s27, v%d' % (VC, VW))
    a('s_lshl_b32 s35, s20, 10')
    a('s_add_u32 s35, s35, 6144')
    if k1:
        a('v_lshlrev_b32 v15, 1, v4')
        a('v_mov_b32 v14, 0x78')
        a('v_lshrrev_b32 v15, v15, v14')
        a('v_and_b32 v15, 3, v15')
        a('v_xor_b32 v15, v15, v2')
        a('v_lshlrev_b32 v15, 4, v15')
        a('v_lshl_add_u32 v15, v3, 6, v15')
        a('v_add_u32 v%d, s35, v15' % VA)
    else:
        a('v_add_u32 v%d, s35, v6' % VA)
    a('v_xor_b32 v%d, 0x400, v%d' % (VP, VA))
    nb = (ns + 3) // 4
    for b in range(1, nb):
        for r in (VW, VC, VA, VP):
            a('v_add_u32 v%d, 0x%x, v%d' % (r + b, b * 4 * SLOT, r))
    for i in range(4):
        a('v_mov_b32 v%d, 0x3f803f80' % (ONES + i))
    eoff = 256 if k1 else 1024

    def reads(ks):
        if XP & 2:
            return
        b = BUF[ks & 1]
        af = AFB[ks & 1]
        sl = ks % ns
        bk, so = sl // 4, (sl % 4) * SLOT
        a('ds_read_b128 %s, v%d offset:%d' % (vr(af, 4), VA + bk, so))
        a('ds_read_b128 %s, v%d offset:%d' % (vr(af + 4, 4), VP + bk, so))
        for seg in range(3):
            for e in range(2):
                a('ds_read_b64_tr_b16 %s, v%d offset:%d' % (vr(b + 4 * seg + 2 * e, 2), VW + bk, so + seg * 2048 + e * eoff))
        for e in range(2):
            if XP & 1:
                continue
            a('ds_read_b64_tr_b16 %s, v%d offset:%d' % (vr(b + 12 + 2 * e, 2), VC + bk, so + e * eoff))

    stamp(a, 2)
    a('s_barrier')
    stamp(a, 3)
    reads(0)
    for ks in range(16):
        b = BUF[ks & 1]
        af = AFB[ks & 1]

        def cop(r):
            return '0' if ks == 0 else vr(r, 4)
        mf = []
        for p in range(2):
            for seg in range(3):
                ac = ACC + 4 * (3 * p + seg)
                mf.append('v_mfma_f32_16x16x32_bf16 %s, %s, %s, %s' % (vr(ac, 4), vr(b + 4 * seg, 4), vr(af + 4 * p, 4), cop(ac)))
        mf.append('v_mfma_f32_16x16x32_bf16 %s, %s, %s, %s' % (vr(CSA, 4), vr(b + 12, 4), vr(ONES, 4), cop(CSA)))
        if k1:
            mf.append('v_mfma_f32_16x16x32_bf16 %s, %s, %s, %s' % (vr(RS, 4), vr(ONES, 4), vr(af, 4), cop(RS)))
            mf.append('v_mfma_f32_16x16x32_bf16 %s, %s, %s, %s' % (vr(GR, 4), vr(af, 4), vr(af, 4), cop(GR)))
        if XP & 4:
            mf = []
        a('s_waitcnt lgkmcnt(0)')
        for m in mf[:BPOS]:
            a(m)
        if ks + 1 < 16:
            if ks + 1 in gstart:
                a('s_barrier')
            if (ks + 1) % 4 == 0:
                stamp(a, 3 + (ks + 1) // 4)
            reads(ks + 1)
        if late_loads and ks == 14:
            late_loads(a)
        for m in mf[BPOS:]:
            a(m)
    stamp(a, 7)
    stamp(a, 2, True)
    a('v_lshlrev_b32 v15, 4, v2')
    a('s_lshl_b32 s27, s26, 6')
    a('s_add_u32 s27, s27, 0x%x' % XCH)
    a('v_add_u32 v14, s27, v15')
    a('ds_write_b128 v14, %s' % vr(CSA, 4))

    def finish_stats(SUM, SQ, M, RD):
        a('v_mul_f32 v%d, 0x3b000000, v%d' % (SUM, SUM))
        a('v_mul_f32 v%d, 0x3b000000, v%d' % (SQ, SQ))
        a('v_fma_f32 v%d, -v%d, v%d, v%d' % (SQ, SUM, SUM, SQ))
        a('v_max_f32 v%d, 0, v%d' % (SQ, SQ))
        bf16r(a, M, SUM)
        bf16r(a, SQ, SQ)
        a('v_add_f32 v%d, 0x3727c5ac, v%d' % (SQ, SQ))
        bf16r(a, SQ, SQ)
        a('v_sqrt_f32 v%d, v%d' % (SQ, SQ))
        bf16r(a, SQ, SQ)
        a('v_rcp_f32 v%d, v%d' % (RD, SQ))

    if k1:
        SUM, SQ = 48, 49
        a('v_cmp_eq_u32 vcc, 1, v5')
        a('v_cndmask_b32 v%d, v%d, v%d, vcc' % (SQ, GR, GR + 1))
        a('v_cmp_eq_u32 vcc, 2, v5')
        a('v_cndmask_b32 v%d, v%d, v%d, vcc' % (SQ, SQ, GR + 2))
        a('v_cmp_eq_u32 vcc, 3, v5')
        a('v_cndmask_b32 v%d, v%d, v%d, vcc' % (SQ, SQ, GR + 3))
        a('v_cmp_eq_u32 vcc, v2, v4')
        a('v_cndmask_b32 v%d, 0, v%d, vcc' % (SQ, SQ))
        a('v_mov_b32 v%d, v%d' % (SUM, RS))
        butterfly(a, [('v_add_f32', SQ, 52)])
        finish_stats(SUM, SQ, 36, 37)
        a('s_lshl_b32 s27, s20, 7')
        a('s_add_u32 s27, s27, 0x%x' % (XCH + 512))
        a('v_lshlrev_b32 v50, 3, v3')
        a('v_add_u32 v51, s27, v50')
        a('ds_write_b64 v51, v[36:37]')
        a('v_xor_b32 v51, 0x80, v51')
    else:
        for p in range(2):
            b = 144 + 8 * p
            a('v_add_f32 v%d, v%d, v%d' % (48 + 2 * p, b, b + 2))
            a('v_add_f32 v%d, v%d, v%d' % (49 + 2 * p, b + 1, b + 3))
            a('v_add_f32 v%d, v%d, v%d' % (52 + 2 * p, b + 4, b + 6))
            a('v_add_f32 v%d, v%d, v%d' % (53 + 2 * p, b + 5, b + 7))
        for i in range(4):
            a('v_add_f32 v%d, v%d, v%d' % (48 + i, 48 + i, 52 + i))
        butterfly(a, [('v_add_f32', 48, 52), ('v_add_f32', 49, 53), ('v_add_f32', 50, 54), ('v_add_f32', 51, 55)])
        finish_stats(48, 49, 36, 37)
        finish_stats(50, 51, 38, 39)
    a('s_lshl_b32 s27, s36, 6')
    a('s_add_u32 s27, s27, 0x%x' % XCH)
    a('v_add_u32 v15, s27, v15')
    a('s_waitcnt lgkmcnt(0)')
    a('s_barrier')
    stamp(a, 3, True)
    if k1:
        a('ds_read_b64 v[38:39], v51')
    for seg in range(3):
        a('ds_read_b128 %s, v15 offset:%d' % (vr(132 + 4 * seg, 4), seg * 128))
    if not k1:
        return
    for p in range(2):
        for seg in range(3):
            if p == 0:
                a('s_waitcnt lgkmcnt(%d)' % (2 - seg))
            ac = ACC + 4 * (3 * p + seg)
            for r in range(4):
                a('v_fma_f32 v%d, -v%d, v%d, v%d' % (ac + r, 36 + 2 * p, 132 + 4 * seg + r, ac + r))
            for r in range(4):
                a('v_mul_f32 v%d, v%d, v%d' % (ac + r, 37 + 2 * p, ac + r))


def gen_k1(a):
    kernel_head(a, 'k1', 256)
    ns, lag = g96_cfg('k1')
    XCH = ns * SLOT
    srd(a, 4, 0)
    srd(a, 8, 8)
    srd(a, 12, 16)
    srd(a, 16, 88)
    lane_decomp(a)
    a('s_and_b32 s30, s2, 7')
    a('s_lshr_b32 s31, s2, 3')
    a('s_lshr_b32 s21, s30, 1')
    a('s_lshl_b32 s21, s21, 2')
    a('s_and_b32 s22, s31, 3')
    a('s_add_u32 s33, s21, s22')
    a('s_and_b32 s21, s30, 1')
    a('s_lshl_b32 s21, s21, 3')
    a('s_lshr_b32 s22, s31, 2')
    a('s_add_u32 s34, s21, s22')
    a('s_lshl_b32 s21, s33, 7')
    a('s_lshl_b32 s22, s34, 6')
    a('s_waitcnt lgkmcnt(0)')
    srd_fin(a, 4, 2048 * 1024)
    srd_fin(a, 8, 512 * 3072)
    srd_fin(a, 12, 16384)
    srd_fin(a, 16, WS_SIZE)
    a('s_cmp_ge_u32 s20, 8')
    a('s_cbranch_scc1 k1_prod')

    def extra(a):
        if PREFETCH == 4:
            Q0 = env('PFQ0', 1)
            a('s_and_b32 s31, s20, 3')
            a('s_cmp_lt_u32 s31, %d' % Q0)
            a('s_cbranch_scc1 k1_pfd')
            a('s_lshr_b32 s30, s2, 3')
            PFD = env('PFD', 8)
            for q in range(Q0 + 1, 4):
                a('s_cmp_lt_u32 s31, %d' % q)
                a('s_cbranch_scc1 k1_pfs')
                a('s_sleep %d' % PFD)
            a.label('k1_pfs')
            a('s_cmp_ge_u32 s20, 4')
            a('s_cbranch_scc1 k1_pfw')
            a('s_lshl_b32 s30, s30, 14')
            a('s_lshl_b32 s31, s31, 8')
            a('s_add_u32 s30, s30, s31')
            a('s_lshr_b32 s31, s33, 2')
            a('s_lshl_b32 s31, s31, 19')
            a('s_add_u32 s30, s30, s31')
            a('v_bfe_u32 v15, v1, 1, 4')
            a('v_and_b32 v23, 1, v1')
            a('v_lshlrev_b32 v23, 7, v23')
            a('v_lshl_add_u32 v15, v15, 10, v23')
            a('buffer_load_dword v156, v15, s[4:7], s30 offen')
            a('s_branch k1_pfd')
            a.label('k1_pfw')
            a('s_lshl_b32 s31, s31, 5')
            a('s_add_u32 s30, s30, s31')
            a('s_mul_i32 s30, s30, %d' % (4 * 3072))
            a('s_lshr_b32 s31, s34, 3')
            a('s_lshl_b32 s31, s31, 9')
            a('s_add_u32 s30, s30, s31')
            a('v_min_u32 v15, 47, v1')
            a('v_and_b32 v23, 3, v15')
            a('v_lshrrev_b32 v15, 2, v15')
            a('v_lshlrev_b32 v23, 7, v23')
            a('v_lshl_add_u32 v15, v15, 10, v23')
            a('buffer_load_dword v156, v15, s[8:11], s30 offen')
            a.label('k1_pfd')
        if PREFETCH == 3:
            a('s_lshr_b32 s30, s2, 3')
            a('s_lshl_b32 s30, s30, 2')
            a('s_and_b32 s31, s20, 3')
            a('s_add_u32 s30, s30, s31')
            a('s_cmp_ge_u32 s20, 4')
            a('s_cbranch_scc1 k1_pfw')
            a('s_lshr_b32 s31, s33, 2')
            a('s_lshl_b32 s31, s31, 19')
            a('s_lshl_b32 s30, s30, 12')
            a('s_add_u32 s30, s30, s31')
            for i in range(4):
                a('buffer_load_dwordx4 v[156:159], v6, s[4:7], s30 offen offset:%d' % (i * 1024))
            a('s_branch k1_pfd')
            a.label('k1_pfw')
            a('s_mul_i32 s30, s30, %d' % (4 * 3072))
            a('s_lshr_b32 s31, s34, 3')
            a('s_lshl_b32 s31, s31, 9')
            a('s_add_u32 s30, s30, s31')
            a('v_lshrrev_b32 v15, 5, v1')
            a('v_and_b32 v23, 31, v1')
            a('v_lshlrev_b32 v23, 4, v23')
            a('v_lshl_add_u32 v15, v15, 10, v23')
            for i in range(6):
                if i == 2:
                    a('s_add_u32 s30, s30, 4096')
                if i == 4:
                    a('s_add_u32 s30, s30, 4096')
                a('buffer_load_dwordx4 v[156:159], v15, s[8:11], s30 offen offset:%d' % ((i & 1) * 2048))
            a.label('k1_pfd')
        if PREFETCH == 2:
            a('s_lshl_b32 s30, s2, 2')
            a('s_and_b32 s31, s20, 3')
            a('s_add_u32 s30, s30, s31')
            a('s_cmp_ge_u32 s20, 4')
            a('s_cbranch_scc1 k1_pfw')
            a('v_lshrrev_b32 v15, 5, v1')
            a('v_and_b32 v23, 31, v1')
            a('v_lshlrev_b32 v23, 4, v23')
            a('v_lshl_add_u32 v15, v15, 10, v23')
            a('s_lshl_b32 s30, s30, 11')
            a('buffer_load_dwordx4 v[156:159], v15, s[4:7], s30 offen offset:512')
            a('s_branch k1_pfd')
            a.label('k1_pfw')
            a('s_mul_i32 s30, s30, 768')
            a('s_add_u32 s30, s30, 0x%x' % (256 * 3072))
            a('buffer_load_dwordx4 v[156:159], v6, s[8:11], s30 offen')
            a.label('k1_pfd')
        a('v_lshlrev_b32 v15, 2, v2')
        a('v_sub_u32 v15, v3, v15')
        a('v_mov_b32 v23, 0x3f80')
        a('v_mov_b32 v24, 0x3f800000')
        a('v_cmp_eq_u32 vcc, 0, v15')
        a('v_cndmask_b32 v20, 0, v23, vcc')
        a('v_cmp_eq_u32 vcc, 1, v15')
        a('v_cndmask_b32 v21, 0, v24, vcc')
        a('v_or_b32 v20, v20, v21')
        a('v_cmp_eq_u32 vcc, 2, v15')
        a('v_cndmask_b32 v21, 0, v23, vcc')
        a('v_cmp_eq_u32 vcc, 3, v15')
        a('v_cndmask_b32 v25, 0, v24, vcc')
        a('v_or_b32 v21, v21, v25')
        a('v_lshl_add_u32 v22, v2, 2, v4')
        a('v_lshlrev_b32 v22, 5, v22')
        a('v_lshl_add_u32 v22, v5, 3, v22')
        a('s_lshl_b32 s30, s36, 9')
        a('s_add_u32 s30, s30, 0x%x' % (XCH + 2048))
        a('v_add_u32 v22, s30, v22')
        a('v_lshlrev_b32 v23, 3, v1')

    gemm96_main(a, 'k1', extra)
    stamp(a, 8)
    stamp(a, 4, True)
    a('ds_read_b64_tr_b16 v[26:27], v22')
    PK = 144
    for t in range(6):
        a('v_cvt_pk_bf16_f32 v%d, v%d, v%d' % (PK + 2 * t, ACC + 4 * t, ACC + 4 * t + 1))
        a('v_cvt_pk_bf16_f32 v%d, v%d, v%d' % (PK + 1 + 2 * t, ACC + 4 * t + 2, ACC + 4 * t + 3))
    a('s_waitcnt lgkmcnt(0)')
    PB = 48
    for s in range(4):
        src = PK + 2 * (3 * (s & 1) + (1 - (s >> 1)))
        a('v_mfma_f32_16x16x16_bf16 %s, v[26:27], %s, 0' % (vr(PB + 4 * s, 4), vr(src, 2)))
    TV = 64
    for p in range(2):
        a('v_mfma_f32_16x16x16_bf16 %s, %s, v[20:21], 0' % (vr(TV + 4 * p, 4), vr(PK + 2 * (3 * p + 2), 2)))
    TB = 72
    for s in range(4):
        p = PB + 4 * s
        a('v_cvt_pk_bf16_f32 v%d, v%d, v%d' % (TB + 12 * s + 2, p, p + 1))
        a('v_cvt_pk_bf16_f32 v%d, v%d, v%d' % (TB + 12 * s + 3, p + 2, p + 3))
    a('s_lshl_b32 s31, s34, 10')
    a('s_lshl_b32 s27, s36, 9')
    a('s_add_u32 s31, s31, s27')
    for p in range(2):
        a('s_lshl_b32 s30, s%d, 10' % (24 if p == 0 else 37))
        a('s_add_u32 s30, s30, s31')
        a('buffer_store_dwordx2 %s, v23, s[16:19], s30 offen' % (vr(TB + 12 * (2 + p) + 2, 2)))
    FB = 120
    softmax_sets(a, 2, PB, TB, FB, 28)
    stamp(a, 7, True)
    for p in range(2):
        for pm in range(2):
            a('v_mfma_f32_16x16x16_bf16 %s, %s, v[20:21], 0' % (vr(72 + 4 * (2 * p + pm), 4), vr(FB + 4 * p + 2 * pm, 2)))
    for p in range(2):
        a('v_cvt_pk_bf16_f32 v%d, v%d, v%d' % (88 + 2 * p, TV + 4 * p, TV + 4 * p + 1))
        a('v_cvt_pk_bf16_f32 v%d, v%d, v%d' % (89 + 2 * p, TV + 4 * p + 2, TV + 4 * p + 3))
    for i in range(4):
        a('v_cvt_pk_bf16_f32 v%d, v%d, v%d' % (92 + 2 * i, 72 + 4 * i, 73 + 4 * i))
        a('v_cvt_pk_bf16_f32 v%d, v%d, v%d' % (93 + 2 * i, 74 + 4 * i, 75 + 4 * i))
    RB = 128
    for p in range(2):
        for pm in range(2):
            r1, r2 = RB + 4 * pm, RB + 4 * (2 + pm)
            a('v_mfma_f32_16x16x16_bf16 %s, %s, %s, %s' % (vr(r1, 4), vr(92 + 2 * (2 * p + pm), 2), vr(88 + 2 * p, 2), '0' if p == 0 else vr(r1, 4)))
            a('v_mfma_f32_16x16x16_bf16 %s, %s, v[16:17], %s' % (vr(r2, 4), vr(92 + 2 * (2 * p + pm), 2), '0' if p == 0 else vr(r2, 4)))
    a('s_lshl_b32 s30, s20, 12')
    a('v_add_u32 v23, s30, v6')
    for i in range(4):
        a('ds_write_b128 v23, %s offset:%d' % (vr(RB + 4 * i, 4), i * 1024))
    a('v_lshlrev_b32 v24, 4, v0')
    a('s_lshl_b32 s30, s33, 5')
    a('s_lshl_b32 s31, s34, 1')
    a('s_add_u32 s30, s30, s31')
    a('s_lshr_b32 s31, s20, 2')
    a('s_add_u32 s30, s30, s31')
    a('s_mul_i32 s30, s30, %d' % PSTR)
    a('s_add_u32 s30, s30, 0x%x' % WS_PART)
    a('s_and_b32 s31, s20, 3')
    a('s_lshl_b32 s27, s31, 10')
    a('s_lshl_b32 s28, s31, 6')
    a('s_add_u32 s28, s28, %d' % (2048 - 128))
    a('s_cmp_lt_u32 s31, 2')
    a('s_cselect_b32 s27, s27, s28')
    a('s_cselect_b64 s[28:29], -1, 0')
    a('s_add_u32 s30, s30, s27')
    a('v_lshlrev_b32 v25, 4, v2')
    a('v_cndmask_b32 v25, v25, v6, s[28:29]')
    a('s_mov_b32 s26, 0x00010001')
    a('s_mov_b32 s27, 0x00010001')
    a('s_or_b64 s[28:29], s[28:29], s[26:27]')
    a('s_waitcnt lgkmcnt(0)')
    a('s_barrier')
    stamp(a, 8, True)
    for m in range(4):
        a('ds_read_b128 %s, v24 offset:%d' % (vr(48 + 4 * m, 4), m * 8192))
    for m in range(1, 4):
        a('s_waitcnt lgkmcnt(%d)' % (3 - m))
        for r in range(4):
            a('v_add_f32 v%d, v%d, v%d' % (48 + r, 48 + r, 48 + 4 * m + r))
    a('s_mov_b64 exec, s[28:29]')
    a('buffer_store_dwordx4 v[48:51], v25, s[16:19], s30 offen')
    stamp_store(a, 0)
    a.label('k1_exit')
    a('s_endpgm')
    gemm96_producers(a, 'k1', 'k1', 3072, 1024)


def gen_ko(a):
    kernel_head(a, 'ko', 256)
    srd(a, 16, 88)
    KOPF = env('KOPF', 0)
    if KOPF:
        srd(a, 64, 24)
        srd(a, 68, 40)
        srd(a, 72, 56)
    lane_decomp(a)
    a('s_and_b32 s30, s2, 7')
    a('s_lshr_b32 s31, s2, 3')
    a('s_and_b32 s21, s30, 1')
    a('s_lshl_b32 s21, s21, 4')
    a('s_and_b32 s22, s31, 15')
    a('s_add_u32 s21, s21, s22')
    a('s_lshr_b32 s22, s30, 1')
    a('s_lshl_b32 s22, s22, 1')
    a('s_lshr_b32 s23, s31, 4')
    a('s_add_u32 s22, s22, s23')
    a('s_lshl_b32 s22, s22, 3')
    a('s_add_u32 s22, s22, s20')
    a('s_lshl_b32 s22, s22, 15')
    a('s_lshl_b32 s23, s21, 9')
    a('s_add_u32 s22, s22, s23')
    a('s_add_u32 s23, s22, 16384')
    a('v_lshlrev_b32 v7, 3, v1')
    a('s_lshr_b32 s24, s20, 1')
    a('s_lshl_b32 s24, s24, 7')
    a('s_add_u32 s24, s24, s21')
    a('s_mul_i32 s24, s24, %d' % PSTR)
    a('s_add_u32 s24, s24, 0x%x' % WS_PART)
    a('s_and_b32 s25, s20, 1')
    a('s_lshl_b32 s26, s25, 10')
    a('s_lshl_b32 s27, s25, 6')
    a('s_add_u32 s26, s26, s24')
    a('s_add_u32 s27, s27, s24')
    a('s_add_u32 s27, s27, 2048')
    a('v_lshlrev_b32 v8, 4, v2')
    a('s_waitcnt lgkmcnt(0)')
    srd_fin(a, 16, WS_SIZE)
    PB, TB, FB = 16, 24, 48
    q_p = []
    for s in range(2):
        q_p.append(a('buffer_load_dwordx2 %s, v7, s[16:19], s%d offen' % (vr(TB + 12 * s + 2, 2), 22 + s)))
    KV, ZZ = 64, 80
    for j in range(4):
        a('buffer_load_dwordx4 %s, v6, s[16:19], s26 offen' % vr(KV + 4 * j, 4))
        q_l = a('buffer_load_dwordx4 %s, v8, s[16:19], s27 offen' % vr(ZZ + 4 * j, 4))
        if j < 3:
            a('s_add_u32 s26, s26, %d' % (32 * PSTR))
            a('s_add_u32 s27, s27, %d' % (32 * PSTR))
    if KOPF & 1:
        srd_fin(a, 64, 512 * 1024)
        start_touch(a, 64, 512 * 1024, 32, 128)
    if KOPF & 2:
        srd_fin(a, 68, 1376 * 1024)
        start_touch(a, 68, 1376 * 1024, 32, 128)
    if KOPF & 4:
        srd_fin(a, 72, 1376 * 1024)
        start_touch(a, 72, 1376 * 1024, 32, 128)
    a('s_lshl_b32 s30, s20, 11')
    a('v_add_u32 v9, s30, v6')
    stamp(a, 2)
    a.wait_vm(q_p[1])
    stamp(a, 3)
    softmax_sets(a, 2, PB, TB, FB, 10)
    stamp(a, 4)
    a.wait_vm(q_l)
    stamp(a, 5)
    for B in (KV, ZZ):
        for r in range(4):
            a('v_add_f32 v%d, v%d, v%d' % (B + r, B + r, B + 4 + r))
            a('v_add_f32 v%d, v%d, v%d' % (B + 8 + r, B + 8 + r, B + 12 + r))
        for r in range(4):
            a('v_add_f32 v%d, v%d, v%d' % (B + r, B + r, B + 8 + r))
    a('ds_write_b128 v9, %s' % vr(KV, 4))
    a('ds_write_b128 v9, %s offset:1024' % vr(ZZ, 4))
    a('s_waitcnt lgkmcnt(0)')
    a('s_barrier')
    stamp(a, 6)
    RD = 64
    for t in range(2):
        for kz in range(2):
            for qd in range(4):
                a('ds_read_b128 %s, v6 offset:%d' % (vr(RD + 4 * (8 * t + 4 * kz + qd), 4), (2 * qd + t) * 2048 + kz * 1024))
    OPA = 56
    for t in range(2):
        for kz in range(2):
            i = 2 * t + kz
            B = RD + 16 * i
            a('s_waitcnt lgkmcnt(%d)' % (12 - 4 * i))
            for r in range(4):
                a('v_add_f32 v%d, v%d, v%d' % (B + r, B + r, B + 4 + r))
                a('v_add_f32 v%d, v%d, v%d' % (B + 8 + r, B + 8 + r, B + 12 + r))
            for r in range(4):
                a('v_add_f32 v%d, v%d, v%d' % (B + r, B + r, B + 8 + r))
            a('v_cvt_pk_bf16_f32 v%d, v%d, v%d' % (OPA + 4 * kz + 2 * t, B, B + 1))
            a('v_cvt_pk_bf16_f32 v%d, v%d, v%d' % (OPA + 4 * kz + 2 * t + 1, B + 2, B + 3))
    ND = 64
    for s in range(2):
        a('v_mfma_f32_16x16x32_bf16 %s, %s, %s, 0' % (vr(ND + 8 * s, 4), vr(OPA, 4), vr(FB + 4 * s, 4)))
        a('v_mfma_f32_16x16x32_bf16 %s, %s, %s, 0' % (vr(ND + 8 * s + 4, 4), vr(OPA + 4, 4), vr(FB + 4 * s, 4)))
    stamp(a, 7)
    a('s_add_u32 s22, s22, 0x%x' % WS_O)
    a('s_add_u32 s23, s23, 0x%x' % WS_O)
    for s in range(2):
        n = ND + 8 * s
        d = n + 4
        T = 16 + 8 * s
        a('v_cvt_pk_bf16_f32 v%d, v%d, v%d' % (T, d, d))
        a('v_cvt_pk_bf16_f32 v%d, v%d, v%d' % (T + 1, n, n + 1))
        a('v_cvt_pk_bf16_f32 v%d, v%d, v%d' % (T + 2, n + 2, n + 3))
        a('v_lshlrev_b32 v%d, 16, v%d' % (T, T))
        a('v_add_f32 v%d, 0x358637bd, v%d' % (T, T))
        a('v_cvt_pk_bf16_f32 v%d, v%d, v%d' % (T, T, T))
        a('v_lshlrev_b32 v%d, 16, v%d' % (T, T))
        a('v_rcp_f32 v%d, v%d' % (T, T))
        a('v_lshlrev_b32 v%d, 16, v%d' % (T + 3, T + 1))
        a('v_and_b32 v%d, 0xffff0000, v%d' % (T + 4, T + 1))
        a('v_lshlrev_b32 v%d, 16, v%d' % (T + 5, T + 2))
        a('v_and_b32 v%d, 0xffff0000, v%d' % (T + 6, T + 2))
        for i in range(4):
            a('v_mul_f32 v%d, v%d, v%d' % (T + 3 + i, T, T + 3 + i))
        a('v_cvt_pk_bf16_f32 v%d, v%d, v%d' % (T, T + 3, T + 4))
        a('v_cvt_pk_bf16_f32 v%d, v%d, v%d' % (T + 1, T + 5, T + 6))
        a('buffer_store_dwordx2 %s, v7, s[16:19], s%d offen' % (vr(T, 2), 22 + s))
    stamp(a, 8)
    stamp_store(a, 1)
    a.label('ko_exit')
    a('s_endpgm')


SL2 = 16384


def g64_cfg(mode):
    ns = env('NS2', 8) if mode == 'k2' else env('NS4', 8)
    lag = env('LAG2', 5) if mode == 'k2' else env('LAG4', 5)
    return ns, lag


def g64_groups(mode, nsl):
    return mk_groups(nsl, os.environ.get('GR2', '1') if mode == 'k2' else os.environ.get('GR4', '1'))


def g64_map(a):
    a('s_and_b32 s30, s2, 7')
    a('s_lshr_b32 s31, s2, 3')
    a('s_lshl_b32 s21, s30, 2')
    a('s_and_b32 s22, s31, 3')
    a('s_add_u32 s21, s21, s22')
    a('s_lshr_b32 s22, s31, 2')
    a('s_lshl_b32 s21, s21, 2')
    a('s_lshl_b32 s22, s22, 7')


NP64 = env('NP64', 2)


def gemm64_producers(a, mode, nks, atile, abase):
    name = mode
    ns, lag = g64_cfg(mode)
    nsl = (nks + 1) // 2
    np_ = NP64
    a.label(name + '_prod')
    a.hist = []
    a('s_cmp_ge_u32 s20, %d' % (8 + np_))
    a('s_cbranch_scc1 %s_prodA' % name)
    a.vm_issued = 0
    a('s_sub_u32 s35, s20, 8')
    a('s_lshl_b32 s32, s35, 10')
    a('s_lshl_b32 s31, s35, 13')
    a('s_add_u32 s31, s31, s22')
    a('v_lshrrev_b32 v8, 3, v1')
    a('v_bfe_u32 v9, v1, 1, 2')
    if mode == 'k2':
        a('v_bfe_u32 v10, v1, 4, 2')
        a('v_xor_b32 v9, v9, v10')
    else:
        assert np_ == 2
        a('v_bfe_u32 v10, v1, 4, 1')
        a('v_xor_b32 v9, v9, v10')
        a('s_lshl_b32 s30, s35, 1')
        a('v_xor_b32 v9, s30, v9')
    a('v_and_b32 v10, 1, v1')
    a('v_lshlrev_b32 v10, 4, v10')
    a('v_lshl_add_u32 v9, v9, 5, v10')
    a('v_lshl_add_u32 v8, v8, 10, v9')
    a('v_add_u32 v8, s31, v8')

    def xtile():
        a('v_lshrrev_b32 v9, 3, v1')
        a('v_and_b32 v10, 7, v1')
        a('v_lshlrev_b32 v10, 4, v10')
        a('v_lshl_add_u32 v9, v9, 10, v10')
        a('s_lshl_b32 s30, s21, 14')
        a('s_add_u32 s31, s31, s30')
        for j in range(0, 8, np_):
            a('s_add_u32 m0, s32, 0x%x' % (ns * SL2 + j * 1024))
            a('s_add_u32 s30, s31, 0x%x' % (j * 8192))
            a('buffer_load_dwordx4 v9, s[4:7], s30 offen lds')

    def wissue(i):
        n = 8 if 2 * i + 1 < nks else 4
        for j in range(0, n, np_):
            a('s_add_u32 m0, s32, 0x%x' % ((i % ns) * SL2 + j * 1024))
            a('s_mov_b32 s30, 0x%x' % (((i % 11 if XP & 8 else i) * 64 + 8 * j) * 1024))
            q = a('buffer_load_dwordx4 v8, s[8:11], s30 offen lds')
        return q
    producer_loop(a, nsl, ns, lag, 8 // np_, wissue, g64_groups(mode, nsl), xtile if mode == 'k2' else None)
    a.label(name + '_prodA')
    a.hist = []
    a.vm_issued = 0
    nt = 4 // np_
    a('s_sub_u32 s35, s20, %d' % (8 + np_))
    a('s_mul_i32 s32, s35, %d' % (nt * 2048))
    a('s_mul_i32 s35, s35, %d' % nt)
    a('s_add_u32 s35, s35, s21')
    a('s_mul_i32 s31, s35, %d' % atile)
    a('v_add_u32 v7, s31, v6')

    def aissue(i):
        n = 2 if 2 * i + 1 < nks else 1
        for rt in range(nt):
            for j in range(n):
                a('s_add_u32 m0, s32, 0x%x' % ((i % ns) * SL2 + 8192 + rt * 2048 + j * 1024))
                a('s_mov_b32 s30, 0x%x' % (abase + rt * atile + (i % 11 if XP & 16 else i) * 2048 + j * 1024))
                q = a('buffer_load_dwordx4 v7, s[16:19], s30 offen lds')
        return q
    producer_loop(a, nsl, ns, lag, 2 * nt, aissue, g64_groups(mode, nsl))


G_AC = 16
G_BUF = (24, 48)
G_TB = 72


PT = env('PT', 0)
PTPOL = os.environ.get('PTPOL', '')


def paced_setup(a, atile, abase):
    a('s_lshr_b32 s30, s2, 3')
    a('s_lshl_b32 s31, s30, 13')
    a('v_lshlrev_b32 v92, 7, v1')
    a('v_add_u32 v92, s31, v92')
    a('s_and_b32 s31, s2, 7')
    a('s_lshl_b32 s31, s31, 4')
    a('s_lshr_b32 s26, s30, 1')
    a('s_add_u32 s31, s31, s26')
    a('s_mul_i32 s31, s31, %d' % atile)
    a('s_and_b32 s30, s30, 1')
    a('s_lshl_b32 s30, s30, 12')
    a('s_add_u32 s31, s31, s30')
    a('s_add_u32 s31, s31, 0x%x' % abase)
    a('v_and_b32 v93, 31, v1')
    a('v_lshlrev_b32 v93, 7, v93')
    a('v_add_u32 v93, s31, v93')


def paced_touch(a, q, nks, atile):
    if q * 8 >= nks:
        return
    lb = '%s_pt%d' % (a.kname, q)
    a('s_cmp_lg_u32 s20, %d' % ((2 * q) & 7))
    a('s_cbranch_scc1 %sa' % lb)
    a('s_mov_b32 s30, 0x%x' % (q * 262144))
    a('buffer_load_dword v94, v92, s[8:11], s30 offen %s' % PTPOL)
    a.label(lb + 'a')
    a('s_cmp_lg_u32 s20, %d' % ((2 * q + 1) & 7))
    a('s_cbranch_scc1 %sb' % lb)
    a('s_mov_b32 s30, 0x%x' % min(q * 8192, atile - 8192))
    a('buffer_load_dword v94, v93, s[16:19], s30 offen %s' % PTPOL)
    a.label(lb + 'b')


def gemm64_main(a, mode, nks, mid, tail=None):
    ns, lag = g64_cfg(mode)
    nsl = (nks + 1) // 2
    k2 = mode == 'k2'
    nb = (ns + 3) // 4
    gstart = set(lo for (lo, hi) in g64_groups(mode, nsl))
    a('s_lshr_b32 s23, s20, 1')
    a('s_add_u32 s24, s21, s23')
    a('s_and_b32 s25, s20, 1')
    a('v_lshl_add_u32 v14, v2, %d, v4' % (2 if k2 else 3))
    a('v_lshlrev_b32 v14, 7, v14')
    a('v_lshl_add_u32 v14, v5, 3, v14')
    a('v_and_b32 v15, 1, v2')
    a('v_lshlrev_b32 v15, 1, v15')
    a('v_lshrrev_b32 v13, 1, v4')
    a('v_or_b32 v15, v15, v13')
    a('s_lshl_b32 s26, s25, 1')
    a('v_xor_b32 v15, s26, v15')
    a('v_lshl_add_u32 v%d, v15, 5, v14' % G_TB)
    a('v_xor_b32 v%d, 32, v%d' % (G_TB + 1, G_TB))
    a('s_lshl_b32 s26, s23, 11')
    a('s_add_u32 s26, s26, 8192')
    if k2:
        a('v_lshlrev_b32 v13, 3, v1')
        a('v_add_u32 v%d, s26, v13' % (G_TB + 6))
    else:
        a('v_add_u32 v%d, s26, v6' % (G_TB + 6))
    for b in range(1, nb):
        a('v_add_u32 v%d, 0x%x, v%d' % (G_TB + 2 * b, b * 65536, G_TB))
        a('v_add_u32 v%d, 0x%x, v%d' % (G_TB + 2 * b + 1, b * 65536, G_TB + 1))
        a('v_add_u32 v%d, 0x%x, v%d' % (G_TB + 6 + b, b * 65536, G_TB + 6))

    def nkk(i):
        return 2 if 2 * i + 1 < nks else 1

    def reads(i):
        if XP & 2:
            return
        B = G_BUF[i & 1]
        sl = i % ns
        bk, so = sl // 4, (sl % 4) * SL2
        for kk in range(nkk(i)):
            if k2:
                a('ds_read_b64 %s, v%d offset:%d' % (vr(B + 16 + 4 * kk, 2), G_TB + 6 + bk, so + kk * 1024))
                a('ds_read_b64 %s, v%d offset:%d' % (vr(B + 18 + 4 * kk, 2), G_TB + 6 + bk, so + kk * 1024 + 512))
            else:
                a('ds_read_b128 %s, v%d offset:%d' % (vr(B + 16 + 4 * kk, 4), G_TB + 6 + bk, so + kk * 1024))
            for nt in range(2):
                for e in range(2):
                    a('ds_read_b64_tr_b16 %s, v%d offset:%d' % (vr(B + 8 * kk + 4 * nt + 2 * e, 2), G_TB + 2 * bk + nt, so + kk * 4096 + e * (2048 if k2 else 512)))
    atile = 16384 if k2 else 43 * 1024
    if PT:
        paced_setup(a, atile, WS_O if k2 else WS_R)
        for q in range(1, PT):
            paced_touch(a, q, nks, atile)
    stamp(a, 2)
    a('s_barrier')
    stamp(a, 3)
    reads(0)
    mid(a)
    for i in range(nsl):
        B = G_BUF[i & 1]
        if PT and i % 4 == 0:
            paced_touch(a, i // 4 + PT, nks, atile)
        mf = []
        for kk in range(nkk(i)):
            for nt in range(2):
                c_op = '0' if (i == 0 and kk == 0) else vr(G_AC + 4 * nt, 4)
                mf.append('v_mfma_f32_16x16x32_bf16 %s, %s, %s, %s' % (vr(G_AC + 4 * nt, 4), vr(B + 8 * kk + 4 * nt, 4), vr(B + 16 + 4 * kk, 4), c_op))
        if XP & 4:
            mf = []
        a('s_waitcnt lgkmcnt(0)')
        if i + 1 < nsl:
            if i + 1 in gstart:
                a('s_barrier')
            if (i + 1) % ((nsl + 3) // 4) == 0:
                stamp(a, 3 + (i + 1) // ((nsl + 3) // 4))
            reads(i + 1)
            if tail and i + 2 == nsl:
                tail(a)
        for m in mf:
            a(m)
    stamp(a, 7)


def gen_k2(a):
    kernel_head(a, 'k2', 256)
    srd(a, 4, 0)
    srd(a, 8, 24)
    srd(a, 16, 88)
    lane_decomp(a)
    g64_map(a)
    a('s_waitcnt lgkmcnt(0)')
    srd_fin(a, 4, 2048 * 1024)
    srd_fin(a, 8, 512 * 1024)
    srd_fin(a, 16, WS_SIZE)
    a('s_cmp_ge_u32 s20, 8')
    a('s_cbranch_scc1 k2_prod')
    if PF3 & 1:
        start_touch(a, 8, 512 * 1024, 32, 92)
    if LT:
        line_touch(a, 8, 512, LT, 94, LTPOL)
    XR = 84

    def mid(a):
        a('s_lshl_b32 s26, s23, 11')
        a('s_lshl_b32 s27, s25, 6')
        a('s_add_u32 s26, s26, s27')
        a('s_add_u32 s26, s26, 0x%x' % (g64_cfg('k2')[0] * SL2))
        a('v_lshlrev_b32 v11, 7, v3')
        a('v_lshl_add_u32 v11, v2, 3, v11')
        a('v_add_u32 v11, s26, v11')

    def tail(a):
        for nt in range(2):
            a('ds_read_b64 %s, v11 offset:%d' % (vr(XR + 2 * nt, 2), nt * 32))
    gemm64_main(a, 'k2', 16, mid, tail)
    stamp(a, 8)
    a('s_lshl_b32 s30, s24, 14')
    a('s_lshl_b32 s31, s22, 4')
    a('s_add_u32 s30, s30, s31')
    a('s_lshl_b32 s31, s25, 10')
    a('s_add_u32 s30, s30, s31')
    a('s_add_u32 s30, s30, 0x%x' % WS_H)
    OUTR = 56
    S1, S2 = 54, 55
    T = 24
    for i in range(4):
        a('v_lshlrev_b32 v%d, 16, v%d' % (T + 2 * i, XR + i))
        a('v_and_b32 v%d, 0xffff0000, v%d' % (T + 2 * i + 1, XR + i))
    a('v_mov_b32 v52, 0x3f803f80')
    for i in range(8):
        a('v_add_f32 v%d, v%d, v%d' % (T + i, T + i, G_AC + i))
    for i in range(4):
        a('v_cvt_pk_bf16_f32 v%d, v%d, v%d' % (OUTR + i, T + 2 * i, T + 2 * i + 1))
    a('buffer_store_dwordx4 %s, v6, s[16:19], s30 offen' % (vr(OUTR, 4)))
    for i in range(4):
        a('v_dot2_f32_bf16 v%d, v%d, v52, %s' % (S1, OUTR + i, 'v%d' % S1 if i else '0'))
        a('v_dot2_f32_bf16 v%d, v%d, v%d, %s' % (S2, OUTR + i, OUTR + i, 'v%d' % S2 if i else '0'))
    butterfly(a, [('v_add_f32', S1, 52), ('v_add_f32', S2, 53)])
    a('v_lshlrev_b32 v12, 4, v3')
    a('s_lshl_b32 s30, s24, 11')
    a('s_lshr_b32 s31, s22, 7')
    a('s_and_b32 s26, s31, 1')
    a('s_lshl_b32 s26, s26, 10')
    a('s_add_u32 s30, s30, s26')
    a('s_lshr_b32 s31, s31, 1')
    a('s_lshl_b32 s31, s31, 8')
    a('s_add_u32 s30, s30, s31')
    a('s_lshl_b32 s31, s25, 3')
    a('s_add_u32 s30, s30, s31')
    a('s_add_u32 s30, s30, 0x%x' % WS_ST2)
    a('buffer_store_dwordx2 v[54:55], v12, s[16:19], s30 offen')
    stamp_store(a, 2)
    a.label('k2_exit')
    a('s_endpgm')
    gemm64_producers(a, 'k2', 16, 16384, WS_O)


K3MAP = env('K3MAP', 0)


def gen_k3(a):
    kernel_head(a, 'k3', 256 if K3MAP else 240)
    srd(a, 4, 88)
    srd(a, 8, 40)
    srd(a, 12, 48)
    srd(a, 16, 88)
    lane_decomp(a)
    a('s_and_b32 s30, s2, 7')
    a('s_lshr_b32 s31, s2, 3')
    if K3MAP:
        a('s_lshr_b32 s21, s30, 1')
        a('s_lshl_b32 s21, s21, 2')
        a('s_and_b32 s22, s31, 3')
        a('s_add_u32 s33, s21, s22')
        a('s_and_b32 s21, s30, 1')
        a('s_lshl_b32 s21, s21, 3')
        a('s_lshr_b32 s22, s31, 2')
        a('s_add_u32 s34, s21, s22')
        a('s_cmp_eq_u32 s34, 15')
        a('s_cbranch_scc1 k3_exit')
    else:
        a('s_lshl_b32 s21, s30, 1')
        a('s_and_b32 s22, s31, 1')
        a('s_add_u32 s33, s21, s22')
        a('s_lshr_b32 s34, s31, 1')
    a('s_lshl_b32 s21, s33, 7')
    a('s_mul_i32 s22, s34, 192')
    a('s_waitcnt lgkmcnt(0)')
    a('s_add_u32 s4, s4, 0x%x' % WS_H)
    a('s_addc_u32 s5, s5, 0')
    srd_fin(a, 4, 2048 * 1024)
    srd_fin(a, 8, 512 * 2752)
    srd_fin(a, 12, 2752)
    srd_fin(a, 16, WS_SIZE)
    a('s_cmp_ge_u32 s20, 8')
    a('s_cbranch_scc1 k3_prod')

    def extra(a):
        if PF3 & 2:
            start_touch(a, 8, 512 * 2752, 30, 156)
        if LT and env('LT3', 0):
            line_touch(a, 8, 1376, LT, 156, LTPOL, 28 if K3MAP else 30)

    def late(a):
        XCH = g96_cfg('k3')[0] * SLOT
        a('v_lshlrev_b32 v22, 3, v2')
        a('s_lshl_b32 s30, s36, 5')
        a('s_add_u32 s30, s30, 0x%x' % (XCH + 2048))
        a('v_add_u32 v22, s30, v22')
        a('s_lshl_b32 s30, s20, 11')
        a('s_add_u32 s30, s30, 0x%x' % (XCH + 4096))
        a('v_add_u32 v23, s30, v6')
        a('v_xor_b32 v24, 0x800, v23')
        a('s_waitcnt vmcnt(0)')
        for p in range(2):
            a('ds_read_b128 %s, v%d' % (vr(144 + 8 * p, 4), 23 + p))
            a('ds_read_b128 %s, v%d offset:1024' % (vr(148 + 8 * p, 4), 23 + p))
        for seg in range(3):
            a('ds_read_b64 %s, v22 offset:%d' % (vr(28 + 2 * seg, 2), seg * 64))

    gemm96_main(a, 'k3', extra, late)
    stamp(a, 8)
    a('s_lshl_b32 s27, s36, 9')
    a('s_mul_i32 s31, s34, 3 * 1024')
    a('s_add_u32 s31, s31, s27')
    a('s_add_u32 s31, s31, 0x%x' % WS_R)
    for p in range(2):
        a('s_lshr_b32 s%d, s%d, 4' % (28 + p, 24 if p == 0 else 37))
        a('s_mul_i32 s%d, s%d, 43 * 1024' % (28 + p, 28 + p))
    a('v_and_b32 v22, 1, v2')
    a('v_cmp_eq_u32 vcc, 0, v22')
    a('v_mov_b32 v22, s28')
    a('v_mov_b32 v23, s29')
    a('v_cndmask_b32 v22, v23, v22, vcc')
    a('v_lshrrev_b32 v23, 1, v2')
    a('v_lshl_add_u32 v22, v23, 8, v22')
    a('v_lshl_add_u32 v22, v3, 4, v22')
    for seg in range(3):
        b = 28 + 2 * seg
        B = 144 + 4 * seg
        a('v_lshlrev_b32 v%d, 16, v%d' % (B, b))
        a('v_and_b32 v%d, 0xffff0000, v%d' % (B + 1, b))
        a('v_lshlrev_b32 v%d, 16, v%d' % (B + 2, b + 1))
        a('v_and_b32 v%d, 0xffff0000, v%d' % (B + 3, b + 1))
    for seg in range(3):
        if seg == 1:
            a('s_cmp_eq_u32 s34, 14')
            a('s_cbranch_scc1 k3_done')
        a('s_waitcnt lgkmcnt(%d)' % (2 - seg))
        B = 144 + 4 * seg
        for p in range(2):
            ac = ACC + 4 * (3 * p + seg)
            for r in range(4):
                a('v_fma_f32 v%d, -v%d, v%d, v%d' % (ac + r, 36 + 2 * p, 132 + 4 * seg + r, ac + r))
        for p in range(2):
            ac = ACC + 4 * (3 * p + seg)
            for r in range(4):
                a('v_fma_f32 v%d, v%d, v%d, v%d' % (ac + r, 37 + 2 * p, ac + r, B + r))
        for p in range(2):
            ac = ACC + 4 * (3 * p + seg)
            for r in range(4):
                a('v_mul_f32 v%d, v%d, |v%d|' % (ac + r, ac + r, ac + r))
        for p in range(2):
            ac = ACC + 4 * (3 * p + seg)
            T = 48 + 2 * (2 * seg + p)
            a('v_cvt_pk_bf16_f32 v%d, v%d, v%d' % (T, ac, ac + 1))
            a('v_cvt_pk_bf16_f32 v%d, v%d, v%d' % (T + 1, ac + 2, ac + 3))
        for p in range(2):
            T = 48 + 2 * (2 * seg + p)
            a('v_pk_max_i16 v%d, v%d, 0' % (T, T))
            a('v_pk_max_i16 v%d, v%d, 0' % (T + 1, T + 1))
        T = 48 + 4 * seg
        a('v_permlane16_swap_b32 v%d, v%d' % (T, T + 2))
        a('v_permlane16_swap_b32 v%d, v%d' % (T + 1, T + 3))
        a('buffer_store_dwordx4 %s, v22, s[16:19], s31 offen offset:%d' % (vr(T, 4), seg * 1024))
    a.label('k3_done')
    stamp_store(a, 3)
    a.label('k3_exit')
    a('s_endpgm')
    gemm96_producers(a, 'k3', 'k3', 2752, 64)


def gen_k4(a):
    kernel_head(a, 'k4', 256)
    srd(a, 4, 72)
    srd(a, 8, 56)
    srd(a, 12, 64)
    srd(a, 16, 88)
    lane_decomp(a)
    g64_map(a)
    a('s_waitcnt lgkmcnt(0)')
    srd_fin(a, 4, 2048 * 1024)
    srd_fin(a, 8, 1376 * 1024)
    srd_fin(a, 12, 1024)
    srd_fin(a, 16, WS_SIZE)
    a('s_cmp_ge_u32 s20, 8')
    a('s_cbranch_scc1 k4_prod')
    if PF3 & 4:
        start_touch(a, 8, 1376 * 1024, 32, 92)
    if LT:
        line_touch(a, 8, 1376, LT, 94, LTPOL)
    HR = 84
    BR = 88

    def mid(a):
        a('s_lshl_b32 s30, s24, 14')
        a('s_lshl_b32 s31, s22, 4')
        a('s_add_u32 s30, s30, s31')
        a('s_lshl_b32 s31, s25, 10')
        a('s_add_u32 s30, s30, s31')
        a('s_add_u32 s30, s30, 0x%x' % WS_H)
        a('buffer_load_dwordx4 %s, v6, s[16:19], s30 offen' % (vr(HR, 4)))
        a('s_lshl_b32 s27, s25, 6')
        a('s_add_u32 s27, s27, s22')
        a('v_lshlrev_b32 v12, 3, v2')
        for nt in range(2):
            a('buffer_load_dwordx2 %s, v12, s[12:15], s27 offen offset:%d' % (vr(BR + 2 * nt, 2), nt * 32))
        a('s_lshl_b32 s26, s24, 14')
        a('s_add_u32 s26, s26, s27')
        a('v_and_b32 v11, 1, v2')
        a('v_lshlrev_b32 v11, 5, v11')
        a('v_lshrrev_b32 v12, 1, v2')
        a('v_lshl_add_u32 v11, v12, 4, v11')
        a('v_lshl_add_u32 v11, v3, 10, v11')
    HB = 96

    def tail(a):
        a('s_waitcnt vmcnt(0)')
        for i in range(4):
            a('v_lshlrev_b32 v%d, 16, v%d' % (HB + 2 * i, HR + i))
            a('v_and_b32 v%d, 0xffff0000, v%d' % (HB + 2 * i + 1, HR + i))
            a('v_lshlrev_b32 v%d, 16, v%d' % (HR + i, BR + i))
            a('v_and_b32 v%d, 0xffff0000, v%d' % (BR + i, BR + i))
        for i in range(4):
            a('v_add_f32 v%d, v%d, v%d' % (HB + 2 * i, HB + 2 * i, HR + i))
            a('v_add_f32 v%d, v%d, v%d' % (HB + 2 * i + 1, HB + 2 * i + 1, BR + i))
    gemm64_main(a, 'k4', 43, mid, tail)
    stamp(a, 8)
    O = 56
    for i in range(8):
        a('v_add_f32 v%d, v%d, v%d' % (HB + i, HB + i, G_AC + i))
    for i in range(4):
        a('v_cvt_pk_bf16_f32 v%d, v%d, v%d' % (O + i, HB + 2 * i, HB + 2 * i + 1))
    a('v_permlane16_swap_b32 v%d, v%d' % (O, O + 2))
    a('v_permlane16_swap_b32 v%d, v%d' % (O + 1, O + 3))
    a('buffer_store_dwordx4 %s, v11, s[4:7], s26 offen' % vr(O, 4))
    stamp_store(a, 4)
    a.label('k4_exit')
    a('s_endpgm')
    gemm64_producers(a, 'k4', 43, 43 * 1024, WS_R)


def desc(name, vgpr, sgpr=80):
    return '''.amdhsa_kernel %s
  .amdhsa_next_free_vgpr %d
  .amdhsa_next_free_sgpr %d
  .amdhsa_accum_offset %d
  .amdhsa_group_segment_fixed_size 0
  .amdhsa_kernarg_size 96
  .amdhsa_user_sgpr_count 2
  .amdhsa_user_sgpr_kernarg_segment_ptr 1
  .amdhsa_system_sgpr_workgroup_id_x 1
.end_amdhsa_kernel
''' % (name, vgpr, sgpr, vgpr)


def kernels():
    return [
        ('k1_kernel', gen_k1, 256, 640 + 64 * NPA, g96_cfg('k1')[0] * SLOT + 4096, 160),
        ("ko_kernel", gen_ko, 256, 512, 16384, 136),
        ('k2_kernel', gen_k2, 256, 512 + 128 * NP64, g64_cfg('k2')[0] * SL2 + 8192, 96),
        ('k3_kernel', gen_k3, 256 if K3MAP else 240, 640 + 64 * NPA, g96_cfg('k3')[0] * SLOT + 4096 + 16384, 160),
        ('k4_kernel', gen_k4, 256, 512 + 128 * NP64, g64_cfg('k4')[0] * SL2, 104),
    ]


def build(kernels):
    head = ''
    for (n, g, grid, block, lds, v) in kernels:
        head += '; @launch kernel=%s grid=(%d,1,1) block=(%d,1,1) lds=%d\n' % (n, grid, block, lds)
    head += '.amdgcn_target "amdgcn-amd-amdhsa--gfx950"\n.text\n'
    a = Asm()
    for (n, g, grid, block, lds, v) in kernels:
        a.vm_issued = 0
        g(a)
    d = '.section .rodata,"a"\n.p2align 6\n'
    for (n, g, grid, block, lds, v) in kernels:
        d += desc(n, v)
    return head + a.text() + d


if __name__ == '__main__':
    out = sys.argv[1] if len(sys.argv) > 1 else 'cur.s'
    open(out, 'w').write(build(kernels()))
    print('wrote', out)
```

```python
import sys, os
sys.path.insert(0, os.path.dirname(__file__))
from dsl import Asm

MB = 1 << 20
WS_PQ = 0
WS_O = 2 * MB
WS_PART = 4 * MB
PSTR = 2176
WS_ST2 = 6 * MB
WS_H = 7 * MB
WS_R = 9 * MB
WS_SIZE = 16 * MB
L2E = '0x3fb8aa3b'
NL2E = '0xbfb8aa3b'


def env(n, d):
    return int(os.environ.get(n, d))


STAMP = os.environ.get('STAMP')
EPI = os.environ.get('EPI')
PREFETCH = env('PREFETCH', 3)
PF2 = env('PF2', 0)
XP = env('XP', 0)
WS_STAMP = 15 * MB


def vr(b, n):
    return 'v[%d:%d]' % (b, b + n - 1)


def srd(a, s, koff):
    a('s_load_dwordx2 s[%d:%d], s[0:1], %d' % (s, s + 1, koff))


def srd_fin(a, s, size):
    a('s_and_b32 s%d, s%d, 0xffff' % (s + 1, s + 1))
    a('s_mov_b32 s%d, 0x%x' % (s + 2, size))
    a('s_mov_b32 s%d, 0x00020000' % (s + 3))


def bf16r(a, d, s):
    a('v_cvt_pk_bf16_f32 v%d, v%d, v%d' % (d, s, s))
    a('v_lshlrev_b32 v%d, 16, v%d' % (d, d))


def butterfly(a, items):
    for sw in ('v_permlane16_swap_b32', 'v_permlane32_swap_b32'):
        for (op, r, t) in items:
            a('v_mov_b32 v%d, v%d' % (t, r))
        for (op, r, t) in items:
            a('%s v%d, v%d' % (sw, r, t))
        for (op, r, t) in items:
            a('%s v%d, v%d, v%d' % (op, r, r, t))


def stamp(a, i, epi=False):
    if STAMP and (i in (1, 9) or bool(EPI) == epi):
        a('s_memtime s[%d:%d]' % (40 + 2 * i, 41 + 2 * i))


def stamp_real(a, i):
    if STAMP:
        a('s_memrealtime s[%d:%d]' % (40 + 2 * i, 41 + 2 * i))


def stamp_store(a, kidx, n=11, srd=16):
    if not STAMP:
        return
    stamp(a, 9)
    stamp_real(a, 10)
    a('s_waitcnt lgkmcnt(0)')
    a('s_lshl_b32 s38, s2, 3')
    a('s_add_u32 s38, s38, s20')
    a('s_lshl_b32 s38, s38, 6')
    a('s_add_u32 s38, s38, 0x%x' % (WS_STAMP + kidx * 131072))
    a('v_mov_b32 v0, 0')
    for i in range(n):
        a('v_mov_b32 v1, s%d' % (40 + 2 * i))
        a('buffer_store_dword v1, v0, s[%d:%d], s38 offen offset:%d' % (srd, srd + 3, i * 4))


def kernel_head(a, name, nwg):
    a.raw('.globl %s_kernel' % name)
    a.raw('.p2align 8')
    a.raw('.type %s_kernel,@function' % name)
    a.label(name + '_kernel')
    a.kname = name
    a.hist = []
    a('s_cmp_ge_u32 s2, %d' % nwg)
    a('s_cbranch_scc1 %s_exit' % name)
    stamp_real(a, 0)
    stamp(a, 1)


def lane_decomp(a):
    a('v_and_b32 v1, 63, v0')
    a('v_lshrrev_b32 v6, 6, v0')
    a('v_lshrrev_b32 v2, 4, v1')
    a('v_and_b32 v3, 15, v1')
    a('v_readfirstlane_b32 s20, v6')
    a('v_bfe_u32 v4, v1, 2, 2')
    a('v_and_b32 v5, 3, v1')
    a('v_lshlrev_b32 v6, 4, v1')


def l2_prefetch(a, sr, size, parts=32):
    chunk = (size // parts + 127) // 128 * 128
    if parts <= 32:
        a('s_lshr_b32 s31, s2, 3')
        a('s_mul_i32 s31, s31, %d' % chunk)
    else:
        a('s_mul_i32 s31, s2, %d' % chunk)
    n = (chunk + 1023) // 1024
    for i in range(n):
        if i and i % 4 == 0:
            a('s_add_u32 s31, s31, 4096')
        a('buffer_load_dwordx4 %s, v6, s[%d:%d], s31 offen offset:%d' % (vr(64 + 4 * (i % 8), 4), sr, sr + 3, (i % 4) * 1024))


PF3 = env('PF3', 0)


def start_touch(a, sr, size, ncu, reg):
    a('s_lshr_b32 s30, s2, 3')
    a('s_lshl_b32 s30, s30, 3')
    a('s_add_u32 s30, s30, s20')
    a('s_lshl_b32 s30, s30, 10')
    step = ncu * 8 * 1024
    for i in range((size + step - 1) // step):
        if i:
            a('s_add_u32 s30, s30, 0x%x' % step)
        a('buffer_load_dwordx4 %s, v6, s[%d:%d], s30 offen' % (vr(reg, 4), sr, sr + 3))


def line_touch(a, sr, nrows, cbs, reg, pol='', ncu=32):
    per = (nrows + ncu - 1) // ncu
    assert per <= 64
    a('s_cmp_ge_u32 s20, %d' % len(cbs))
    a('s_cbranch_scc1 %s_lt' % a.kname)
    a('s_lshr_b32 s30, s2, 3')
    a('s_mul_i32 s30, s30, %d' % (per * 1024))
    tab = 0
    for i, c in enumerate(cbs):
        tab |= c << (4 * i)
    a('s_lshl_b32 s31, s20, 2')
    a('s_lshr_b32 s31, 0x%x, s31' % tab)
    a('s_and_b32 s31, s31, 7')
    a('s_lshl_b32 s31, s31, 7')
    a('s_add_u32 s30, s30, s31')
    a('v_min_u32 v%d, %d, v1' % (reg + 1, per - 1))
    a('v_lshlrev_b32 v%d, 10, v%d' % (reg + 1, reg + 1))
    a('buffer_load_dword v%d, v%d, s[%d:%d], s30 offen %s' % (reg, reg + 1, sr, sr + 3, pol))
    a.label('%s_lt' % a.kname)


LT = [int(x) for x in os.environ.get('LT', '3').split(',') if x]
LTPOL = os.environ.get('LTPOL', '')


def mk_groups(nk, spec):
    sz = [int(x) for x in spec.split(',')]
    g, i, k = [], 0, 0
    while k < nk:
        n = min(sz[min(i, len(sz) - 1)], nk - k)
        g.append((k, k + n))
        k += n
        i += 1
    return g


def producer_loop(a, nk, ns, lag, per, issue, groups, early=None, late=None):
    grp = {}
    for j, (lo, hi) in enumerate(groups):
        for i in range(lo, hi):
            grp[i] = j
    last = {}
    issued = 0
    ps = STAMP and os.environ.get('PSTAMP') == a.kname
    if ps:
        a('s_memtime s[44:45]')
    for j, (lo, hi) in enumerate(groups):
        while issued < nk:
            i = issued
            lg = min(lag, env('LAG0' + a.kname, lag) + j * env('LAGR', 2))
            ok = (i < ns or grp[i - ns] + 1 <= j - 1) and (i - lo + 1) * per <= 62 and (i < hi or i < lo + lg)
            if not ok:
                break
            last[i] = issue(i)
            issued += 1
        assert issued >= hi, (j, issued, hi)
        if issued == nk and early:
            early()
            early = None
        if ps and j < 3:
            a('s_memtime s[%d:%d]' % (46 + 4 * j, 47 + 4 * j))
        if hi == nk:
            a('s_waitcnt vmcnt(0)')
        else:
            a.wait_vm(last[hi - 1])
        if ps and j < 3:
            a('s_memtime s[%d:%d]' % (48 + 4 * j, 49 + 4 * j))
        a('s_barrier')
    if late:
        late()
    a('s_waitcnt vmcnt(0)')
    if ps:
        a('s_sub_u32 s20, s20, 8')
        stamp_store(a, 5)
    a('s_endpgm')


def softmax_sets(a, sets, PB, TB, FB, LREG):
    def T(s, i): return TB + 12 * s + i
    S = range(sets)
    for s in S:
        p = PB + 4 * s
        a('v_lshlrev_b32 v%d, 16, v%d' % (p, T(s, 2)))
        a('v_and_b32 v%d, 0xffff0000, v%d' % (p + 1, T(s, 2)))
        a('v_lshlrev_b32 v%d, 16, v%d' % (p + 2, T(s, 3)))
        a('v_and_b32 v%d, 0xffff0000, v%d' % (p + 3, T(s, 3)))
    for s in S:
        p = PB + 4 * s
        a('v_max3_f32 v%d, v%d, v%d, v%d' % (T(s, 0), p, p + 1, p + 2))
        a('v_min3_f32 v%d, v%d, v%d, v%d' % (T(s, 1), p, p + 1, p + 2))
        a('v_max_f32 v%d, v%d, v%d' % (T(s, 0), T(s, 0), p + 3))
        a('v_min_f32 v%d, v%d, v%d' % (T(s, 1), T(s, 1), p + 3))
    it = []
    for s in S:
        it += [('v_max_f32', T(s, 0), T(s, 2)), ('v_min_f32', T(s, 1), T(s, 3))]
    butterfly(a, it)
    for s in S:
        a('v_mul_f32 v%d, %s, v%d' % (T(s, 0), NL2E, T(s, 0)))
        a('v_mul_f32 v%d, %s, v%d' % (T(s, 1), L2E, T(s, 1)))
    a('v_mov_b32 v%d, %s' % (LREG, L2E))
    for s in S:
        p = PB + 4 * s
        for r in range(4):
            a('v_fma_f32 v%d, v%d, v%d, v%d' % (T(s, 4 + r), p + r, LREG, T(s, 0)))
            a('v_fma_f32 v%d, -v%d, v%d, v%d' % (T(s, 8 + r), p + r, LREG, T(s, 1)))
    for s in S:
        for r in range(8):
            a('v_exp_f32 v%d, v%d' % (T(s, 4 + r), T(s, 4 + r)))
    for s in S:
        a('v_add_f32 v%d, v%d, v%d' % (T(s, 0), T(s, 4), T(s, 5)))
        a('v_add_f32 v%d, v%d, v%d' % (T(s, 1), T(s, 8), T(s, 9)))
        a('v_add_f32 v%d, v%d, v%d' % (T(s, 2), T(s, 6), T(s, 7)))
        a('v_add_f32 v%d, v%d, v%d' % (T(s, 3), T(s, 10), T(s, 11)))
    for s in S:
        a('v_add_f32 v%d, v%d, v%d' % (T(s, 0), T(s, 0), T(s, 2)))
        a('v_add_f32 v%d, v%d, v%d' % (T(s, 1), T(s, 1), T(s, 3)))
    it = []
    for s in S:
        it += [('v_add_f32', T(s, 0), T(s, 2)), ('v_add_f32', T(s, 1), T(s, 3))]
    butterfly(a, it)
    for s in S:
        a('v_rcp_f32 v%d, v%d' % (T(s, 0), T(s, 0)))
        a('v_rcp_f32 v%d, v%d' % (T(s, 1), T(s, 1)))
    for s in S:
        for r in range(4):
            a('v_mul_f32 v%d, v%d, v%d' % (T(s, 4 + r), T(s, 0), T(s, 4 + r)))
            a('v_mul_f32 v%d, v%d, v%d' % (T(s, 8 + r), T(s, 1), T(s, 8 + r)))
    for s in S:
        for i in range(4):
            a('v_cvt_pk_bf16_f32 v%d, v%d, v%d' % (FB + 4 * s + i, T(s, 4 + 2 * i), T(s, 5 + 2 * i)))


AFB = (48, 56)
BUF = (64, 80)
ACC = 96
RS, GR, CSA = 120, 124, 128
ONES = 16
SLOT = 14336
VW, VC, VA, VP = 8, 11, 40, 43


NPA = env('NPA', 2)


def g96_cfg(mode):
    ns = env('NS1', 11) if mode == 'k1' else env('NS3', 10)
    lag = env('LAG1', 5) if mode == 'k1' else env('LAG3', 5)
    return ns, lag


def g96_groups(mode):
    return mk_groups(16, os.environ.get('GR1', '1,1,2') if mode == 'k1' else os.environ.get('GR3', '1,1,2'))


def gemm96_producers(a, mode, name, wstride, seg_off):
    k1 = mode == 'k1'
    ns, lag = g96_cfg(mode)
    XCH = ns * SLOT
    nt = 8 // NPA
    a.label(name + '_prod')
    a.hist = []
    a('s_cmp_ge_u32 s20, 10')
    a('s_cbranch_scc1 %s_prodA' % name)
    a.vm_issued = 0
    a('s_sub_u32 s35, s20, 8')
    a('s_mul_i32 s31, s35, %d' % (16 * wstride))
    a('s_add_u32 s31, s31, s22')
    a('s_lshl_b32 s32, s35, 10')
    a('v_lshrrev_b32 v7, 2, v1')
    a('v_mul_u32_u24 v7, 0x%x, v7' % wstride)
    a('v_bfe_u32 v15, v1, %d, 1' % (5 if k1 else 4))
    a('v_lshlrev_b32 v15, 1, v15')
    a('v_xor_b32 v15, v15, v5')
    a('v_lshl_add_u32 v7, v15, 4, v7')
    a('v_add_u32 v7, s31, v7')
    if k1:
        a('s_mov_b32 m0, 0x%x' % (XCH + 2048))
        a('s_lshl_b32 s30, s34, 10')
        a('buffer_load_dwordx4 v6, s[12:15], s30 offen lds')
        if PREFETCH:
            srd(a, 64, 24)
            srd(a, 68, 40)
            srd(a, 72, 56)

    def wissue(i):
        for seg in range(3):
            a('s_add_u32 m0, s32, 0x%x' % ((i % ns) * SLOT + seg * 2048))
            a('s_mov_b32 s30, 0x%x' % ((i & 7 if XP & 8 else i) * 32 * wstride + seg * seg_off))
            q = a('buffer_load_dwordx4 v7, s[8:11], s30 offen lds')
        return q

    def after():
        a('s_waitcnt lgkmcnt(0)')
        a('s_cmp_eq_u32 s35, 0')
        a('s_cselect_b32 s68, s72, s68')
        a('s_cselect_b32 s69, s73, s69')
        srd_fin(a, 64, 512 * 1024)
        srd_fin(a, 68, 1376 * 1024)
        l2_prefetch(a, 68, 1376 * 1024, 256)
        a('s_lshl_b32 s31, s2, 11')
        a('s_add_u32 s31, s31, s32')
        a('buffer_load_dwordx4 v[96:99], v6, s[64:67], s31 offen')
        a('s_barrier')
        a('s_barrier')

    def bias():
        a('s_mov_b32 m0, 0x%x' % (XCH + 2048))
        a('buffer_load_dwordx4 v6, s[12:15], s22 offen lds')
    producer_loop(a, 16, ns, lag, 3, wissue, g96_groups(mode), None if k1 else bias, after if (k1 and PREFETCH) else None)
    a.label(name + '_prodA')
    a.hist = []
    a.vm_issued = 0
    a('s_sub_u32 s31, s20, 10')
    a('s_mul_i32 s32, s31, %d' % (nt * 1024))
    a('s_mul_i32 s31, s31, %d' % (nt * 16))
    a('s_add_u32 s31, s31, s21')
    a('s_lshl_b32 s31, s31, 10')
    if k1:
        a('v_lshlrev_b32 v15, 1, v2')
        a('v_mov_b32 v14, 0x78')
        a('v_lshrrev_b32 v15, v15, v14')
        a('v_and_b32 v15, 3, v15')
        a('v_xor_b32 v15, v15, v5')
        a('v_lshrrev_b32 v7, 2, v1')
        a('v_lshlrev_b32 v7, 10, v7')
        a('v_lshl_add_u32 v7, v15, 4, v7')
        a('v_add_u32 v7, s31, v7')
    else:
        a('v_add_u32 v7, s31, v6')

    def aissue(i):
        for rt in range(nt):
            a('s_add_u32 m0, s32, 0x%x' % ((i % ns) * SLOT + 6144 + rt * 1024))
            a('s_mov_b32 s30, 0x%x' % (rt * 16384 + (i & 7 if XP & 16 else i) * (64 if k1 else 1024)))
            q = a('buffer_load_dwordx4 v7, s[4:7], s30 offen lds')
        return q

    def st2():
        a('s_lshr_b32 s31, s31, 3')
        a('s_add_u32 s31, s31, 0x%x' % WS_ST2)
        a('s_lshl_b32 s32, s32, 1')
        for j in range(2 * nt):
            a('s_add_u32 m0, s32, 0x%x' % (XCH + 4096 + j * 1024))
            a('s_add_u32 s30, s31, 0x%x' % (j * 1024))
            a('buffer_load_dwordx4 v6, s[16:19], s30 offen lds')
    producer_loop(a, 16, ns, lag, nt, aissue, g96_groups(mode), None if k1 else st2)


def gemm96_main(a, mode, extra_loads, late_loads=None):
    k1 = mode == 'k1'
    ns, lag = g96_cfg(mode)
    XCH = ns * SLOT
    BPOS = env('BPOS', 3)
    gstart = set(lo for (lo, hi) in g96_groups(mode))
    a('s_lshl_b32 s23, s20, 4')
    a('s_add_u32 s24, s21, s23')
    a('s_xor_b32 s37, s24, 16')
    a('s_and_b32 s36, s20, 1')
    extra_loads(a)
    a('v_lshl_add_u32 v8, v2, %d, v4' % (3 if k1 else 2))
    a('v_lshlrev_b32 v8, 6, v8')
    a('v_lshl_add_u32 v8, v5, 3, v8')
    a('v_and_b32 v15, 1, v2')
    a('v_lshlrev_b32 v15, 5, v15')
    a('s_sub_u32 s26, s20, 6')
    a('s_cmp_lt_u32 s20, 6')
    a('s_cselect_b32 s26, s20, s26')
    a('s_lshr_b32 s27, s26, 1')
    a('s_lshl_b32 s27, s27, 11')
    a('s_lshl_b32 s28, s36, 5')
    a('v_xor_b32 v15, s28, v15')
    a('v_add_u32 v%d, v8, v15' % VW)
    a('v_add_u32 v%d, s27, v%d' % (VC, VW))
    a('s_lshl_b32 s35, s20, 10')
    a('s_add_u32 s35, s35, 6144')
    if k1:
        a('v_lshlrev_b32 v15, 1, v4')
        a('v_mov_b32 v14, 0x78')
        a('v_lshrrev_b32 v15, v15, v14')
        a('v_and_b32 v15, 3, v15')
        a('v_xor_b32 v15, v15, v2')
        a('v_lshlrev_b32 v15, 4, v15')
        a('v_lshl_add_u32 v15, v3, 6, v15')
        a('v_add_u32 v%d, s35, v15' % VA)
    else:
        a('v_add_u32 v%d, s35, v6' % VA)
    a('v_xor_b32 v%d, 0x400, v%d' % (VP, VA))
    nb = (ns + 3) // 4
    for b in range(1, nb):
        for r in (VW, VC, VA, VP):
            a('v_add_u32 v%d, 0x%x, v%d' % (r + b, b * 4 * SLOT, r))
    for i in range(4):
        a('v_mov_b32 v%d, 0x3f803f80' % (ONES + i))
    eoff = 256 if k1 else 1024

    def reads(ks):
        if XP & 2:
            return
        b = BUF[ks & 1]
        af = AFB[ks & 1]
        sl = ks % ns
        bk, so = sl // 4, (sl % 4) * SLOT
        a('ds_read_b128 %s, v%d offset:%d' % (vr(af, 4), VA + bk, so))
        a('ds_read_b128 %s, v%d offset:%d' % (vr(af + 4, 4), VP + bk, so))
        for seg in range(3):
            for e in range(2):
                a('ds_read_b64_tr_b16 %s, v%d offset:%d' % (vr(b + 4 * seg + 2 * e, 2), VW + bk, so + seg * 2048 + e * eoff))
        for e in range(2):
            if XP & 1:
                continue
            a('ds_read_b64_tr_b16 %s, v%d offset:%d' % (vr(b + 12 + 2 * e, 2), VC + bk, so + e * eoff))

    stamp(a, 2)
    a('s_barrier')
    stamp(a, 3)
    reads(0)
    for ks in range(16):
        b = BUF[ks & 1]
        af = AFB[ks & 1]

        def cop(r):
            return '0' if ks == 0 else vr(r, 4)
        mf = []
        for p in range(2):
            for seg in range(3):
                ac = ACC + 4 * (3 * p + seg)
                mf.append('v_mfma_f32_16x16x32_bf16 %s, %s, %s, %s' % (vr(ac, 4), vr(b + 4 * seg, 4), vr(af + 4 * p, 4), cop(ac)))
        mf.append('v_mfma_f32_16x16x32_bf16 %s, %s, %s, %s' % (vr(CSA, 4), vr(b + 12, 4), vr(ONES, 4), cop(CSA)))
        if k1:
            mf.append('v_mfma_f32_16x16x32_bf16 %s, %s, %s, %s' % (vr(RS, 4), vr(ONES, 4), vr(af, 4), cop(RS)))
            mf.append('v_mfma_f32_16x16x32_bf16 %s, %s, %s, %s' % (vr(GR, 4), vr(af, 4), vr(af, 4), cop(GR)))
        if XP & 4:
            mf = []
        a('s_waitcnt lgkmcnt(0)')
        for m in mf[:BPOS]:
            a(m)
        if ks + 1 < 16:
            if ks + 1 in gstart:
                a('s_barrier')
            if (ks + 1) % 4 == 0:
                stamp(a, 3 + (ks + 1) // 4)
            reads(ks + 1)
        if late_loads and ks == 14:
            late_loads(a)
        for m in mf[BPOS:]:
            a(m)
    stamp(a, 7)
    stamp(a, 2, True)
    a('v_lshlrev_b32 v15, 4, v2')
    a('s_lshl_b32 s27, s26, 6')
    a('s_add_u32 s27, s27, 0x%x' % XCH)
    a('v_add_u32 v14, s27, v15')
    a('ds_write_b128 v14, %s' % vr(CSA, 4))

    def finish_stats(SUM, SQ, M, RD):
        a('v_mul_f32 v%d, 0x3b000000, v%d' % (SUM, SUM))
        a('v_mul_f32 v%d, 0x3b000000, v%d' % (SQ, SQ))
        a('v_fma_f32 v%d, -v%d, v%d, v%d' % (SQ, SUM, SUM, SQ))
        a('v_max_f32 v%d, 0, v%d' % (SQ, SQ))
        bf16r(a, M, SUM)
        bf16r(a, SQ, SQ)
        a('v_add_f32 v%d, 0x3727c5ac, v%d' % (SQ, SQ))
        bf16r(a, SQ, SQ)
        a('v_sqrt_f32 v%d, v%d' % (SQ, SQ))
        bf16r(a, SQ, SQ)
        a('v_rcp_f32 v%d, v%d' % (RD, SQ))

    if k1:
        SUM, SQ = 48, 49
        a('v_cmp_eq_u32 vcc, 1, v5')
        a('v_cndmask_b32 v%d, v%d, v%d, vcc' % (SQ, GR, GR + 1))
        a('v_cmp_eq_u32 vcc, 2, v5')
        a('v_cndmask_b32 v%d, v%d, v%d, vcc' % (SQ, SQ, GR + 2))
        a('v_cmp_eq_u32 vcc, 3, v5')
        a('v_cndmask_b32 v%d, v%d, v%d, vcc' % (SQ, SQ, GR + 3))
        a('v_cmp_eq_u32 vcc, v2, v4')
        a('v_cndmask_b32 v%d, 0, v%d, vcc' % (SQ, SQ))
        a('v_mov_b32 v%d, v%d' % (SUM, RS))
        butterfly(a, [('v_add_f32', SQ, 52)])
        finish_stats(SUM, SQ, 36, 37)
        a('s_lshl_b32 s27, s20, 7')
        a('s_add_u32 s27, s27, 0x%x' % (XCH + 512))
        a('v_lshlrev_b32 v50, 3, v3')
        a('v_add_u32 v51, s27, v50')
        a('ds_write_b64 v51, v[36:37]')
        a('v_xor_b32 v51, 0x80, v51')
    else:
        for p in range(2):
            b = 144 + 8 * p
            a('v_add_f32 v%d, v%d, v%d' % (48 + 2 * p, b, b + 2))
            a('v_add_f32 v%d, v%d, v%d' % (49 + 2 * p, b + 1, b + 3))
            a('v_add_f32 v%d, v%d, v%d' % (52 + 2 * p, b + 4, b + 6))
            a('v_add_f32 v%d, v%d, v%d' % (53 + 2 * p, b + 5, b + 7))
        for i in range(4):
            a('v_add_f32 v%d, v%d, v%d' % (48 + i, 48 + i, 52 + i))
        butterfly(a, [('v_add_f32', 48, 52), ('v_add_f32', 49, 53), ('v_add_f32', 50, 54), ('v_add_f32', 51, 55)])
        finish_stats(48, 49, 36, 37)
        finish_stats(50, 51, 38, 39)
    a('s_lshl_b32 s27, s36, 6')
    a('s_add_u32 s27, s27, 0x%x' % XCH)
    a('v_add_u32 v15, s27, v15')
    a('s_waitcnt lgkmcnt(0)')
    a('s_barrier')
    stamp(a, 3, True)
    if k1:
        a('ds_read_b64 v[38:39], v51')
    for seg in range(3):
        a('ds_read_b128 %s, v15 offset:%d' % (vr(132 + 4 * seg, 4), seg * 128))
    if not k1:
        return
    for p in range(2):
        for seg in range(3):
            if p == 0:
                a('s_waitcnt lgkmcnt(%d)' % (2 - seg))
            ac = ACC + 4 * (3 * p + seg)
            for r in range(4):
                a('v_fma_f32 v%d, -v%d, v%d, v%d' % (ac + r, 36 + 2 * p, 132 + 4 * seg + r, ac + r))
            for r in range(4):
                a('v_mul_f32 v%d, v%d, v%d' % (ac + r, 37 + 2 * p, ac + r))


def gen_k1(a):
    kernel_head(a, 'k1', 256)
    ns, lag = g96_cfg('k1')
    XCH = ns * SLOT
    srd(a, 4, 0)
    srd(a, 8, 8)
    srd(a, 12, 16)
    srd(a, 16, 88)
    lane_decomp(a)
    a('s_and_b32 s30, s2, 7')
    a('s_lshr_b32 s31, s2, 3')
    K1MAP = env('K1MAP', 0)
    if K1MAP:
        a('s_lshl_b32 s21, s30, 1')
        a('s_and_b32 s22, s31, 1')
        a('s_add_u32 s33, s21, s22')
        a('s_lshr_b32 s34, s31, 1')
    else:
        a('s_lshr_b32 s21, s30, 1')
        a('s_lshl_b32 s21, s21, 2')
        a('s_and_b32 s22, s31, 3')
        a('s_add_u32 s33, s21, s22')
        a('s_and_b32 s21, s30, 1')
        a('s_lshl_b32 s21, s21, 3')
        a('s_lshr_b32 s22, s31, 2')
        a('s_add_u32 s34, s21, s22')
    a('s_lshl_b32 s21, s33, 7')
    a('s_lshl_b32 s22, s34, 6')
    a('s_waitcnt lgkmcnt(0)')
    srd_fin(a, 4, 2048 * 1024)
    srd_fin(a, 8, 512 * 3072)
    srd_fin(a, 12, 16384)
    srd_fin(a, 16, WS_SIZE)
    a('s_cmp_ge_u32 s20, 8')
    a('s_cbranch_scc1 k1_prod')

    def extra(a):
        if PREFETCH == 4:
            Q0 = env('PFQ0', 1)
            a('s_and_b32 s31, s20, 3')
            a('s_cmp_lt_u32 s31, %d' % Q0)
            a('s_cbranch_scc1 k1_pfd')
            a('s_lshr_b32 s30, s2, 3')
            PFD = env('PFD', 8)
            for q in range(Q0 + 1, 4):
                a('s_cmp_lt_u32 s31, %d' % q)
                a('s_cbranch_scc1 k1_pfs')
                a('s_sleep %d' % PFD)
            a.label('k1_pfs')
            a('s_cmp_ge_u32 s20, 4')
            a('s_cbranch_scc1 k1_pfw')
            a('s_lshl_b32 s30, s30, 14')
            a('s_lshl_b32 s31, s31, 8')
            a('s_add_u32 s30, s30, s31')
            a('s_lshr_b32 s31, s33, 2')
            a('s_lshl_b32 s31, s31, 19')
            a('s_add_u32 s30, s30, s31')
            a('v_bfe_u32 v15, v1, 1, 4')
            a('v_and_b32 v23, 1, v1')
            a('v_lshlrev_b32 v23, 7, v23')
            a('v_lshl_add_u32 v15, v15, 10, v23')
            a('buffer_load_dword v156, v15, s[4:7], s30 offen')
            a('s_branch k1_pfd')
            a.label('k1_pfw')
            a('s_lshl_b32 s31, s31, 5')
            a('s_add_u32 s30, s30, s31')
            a('s_mul_i32 s30, s30, %d' % (4 * 3072))
            a('s_lshr_b32 s31, s34, 3')
            a('s_lshl_b32 s31, s31, 9')
            a('s_add_u32 s30, s30, s31')
            a('v_min_u32 v15, 47, v1')
            a('v_and_b32 v23, 3, v15')
            a('v_lshrrev_b32 v15, 2, v15')
            a('v_lshlrev_b32 v23, 7, v23')
            a('v_lshl_add_u32 v15, v15, 10, v23')
            a('buffer_load_dword v156, v15, s[8:11], s30 offen')
            a.label('k1_pfd')
        if PREFETCH == 5:
            a('s_lshr_b32 s30, s2, 3')
            a('s_lshl_b32 s30, s30, 3')
            a('s_add_u32 s30, s30, s20')
            a('s_mul_i32 s31, s30, 6144')
            a('s_lshl_b32 s30, s30, 10')
            a('s_and_b32 s23, s2, 7')
            a('s_lshl_b32 s23, s23, 18')
            a('s_add_u32 s30, s30, s23')
            a('buffer_load_dwordx4 v[156:159], v6, s[4:7], s30 offen')
            for i in range(6):
                if i == 4:
                    a('s_add_u32 s31, s31, 4096')
                a('buffer_load_dwordx4 v[156:159], v6, s[8:11], s31 offen offset:%d' % ((i & 3) * 1024))
        if PREFETCH == 3:
            a('s_lshr_b32 s30, s2, 3')
            a('s_lshl_b32 s30, s30, 2')
            a('s_and_b32 s31, s20, 3')
            a('s_add_u32 s30, s30, s31')
            a('s_cmp_ge_u32 s20, 4')
            a('s_cbranch_scc1 k1_pfw')
            a('s_lshr_b32 s31, s33, 2')
            a('s_lshl_b32 s31, s31, 19')
            a('s_lshl_b32 s30, s30, 12')
            a('s_add_u32 s30, s30, s31')
            for i in range(4):
                a('buffer_load_dwordx4 v[156:159], v6, s[4:7], s30 offen offset:%d' % (i * 1024))
            a('s_branch k1_pfd')
            a.label('k1_pfw')
            a('s_mul_i32 s30, s30, %d' % (4 * 3072))
            a('s_lshr_b32 s31, s34, 3')
            a('s_lshl_b32 s31, s31, 9')
            a('s_add_u32 s30, s30, s31')
            a('v_lshrrev_b32 v15, 5, v1')
            a('v_and_b32 v23, 31, v1')
            a('v_lshlrev_b32 v23, 4, v23')
            a('v_lshl_add_u32 v15, v15, 10, v23')
            for i in range(6):
                if i == 2:
                    a('s_add_u32 s30, s30, 4096')
                if i == 4:
                    a('s_add_u32 s30, s30, 4096')
                a('buffer_load_dwordx4 v[156:159], v15, s[8:11], s30 offen offset:%d' % ((i & 1) * 2048))
            a.label('k1_pfd')
        if PREFETCH == 2:
            a('s_lshl_b32 s30, s2, 2')
            a('s_and_b32 s31, s20, 3')
            a('s_add_u32 s30, s30, s31')
            a('s_cmp_ge_u32 s20, 4')
            a('s_cbranch_scc1 k1_pfw')
            a('v_lshrrev_b32 v15, 5, v1')
            a('v_and_b32 v23, 31, v1')
            a('v_lshlrev_b32 v23, 4, v23')
            a('v_lshl_add_u32 v15, v15, 10, v23')
            a('s_lshl_b32 s30, s30, 11')
            a('buffer_load_dwordx4 v[156:159], v15, s[4:7], s30 offen offset:512')
            a('s_branch k1_pfd')
            a.label('k1_pfw')
            a('s_mul_i32 s30, s30, 768')
            a('s_add_u32 s30, s30, 0x%x' % (256 * 3072))
            a('buffer_load_dwordx4 v[156:159], v6, s[8:11], s30 offen')
            a.label('k1_pfd')
        a('v_lshlrev_b32 v15, 2, v2')
        a('v_sub_u32 v15, v3, v15')
        a('v_mov_b32 v23, 0x3f80')
        a('v_mov_b32 v24, 0x3f800000')
        a('v_cmp_eq_u32 vcc, 0, v15')
        a('v_cndmask_b32 v20, 0, v23, vcc')
        a('v_cmp_eq_u32 vcc, 1, v15')
        a('v_cndmask_b32 v21, 0, v24, vcc')
        a('v_or_b32 v20, v20, v21')
        a('v_cmp_eq_u32 vcc, 2, v15')
        a('v_cndmask_b32 v21, 0, v23, vcc')
        a('v_cmp_eq_u32 vcc, 3, v15')
        a('v_cndmask_b32 v25, 0, v24, vcc')
        a('v_or_b32 v21, v21, v25')
        a('v_lshl_add_u32 v22, v2, 2, v4')
        a('v_lshlrev_b32 v22, 5, v22')
        a('v_lshl_add_u32 v22, v5, 3, v22')
        a('s_lshl_b32 s30, s36, 9')
        a('s_add_u32 s30, s30, 0x%x' % (XCH + 2048))
        a('v_add_u32 v22, s30, v22')
        a('v_lshlrev_b32 v23, 3, v1')

    gemm96_main(a, 'k1', extra)
    stamp(a, 8)
    stamp(a, 4, True)
    a('ds_read_b64_tr_b16 v[26:27], v22')
    PK = 144
    for t in range(6):
        a('v_cvt_pk_bf16_f32 v%d, v%d, v%d' % (PK + 2 * t, ACC + 4 * t, ACC + 4 * t + 1))
        a('v_cvt_pk_bf16_f32 v%d, v%d, v%d' % (PK + 1 + 2 * t, ACC + 4 * t + 2, ACC + 4 * t + 3))
    a('s_waitcnt lgkmcnt(0)')
    PB = 48
    for s in range(4):
        src = PK + 2 * (3 * (s & 1) + (1 - (s >> 1)))
        a('v_mfma_f32_16x16x16_bf16 %s, v[26:27], %s, 0' % (vr(PB + 4 * s, 4), vr(src, 2)))
    TV = 64
    for p in range(2):
        a('v_mfma_f32_16x16x16_bf16 %s, %s, v[20:21], 0' % (vr(TV + 4 * p, 4), vr(PK + 2 * (3 * p + 2), 2)))
    TB = 72
    for s in range(4):
        p = PB + 4 * s
        a('v_cvt_pk_bf16_f32 v%d, v%d, v%d' % (TB + 12 * s + 2, p, p + 1))
        a('v_cvt_pk_bf16_f32 v%d, v%d, v%d' % (TB + 12 * s + 3, p + 2, p + 3))
    a('s_lshl_b32 s31, s34, 10')
    a('s_lshl_b32 s27, s36, 9')
    a('s_add_u32 s31, s31, s27')
    for p in range(2):
        a('s_lshl_b32 s30, s%d, 10' % (24 if p == 0 else 37))
        a('s_add_u32 s30, s30, s31')
        a('buffer_store_dwordx2 %s, v23, s[16:19], s30 offen' % (vr(TB + 12 * (2 + p) + 2, 2)))
    FB = 120
    softmax_sets(a, 2, PB, TB, FB, 28)
    stamp(a, 7, True)
    for p in range(2):
        for pm in range(2):
            a('v_mfma_f32_16x16x16_bf16 %s, %s, v[20:21], 0' % (vr(72 + 4 * (2 * p + pm), 4), vr(FB + 4 * p + 2 * pm, 2)))
    for p in range(2):
        a('v_cvt_pk_bf16_f32 v%d, v%d, v%d' % (88 + 2 * p, TV + 4 * p, TV + 4 * p + 1))
        a('v_cvt_pk_bf16_f32 v%d, v%d, v%d' % (89 + 2 * p, TV + 4 * p + 2, TV + 4 * p + 3))
    for i in range(4):
        a('v_cvt_pk_bf16_f32 v%d, v%d, v%d' % (92 + 2 * i, 72 + 4 * i, 73 + 4 * i))
        a('v_cvt_pk_bf16_f32 v%d, v%d, v%d' % (93 + 2 * i, 74 + 4 * i, 75 + 4 * i))
    RB = 128
    for p in range(2):
        for pm in range(2):
            r1, r2 = RB + 4 * pm, RB + 4 * (2 + pm)
            a('v_mfma_f32_16x16x16_bf16 %s, %s, %s, %s' % (vr(r1, 4), vr(92 + 2 * (2 * p + pm), 2), vr(88 + 2 * p, 2), '0' if p == 0 else vr(r1, 4)))
            a('v_mfma_f32_16x16x16_bf16 %s, %s, v[16:17], %s' % (vr(r2, 4), vr(92 + 2 * (2 * p + pm), 2), '0' if p == 0 else vr(r2, 4)))
    a('s_lshl_b32 s30, s20, 12')
    a('v_add_u32 v23, s30, v6')
    for i in range(4):
        a('ds_write_b128 v23, %s offset:%d' % (vr(RB + 4 * i, 4), i * 1024))
    a('v_lshlrev_b32 v24, 4, v0')
    a('s_lshl_b32 s30, s33, 5')
    a('s_lshl_b32 s31, s34, 1')
    a('s_add_u32 s30, s30, s31')
    a('s_lshr_b32 s31, s20, 2')
    a('s_add_u32 s30, s30, s31')
    a('s_mul_i32 s30, s30, %d' % PSTR)
    a('s_add_u32 s30, s30, 0x%x' % WS_PART)
    a('s_and_b32 s31, s20, 3')
    a('s_lshl_b32 s27, s31, 10')
    a('s_lshl_b32 s28, s31, 6')
    a('s_add_u32 s28, s28, %d' % (2048 - 128))
    a('s_cmp_lt_u32 s31, 2')
    a('s_cselect_b32 s27, s27, s28')
    a('s_cselect_b64 s[28:29], -1, 0')
    a('s_add_u32 s30, s30, s27')
    a('v_lshlrev_b32 v25, 4, v2')
    a('v_cndmask_b32 v25, v25, v6, s[28:29]')
    a('s_mov_b32 s26, 0x00010001')
    a('s_mov_b32 s27, 0x00010001')
    a('s_or_b64 s[28:29], s[28:29], s[26:27]')
    a('s_waitcnt lgkmcnt(0)')
    a('s_barrier')
    stamp(a, 8, True)
    for m in range(4):
        a('ds_read_b128 %s, v24 offset:%d' % (vr(48 + 4 * m, 4), m * 8192))
    for m in range(1, 4):
        a('s_waitcnt lgkmcnt(%d)' % (3 - m))
        for r in range(4):
            a('v_add_f32 v%d, v%d, v%d' % (48 + r, 48 + r, 48 + 4 * m + r))
    a('s_mov_b64 exec, s[28:29]')
    a('buffer_store_dwordx4 v[48:51], v25, s[16:19], s30 offen')
    stamp_store(a, 0)
    a.label('k1_exit')
    a('s_endpgm')
    gemm96_producers(a, 'k1', 'k1', 3072, 1024)


def gen_ko(a):
    kernel_head(a, 'ko', 256)
    srd(a, 16, 88)
    KOPF = env('KOPF', 0)
    if KOPF:
        srd(a, 64, 24)
        srd(a, 68, 40)
        srd(a, 72, 56)
    lane_decomp(a)
    a('s_and_b32 s30, s2, 7')
    a('s_lshr_b32 s31, s2, 3')
    a('s_and_b32 s21, s30, 1')
    a('s_lshl_b32 s21, s21, 4')
    a('s_and_b32 s22, s31, 15')
    a('s_add_u32 s21, s21, s22')
    a('s_lshr_b32 s22, s30, 1')
    a('s_lshl_b32 s22, s22, 1')
    a('s_lshr_b32 s23, s31, 4')
    a('s_add_u32 s22, s22, s23')
    a('s_lshl_b32 s22, s22, 3')
    a('s_add_u32 s22, s22, s20')
    a('s_lshl_b32 s22, s22, 15')
    a('s_lshl_b32 s23, s21, 9')
    a('s_add_u32 s22, s22, s23')
    a('s_add_u32 s23, s22, 16384')
    a('v_lshlrev_b32 v7, 3, v1')
    a('s_lshr_b32 s24, s20, 1')
    a('s_lshl_b32 s24, s24, 7')
    a('s_add_u32 s24, s24, s21')
    a('s_mul_i32 s24, s24, %d' % PSTR)
    a('s_add_u32 s24, s24, 0x%x' % WS_PART)
    a('s_and_b32 s25, s20, 1')
    a('s_lshl_b32 s26, s25, 10')
    a('s_lshl_b32 s27, s25, 6')
    a('s_add_u32 s26, s26, s24')
    a('s_add_u32 s27, s27, s24')
    a('s_add_u32 s27, s27, 2048')
    a('v_lshlrev_b32 v8, 4, v2')
    a('s_waitcnt lgkmcnt(0)')
    srd_fin(a, 16, WS_SIZE)
    PB, TB, FB = 16, 24, 48
    q_p = []
    for s in range(2):
        q_p.append(a('buffer_load_dwordx2 %s, v7, s[16:19], s%d offen' % (vr(TB + 12 * s + 2, 2), 22 + s)))
    KV, ZZ = 64, 80
    for j in range(4):
        a('buffer_load_dwordx4 %s, v6, s[16:19], s26 offen' % vr(KV + 4 * j, 4))
        q_l = a('buffer_load_dwordx4 %s, v8, s[16:19], s27 offen' % vr(ZZ + 4 * j, 4))
        if j < 3:
            a('s_add_u32 s26, s26, %d' % (32 * PSTR))
            a('s_add_u32 s27, s27, %d' % (32 * PSTR))
    if KOPF & 1:
        srd_fin(a, 64, 512 * 1024)
        start_touch(a, 64, 512 * 1024, 32, 128)
    if KOPF & 2:
        srd_fin(a, 68, 1376 * 1024)
        start_touch(a, 68, 1376 * 1024, 32, 128)
    if KOPF & 4:
        srd_fin(a, 72, 1376 * 1024)
        start_touch(a, 72, 1376 * 1024, 32, 128)
    a('s_lshl_b32 s30, s20, 11')
    a('v_add_u32 v9, s30, v6')
    stamp(a, 2)
    a.wait_vm(q_p[1])
    stamp(a, 3)
    softmax_sets(a, 2, PB, TB, FB, 10)
    stamp(a, 4)
    a.wait_vm(q_l)
    stamp(a, 5)
    for B in (KV, ZZ):
        for r in range(4):
            a('v_add_f32 v%d, v%d, v%d' % (B + r, B + r, B + 4 + r))
            a('v_add_f32 v%d, v%d, v%d' % (B + 8 + r, B + 8 + r, B + 12 + r))
        for r in range(4):
            a('v_add_f32 v%d, v%d, v%d' % (B + r, B + r, B + 8 + r))
    a('ds_write_b128 v9, %s' % vr(KV, 4))
    a('ds_write_b128 v9, %s offset:1024' % vr(ZZ, 4))
    a('s_waitcnt lgkmcnt(0)')
    a('s_barrier')
    stamp(a, 6)
    RD = 64
    for t in range(2):
        for kz in range(2):
            for qd in range(4):
                a('ds_read_b128 %s, v6 offset:%d' % (vr(RD + 4 * (8 * t + 4 * kz + qd), 4), (2 * qd + t) * 2048 + kz * 1024))
    OPA = 56
    for t in range(2):
        for kz in range(2):
            i = 2 * t + kz
            B = RD + 16 * i
            a('s_waitcnt lgkmcnt(%d)' % (12 - 4 * i))
            for r in range(4):
                a('v_add_f32 v%d, v%d, v%d' % (B + r, B + r, B + 4 + r))
                a('v_add_f32 v%d, v%d, v%d' % (B + 8 + r, B + 8 + r, B + 12 + r))
            for r in range(4):
                a('v_add_f32 v%d, v%d, v%d' % (B + r, B + r, B + 8 + r))
            a('v_cvt_pk_bf16_f32 v%d, v%d, v%d' % (OPA + 4 * kz + 2 * t, B, B + 1))
            a('v_cvt_pk_bf16_f32 v%d, v%d, v%d' % (OPA + 4 * kz + 2 * t + 1, B + 2, B + 3))
    ND = 64
    for s in range(2):
        a('v_mfma_f32_16x16x32_bf16 %s, %s, %s, 0' % (vr(ND + 8 * s, 4), vr(OPA, 4), vr(FB + 4 * s, 4)))
        a('v_mfma_f32_16x16x32_bf16 %s, %s, %s, 0' % (vr(ND + 8 * s + 4, 4), vr(OPA + 4, 4), vr(FB + 4 * s, 4)))
    stamp(a, 7)
    a('s_add_u32 s22, s22, 0x%x' % WS_O)
    a('s_add_u32 s23, s23, 0x%x' % WS_O)
    for s in range(2):
        n = ND + 8 * s
        d = n + 4
        T = 16 + 8 * s
        a('v_cvt_pk_bf16_f32 v%d, v%d, v%d' % (T, d, d))
        a('v_cvt_pk_bf16_f32 v%d, v%d, v%d' % (T + 1, n, n + 1))
        a('v_cvt_pk_bf16_f32 v%d, v%d, v%d' % (T + 2, n + 2, n + 3))
        a('v_lshlrev_b32 v%d, 16, v%d' % (T, T))
        a('v_add_f32 v%d, 0x358637bd, v%d' % (T, T))
        a('v_cvt_pk_bf16_f32 v%d, v%d, v%d' % (T, T, T))
        a('v_lshlrev_b32 v%d, 16, v%d' % (T, T))
        a('v_rcp_f32 v%d, v%d' % (T, T))
        a('v_lshlrev_b32 v%d, 16, v%d' % (T + 3, T + 1))
        a('v_and_b32 v%d, 0xffff0000, v%d' % (T + 4, T + 1))
        a('v_lshlrev_b32 v%d, 16, v%d' % (T + 5, T + 2))
        a('v_and_b32 v%d, 0xffff0000, v%d' % (T + 6, T + 2))
        for i in range(4):
            a('v_mul_f32 v%d, v%d, v%d' % (T + 3 + i, T, T + 3 + i))
        a('v_cvt_pk_bf16_f32 v%d, v%d, v%d' % (T, T + 3, T + 4))
        a('v_cvt_pk_bf16_f32 v%d, v%d, v%d' % (T + 1, T + 5, T + 6))
        a('buffer_store_dwordx2 %s, v7, s[16:19], s%d offen' % (vr(T, 2), 22 + s))
    stamp(a, 8)
    stamp_store(a, 1)
    a.label('ko_exit')
    a('s_endpgm')


SL2 = 16384


def g64_cfg(mode):
    ns = env('NS2', 8) if mode == 'k2' else env('NS4', 8)
    lag = env('LAG2', 5) if mode == 'k2' else env('LAG4', 5)
    return ns, lag


def g64_groups(mode, nsl):
    return mk_groups(nsl, os.environ.get('GR2', '1') if mode == 'k2' else os.environ.get('GR4', '1'))


def g64_map(a):
    a('s_and_b32 s30, s2, 7')
    a('s_lshr_b32 s31, s2, 3')
    a('s_lshl_b32 s21, s30, 2')
    a('s_and_b32 s22, s31, 3')
    a('s_add_u32 s21, s21, s22')
    a('s_lshr_b32 s22, s31, 2')
    a('s_lshl_b32 s21, s21, 2')
    a('s_lshl_b32 s22, s22, 7')


NP64 = env('NP64', 2)


def gemm64_producers(a, mode, nks, atile, abase):
    name = mode
    ns, lag = g64_cfg(mode)
    nsl = (nks + 1) // 2
    np_ = NP64
    a.label(name + '_prod')
    a.hist = []
    a('s_cmp_ge_u32 s20, %d' % (8 + np_))
    a('s_cbranch_scc1 %s_prodA' % name)
    a.vm_issued = 0
    a('s_sub_u32 s35, s20, 8')
    a('s_lshl_b32 s32, s35, 10')
    a('s_lshl_b32 s31, s35, 13')
    a('s_add_u32 s31, s31, s22')
    a('v_lshrrev_b32 v8, 3, v1')
    a('v_bfe_u32 v9, v1, 1, 2')
    if mode == 'k2':
        a('v_bfe_u32 v10, v1, 4, 2')
        a('v_xor_b32 v9, v9, v10')
    else:
        assert np_ == 2
        a('v_bfe_u32 v10, v1, 4, 1')
        a('v_xor_b32 v9, v9, v10')
        a('s_lshl_b32 s30, s35, 1')
        a('v_xor_b32 v9, s30, v9')
    a('v_and_b32 v10, 1, v1')
    a('v_lshlrev_b32 v10, 4, v10')
    a('v_lshl_add_u32 v9, v9, 5, v10')
    a('v_lshl_add_u32 v8, v8, 10, v9')
    a('v_add_u32 v8, s31, v8')

    def xtile():
        a('v_lshrrev_b32 v9, 3, v1')
        a('v_and_b32 v10, 7, v1')
        a('v_lshlrev_b32 v10, 4, v10')
        a('v_lshl_add_u32 v9, v9, 10, v10')
        a('s_lshl_b32 s30, s21, 14')
        a('s_add_u32 s31, s31, s30')
        for j in range(0, 8, np_):
            a('s_add_u32 m0, s32, 0x%x' % (ns * SL2 + j * 1024))
            a('s_add_u32 s30, s31, 0x%x' % (j * 8192))
            a('buffer_load_dwordx4 v9, s[4:7], s30 offen lds')

    def wissue(i):
        n = 8 if 2 * i + 1 < nks else 4
        for j in range(0, n, np_):
            a('s_add_u32 m0, s32, 0x%x' % ((i % ns) * SL2 + j * 1024))
            a('s_mov_b32 s30, 0x%x' % (((i % 11 if XP & 8 else i) * 64 + 8 * j) * 1024))
            q = a('buffer_load_dwordx4 v8, s[8:11], s30 offen lds')
        return q
    producer_loop(a, nsl, ns, lag, 8 // np_, wissue, g64_groups(mode, nsl), xtile if mode == 'k2' else None)
    a.label(name + '_prodA')
    a.hist = []
    a.vm_issued = 0
    nt = 4 // np_
    a('s_sub_u32 s35, s20, %d' % (8 + np_))
    a('s_mul_i32 s32, s35, %d' % (nt * 2048))
    a('s_mul_i32 s35, s35, %d' % nt)
    a('s_add_u32 s35, s35, s21')
    a('s_mul_i32 s31, s35, %d' % atile)
    a('v_add_u32 v7, s31, v6')

    def aissue(i):
        n = 2 if 2 * i + 1 < nks else 1
        for rt in range(nt):
            for j in range(n):
                a('s_add_u32 m0, s32, 0x%x' % ((i % ns) * SL2 + 8192 + rt * 2048 + j * 1024))
                a('s_mov_b32 s30, 0x%x' % (abase + rt * atile + (i % 11 if XP & 16 else i) * 2048 + j * 1024))
                q = a('buffer_load_dwordx4 v7, s[16:19], s30 offen lds')
        return q
    producer_loop(a, nsl, ns, lag, 2 * nt, aissue, g64_groups(mode, nsl))


G_AC = 16
G_BUF = (24, 48)
G_TB = 72


PT = env('PT', 0)
PTPOL = os.environ.get('PTPOL', '')


def paced_setup(a, atile, abase):
    a('s_lshr_b32 s30, s2, 3')
    a('s_lshl_b32 s31, s30, 13')
    a('v_lshlrev_b32 v92, 7, v1')
    a('v_add_u32 v92, s31, v92')
    a('s_and_b32 s31, s2, 7')
    a('s_lshl_b32 s31, s31, 4')
    a('s_lshr_b32 s26, s30, 1')
    a('s_add_u32 s31, s31, s26')
    a('s_mul_i32 s31, s31, %d' % atile)
    a('s_and_b32 s30, s30, 1')
    a('s_lshl_b32 s30, s30, 12')
    a('s_add_u32 s31, s31, s30')
    a('s_add_u32 s31, s31, 0x%x' % abase)
    a('v_and_b32 v93, 31, v1')
    a('v_lshlrev_b32 v93, 7, v93')
    a('v_add_u32 v93, s31, v93')


def paced_touch(a, q, nks, atile):
    if q * 8 >= nks:
        return
    lb = '%s_pt%d' % (a.kname, q)
    a('s_cmp_lg_u32 s20, %d' % ((2 * q) & 7))
    a('s_cbranch_scc1 %sa' % lb)
    a('s_mov_b32 s30, 0x%x' % (q * 262144))
    a('buffer_load_dword v94, v92, s[8:11], s30 offen %s' % PTPOL)
    a.label(lb + 'a')
    a('s_cmp_lg_u32 s20, %d' % ((2 * q + 1) & 7))
    a('s_cbranch_scc1 %sb' % lb)
    a('s_mov_b32 s30, 0x%x' % min(q * 8192, atile - 8192))
    a('buffer_load_dword v94, v93, s[16:19], s30 offen %s' % PTPOL)
    a.label(lb + 'b')


def gemm64_main(a, mode, nks, mid, tail=None):
    ns, lag = g64_cfg(mode)
    nsl = (nks + 1) // 2
    k2 = mode == 'k2'
    nb = (ns + 3) // 4
    gstart = set(lo for (lo, hi) in g64_groups(mode, nsl))
    a('s_lshr_b32 s23, s20, 1')
    a('s_add_u32 s24, s21, s23')
    a('s_and_b32 s25, s20, 1')
    a('v_lshl_add_u32 v14, v2, %d, v4' % (2 if k2 else 3))
    a('v_lshlrev_b32 v14, 7, v14')
    a('v_lshl_add_u32 v14, v5, 3, v14')
    a('v_and_b32 v15, 1, v2')
    a('v_lshlrev_b32 v15, 1, v15')
    a('v_lshrrev_b32 v13, 1, v4')
    a('v_or_b32 v15, v15, v13')
    a('s_lshl_b32 s26, s25, 1')
    a('v_xor_b32 v15, s26, v15')
    a('v_lshl_add_u32 v%d, v15, 5, v14' % G_TB)
    a('v_xor_b32 v%d, 32, v%d' % (G_TB + 1, G_TB))
    a('s_lshl_b32 s26, s23, 11')
    a('s_add_u32 s26, s26, 8192')
    if k2:
        a('v_lshlrev_b32 v13, 3, v1')
        a('v_add_u32 v%d, s26, v13' % (G_TB + 6))
    else:
        a('v_add_u32 v%d, s26, v6' % (G_TB + 6))
    for b in range(1, nb):
        a('v_add_u32 v%d, 0x%x, v%d' % (G_TB + 2 * b, b * 65536, G_TB))
        a('v_add_u32 v%d, 0x%x, v%d' % (G_TB + 2 * b + 1, b * 65536, G_TB + 1))
        a('v_add_u32 v%d, 0x%x, v%d' % (G_TB + 6 + b, b * 65536, G_TB + 6))

    def nkk(i):
        return 2 if 2 * i + 1 < nks else 1

    def reads(i):
        if XP & 2:
            return
        B = G_BUF[i & 1]
        sl = i % ns
        bk, so = sl // 4, (sl % 4) * SL2
        for kk in range(nkk(i)):
            if k2:
                a('ds_read_b64 %s, v%d offset:%d' % (vr(B + 16 + 4 * kk, 2), G_TB + 6 + bk, so + kk * 1024))
                a('ds_read_b64 %s, v%d offset:%d' % (vr(B + 18 + 4 * kk, 2), G_TB + 6 + bk, so + kk * 1024 + 512))
            else:
                a('ds_read_b128 %s, v%d offset:%d' % (vr(B + 16 + 4 * kk, 4), G_TB + 6 + bk, so + kk * 1024))
            for nt in range(2):
                for e in range(2):
                    a('ds_read_b64_tr_b16 %s, v%d offset:%d' % (vr(B + 8 * kk + 4 * nt + 2 * e, 2), G_TB + 2 * bk + nt, so + kk * 4096 + e * (2048 if k2 else 512)))
    atile = 16384 if k2 else 43 * 1024
    if PT:
        paced_setup(a, atile, WS_O if k2 else WS_R)
        for q in range(1, PT):
            paced_touch(a, q, nks, atile)
    stamp(a, 2)
    a('s_barrier')
    stamp(a, 3)
    reads(0)
    mid(a)
    for i in range(nsl):
        B = G_BUF[i & 1]
        if PT and i % 4 == 0:
            paced_touch(a, i // 4 + PT, nks, atile)
        mf = []
        for kk in range(nkk(i)):
            for nt in range(2):
                c_op = '0' if (i == 0 and kk == 0) else vr(G_AC + 4 * nt, 4)
                mf.append('v_mfma_f32_16x16x32_bf16 %s, %s, %s, %s' % (vr(G_AC + 4 * nt, 4), vr(B + 8 * kk + 4 * nt, 4), vr(B + 16 + 4 * kk, 4), c_op))
        if XP & 4:
            mf = []
        a('s_waitcnt lgkmcnt(0)')
        if i + 1 < nsl:
            if i + 1 in gstart:
                a('s_barrier')
            if (i + 1) % ((nsl + 3) // 4) == 0:
                stamp(a, 3 + (i + 1) // ((nsl + 3) // 4))
            reads(i + 1)
            if tail and i + 2 == nsl:
                tail(a)
        for m in mf:
            a(m)
    stamp(a, 7)


def gen_k2(a):
    kernel_head(a, 'k2', 256)
    srd(a, 4, 0)
    srd(a, 8, 24)
    srd(a, 16, 88)
    lane_decomp(a)
    g64_map(a)
    a('s_waitcnt lgkmcnt(0)')
    srd_fin(a, 4, 2048 * 1024)
    srd_fin(a, 8, 512 * 1024)
    srd_fin(a, 16, WS_SIZE)
    a('s_cmp_ge_u32 s20, 8')
    a('s_cbranch_scc1 k2_prod')
    if PF3 & 1:
        start_touch(a, 8, 512 * 1024, 32, 92)
    if LT:
        line_touch(a, 8, 512, LT, 94, LTPOL)
    XR = 84

    def mid(a):
        a('s_lshl_b32 s26, s23, 11')
        a('s_lshl_b32 s27, s25, 6')
        a('s_add_u32 s26, s26, s27')
        a('s_add_u32 s26, s26, 0x%x' % (g64_cfg('k2')[0] * SL2))
        a('v_lshlrev_b32 v11, 7, v3')
        a('v_lshl_add_u32 v11, v2, 3, v11')
        a('v_add_u32 v11, s26, v11')

    def tail(a):
        for nt in range(2):
            a('ds_read_b64 %s, v11 offset:%d' % (vr(XR + 2 * nt, 2), nt * 32))
    gemm64_main(a, 'k2', 16, mid, tail)
    stamp(a, 8)
    a('s_lshl_b32 s30, s24, 14')
    a('s_lshl_b32 s31, s22, 4')
    a('s_add_u32 s30, s30, s31')
    a('s_lshl_b32 s31, s25, 10')
    a('s_add_u32 s30, s30, s31')
    a('s_add_u32 s30, s30, 0x%x' % WS_H)
    OUTR = 56
    S1, S2 = 54, 55
    T = 24
    for i in range(4):
        a('v_lshlrev_b32 v%d, 16, v%d' % (T + 2 * i, XR + i))
        a('v_and_b32 v%d, 0xffff0000, v%d' % (T + 2 * i + 1, XR + i))
    a('v_mov_b32 v52, 0x3f803f80')
    for i in range(8):
        a('v_add_f32 v%d, v%d, v%d' % (T + i, T + i, G_AC + i))
    for i in range(4):
        a('v_cvt_pk_bf16_f32 v%d, v%d, v%d' % (OUTR + i, T + 2 * i, T + 2 * i + 1))
    a('buffer_store_dwordx4 %s, v6, s[16:19], s30 offen' % (vr(OUTR, 4)))
    for i in range(4):
        a('v_dot2_f32_bf16 v%d, v%d, v52, %s' % (S1, OUTR + i, 'v%d' % S1 if i else '0'))
        a('v_dot2_f32_bf16 v%d, v%d, v%d, %s' % (S2, OUTR + i, OUTR + i, 'v%d' % S2 if i else '0'))
    butterfly(a, [('v_add_f32', S1, 52), ('v_add_f32', S2, 53)])
    a('v_lshlrev_b32 v12, 4, v3')
    a('s_lshl_b32 s30, s24, 11')
    a('s_lshr_b32 s31, s22, 7')
    a('s_and_b32 s26, s31, 1')
    a('s_lshl_b32 s26, s26, 10')
    a('s_add_u32 s30, s30, s26')
    a('s_lshr_b32 s31, s31, 1')
    a('s_lshl_b32 s31, s31, 8')
    a('s_add_u32 s30, s30, s31')
    a('s_lshl_b32 s31, s25, 3')
    a('s_add_u32 s30, s30, s31')
    a('s_add_u32 s30, s30, 0x%x' % WS_ST2)
    a('buffer_store_dwordx2 v[54:55], v12, s[16:19], s30 offen')
    stamp_store(a, 2)
    a.label('k2_exit')
    a('s_endpgm')
    gemm64_producers(a, 'k2', 16, 16384, WS_O)


K3MAP = env('K3MAP', 0)


def gen_k3(a):
    kernel_head(a, 'k3', 256 if K3MAP else 240)
    srd(a, 4, 88)
    srd(a, 8, 40)
    srd(a, 12, 48)
    srd(a, 16, 88)
    lane_decomp(a)
    a('s_and_b32 s30, s2, 7')
    a('s_lshr_b32 s31, s2, 3')
    if K3MAP:
        a('s_lshr_b32 s21, s30, 1')
        a('s_lshl_b32 s21, s21, 2')
        a('s_and_b32 s22, s31, 3')
        a('s_add_u32 s33, s21, s22')
        a('s_and_b32 s21, s30, 1')
        a('s_lshl_b32 s21, s21, 3')
        a('s_lshr_b32 s22, s31, 2')
        a('s_add_u32 s34, s21, s22')
        a('s_cmp_eq_u32 s34, 15')
        a('s_cbranch_scc1 k3_exit')
    else:
        a('s_lshl_b32 s21, s30, 1')
        a('s_and_b32 s22, s31, 1')
        a('s_add_u32 s33, s21, s22')
        a('s_lshr_b32 s34, s31, 1')
    a('s_lshl_b32 s21, s33, 7')
    a('s_mul_i32 s22, s34, 192')
    a('s_waitcnt lgkmcnt(0)')
    a('s_add_u32 s4, s4, 0x%x' % WS_H)
    a('s_addc_u32 s5, s5, 0')
    srd_fin(a, 4, 2048 * 1024)
    srd_fin(a, 8, 512 * 2752)
    srd_fin(a, 12, 2752)
    srd_fin(a, 16, WS_SIZE)
    a('s_cmp_ge_u32 s20, 8')
    a('s_cbranch_scc1 k3_prod')

    def extra(a):
        if PF3 & 2:
            start_touch(a, 8, 512 * 2752, 30, 156)
        if LT and env('LT3', 0):
            line_touch(a, 8, 1376, LT, 156, LTPOL, 28 if K3MAP else 30)

    def late(a):
        XCH = g96_cfg('k3')[0] * SLOT
        a('v_lshlrev_b32 v22, 3, v2')
        a('s_lshl_b32 s30, s36, 5')
        a('s_add_u32 s30, s30, 0x%x' % (XCH + 2048))
        a('v_add_u32 v22, s30, v22')
        a('s_lshl_b32 s30, s20, 11')
        a('s_add_u32 s30, s30, 0x%x' % (XCH + 4096))
        a('v_add_u32 v23, s30, v6')
        a('v_xor_b32 v24, 0x800, v23')
        a('s_waitcnt vmcnt(0)')
        for p in range(2):
            a('ds_read_b128 %s, v%d' % (vr(144 + 8 * p, 4), 23 + p))
            a('ds_read_b128 %s, v%d offset:1024' % (vr(148 + 8 * p, 4), 23 + p))
        for seg in range(3):
            a('ds_read_b64 %s, v22 offset:%d' % (vr(28 + 2 * seg, 2), seg * 64))

    gemm96_main(a, 'k3', extra, late)
    stamp(a, 8)
    a('s_lshl_b32 s27, s36, 9')
    a('s_mul_i32 s31, s34, 3 * 1024')
    a('s_add_u32 s31, s31, s27')
    a('s_add_u32 s31, s31, 0x%x' % WS_R)
    for p in range(2):
        a('s_lshr_b32 s%d, s%d, 4' % (28 + p, 24 if p == 0 else 37))
        a('s_mul_i32 s%d, s%d, 43 * 1024' % (28 + p, 28 + p))
    a('v_and_b32 v22, 1, v2')
    a('v_cmp_eq_u32 vcc, 0, v22')
    a('v_mov_b32 v22, s28')
    a('v_mov_b32 v23, s29')
    a('v_cndmask_b32 v22, v23, v22, vcc')
    a('v_lshrrev_b32 v23, 1, v2')
    a('v_lshl_add_u32 v22, v23, 8, v22')
    a('v_lshl_add_u32 v22, v3, 4, v22')
    for seg in range(3):
        b = 28 + 2 * seg
        B = 144 + 4 * seg
        a('v_lshlrev_b32 v%d, 16, v%d' % (B, b))
        a('v_and_b32 v%d, 0xffff0000, v%d' % (B + 1, b))
        a('v_lshlrev_b32 v%d, 16, v%d' % (B + 2, b + 1))
        a('v_and_b32 v%d, 0xffff0000, v%d' % (B + 3, b + 1))
    for seg in range(3):
        if seg == 1:
            a('s_cmp_eq_u32 s34, 14')
            a('s_cbranch_scc1 k3_done')
        a('s_waitcnt lgkmcnt(%d)' % (2 - seg))
        B = 144 + 4 * seg
        for p in range(2):
            ac = ACC + 4 * (3 * p + seg)
            for r in range(4):
                a('v_fma_f32 v%d, -v%d, v%d, v%d' % (ac + r, 36 + 2 * p, 132 + 4 * seg + r, ac + r))
        for p in range(2):
            ac = ACC + 4 * (3 * p + seg)
            for r in range(4):
                a('v_fma_f32 v%d, v%d, v%d, v%d' % (ac + r, 37 + 2 * p, ac + r, B + r))
        for p in range(2):
            ac = ACC + 4 * (3 * p + seg)
            for r in range(4):
                a('v_mul_f32 v%d, v%d, |v%d|' % (ac + r, ac + r, ac + r))
        for p in range(2):
            ac = ACC + 4 * (3 * p + seg)
            T = 48 + 2 * (2 * seg + p)
            a('v_cvt_pk_bf16_f32 v%d, v%d, v%d' % (T, ac, ac + 1))
            a('v_cvt_pk_bf16_f32 v%d, v%d, v%d' % (T + 1, ac + 2, ac + 3))
        for p in range(2):
            T = 48 + 2 * (2 * seg + p)
            a('v_pk_max_i16 v%d, v%d, 0' % (T, T))
            a('v_pk_max_i16 v%d, v%d, 0' % (T + 1, T + 1))
        T = 48 + 4 * seg
        a('v_permlane16_swap_b32 v%d, v%d' % (T, T + 2))
        a('v_permlane16_swap_b32 v%d, v%d' % (T + 1, T + 3))
        a('buffer_store_dwordx4 %s, v22, s[16:19], s31 offen offset:%d' % (vr(T, 4), seg * 1024))
    a.label('k3_done')
    stamp_store(a, 3)
    a.label('k3_exit')
    a('s_endpgm')
    gemm96_producers(a, 'k3', 'k3', 2752, 64)


def gen_k4(a):
    kernel_head(a, 'k4', 256)
    srd(a, 4, 72)
    srd(a, 8, 56)
    srd(a, 12, 64)
    srd(a, 16, 88)
    lane_decomp(a)
    g64_map(a)
    a('s_waitcnt lgkmcnt(0)')
    srd_fin(a, 4, 2048 * 1024)
    srd_fin(a, 8, 1376 * 1024)
    srd_fin(a, 12, 1024)
    srd_fin(a, 16, WS_SIZE)
    a('s_cmp_ge_u32 s20, 8')
    a('s_cbranch_scc1 k4_prod')
    if PF3 & 4:
        start_touch(a, 8, 1376 * 1024, 32, 92)
    if LT:
        line_touch(a, 8, 1376, LT, 94, LTPOL)
    HR = 84
    BR = 88

    def mid(a):
        a('s_lshl_b32 s30, s24, 14')
        a('s_lshl_b32 s31, s22, 4')
        a('s_add_u32 s30, s30, s31')
        a('s_lshl_b32 s31, s25, 10')
        a('s_add_u32 s30, s30, s31')
        a('s_add_u32 s30, s30, 0x%x' % WS_H)
        a('buffer_load_dwordx4 %s, v6, s[16:19], s30 offen' % (vr(HR, 4)))
        a('s_lshl_b32 s27, s25, 6')
        a('s_add_u32 s27, s27, s22')
        a('v_lshlrev_b32 v12, 3, v2')
        for nt in range(2):
            a('buffer_load_dwordx2 %s, v12, s[12:15], s27 offen offset:%d' % (vr(BR + 2 * nt, 2), nt * 32))
        a('s_lshl_b32 s26, s24, 14')
        a('s_add_u32 s26, s26, s27')
        a('v_and_b32 v11, 1, v2')
        a('v_lshlrev_b32 v11, 5, v11')
        a('v_lshrrev_b32 v12, 1, v2')
        a('v_lshl_add_u32 v11, v12, 4, v11')
        a('v_lshl_add_u32 v11, v3, 10, v11')
    HB = 96

    def tail(a):
        a('s_waitcnt vmcnt(0)')
        for i in range(4):
            a('v_lshlrev_b32 v%d, 16, v%d' % (HB + 2 * i, HR + i))
            a('v_and_b32 v%d, 0xffff0000, v%d' % (HB + 2 * i + 1, HR + i))
            a('v_lshlrev_b32 v%d, 16, v%d' % (HR + i, BR + i))
            a('v_and_b32 v%d, 0xffff0000, v%d' % (BR + i, BR + i))
        for i in range(4):
            a('v_add_f32 v%d, v%d, v%d' % (HB + 2 * i, HB + 2 * i, HR + i))
            a('v_add_f32 v%d, v%d, v%d' % (HB + 2 * i + 1, HB + 2 * i + 1, BR + i))
    gemm64_main(a, 'k4', 43, mid, tail)
    stamp(a, 8)
    O = 56
    for i in range(8):
        a('v_add_f32 v%d, v%d, v%d' % (HB + i, HB + i, G_AC + i))
    for i in range(4):
        a('v_cvt_pk_bf16_f32 v%d, v%d, v%d' % (O + i, HB + 2 * i, HB + 2 * i + 1))
    a('v_permlane16_swap_b32 v%d, v%d' % (O, O + 2))
    a('v_permlane16_swap_b32 v%d, v%d' % (O + 1, O + 3))
    a('buffer_store_dwordx4 %s, v11, s[4:7], s26 offen' % vr(O, 4))
    stamp_store(a, 4)
    a.label('k4_exit')
    a('s_endpgm')
    gemm64_producers(a, 'k4', 43, 43 * 1024, WS_R)


def desc(name, vgpr, sgpr=80):
    return '''.amdhsa_kernel %s
  .amdhsa_next_free_vgpr %d
  .amdhsa_next_free_sgpr %d
  .amdhsa_accum_offset %d
  .amdhsa_group_segment_fixed_size 0
  .amdhsa_kernarg_size 96
  .amdhsa_user_sgpr_count 2
  .amdhsa_user_sgpr_kernarg_segment_ptr 1
  .amdhsa_system_sgpr_workgroup_id_x 1
.end_amdhsa_kernel
''' % (name, vgpr, sgpr, vgpr)


def kernels():
    return [
        ('k1_kernel', gen_k1, 256, 640 + 64 * NPA, g96_cfg('k1')[0] * SLOT + 4096, 160),
        ("ko_kernel", gen_ko, 256, 512, 16384, 136),
        ('k2_kernel', gen_k2, 256, 512 + 128 * NP64, g64_cfg('k2')[0] * SL2 + 8192, 96),
        ('k3_kernel', gen_k3, 256 if K3MAP else 240, 640 + 64 * NPA, g96_cfg('k3')[0] * SLOT + 4096 + 16384, 160),
        ('k4_kernel', gen_k4, 256, 512 + 128 * NP64, g64_cfg('k4')[0] * SL2, 104),
    ]


def build(kernels):
    head = ''
    for (n, g, grid, block, lds, v) in kernels:
        head += '; @launch kernel=%s grid=(%d,1,1) block=(%d,1,1) lds=%d\n' % (n, grid, block, lds)
    head += '.amdgcn_target "amdgcn-amd-amdhsa--gfx950"\n.text\n'
    a = Asm()
    for (n, g, grid, block, lds, v) in kernels:
        a.vm_issued = 0
        g(a)
    d = '.section .rodata,"a"\n.p2align 6\n'
    for (n, g, grid, block, lds, v) in kernels:
        d += desc(n, v)
    return head + a.text() + d


if __name__ == '__main__':
    out = sys.argv[1] if len(sys.argv) > 1 else 'cur.s'
    open(out, 'w').write(build(kernels()))
    print('wrote', out)
```

```python
import sys, os
sys.path.insert(0, os.path.dirname(__file__))
from dsl import Asm
from gen2 import (MB, WS_PQ, WS_O, WS_PART, PSTR, WS_ST2, WS_H, WS_R, WS_SIZE, env, vr, srd, srd_fin, bf16r, butterfly,
                  lane_decomp, mk_groups, softmax_sets)

NAME = os.environ.get('KNAME', 'mega_kernel')
STAMP = os.environ.get('STAMP')
WS_STAMP = 15 * MB
WS_FLAG = 6 * MB + 512 * 1024
FORCE_SLOW = env('FORCE_SLOW', 0)
LPOL = os.environ.get('LPOL', 'sc1')
XP = env('XP', 0)
TMO = 4096

S_X, S_WQ, S_WP, S_WS = 4, 8, 12, 16
S_WO, S_W1, S_W2, S_B1, S_B2, S_OUT, S_DBG = 40, 44, 48, 52, 56, 60, 64
FAST = 3
BANK = 57344
SLOT = 14336
NS1 = 11
XCH1 = NS1 * SLOT
XCH3 = 159744
CTRL = 161792
KOX = 32768
W2B = 73728
XT = W2B + 65536
LAG1 = env('LAG1', 5)


def sr(s):
    return 's[%d:%d]' % (s, s + 3)


def stamp(a, i):
    if STAMP:
        a('s_memtime s[%d:%d]' % (68 + 2 * i, 69 + 2 * i))


def stamp_real(a, i):
    if STAMP:
        a('s_memrealtime s[%d:%d]' % (68 + 2 * i, 69 + 2 * i))


NSTAMP = 17


def stamp_store(a):
    if not STAMP:
        return
    stamp(a, 15)
    stamp_real(a, 16)
    a('s_waitcnt lgkmcnt(0)')
    a('s_lshl_b32 s38, s2, 3')
    a('s_add_u32 s38, s38, s20')
    a('s_lshl_b32 s38, s38, 7')
    a('s_add_u32 s38, s38, 0x%x' % WS_STAMP)
    a('v_mov_b32 v0, 0')
    for i in range(NSTAMP):
        a('v_mov_b32 v1, s%d' % (68 + 2 * i))
        a('buffer_store_dword v1, v0, %s, s38 offen offset:%d' % (sr(S_WS), i * 4))


def bar(a, name):
    a('s_barrier')
    a.bars.append(name)


_uid = [0]


def uid(p):
    _uid[0] += 1
    return 'L%s%d' % (p, _uid[0])


def gstore(a, text):
    ls, le = uid('s'), uid('e')
    a('s_cmp_eq_u32 s%d, 0' % FAST)
    a('s_cbranch_scc1 %s' % ls)
    a(text)
    a('s_branch %s' % le)
    a.label(ls)
    a(text + ' sc1')
    a.label(le)
    a.vm_issued -= 1


def fin_rest(a):
    srd_fin(a, S_WO, 512 * 1024)
    srd_fin(a, S_W1, 512 * 2752)
    srd_fin(a, S_W2, 1376 * 1024)
    srd_fin(a, S_B1, 2752)
    srd_fin(a, S_B2, 1024)
    srd_fin(a, S_OUT, 2048 * 1024)
    srd_fin(a, S_DBG, 256)


def map64(a):
    a('s_and_b32 s30, s2, 7')
    a('s_lshr_b32 s31, s2, 3')
    a('s_lshl_b32 s21, s30, 2')
    a('s_and_b32 s22, s31, 3')
    a('s_add_u32 s21, s21, s22')
    a('s_lshr_b32 s22, s31, 2')
    a('s_lshl_b32 s21, s21, 2')
    a('s_lshl_b32 s22, s22, 7')


def map3(a):
    a('s_and_b32 s30, s2, 7')
    a('s_lshr_b32 s31, s2, 3')
    a('s_lshl_b32 s21, s30, 1')
    a('s_and_b32 s22, s31, 1')
    a('s_add_u32 s33, s21, s22')
    a('s_lshr_b32 s34, s31, 1')
    a('s_lshl_b32 s21, s33, 7')
    a('s_min_u32 s22, s34, 14')
    a('s_mul_i32 s22, s22, 192')


G96 = mk_groups(16, '1,1,2')
W3A = {0: 65536, 1: 147456, 2: 153600, 15: 65536}
for _m in range(12):
    W3A[3 + _m] = W2B + 6144 * _m
ST2A = (18 * 8192, 9 * 8192)


def a3addr(i):
    return 8192 * (i % 8)


NSL4 = 22
W4PRE = [(10, 'q4'), (11, 'q5'), (12, 'q6'), (13, 'q6'), (0, 'q6'), (1, 'q6'), (14, 'q7'), (2, 'q7'), (3, 'q7'),
         (15, 'q8'), (16, 'q8'), (4, 'q8'), (5, 'q8')]
NWPRE = env('NWPRE', 13)
A4PRE = [p for p, _ in W4PRE[NWPRE:]] + [6, 7, 8, 9, 17, 18]
W4P, A4P = {}, {}
W4T, A4T = {}, {}
for _s in range(NWPRE):
    W4P[_s], W4T[_s] = W4PRE[_s]
for _s, _p in enumerate(A4PRE):
    A4P[_s], A4T[_s] = _p, 'd3'
_nw, _na = NWPRE, len(A4PRE)
for _s in range(NSL4):
    for _isw, _p in ((0, A4P[_s]), (1, W4P[_s])):
        if _isw and _nw < NSL4:
            W4P[_nw], W4T[_nw] = _p, 'r%d' % (_s + 1)
            _nw += 1
        elif _na < NSL4:
            A4P[_na], A4T[_na] = _p, 'r%d' % (_s + 1)
            _na += 1

AFB = (48, 56)
BUF = (64, 80)
ACC = 96
RS, GR, CSA = 120, 124, 128
ONES = 16
VW, VC, VA, VP = 8, 11, 40, 43
HKEEP = 160


def gemm96_main(a, mode, waddr, aaddr, XCH, bn, en, extra_loads, late_loads=None, after_first=None, st=(0, 0)):
    k1 = mode == 'k1'
    BPOS = env('BPOS', 3)
    gstart = {lo: g for g, (lo, hi) in enumerate(G96)}
    a('s_lshl_b32 s23, s20, 4')
    a('s_add_u32 s24, s21, s23')
    a('s_xor_b32 s37, s24, 16')
    a('s_and_b32 s36, s20, 1')
    extra_loads(a)
    a('v_lshl_add_u32 v8, v2, %d, v4' % (3 if k1 else 2))
    a('v_lshlrev_b32 v8, 6, v8')
    a('v_lshl_add_u32 v8, v5, 3, v8')
    a('v_and_b32 v15, 1, v2')
    a('v_lshlrev_b32 v15, 5, v15')
    a('s_sub_u32 s26, s20, 6')
    a('s_cmp_lt_u32 s20, 6')
    a('s_cselect_b32 s26, s20, s26')
    a('s_lshr_b32 s27, s26, 1')
    a('s_lshl_b32 s27, s27, 11')
    a('s_lshl_b32 s28, s36, 5')
    a('v_xor_b32 v15, s28, v15')
    a('v_add_u32 v%d, v8, v15' % VW)
    a('v_add_u32 v%d, s27, v%d' % (VC, VW))
    a('s_lshl_b32 s35, s20, 10')
    if k1:
        a('v_lshlrev_b32 v15, 1, v4')
        a('v_mov_b32 v14, 0x78')
        a('v_lshrrev_b32 v15, v15, v14')
        a('v_and_b32 v15, 3, v15')
        a('v_xor_b32 v15, v15, v2')
        a('v_lshlrev_b32 v15, 4, v15')
        a('v_lshl_add_u32 v15, v3, 6, v15')
        a('v_add_u32 v%d, s35, v15' % VA)
    else:
        a('v_add_u32 v%d, s35, v6' % VA)
    a('v_xor_b32 v%d, 0x400, v%d' % (VP, VA))
    for b in range(1, 3):
        for r in (VW, VC, VA, VP):
            a('v_add_u32 v%d, 0x%x, v%d' % (r + b, b * BANK, r))
    for i in range(4):
        a('v_mov_b32 v%d, 0x3f803f80' % (ONES + i))
    eoff = 256 if k1 else 1024

    def reads(ks):
        b = BUF[ks & 1]
        af = AFB[ks & 1]
        ab, ao = divmod(aaddr(ks), BANK)
        wb, wo = divmod(waddr(ks), BANK)
        a('ds_read_b128 %s, v%d offset:%d' % (vr(af, 4), VA + ab, ao))
        a('ds_read_b128 %s, v%d offset:%d' % (vr(af + 4, 4), VP + ab, ao))
        for seg in range(3):
            for e in range(2):
                a('ds_read_b64_tr_b16 %s, v%d offset:%d' % (vr(b + 4 * seg + 2 * e, 2), VW + wb, wo + seg * 2048 + e * eoff))
        for e in range(2):
            a('ds_read_b64_tr_b16 %s, v%d offset:%d' % (vr(b + 12 + 2 * e, 2), VC + wb, wo + e * eoff))

    bar(a, bn + '0')
    stamp(a, st[0])
    reads(0)
    if after_first:
        a('s_waitcnt vmcnt(0)')
    for ks in range(16):
        b = BUF[ks & 1]
        af = AFB[ks & 1]

        def cop(r):
            return '0' if ks == 0 else vr(r, 4)
        mf = []
        for p in range(2):
            for seg in range(3):
                ac = ACC + 4 * (3 * p + seg)
                mf.append('v_mfma_f32_16x16x32_bf16 %s, %s, %s, %s' % (vr(ac, 4), vr(b + 4 * seg, 4), vr(af + 4 * p, 4), cop(ac)))
        mf.append('v_mfma_f32_16x16x32_bf16 %s, %s, %s, %s' % (vr(CSA, 4), vr(b + 12, 4), vr(ONES, 4), cop(CSA)))
        if k1:
            mf.append('v_mfma_f32_16x16x32_bf16 %s, %s, %s, %s' % (vr(RS, 4), vr(ONES, 4), vr(af, 4), cop(RS)))
            mf.append('v_mfma_f32_16x16x32_bf16 %s, %s, %s, %s' % (vr(GR, 4), vr(af, 4), vr(af, 4), cop(GR)))
        a('s_waitcnt lgkmcnt(0)')
        for m in mf[:BPOS]:
            a(m)
        if ks + 1 < 16:
            if ks + 1 in gstart:
                bar(a, bn + str(gstart[ks + 1]))
            reads(ks + 1)
            if after_first and ks == 0:
                after_first(a)
        if late_loads and ks == 14:
            late_loads(a)
        for m in mf[BPOS:]:
            a(m)
    stamp(a, st[1])
    a('v_lshlrev_b32 v15, 4, v2')
    a('s_lshl_b32 s27, s26, 6')
    a('s_add_u32 s27, s27, 0x%x' % XCH)
    a('v_add_u32 v14, s27, v15')
    a('ds_write_b128 v14, %s' % vr(CSA, 4))

    def finish_stats(SUM, SQ, M, RD):
        a('v_mul_f32 v%d, 0x3b000000, v%d' % (SUM, SUM))
        a('v_mul_f32 v%d, 0x3b000000, v%d' % (SQ, SQ))
        a('v_fma_f32 v%d, -v%d, v%d, v%d' % (SQ, SUM, SUM, SQ))
        a('v_max_f32 v%d, 0, v%d' % (SQ, SQ))
        bf16r(a, M, SUM)
        bf16r(a, SQ, SQ)
        a('v_add_f32 v%d, 0x3727c5ac, v%d' % (SQ, SQ))
        bf16r(a, SQ, SQ)
        a('v_sqrt_f32 v%d, v%d' % (SQ, SQ))
        bf16r(a, SQ, SQ)
        a('v_rcp_f32 v%d, v%d' % (RD, SQ))

    if k1:
        SUM, SQ = 48, 49
        a('v_cmp_eq_u32 vcc, 1, v5')
        a('v_cndmask_b32 v%d, v%d, v%d, vcc' % (SQ, GR, GR + 1))
        a('v_cmp_eq_u32 vcc, 2, v5')
        a('v_cndmask_b32 v%d, v%d, v%d, vcc' % (SQ, SQ, GR + 2))
        a('v_cmp_eq_u32 vcc, 3, v5')
        a('v_cndmask_b32 v%d, v%d, v%d, vcc' % (SQ, SQ, GR + 3))
        a('v_cmp_eq_u32 vcc, v2, v4')
        a('v_cndmask_b32 v%d, 0, v%d, vcc' % (SQ, SQ))
        a('v_mov_b32 v%d, v%d' % (SUM, RS))
        butterfly(a, [('v_add_f32', SQ, 52)])
        finish_stats(SUM, SQ, 36, 37)
        a('s_lshl_b32 s27, s20, 7')
        a('s_add_u32 s27, s27, 0x%x' % (XCH + 512))
        a('v_lshlrev_b32 v50, 3, v3')
        a('v_add_u32 v51, s27, v50')
        a('ds_write_b64 v51, v[36:37]')
        a('v_xor_b32 v51, 0x80, v51')
    else:
        for p in range(2):
            b = 144 + 8 * p
            a('v_add_f32 v%d, v%d, v%d' % (48 + 2 * p, b, b + 2))
            a('v_add_f32 v%d, v%d, v%d' % (49 + 2 * p, b + 1, b + 3))
            a('v_add_f32 v%d, v%d, v%d' % (52 + 2 * p, b + 4, b + 6))
            a('v_add_f32 v%d, v%d, v%d' % (53 + 2 * p, b + 5, b + 7))
        for i in range(4):
            a('v_add_f32 v%d, v%d, v%d' % (48 + i, 48 + i, 52 + i))
        butterfly(a, [('v_add_f32', 48, 52), ('v_add_f32', 49, 53), ('v_add_f32', 50, 54), ('v_add_f32', 51, 55)])
        finish_stats(48, 49, 36, 37)
        finish_stats(50, 51, 38, 39)
    a('s_lshl_b32 s27, s36, 6')
    a('s_add_u32 s27, s27, 0x%x' % XCH)
    a('v_add_u32 v15, s27, v15')
    a('s_waitcnt lgkmcnt(0)')
    bar(a, en)
    if k1:
        a('ds_read_b64 v[38:39], v51')
    for seg in range(3):
        a('ds_read_b128 %s, v15 offset:%d' % (vr(132 + 4 * seg, 4), seg * 128))
    if not k1:
        return
    for p in range(2):
        for seg in range(3):
            if p == 0:
                a('s_waitcnt lgkmcnt(%d)' % (2 - seg))
            ac = ACC + 4 * (3 * p + seg)
            for r in range(4):
                a('v_fma_f32 v%d, -v%d, v%d, v%d' % (ac + r, 36 + 2 * p, 132 + 4 * seg + r, ac + r))
            for r in range(4):
                a('v_mul_f32 v%d, v%d, v%d' % (ac + r, 37 + 2 * p, ac + r))


S_MASK, S_PART, S_PQ = 96, 98, 99
V_PART, V_L8 = 164, 165


def cons_k1(a):
    XCH = XCH1

    def extra(a):
        a('s_lshl_b32 s31, s34, 10')
        a('s_lshl_b32 s27, s36, 9')
        a('s_add_u32 s31, s31, s27')
        a('s_lshl_b32 s30, s24, 10')
        a('s_add_u32 s%d, s30, s31' % S_PQ)
        a('s_xor_b32 s29, s%d, 16384' % S_PQ)
        a('v_lshlrev_b32 v%d, 3, v1' % V_L8)
        a('s_lshl_b32 s30, s33, 5')
        a('s_lshl_b32 s31, s34, 1')
        a('s_add_u32 s30, s30, s31')
        a('s_lshr_b32 s31, s20, 2')
        a('s_add_u32 s30, s30, s31')
        a('s_mul_i32 s30, s30, %d' % PSTR)
        a('s_add_u32 s30, s30, 0x%x' % WS_PART)
        a('s_and_b32 s31, s20, 3')
        a('s_lshl_b32 s27, s31, 10')
        a('s_lshl_b32 s28, s31, 6')
        a('s_add_u32 s28, s28, %d' % (2048 - 128))
        a('s_cmp_lt_u32 s31, 2')
        a('s_cselect_b32 s27, s27, s28')
        a('s_cselect_b64 s[%d:%d], -1, 0' % (S_MASK, S_MASK + 1))
        a('s_add_u32 s%d, s30, s27' % S_PART)
        a('v_lshlrev_b32 v%d, 4, v2' % V_PART)
        a('v_cndmask_b32 v%d, v%d, v6, s[%d:%d]' % (V_PART, V_PART, S_MASK, S_MASK + 1))
        a('s_mov_b32 s26, 0x00010001')
        a('s_mov_b32 s27, 0x00010001')
        a('s_or_b64 s[%d:%d], s[%d:%d], s[26:27]' % (S_MASK, S_MASK + 1, S_MASK, S_MASK + 1))
        for i in range(4):
            a('v_mov_b32 v%d, -1' % (152 + i))
        a('buffer_store_dwordx2 v[152:153], v%d, %s, s%d offen sc1' % (V_L8, sr(S_WS), S_PQ))
        a('buffer_store_dwordx2 v[152:153], v%d, %s, s29 offen sc1' % (V_L8, sr(S_WS)))
        a('s_mov_b64 exec, s[%d:%d]' % (S_MASK, S_MASK + 1))
        a('buffer_store_dwordx4 v[152:155], v%d, %s, s%d offen sc1' % (V_PART, sr(S_WS), S_PART))
        a('s_mov_b64 exec, 7')
        a('s_and_b32 s30, s2, 7')
        a('s_lshl_b32 s30, s30, 7')
        a('s_lshr_b32 s31, s2, 3')
        a('s_lshl_b32 s31, s31, 2')
        a('s_add_u32 s30, s30, s31')
        a('s_add_u32 s30, s30, 0x%x' % WS_FLAG)
        a('v_lshlrev_b32 v15, 10, v1')
        a('v_mov_b32 v23, 0')
        a('s_cmp_lg_u32 s20, 0')
        a('s_cbranch_scc1 c_nfc')
        a('buffer_store_dword v23, v15, %s, s30 offen sc1' % sr(S_WS))
        a.label('c_nfc')
        a('s_mov_b64 exec, -1')
        a('s_lshr_b32 s30, s2, 3')
        a('s_lshl_b32 s30, s30, 2')
        a('s_and_b32 s31, s20, 3')
        a('s_add_u32 s30, s30, s31')
        a('s_cmp_ge_u32 s20, 4')
        a('s_cbranch_scc1 k1_pfw')
        a('s_lshr_b32 s31, s33, 2')
        a('s_lshl_b32 s31, s31, 19')
        a('s_lshl_b32 s30, s30, 12')
        a('s_add_u32 s30, s30, s31')
        for i in range(4):
            a('buffer_load_dwordx4 v[156:159], v6, %s, s30 offen offset:%d' % (sr(S_X), i * 1024))
        a('s_branch k1_pfd')
        a.label('k1_pfw')
        a('s_mul_i32 s30, s30, %d' % (4 * 3072))
        a('s_lshr_b32 s31, s34, 3')
        a('s_lshl_b32 s31, s31, 9')
        a('s_add_u32 s30, s30, s31')
        a('v_lshrrev_b32 v15, 5, v1')
        a('v_and_b32 v23, 31, v1')
        a('v_lshlrev_b32 v23, 4, v23')
        a('v_lshl_add_u32 v15, v15, 10, v23')
        for i in range(6):
            if i in (2, 4):
                a('s_add_u32 s30, s30, 4096')
            a('buffer_load_dwordx4 v[156:159], v15, %s, s30 offen offset:%d' % (sr(S_WQ), (i & 1) * 2048))
        a.label('k1_pfd')
        fin_rest(a)
        a('v_lshlrev_b32 v15, 2, v2')
        a('v_sub_u32 v15, v3, v15')
        a('v_mov_b32 v23, 0x3f80')
        a('v_mov_b32 v24, 0x3f800000')
        a('v_cmp_eq_u32 vcc, 0, v15')
        a('v_cndmask_b32 v20, 0, v23, vcc')
        a('v_cmp_eq_u32 vcc, 1, v15')
        a('v_cndmask_b32 v21, 0, v24, vcc')
        a('v_or_b32 v20, v20, v21')
        a('v_cmp_eq_u32 vcc, 2, v15')
        a('v_cndmask_b32 v21, 0, v23, vcc')
        a('v_cmp_eq_u32 vcc, 3, v15')
        a('v_cndmask_b32 v25, 0, v24, vcc')
        a('v_or_b32 v21, v21, v25')
        a('v_lshl_add_u32 v22, v2, 2, v4')
        a('v_lshlrev_b32 v22, 5, v22')
        a('v_lshl_add_u32 v22, v5, 3, v22')
        a('s_lshl_b32 s30, s36, 9')
        a('s_add_u32 s30, s30, 0x%x' % (XCH + 2048))
        a('v_add_u32 v22, s30, v22')

    def ready(a):
        a('s_cmp_lg_u32 s20, 0')
        a('s_cbranch_scc1 c_nrdy')
        a('s_getreg_b32 s30, hwreg(HW_REG_XCC_ID, 0, 4)')
        a('s_or_b32 s30, s30, 0x80')
        a('s_and_b32 s31, s2, 7')
        a('s_lshl_b32 s31, s31, 5')
        a('s_lshr_b32 s29, s2, 3')
        a('s_add_u32 s31, s31, s29')
        a('v_mov_b32 v23, s30')
        a('v_mov_b32 v24, 0')
        a('s_mov_b64 exec, 1')
        a('buffer_store_byte v23, v24, %s, s31 offen sc1' % sr(S_DBG))
        a('s_mov_b64 exec, -1')
        a.label('c_nrdy')

    gemm96_main(a, 'k1', lambda ks: (ks % NS1) * SLOT, lambda ks: (ks % NS1) * SLOT + 6144, XCH, 'g', 'e1', extra, None, ready, (2, 3))
    a('ds_read_b64_tr_b16 v[26:27], v22')
    a('v_mov_b32 v23, 0x%x' % CTRL)
    a('ds_read_b32 v24, v23')
    PK = 144
    for t in range(6):
        a('v_cvt_pk_bf16_f32 v%d, v%d, v%d' % (PK + 2 * t, ACC + 4 * t, ACC + 4 * t + 1))
        a('v_cvt_pk_bf16_f32 v%d, v%d, v%d' % (PK + 1 + 2 * t, ACC + 4 * t + 2, ACC + 4 * t + 3))
    a('s_waitcnt lgkmcnt(0)')
    a('v_readfirstlane_b32 s%d, v24' % FAST)
    PB = 48
    for s in range(4):
        src = PK + 2 * (3 * (s & 1) + (1 - (s >> 1)))
        a('v_mfma_f32_16x16x16_bf16 %s, v[26:27], %s, 0' % (vr(PB + 4 * s, 4), vr(src, 2)))
    TV = 64
    for p in range(2):
        a('v_mfma_f32_16x16x16_bf16 %s, %s, v[20:21], 0' % (vr(TV + 4 * p, 4), vr(PK + 2 * (3 * p + 2), 2)))
    TB = 72
    for s in (2, 3, 0, 1):
        p = PB + 4 * s
        a('v_cvt_pk_bf16_f32 v%d, v%d, v%d' % (TB + 12 * s + 2, p, p + 1))
        a('v_cvt_pk_bf16_f32 v%d, v%d, v%d' % (TB + 12 * s + 3, p + 2, p + 3))
    a('s_xor_b32 s30, s%d, 16384' % S_PQ)
    a('buffer_store_dwordx2 %s, v%d, %s, s%d offen sc1' % (vr(TB + 12 * 2 + 2, 2), V_L8, sr(S_WS), S_PQ))
    a('buffer_store_dwordx2 %s, v%d, %s, s30 offen sc1' % (vr(TB + 12 * 3 + 2, 2), V_L8, sr(S_WS)))
    FB = 120
    softmax_sets(a, 2, PB, TB, FB, 28)
    for p in range(2):
        for pm in range(2):
            a('v_mfma_f32_16x16x16_bf16 %s, %s, v[20:21], 0' % (vr(72 + 4 * (2 * p + pm), 4), vr(FB + 4 * p + 2 * pm, 2)))
    for p in range(2):
        a('v_cvt_pk_bf16_f32 v%d, v%d, v%d' % (88 + 2 * p, TV + 4 * p, TV + 4 * p + 1))
        a('v_cvt_pk_bf16_f32 v%d, v%d, v%d' % (89 + 2 * p, TV + 4 * p + 2, TV + 4 * p + 3))
    for i in range(4):
        a('v_cvt_pk_bf16_f32 v%d, v%d, v%d' % (92 + 2 * i, 72 + 4 * i, 73 + 4 * i))
        a('v_cvt_pk_bf16_f32 v%d, v%d, v%d' % (93 + 2 * i, 74 + 4 * i, 75 + 4 * i))
    RB = 128
    for p in range(2):
        for pm in range(2):
            r1, r2 = RB + 4 * pm, RB + 4 * (2 + pm)
            a('v_mfma_f32_16x16x16_bf16 %s, %s, %s, %s' % (vr(r1, 4), vr(92 + 2 * (2 * p + pm), 2), vr(88 + 2 * p, 2), '0' if p == 0 else vr(r1, 4)))
            a('v_mfma_f32_16x16x16_bf16 %s, %s, v[16:17], %s' % (vr(r2, 4), vr(92 + 2 * (2 * p + pm), 2), '0' if p == 0 else vr(r2, 4)))
    a('s_lshl_b32 s30, s20, 12')
    a('v_add_u32 v23, s30, v6')
    for i in range(4):
        a('ds_write_b128 v23, %s offset:%d' % (vr(RB + 4 * i, 4), i * 1024))
    a('v_lshlrev_b32 v24, 4, v0')
    ko_setup(a)
    a('s_waitcnt lgkmcnt(0)')
    bar(a, 'e2')
    for m in range(4):
        a('ds_read_b128 %s, v24 offset:%d' % (vr(48 + 4 * m, 4), m * 8192))
    for m in range(1, 4):
        a('s_waitcnt lgkmcnt(%d)' % (3 - m))
        for r in range(4):
            a('v_add_f32 v%d, v%d, v%d' % (48 + r, 48 + r, 48 + 4 * m + r))
    a('s_mov_b64 exec, s[%d:%d]' % (S_MASK, S_MASK + 1))
    a('buffer_store_dwordx4 v[48:51], v%d, %s, s%d offen sc1' % (V_PART, sr(S_WS), S_PART))
    a('s_mov_b64 exec, -1')
    stamp(a, 4)


def ko_setup(a):
    a('s_lshr_b32 s21, s2, 3')
    a('s_and_b32 s22, s2, 7')
    a('s_lshl_b32 s22, s22, 3')
    a('s_add_u32 s22, s22, s20')
    a('s_lshl_b32 s22, s22, 15')
    a('s_lshl_b32 s23, s21, 9')
    a('s_add_u32 s22, s22, s23')
    a('s_add_u32 s23, s22, 16384')
    a('v_lshlrev_b32 v7, 3, v1')
    a('s_lshr_b32 s24, s20, 1')
    a('s_lshl_b32 s24, s24, 7')
    a('s_add_u32 s24, s24, s21')
    a('s_mul_i32 s24, s24, %d' % PSTR)
    a('s_add_u32 s24, s24, 0x%x' % WS_PART)
    a('s_and_b32 s25, s20, 1')
    a('s_lshl_b32 s26, s25, 10')
    a('s_lshl_b32 s27, s25, 6')
    a('s_add_u32 s26, s26, s24')
    a('s_add_u32 s27, s27, s24')
    a('s_add_u32 s27, s27, 2048')
    a('v_lshlrev_b32 v8, 4, v2')
    for s in range(2):
        a('buffer_load_dwordx2 %s, v7, %s, s%d offen sc1' % (vr(24 + 12 * s + 2, 2), sr(S_WS), 22 + s))


def cons_ko(a):
    PB, TB, FB = 16, 24, 52
    a('s_mov_b32 s28, %d' % TMO)
    a('s_waitcnt vmcnt(1)')
    a('s_branch ko_pqc')
    a.label('ko_pq')
    for s in range(2):
        a('buffer_load_dwordx2 %s, v7, %s, s%d offen sc1' % (vr(TB + 12 * s + 2, 2), sr(S_WS), 22 + s))
    a('s_waitcnt vmcnt(0)')
    a.label('ko_pqc')
    a('s_sub_u32 s28, s28, 1')
    a('s_cbranch_scc1 ko_pq_ok')
    a('v_max3_u32 v9, v%d, v%d, v%d' % (TB + 2, TB + 3, TB + 14))
    a('v_max_u32 v9, v9, v%d' % (TB + 15))
    a('v_cmp_eq_u32 vcc, -1, v9')
    a('s_cbranch_vccnz ko_pq')
    a.label('ko_pq_ok')
    stamp(a, 5)
    KV, ZZ = 64, 80

    def part_loads():
        for j in range(4):
            a('s_add_u32 s30, s26, %d' % (32 * PSTR * j))
            a('s_add_u32 s31, s27, %d' % (32 * PSTR * j))
            a('buffer_load_dwordx4 %s, v6, %s, s30 offen sc1' % (vr(KV + 4 * j, 4), sr(S_WS)))
            a('buffer_load_dwordx4 %s, v8, %s, s31 offen sc1' % (vr(ZZ + 4 * j, 4), sr(S_WS)))
    EARLY = env('KOEARLY', 0)
    if EARLY:
        part_loads()
    a('s_lshl_b32 s30, s20, 11')
    a('s_add_u32 s30, s30, 0x%x' % KOX)
    a('v_add_u32 v9, s30, v6')
    softmax_sets(a, 2, PB, TB, FB, 10)
    a('s_mov_b32 s28, %d' % TMO)
    if EARLY:
        a('s_branch ko_pc')
    a.label('ko_pp')
    part_loads()
    a.label('ko_pc')
    a('s_sub_u32 s28, s28, 1')
    a('s_cbranch_scc1 ko_pp_ok')
    a('s_waitcnt vmcnt(0)')
    a('v_max3_u32 v11, v%d, v%d, v%d' % (KV, KV + 1, KV + 2))
    a('v_max3_u32 v12, v%d, v%d, v%d' % (KV + 3, KV + 4, KV + 5))
    for i in range(6, 30, 4):
        a('v_max3_u32 v11, v11, v%d, v%d' % (KV + i, KV + i + 1))
        a('v_max3_u32 v12, v12, v%d, v%d' % (KV + i + 2, KV + i + 3))
    a('v_max3_u32 v11, v11, v%d, v%d' % (KV + 30, KV + 31))
    a('v_max_u32 v11, v11, v12')
    a('v_cmp_eq_u32 vcc, -1, v11')
    a('s_cbranch_vccnz ko_pp')
    a.label('ko_pp_ok')
    a('s_waitcnt vmcnt(0)')
    stamp(a, 6)
    for B in (KV, ZZ):
        for r in range(4):
            a('v_add_f32 v%d, v%d, v%d' % (B + r, B + r, B + 4 + r))
            a('v_add_f32 v%d, v%d, v%d' % (B + 8 + r, B + 8 + r, B + 12 + r))
        for r in range(4):
            a('v_add_f32 v%d, v%d, v%d' % (B + r, B + r, B + 8 + r))
    a('ds_write_b128 v9, %s' % vr(KV, 4))
    a('ds_write_b128 v9, %s offset:1024' % vr(ZZ, 4))
    a('s_waitcnt lgkmcnt(0)')
    bar(a, 'o1')
    RD = 64
    for t in range(2):
        for kz in range(2):
            for qd in range(4):
                a('ds_read_b128 %s, v6 offset:%d' % (vr(RD + 4 * (8 * t + 4 * kz + qd), 4), KOX + (2 * qd + t) * 2048 + kz * 1024))
    OPA = 128
    for t in range(2):
        for kz in range(2):
            i = 2 * t + kz
            B = RD + 16 * i
            a('s_waitcnt lgkmcnt(%d)' % (12 - 4 * i))
            for r in range(4):
                a('v_add_f32 v%d, v%d, v%d' % (B + r, B + r, B + 4 + r))
                a('v_add_f32 v%d, v%d, v%d' % (B + 8 + r, B + 8 + r, B + 12 + r))
            for r in range(4):
                a('v_add_f32 v%d, v%d, v%d' % (B + r, B + r, B + 8 + r))
            a('v_cvt_pk_bf16_f32 v%d, v%d, v%d' % (OPA + 4 * kz + 2 * t, B, B + 1))
            a('v_cvt_pk_bf16_f32 v%d, v%d, v%d' % (OPA + 4 * kz + 2 * t + 1, B + 2, B + 3))
    ND = 64
    for s in range(2):
        a('v_mfma_f32_16x16x32_bf16 %s, %s, %s, 0' % (vr(ND + 8 * s, 4), vr(OPA, 4), vr(FB + 4 * s, 4)))
        a('v_mfma_f32_16x16x32_bf16 %s, %s, %s, 0' % (vr(ND + 8 * s + 4, 4), vr(OPA + 4, 4), vr(FB + 4 * s, 4)))
    a('s_add_u32 s22, s22, 0x%x' % WS_O)
    a('s_add_u32 s23, s23, 0x%x' % WS_O)
    for s in range(2):
        n = ND + 8 * s
        d = n + 4
        T = 16 + 8 * s
        a('v_cvt_pk_bf16_f32 v%d, v%d, v%d' % (T, d, d))
        a('v_cvt_pk_bf16_f32 v%d, v%d, v%d' % (T + 1, n, n + 1))
        a('v_cvt_pk_bf16_f32 v%d, v%d, v%d' % (T + 2, n + 2, n + 3))
        a('v_lshlrev_b32 v%d, 16, v%d' % (T, T))
        a('v_add_f32 v%d, 0x358637bd, v%d' % (T, T))
        a('v_cvt_pk_bf16_f32 v%d, v%d, v%d' % (T, T, T))
        a('v_lshlrev_b32 v%d, 16, v%d' % (T, T))
        a('v_rcp_f32 v%d, v%d' % (T, T))
        a('v_lshlrev_b32 v%d, 16, v%d' % (T + 3, T + 1))
        a('v_and_b32 v%d, 0xffff0000, v%d' % (T + 4, T + 1))
        a('v_lshlrev_b32 v%d, 16, v%d' % (T + 5, T + 2))
        a('v_and_b32 v%d, 0xffff0000, v%d' % (T + 6, T + 2))
        for i in range(4):
            a('v_mul_f32 v%d, v%d, v%d' % (T + 3 + i, T, T + 3 + i))
        a('v_cvt_pk_bf16_f32 v%d, v%d, v%d' % (T, T + 3, T + 4))
        a('v_cvt_pk_bf16_f32 v%d, v%d, v%d' % (T + 1, T + 5, T + 6))
        gstore(a, 'buffer_store_dwordx2 %s, v7, %s, s%d offen' % (vr(T, 2), sr(S_WS), 22 + s))


G_AC = 16
G_BUF = (24, 48)
G_TB = 72


def gemm64_setup(a, mode):
    k2 = mode == 'k2'
    map64(a)
    a('s_lshr_b32 s23, s20, 1')
    a('s_add_u32 s24, s21, s23')
    a('s_and_b32 s25, s20, 1')
    a('v_lshl_add_u32 v14, v2, %d, v4' % (2 if k2 else 3))
    a('v_lshlrev_b32 v14, 7, v14')
    a('v_lshl_add_u32 v14, v5, 3, v14')
    a('v_and_b32 v15, 1, v2')
    a('v_lshlrev_b32 v15, 1, v15')
    a('v_lshrrev_b32 v13, 1, v4')
    a('v_or_b32 v15, v15, v13')
    a('s_lshl_b32 s26, s25, 1')
    a('v_xor_b32 v15, s26, v15')
    a('v_lshl_add_u32 v%d, v15, 5, v14' % G_TB)
    a('v_xor_b32 v%d, 32, v%d' % (G_TB + 1, G_TB))
    a('s_lshl_b32 s26, s23, 11')
    if k2:
        a('v_lshlrev_b32 v13, 3, v1')
        a('v_add_u32 v%d, s26, v13' % (G_TB + 6))
    else:
        a('v_add_u32 v%d, s26, v6' % (G_TB + 6))
    for b in range(1, 3):
        a('v_add_u32 v%d, 0x%x, v%d' % (G_TB + 2 * b, b * BANK, G_TB))
        a('v_add_u32 v%d, 0x%x, v%d' % (G_TB + 2 * b + 1, b * BANK, G_TB + 1))
        a('v_add_u32 v%d, 0x%x, v%d' % (G_TB + 6 + b, b * BANK, G_TB + 6))


def gemm64_main(a, mode, nks, waddr, aaddr, bn, tail, st):
    nsl = (nks + 1) // 2
    k2 = mode == 'k2'

    def nkk(i):
        return 2 if 2 * i + 1 < nks else 1

    def reads(i):
        B = G_BUF[i & 1]
        wb, wo = divmod(waddr(i), BANK)
        ab, ao = divmod(aaddr(i), BANK)
        for kk in range(nkk(i)):
            if k2:
                a('ds_read_b64 %s, v%d offset:%d' % (vr(B + 16 + 4 * kk, 2), G_TB + 6 + ab, ao + kk * 1024))
                a('ds_read_b64 %s, v%d offset:%d' % (vr(B + 18 + 4 * kk, 2), G_TB + 6 + ab, ao + kk * 1024 + 512))
            else:
                a('ds_read_b128 %s, v%d offset:%d' % (vr(B + 16 + 4 * kk, 4), G_TB + 6 + ab, ao + kk * 1024))
            for nt in range(2):
                for e in range(2):
                    a('ds_read_b64_tr_b16 %s, v%d offset:%d' % (vr(B + 8 * kk + 4 * nt + 2 * e, 2), G_TB + 2 * wb + nt, wo + kk * 4096 + e * (2048 if k2 else 512)))
    bar(a, bn + '0')
    stamp(a, st[0])
    reads(0)
    for i in range(nsl):
        B = G_BUF[i & 1]
        mf = []
        for kk in range(nkk(i)):
            for nt in range(2):
                c_op = '0' if (i == 0 and kk == 0) else vr(G_AC + 4 * nt, 4)
                mf.append('v_mfma_f32_16x16x32_bf16 %s, %s, %s, %s' % (vr(G_AC + 4 * nt, 4), vr(B + 8 * kk + 4 * nt, 4), vr(B + 16 + 4 * kk, 4), c_op))
        a('s_waitcnt lgkmcnt(0)')
        if i + 1 < nsl:
            bar(a, bn + str(i + 1))
            reads(i + 1)
            if tail and i + 2 == nsl:
                tail(a)
        for m in mf:
            a(m)
    stamp(a, st[1])


def cons_k2(a):
    gemm64_setup(a, 'k2')
    XR = 84
    a('s_lshl_b32 s26, s23, 11')
    a('s_lshl_b32 s27, s25, 6')
    a('s_add_u32 s26, s26, s27')
    a('s_add_u32 s26, s26, 0x%x' % XT)
    a('v_lshlrev_b32 v11, 7, v3')
    a('v_lshl_add_u32 v11, v2, 3, v11')
    a('v_add_u32 v11, s26, v11')
    a('s_lshl_b32 s28, s24, 14')
    a('s_lshl_b32 s31, s22, 4')
    a('s_add_u32 s28, s28, s31')
    a('s_lshl_b32 s31, s25, 10')
    a('s_add_u32 s28, s28, s31')
    a('s_add_u32 s28, s28, 0x%x' % WS_H)
    a('v_lshlrev_b32 v12, 4, v3')
    a('s_lshl_b32 s29, s24, 11')
    a('s_lshr_b32 s31, s22, 7')
    a('s_and_b32 s26, s31, 1')
    a('s_lshl_b32 s26, s26, 10')
    a('s_add_u32 s29, s29, s26')
    a('s_lshr_b32 s31, s31, 1')
    a('s_lshl_b32 s31, s31, 8')
    a('s_add_u32 s29, s29, s31')
    a('s_lshl_b32 s31, s25, 3')
    a('s_add_u32 s29, s29, s31')
    a('s_add_u32 s29, s29, 0x%x' % WS_ST2)
    a('s_waitcnt vmcnt(0)')
    bar(a, 'd1')
    stamp(a, 7)

    def tail(a):
        for nt in range(2):
            a('ds_read_b64 %s, v11 offset:%d' % (vr(XR + 2 * nt, 2), nt * 32))
    gemm64_main(a, 'k2', 16, lambda i: W2B + 8192 * i, lambda i: 8192 * i, 'p', tail, (8, 9))
    OUTR = HKEEP
    S1, S2 = 54, 55
    T = 24
    for i in range(4):
        a('v_lshlrev_b32 v%d, 16, v%d' % (T + 2 * i, XR + i))
        a('v_and_b32 v%d, 0xffff0000, v%d' % (T + 2 * i + 1, XR + i))
    a('v_mov_b32 v52, 0x3f803f80')
    for i in range(8):
        a('v_add_f32 v%d, v%d, v%d' % (T + i, T + i, G_AC + i))
    for i in range(4):
        a('v_cvt_pk_bf16_f32 v%d, v%d, v%d' % (OUTR + i, T + 2 * i, T + 2 * i + 1))
    gstore(a, 'buffer_store_dwordx4 %s, v6, %s, s28 offen' % (vr(OUTR, 4), sr(S_WS)))
    for i in range(4):
        a('v_dot2_f32_bf16 v%d, v%d, v52, %s' % (S1, OUTR + i, 'v%d' % S1 if i else '0'))
        a('v_dot2_f32_bf16 v%d, v%d, v%d, %s' % (S2, OUTR + i, OUTR + i, 'v%d' % S2 if i else '0'))
    butterfly(a, [('v_add_f32', S1, 52), ('v_add_f32', S2, 53)])
    gstore(a, 'buffer_store_dwordx2 v[54:55], v12, %s, s29 offen' % sr(S_WS))


def cons_k3(a):
    map3(a)

    def extra(a):
        a('s_waitcnt vmcnt(0)')
        bar(a, 'd2')
        stamp(a, 10)

    def late(a):
        a('v_lshlrev_b32 v22, 3, v2')
        a('s_lshl_b32 s30, s36, 5')
        a('s_add_u32 s30, s30, 0x%x' % (XCH3 + 1024))
        a('v_add_u32 v22, s30, v22')
        a('s_and_b32 s30, s20, 3')
        a('s_lshl_b32 s30, s30, 11')
        a('s_cmp_lt_u32 s20, 4')
        a('s_mov_b32 s31, 0x%x' % ST2A[1])
        a('s_cselect_b32 s31, 0x%x, s31' % ST2A[0])
        a('s_add_u32 s30, s30, s31')
        a('v_add_u32 v23, s30, v6')
        a('v_xor_b32 v24, 0x800, v23')
        for p in range(2):
            a('ds_read_b128 %s, v%d' % (vr(144 + 8 * p, 4), 23 + p))
            a('ds_read_b128 %s, v%d offset:1024' % (vr(148 + 8 * p, 4), 23 + p))
        for seg in range(3):
            a('ds_read_b64 %s, v22 offset:%d' % (vr(28 + 2 * seg, 2), seg * 64))

    gemm96_main(a, 'k3', lambda ks: W3A[ks], a3addr, XCH3, 'q', 'e3', extra, late, None, (11, 12))
    a('s_cmp_eq_u32 s34, 15')
    a('s_cbranch_scc1 k3_done')
    a('s_lshl_b32 s27, s36, 9')
    a('s_mul_i32 s31, s34, 3 * 1024')
    a('s_add_u32 s31, s31, s27')
    a('s_add_u32 s31, s31, 0x%x' % WS_R)
    for p in range(2):
        a('s_lshr_b32 s%d, s%d, 4' % (28 + p, 24 if p == 0 else 37))
        a('s_mul_i32 s%d, s%d, 43 * 1024' % (28 + p, 28 + p))
    a('v_and_b32 v22, 1, v2')
    a('v_cmp_eq_u32 vcc, 0, v22')
    a('v_mov_b32 v22, s28')
    a('v_mov_b32 v23, s29')
    a('v_cndmask_b32 v22, v23, v22, vcc')
    a('v_lshrrev_b32 v23, 1, v2')
    a('v_lshl_add_u32 v22, v23, 8, v22')
    a('v_lshl_add_u32 v22, v3, 4, v22')
    for seg in range(3):
        b = 28 + 2 * seg
        B = 144 + 4 * seg
        a('v_lshlrev_b32 v%d, 16, v%d' % (B, b))
        a('v_and_b32 v%d, 0xffff0000, v%d' % (B + 1, b))
        a('v_lshlrev_b32 v%d, 16, v%d' % (B + 2, b + 1))
        a('v_and_b32 v%d, 0xffff0000, v%d' % (B + 3, b + 1))
    for seg in range(3):
        if seg == 1:
            a('s_cmp_eq_u32 s34, 14')
            a('s_cbranch_scc1 k3_done')
        a('s_waitcnt lgkmcnt(%d)' % (2 - seg))
        B = 144 + 4 * seg
        for p in range(2):
            ac = ACC + 4 * (3 * p + seg)
            for r in range(4):
                a('v_fma_f32 v%d, -v%d, v%d, v%d' % (ac + r, 36 + 2 * p, 132 + 4 * seg + r, ac + r))
        for p in range(2):
            ac = ACC + 4 * (3 * p + seg)
            for r in range(4):
                a('v_fma_f32 v%d, v%d, v%d, v%d' % (ac + r, 37 + 2 * p, ac + r, B + r))
        for p in range(2):
            ac = ACC + 4 * (3 * p + seg)
            for r in range(4):
                a('v_mul_f32 v%d, v%d, |v%d|' % (ac + r, ac + r, ac + r))
        for p in range(2):
            ac = ACC + 4 * (3 * p + seg)
            T = 48 + 2 * (2 * seg + p)
            a('v_cvt_pk_bf16_f32 v%d, v%d, v%d' % (T, ac, ac + 1))
            a('v_cvt_pk_bf16_f32 v%d, v%d, v%d' % (T + 1, ac + 2, ac + 3))
        for p in range(2):
            T = 48 + 2 * (2 * seg + p)
            a('v_pk_max_i16 v%d, v%d, 0' % (T, T))
            a('v_pk_max_i16 v%d, v%d, 0' % (T + 1, T + 1))
        T = 48 + 4 * seg
        a('v_permlane16_swap_b32 v%d, v%d' % (T, T + 2))
        a('v_permlane16_swap_b32 v%d, v%d' % (T + 1, T + 3))
        gstore(a, 'buffer_store_dwordx4 %s, v22, %s, s31 offen offset:%d' % (vr(T, 4), sr(S_WS), seg * 1024))
    a.label('k3_done')
    a('s_waitcnt lgkmcnt(0)')


def cons_k4(a):
    gemm64_setup(a, 'k4')
    a('s_waitcnt vmcnt(0)')
    bar(a, 'd3')
    stamp(a, 13)
    BR = 88
    HB = 96
    a('s_lshl_b32 s27, s25, 6')
    a('s_add_u32 s27, s27, s22')
    a('v_lshlrev_b32 v12, 3, v2')
    for nt in range(2):
        a('buffer_load_dwordx2 %s, v12, %s, s27 offen offset:%d' % (vr(BR + 2 * nt, 2), sr(S_B2), nt * 32))
    a('s_lshl_b32 s26, s24, 14')
    a('s_add_u32 s26, s26, s27')
    a('v_and_b32 v11, 1, v2')
    a('v_lshlrev_b32 v11, 5, v11')
    a('v_lshrrev_b32 v12, 1, v2')
    a('v_lshl_add_u32 v11, v12, 4, v11')
    a('v_lshl_add_u32 v11, v3, 10, v11')
    a('s_waitcnt vmcnt(0)')
    for i in range(4):
        a('v_lshlrev_b32 v%d, 16, v%d' % (HB + 2 * i, HKEEP + i))
        a('v_and_b32 v%d, 0xffff0000, v%d' % (HB + 2 * i + 1, HKEEP + i))
        a('v_lshlrev_b32 v%d, 16, v%d' % (84 + i, BR + i))
        a('v_and_b32 v%d, 0xffff0000, v%d' % (BR + i, BR + i))
    for i in range(4):
        a('v_add_f32 v%d, v%d, v%d' % (HB + 2 * i, HB + 2 * i, 84 + i))
        a('v_add_f32 v%d, v%d, v%d' % (HB + 2 * i + 1, HB + 2 * i + 1, BR + i))
    gemm64_main(a, 'k4', 43, lambda i: 8192 * W4P[i], lambda i: 8192 * A4P[i], 'r', None, (14, 15))
    O = 56
    for i in range(8):
        a('v_add_f32 v%d, v%d, v%d' % (HB + i, HB + i, G_AC + i))
    for i in range(4):
        a('v_cvt_pk_bf16_f32 v%d, v%d, v%d' % (O + i, HB + 2 * i, HB + 2 * i + 1))
    a('v_permlane16_swap_b32 v%d, v%d' % (O, O + 2))
    a('v_permlane16_swap_b32 v%d, v%d' % (O + 1, O + 3))
    a('buffer_store_dwordx4 %s, v11, %s, s26 offen' % (vr(O, 4), sr(S_OUT)))


def ring_loop(a, nk, ns, lag, per, issue, groups, bn, post=None):
    grp = {}
    for j, (lo, hi) in enumerate(groups):
        for i in range(lo, hi):
            grp[i] = j
    last = {}
    issued = 0
    for j, (lo, hi) in enumerate(groups):
        while issued < nk:
            i = issued
            ok = (i < ns or grp[i - ns] + 1 <= j - 1) and (i - lo + 1) * per <= 62 and (i < hi or i < lo + lag)
            if not ok:
                break
            last[i] = issue(i)
            issued += 1
        assert issued >= hi, (j, issued, hi)
        a.wait_vm(last[hi - 1])
        bar(a, bn + str(j))
        if post and j in post:
            post[j]()


def prod_w(a):
    a.label('prod_w')
    a.hist = []
    a.vm_issued = 0
    a.bars = []
    a('s_sub_u32 s35, s20, 8')
    a('s_lshl_b32 s32, s35, 10')

    def w96_addr(k1, wstride, reg):
        a('s_mul_i32 s31, s35, %d' % (16 * wstride))
        a('s_add_u32 s31, s31, s22')
        a('v_lshrrev_b32 v%d, 2, v1' % reg)
        a('v_mul_u32_u24 v%d, 0x%x, v%d' % (reg, wstride, reg))
        a('v_bfe_u32 v15, v1, %d, 1' % (5 if k1 else 4))
        a('v_lshlrev_b32 v15, 1, v15')
        a('v_xor_b32 v15, v15, v5')
        a('v_lshl_add_u32 v%d, v15, 4, v%d' % (reg, reg))
        a('v_add_u32 v%d, s31, v%d' % (reg, reg))
    w96_addr(True, 3072, 7)
    a('s_mov_b32 m0, 0x%x' % (XCH1 + 2048))
    a('s_lshl_b32 s30, s34, 10')
    a('buffer_load_dwordx4 v6, %s, s30 offen lds' % sr(S_WP))

    def wissue1(i):
        for seg in range(3):
            a('s_add_u32 m0, s32, 0x%x' % ((i % NS1) * SLOT + seg * 2048))
            a('s_mov_b32 s30, 0x%x' % (i * 32 * 3072 + seg * 1024))
            q = a('buffer_load_dwordx4 v7, %s, s30 offen lds' % sr(S_WQ))
        return q
    ring_loop(a, 16, NS1, LAG1, 3, wissue1, G96, 'g')
    fin_rest(a)
    map64(a)
    a('s_lshl_b32 s31, s35, 13')
    a('s_add_u32 s31, s31, s22')
    a('v_lshrrev_b32 v8, 3, v1')
    a('v_bfe_u32 v9, v1, 1, 2')
    a('v_and_b32 v10, 1, v1')
    a('v_lshlrev_b32 v10, 4, v10')
    a('v_lshl_add_u32 v8, v8, 10, v10')
    a('v_add_u32 v8, s31, v8')
    a('v_bfe_u32 v10, v1, 4, 2')
    a('v_xor_b32 v10, v9, v10')
    a('v_lshl_add_u32 v11, v10, 5, v8')
    a('v_bfe_u32 v10, v1, 4, 1')
    a('v_xor_b32 v10, v9, v10')
    a('s_lshl_b32 s30, s35, 1')
    a('v_xor_b32 v10, s30, v10')
    a('v_lshl_add_u32 v12, v10, 5, v8')
    a('v_lshl_add_u32 v13, v9, 5, v8')
    for i in range(8):
        for j in range(0, 8, 2):
            a('s_add_u32 m0, s32, 0x%x' % (W2B + 8192 * i + j * 1024))
            a('s_mov_b32 s30, 0x%x' % ((i * 64 + 8 * j) * 1024))
            a('buffer_load_dwordx4 v11, %s, s30 offen lds' % sr(S_WO))
    a('s_lshl_b32 s31, s21, 14')
    for j in range(0, 8, 2):
        a('s_add_u32 m0, s32, 0x%x' % (XT + j * 1024))
        a('s_add_u32 s30, s31, 0x%x' % (j * 8192))
        q_w2 = a('buffer_load_dwordx4 v13, %s, s30 offen lds' % sr(S_X))
    a('s_mul_i32 s31, s2, 5504')
    a('s_cmp_eq_u32 s35, 0')
    a('s_cbranch_scc1 pw_t2')
    for S, lb in ((S_W1, None), (S_W2, 'pw_t2')):
        if lb:
            a('s_branch pw_t3')
            a.label(lb)
        for i in range(6):
            if i == 4:
                a('s_add_u32 s31, s31, 4096')
            a('buffer_load_dwordx4 %s, v6, %s, s31 offen offset:%d' % (vr(64 + 4 * i, 4), sr(S), (i % 4) * 1024))
    a.label('pw_t3')
    a.vm_issued -= 6
    map3(a)
    w96_addr(False, 2752, 7)
    bar(a, 'e1')
    bar(a, 'e2')
    q3 = {}

    def w3(i):
        for seg in range(3):
            a('s_add_u32 m0, s32, 0x%x' % (W3A[i] + seg * 2048))
            a('s_mov_b32 s30, 0x%x' % (i * 32 * 2752 + seg * 64))
            q3[i] = a('buffer_load_dwordx4 v7, %s, s30 offen lds' % sr(S_W1))
    a('s_mov_b32 m0, 0x%x' % (XCH3 + 1024))
    a('buffer_load_dwordx4 v6, %s, s22 offen lds' % sr(S_B1))
    for i in range(3):
        w3(i)
    bar(a, 'o1')
    bar(a, 'd1')
    a.wait_vm(q_w2)
    sched = {1: [3], 2: [4], 3: [5, 6], 4: [7], 5: [8], 6: [9, 10], 7: [11]}
    for i in range(8):
        bar(a, 'p%d' % i)
        for k in sched.get(i, []):
            w3(k)
    bar(a, 'd2')
    for k in (12, 13, 14):
        w3(k)
    q4 = {}
    nxt = [0]

    def w4(after):
        while nxt[0] < NSL4 and W4T[nxt[0]] == after:
            i = nxt[0]
            n = 8 if i < NSL4 - 1 else 4
            for j in range(0, n, 2):
                a('s_add_u32 m0, s32, 0x%x' % (8192 * W4P[i] + j * 1024))
                a('s_mov_b32 s30, 0x%x' % ((i * 64 + 8 * j) * 1024))
                if not XP & 4:
                    q4[i] = a('buffer_load_dwordx4 v12, %s, s30 offen lds' % sr(S_W2))
            nxt[0] += 1
    for g, (lo, hi) in enumerate(G96):
        a.wait_vm(q3[hi - 1])
        bar(a, 'q%d' % g)
        if g == 1:
            w3(15)
        w4('q%d' % g)
    bar(a, 'e3')
    bar(a, 'd3')
    for i in range(NSL4):
        if not XP & 1:
            a.wait_vm(q4[i])
        bar(a, 'r%d' % i)
        w4('r%d' % i)
    assert nxt[0] == NSL4
    a('s_endpgm')


def signal_and_poll(a, ho, maskcode, skip_signal=None):
    a('s_and_b32 s30, s2, 7')
    a('s_lshl_b32 s30, s30, 7')
    a('s_add_u32 s30, s30, 0x%x' % (WS_FLAG + ho * 1024))
    ln = uid('ns')
    a('s_cmp_lg_u32 s20, 10')
    a('s_cbranch_scc1 %s' % ln)
    if skip_signal:
        skip_signal(ln)
    a('s_lshr_b32 s31, s2, 3')
    a('s_lshl_b32 s31, s31, 2')
    a('s_add_u32 s31, s31, s30')
    a('s_mov_b64 exec, 1')
    gstore(a, 'buffer_store_dword v20, v21, %s, s31 offen' % sr(S_WS))
    a.vm_issued -= 1
    a.label(ln)
    maskcode()
    a('s_mov_b64 exec, s[26:27]')
    a('s_mov_b32 s28, %d' % (4 * TMO))
    lp, lo = uid('p'), uid('ok')
    a.label(lp)
    a('buffer_load_dword v22, v23, %s, s30 offen sc1' % sr(S_WS))
    a('s_sub_u32 s28, s28, 1')
    a('s_cbranch_scc1 %s' % lo)
    a('s_waitcnt vmcnt(0)')
    a('v_cmp_ne_u32 vcc, 1, v22')
    a('s_cbranch_vccnz %s' % lp)
    a.label(lo)
    a('s_waitcnt vmcnt(0)')
    a('s_mov_b64 exec, -1')


def prod_a(a):
    a.label('prod_a')
    a.hist = []
    a.vm_issued = 0
    a.bars = []
    nt = 4
    a('s_sub_u32 s35, s20, 10')
    a('s_mul_i32 s32, s35, %d' % (nt * 1024))
    a('s_mul_i32 s31, s35, %d' % (nt * 16))
    a('s_add_u32 s31, s31, s21')
    a('s_lshl_b32 s31, s31, 10')
    a('v_lshlrev_b32 v15, 1, v2')
    a('v_mov_b32 v14, 0x78')
    a('v_lshrrev_b32 v15, v15, v14')
    a('v_and_b32 v15, 3, v15')
    a('v_xor_b32 v15, v15, v5')
    a('v_lshrrev_b32 v7, 2, v1')
    a('v_lshlrev_b32 v7, 10, v7')
    a('v_lshl_add_u32 v7, v15, 4, v7')
    a('v_add_u32 v7, s31, v7')

    def aissue1(i):
        for rt in range(nt):
            a('s_add_u32 m0, s32, 0x%x' % ((i % NS1) * SLOT + 6144 + rt * 1024))
            a('s_mov_b32 s30, 0x%x' % (rt * 16384 + i * 64))
            q = a('buffer_load_dwordx4 v7, %s, s30 offen lds' % sr(S_X))
        return q
    ring_loop(a, 16, NS1, LAG1, nt, aissue1, G96, 'g')
    fin_rest(a)
    a('v_mov_b32 v20, 1')
    a('v_mov_b32 v21, 0')
    a('v_lshlrev_b32 v23, 2, v1')
    a('s_cmp_lg_u32 s20, 10')
    a('s_cbranch_scc1 pa_nr')
    a('s_mov_b32 s28, %d' % (4 * TMO))
    a('s_mov_b32 s29, 0')
    a.label('pa_rp')
    a('buffer_load_dword v22, v23, %s, 0 offen sc1' % sr(S_DBG))
    a('s_sub_u32 s28, s28, 1')
    a('s_cbranch_scc1 pa_rd')
    a('s_waitcnt vmcnt(0)')
    a('v_and_b32 v24, 0x80808080, v22')
    a('v_cmp_ne_u32 vcc, 0x80808080, v24')
    a('s_cbranch_vccnz pa_rp')
    a('s_getreg_b32 s30, hwreg(HW_REG_XCC_ID, 0, 4)')
    a('s_or_b32 s30, s30, 0x80')
    a('s_mul_i32 s30, s30, 0x01010101')
    a('v_cmp_ne_u32 vcc, s30, v22')
    a('s_and_b32 s31, s2, 7')
    a('s_lshl_b32 s31, s31, 3')
    a('s_lshr_b64 s[26:27], vcc, s31')
    a('s_and_b32 s26, s26, 0xff')
    a('s_cmp_eq_u32 s26, 0')
    a('s_cselect_b32 s29, %d, 0' % (0 if FORCE_SLOW else 1))
    a.label('pa_rd')
    a('s_waitcnt vmcnt(0)')
    a('v_mov_b32 v24, s29')
    a('v_mov_b32 v25, 0x%x' % CTRL)
    a('ds_write_b32 v25, v24')
    a('s_mov_b32 s%d, s29' % FAST)
    a('s_waitcnt lgkmcnt(0)')
    a.label('pa_nr')
    a.vm_issued -= 1
    bar(a, 'e1')
    bar(a, 'e2')
    map64(a)
    a('s_lshl_b32 s32, s35, 12')
    a('s_lshl_b32 s31, s35, 1')
    a('s_add_u32 s31, s31, s21')
    a('s_mul_i32 s29, s31, %d' % (43 * 1024))
    a('v_add_u32 v8, s29, v6')
    a('s_lshl_b32 s31, s31, 14')
    a('v_add_u32 v7, s31, v6')
    bar(a, 'o1')
    bar(a, 'd1')
    signal_and_poll(a, 0, lambda: (a('s_mov_b32 s26, -1'), a('s_mov_b32 s27, 0')))
    q = {}
    for i in range(8):
        for rt in range(2):
            for j in range(2):
                a('s_add_u32 m0, s32, 0x%x' % (8192 * i + rt * 2048 + j * 1024))
                a('s_mov_b32 s30, 0x%x' % (WS_O + rt * 16384 + i * 2048 + j * 1024))
                q[i] = a('buffer_load_dwordx4 v7, %s, s30 offen %s lds' % (sr(S_WS), LPOL))
    map3(a)
    a('s_mul_i32 s31, s35, %d' % (nt * 16))
    a('s_add_u32 s31, s31, s21')
    a('s_lshl_b32 s29, s31, 7')
    a('s_lshl_b32 s31, s31, 10')
    a('v_add_u32 v7, s31, v6')
    a('s_add_u32 s29, s29, 0x%x' % WS_ST2)
    a('s_cmp_eq_u32 s35, 0')
    a('s_mov_b32 s36, 0x%x' % ST2A[1])
    a('s_cselect_b32 s36, 0x%x, s36' % ST2A[0])
    for i in range(8):
        a.wait_vm(q[i])
        bar(a, 'p%d' % i)
    bar(a, 'd2')

    def mask3():
        a('s_bitcmp1_b32 s2, 3')
        a('s_mov_b32 s26, 0x33333333')
        a('s_cselect_b32 s26, 0xcccccccc, s26')
        a('s_mov_b32 s27, 0')
    signal_and_poll(a, 1, mask3)

    def aissue3(i):
        for rt in range(nt):
            a('s_add_u32 m0, s32, 0x%x' % (a3addr(i) + rt * 1024))
            a('s_mov_b32 s30, 0x%x' % (WS_H + rt * 16384 + i * 1024))
            q = a('buffer_load_dwordx4 v7, %s, s30 offen %s lds' % (sr(S_WS), LPOL))
        return q

    def st2():
        for j in range(8):
            a('s_add_u32 m0, s36, 0x%x' % (j * 1024))
            a('s_add_u32 s30, s29, 0x%x' % (j * 1024))
            a('buffer_load_dwordx4 v6, %s, s30 offen %s lds' % (sr(S_WS), LPOL))
    ring_loop(a, 16, 8, env('LAG3', 8), nt, aissue3, G96, 'q', {4: st2})
    bar(a, 'e3')
    bar(a, 'd3')

    def mask4():
        a('s_bitcmp1_b32 s2, 4')
        a('s_mov_b32 s26, 0x15555555')
        a('s_cselect_b32 s26, 0x2aaaaaaa, s26')
        a('s_mov_b32 s27, 0')

    def skip(ln):
        a('s_cmp_eq_u32 s34, 15')
        a('s_cbranch_scc1 %s' % ln)
    signal_and_poll(a, 2, mask4, skip)
    q4 = {}
    nxt = [0]

    def a4(after):
        while nxt[0] < NSL4 and A4T[nxt[0]] == after:
            i = nxt[0]
            n = 2 if i < NSL4 - 1 else 1
            for rt in range(2):
                for j in range(n):
                    a('s_add_u32 m0, s32, 0x%x' % (8192 * A4P[i] + rt * 2048 + j * 1024))
                    a('s_mov_b32 s30, 0x%x' % (WS_R + rt * 43 * 1024 + i * 2048 + j * 1024))
                    if not XP & 8:
                        q4[i] = a('buffer_load_dwordx4 v8, %s, s30 offen %s lds' % (sr(S_WS), LPOL))
            nxt[0] += 1
    a4('d3')
    for i in range(NSL4):
        if not XP & 2:
            a.wait_vm(q4[i])
        bar(a, 'r%d' % i)
        a4('r%d' % i)
    assert nxt[0] == NSL4
    a('s_endpgm')


def gen(a):
    a.raw('.globl %s' % NAME)
    a.raw('.p2align 8')
    a.raw('.type %s,@function' % NAME)
    a.label(NAME)
    a.bars = []
    a('s_cmp_ge_u32 s2, 256')
    a('s_cbranch_scc1 mega_exit')
    stamp_real(a, 0)
    stamp(a, 1)
    for s, off in ((S_X, 0), (S_WQ, 8), (S_WP, 16), (S_WS, 88), (S_WO, 24), (S_W1, 40), (S_W2, 56), (S_B1, 48), (S_B2, 64), (S_OUT, 72), (S_DBG, 80)):
        srd(a, s, off)
    lane_decomp(a)
    a('s_mov_b32 s%d, 0' % FAST)
    a('s_and_b32 s30, s2, 7')
    a('s_lshr_b32 s31, s2, 3')
    a('s_lshr_b32 s21, s30, 1')
    a('s_lshl_b32 s21, s21, 2')
    a('s_and_b32 s22, s31, 3')
    a('s_add_u32 s33, s21, s22')
    a('s_and_b32 s21, s30, 1')
    a('s_lshl_b32 s21, s21, 3')
    a('s_lshr_b32 s22, s31, 2')
    a('s_add_u32 s34, s21, s22')
    a('s_lshl_b32 s21, s33, 7')
    a('s_lshl_b32 s22, s34, 6')
    a('s_waitcnt lgkmcnt(0)')
    srd_fin(a, S_X, 2048 * 1024)
    srd_fin(a, S_WQ, 512 * 3072)
    srd_fin(a, S_WP, 16384)
    srd_fin(a, S_WS, WS_SIZE)
    a('s_cmp_ge_u32 s20, 10')
    a('s_cbranch_scc1 prod_a')
    a('s_cmp_ge_u32 s20, 8')
    a('s_cbranch_scc1 prod_w')
    cons_k1(a)
    cons_ko(a)
    cons_k2(a)
    cons_k3(a)
    cons_k4(a)
    stamp_store(a)
    a.label('mega_exit')
    a('s_endpgm')
    bc = a.bars
    prod_w(a)
    assert a.bars == bc, (a.bars, bc)
    prod_a(a)
    assert a.bars == bc, (a.bars, bc)


def build():
    if NAME == 'mega_kernel':
        head = '; @launch kernel=%s grid=(256,1,1) block=(768,1,1) lds=163840\n' % NAME
    else:
        head = '; @launch grid=(256,1,1) block=(768,1,1) lds=163840\n'
    head += '.amdgcn_target "amdgcn-amd-amdhsa--gfx950"\n.text\n'
    a = Asm()
    gen(a)
    d = '''.section .rodata,"a"
.p2align 6
.amdhsa_kernel %s
  .amdhsa_next_free_vgpr 168
  .amdhsa_next_free_sgpr 102
  .amdhsa_accum_offset 168
  .amdhsa_group_segment_fixed_size 0
  .amdhsa_kernarg_size 96
  .amdhsa_user_sgpr_count 2
  .amdhsa_user_sgpr_kernarg_segment_ptr 1
  .amdhsa_system_sgpr_workgroup_id_x 1
.end_amdhsa_kernel
''' % NAME
    return head + a.text() + d


if __name__ == '__main__':
    open(sys.argv[1], 'w').write(build())
```

```python
import sys, os
sys.path.insert(0, os.path.dirname(__file__))
from dsl import Asm
from gen2 import MB, PSTR, env, vr, srd, srd_fin, bf16r, butterfly, lane_decomp, mk_groups, softmax_sets

NAME = os.environ.get('KNAME', 'mega_kernel')
STAMP = os.environ.get('STAMP')
OFF_H, OFF_S = 44032, 60416
WS_PART = 8 * MB
WS_FLAG = 9 * MB + 512 * 1024
WS_STAMP = 15 * MB
WS_SIZE = 16 * MB
FORCE_SLOW = env('FORCE_SLOW', 0)
TMO = 4096

S_X, S_WQ, S_WP, S_WS = 4, 8, 12, 16
S_WO, S_W1, S_W2, S_B1, S_B2, S_OUT, S_DBG = 40, 44, 48, 52, 56, 60, 64
FAST = 3
F0, F1, F2 = 0, 1, 39
BANK = 57344
SLOT = 14336
NS1 = 11
XCH1 = NS1 * SLOT
XCH3 = 159744
CTRL = 161792
KOX = 32768
W2B = 73728
XT = W2B + 65536
LAG1 = env('LAG1', 5)
RDY_KS = env('RDY_KS', 2)
LT1 = env('LT1', 1)
BPOS = env('BPOS', 3)
PST = env('PST', 0)

TCNT = {'wo': 4, 'x': 2, 'w1': 11, 'w2': 11, 'F': 6}
TITEMS = [(m, i) for m in os.environ.get('TLIST', 'wo,x,F,w1,w2').split(',') if m for i in range(TCNT[m])]
T_KS = [int(v) for v in os.environ.get('T_KS', '3,4,5,6,7,8,9,10,11,12,13,14').split(',') if v]
T_PA = [int(v) for v in os.environ.get('T_PA', '0,0,0,6,8,8').split(',')]
T_SL = env('T_SL', 7)
_tnext = [0]


def sr(s):
    return 's[%d:%d]' % (s, s + 3)


def touch_item(a, vaddr, vdst, s0=30, s1=31):
    if _tnext[0] >= len(TITEMS):
        return False
    m, i = TITEMS[_tnext[0]]
    _tnext[0] += 1
    a('s_lshr_b32 s%d, s2, 3' % s0)
    if m in 'xF':
        a('s_and_b32 s%d, s2, 7' % s1)
        a('s_lshl_b32 s%d, s%d, 5' % (s1, s1))
        a('s_add_u32 s%d, s%d, s%d' % (s0, s0, s1))
    if m == 'F':
        a('s_and_b32 s%d, s%d, 1' % (s1, s0))
        a('s_mul_i32 s%d, s%d, %d' % (s1, s1, 23040))
        a('s_lshr_b32 s%d, s%d, 1' % (s0, s0))
        a('s_lshl_b32 s%d, s%d, 16' % (s0, s0))
        a('s_add_u32 s%d, s%d, s%d' % (s0, s0, s1))
        a('s_add_u32 s%d, s%d, %d' % (s0, s0, 16384 + min(i * 4096, 23040 - 4096)))
    else:
        a('s_mul_i32 s%d, s%d, %d' % (s0, s0, {'wo': 16384, 'x': 8192, 'w1': 44032, 'w2': 44032}[m]))
        a('s_add_u32 s%d, s%d, %d' % (s0, s0, i * 4096))
    a('buffer_load_dword v%d, v%d, %s, s%d offen %s' % (vdst, vaddr, sr({'wo': S_WO, 'x': S_X, 'w1': S_W1, 'w2': S_W2, 'F': S_WS}[m]), s0,
                                                         'sc1' if m == 'F' else ''))
    return True


def stamp(a, i, ps=None):
    if ps is not None and ps != PST:
        return
    if STAMP:
        a('s_memtime s[%d:%d]' % (68 + 2 * i, 69 + 2 * i))


def stamp_real(a, i):
    if STAMP:
        a('s_memrealtime s[%d:%d]' % (68 + 2 * i, 69 + 2 * i))


NSTAMP = 17


def stamp_store(a):
    if not STAMP:
        return
    stamp(a, 15)
    stamp_real(a, 16)
    a('s_waitcnt lgkmcnt(0)')
    a('s_mul_i32 s38, s2, 12')
    a('s_add_u32 s38, s38, s20')
    a('s_lshl_b32 s38, s38, 7')
    a('s_add_u32 s38, s38, 0x%x' % WS_STAMP)
    a('v_mov_b32 v0, 0')
    for i in range(NSTAMP):
        a('v_mov_b32 v1, s%d' % (68 + 2 * i))
        a('buffer_store_dword v1, v0, %s, s38 offen offset:%d' % (sr(S_WS), i * 4))


def bar(a, name):
    a('s_barrier')
    a.bars.append(name)


_uid = [0]


def uid(p):
    _uid[0] += 1
    return 'L%s%d' % (p, _uid[0])


def gstore(a, text):
    ls, le = uid('s'), uid('e')
    a('s_cmp_eq_u32 s%d, 0' % FAST)
    a('s_cbranch_scc1 %s' % ls)
    a(text)
    a('s_branch %s' % le)
    a.label(ls)
    a(text + ' sc1')
    a.label(le)
    a.vm_issued -= 1


def set_flag(a, sf, t0, t1):
    a('v_mov_b32 v%d, 1' % t0)
    a('v_mov_b32 v%d, 0' % t1)
    a('s_waitcnt vmcnt(0)')
    a('s_mov_b64 exec, 1')
    gstore(a, 'buffer_store_byte v%d, v%d, %s, s%d offen' % (t0, t1, sr(S_WS), sf))
    a('s_mov_b64 exec, -1')


def poll_flags(a, sbase, nlanes, vaddr, vt):
    a('s_mov_b64 exec, 0x%x' % ((1 << nlanes) - 1))
    a('s_mov_b32 s28, %d' % (4 * TMO))
    lp, lo = uid('p'), uid('ok')
    a.label(lp)
    a('buffer_load_dword v%d, v%d, %s, s%d offen sc1' % (vt, vaddr, sr(S_WS), sbase))
    a('s_sub_u32 s28, s28, 1')
    a('s_cbranch_scc1 %s' % lo)
    a('s_waitcnt vmcnt(0)')
    a('v_cmp_ne_u32 vcc, 0x01010101, v%d' % vt)
    a('s_cbranch_vccnz %s' % lp)
    a.label(lo)
    a('s_waitcnt vmcnt(0)')
    a('s_mov_b64 exec, -1')


def fin_rest(a):
    srd_fin(a, S_WO, 512 * 1024)
    srd_fin(a, S_W1, 512 * 2752)
    srd_fin(a, S_W2, 1376 * 1024)
    srd_fin(a, S_B1, 2752)
    srd_fin(a, S_B2, 1024)
    srd_fin(a, S_OUT, 2048 * 1024)
    srd_fin(a, S_DBG, 256)


def map64(a):
    a('s_and_b32 s30, s2, 7')
    a('s_lshr_b32 s31, s2, 3')
    a('s_lshl_b32 s21, s30, 2')
    a('s_and_b32 s22, s31, 3')
    a('s_add_u32 s21, s21, s22')
    a('s_lshr_b32 s22, s31, 2')
    a('s_lshl_b32 s21, s21, 2')
    a('s_lshl_b32 s22, s22, 7')


def map3(a):
    a('s_and_b32 s30, s2, 7')
    a('s_lshr_b32 s31, s2, 3')
    a('s_lshl_b32 s21, s30, 1')
    a('s_and_b32 s22, s31, 1')
    a('s_add_u32 s33, s21, s22')
    a('s_lshr_b32 s34, s31, 1')
    a('s_lshl_b32 s21, s33, 7')
    a('s_min_u32 s22, s34, 14')
    a('s_mul_i32 s22, s22, 192')


G96 = mk_groups(16, '1,1,2')
GST = [lo for lo, hi in G96]
W3A = {9: 151552, 10: 139264, 11: 145408, 15: 0}
for _m in range(5):
    W3A[_m] = 6144 * _m
for _m in range(4):
    W3A[5 + _m] = 49152 + 6144 * _m
for _m in range(3):
    W3A[12 + _m] = 30720 + 6144 * _m


def a3addr(i):
    return W2B + 8192 * (i % 8)


NP4 = 22
_last = {}
for _ks in range(16):
    for _lo, _n in ((W3A[_ks], 6144), (a3addr(_ks), 8192)):
        for _p in range(_lo // 8192, (_lo + _n - 1) // 8192 + 1):
            _last[_p] = max(_last.get(_p, -1), _ks)
W4Q0 = env('W4Q0', 3)


def _free_bar(ks):
    for g in range(len(GST)):
        if GST[g] - 2 >= ks:
            return max(g, W4Q0)
    return 9


_ordp = sorted(range(19), key=lambda p: (_free_bar(_last[p]), p))
W4P = _ordp + [19, _ordp[0], _ordp[1]]
W4T = [('q%d' % _free_bar(_last[p]) if _free_bar(_last[p]) < 9 else 'e3') for p in _ordp] + ['r0', 'r0', 'r0']
NPUB0 = sum(1 for t in W4T if t[0] == 'q')
R1_AT = NPUB0 - 2

GB = (48, 72, 132)
ACC = 96
RS, GR, CSA = 120, 124, 128
ONES = 16
VW, VC, VA, VP = 8, 11, 40, 43
HKEEP = 160


def gemm96_main(a, mode, waddr, aaddr, XCH, bn, en, extra, hook, st):
    k1 = mode == 'k1'
    gstart = {lo: g for g, (lo, hi) in enumerate(G96)}
    a('s_lshl_b32 s23, s20, 4')
    a('s_add_u32 s24, s21, s23')
    a('s_xor_b32 s37, s24, 16')
    a('s_and_b32 s36, s20, 1')
    extra(a)
    a('v_lshl_add_u32 v8, v2, %d, v4' % (3 if k1 else 2))
    a('v_lshlrev_b32 v8, 6, v8')
    a('v_lshl_add_u32 v8, v5, 3, v8')
    a('v_and_b32 v15, 1, v2')
    a('v_lshlrev_b32 v15, 5, v15')
    a('s_sub_u32 s26, s20, 6')
    a('s_cmp_lt_u32 s20, 6')
    a('s_cselect_b32 s26, s20, s26')
    a('s_lshr_b32 s27, s26, 1')
    a('s_lshl_b32 s27, s27, 11')
    a('s_lshl_b32 s28, s36, 5')
    a('v_xor_b32 v15, s28, v15')
    a('v_add_u32 v%d, v8, v15' % VW)
    a('v_add_u32 v%d, s27, v%d' % (VC, VW))
    a('s_lshl_b32 s35, s20, 10')
    if k1:
        a('v_lshlrev_b32 v15, 1, v4')
        a('v_mov_b32 v14, 0x78')
        a('v_lshrrev_b32 v15, v15, v14')
        a('v_and_b32 v15, 3, v15')
        a('v_xor_b32 v15, v15, v2')
        a('v_lshlrev_b32 v15, 4, v15')
        a('v_lshl_add_u32 v15, v3, 6, v15')
        a('v_add_u32 v%d, s35, v15' % VA)
    else:
        a('v_add_u32 v%d, s35, v6' % VA)
    a('v_xor_b32 v%d, 0x400, v%d' % (VP, VA))
    for b in range(1, 3):
        for r in (VW, VC, VA, VP):
            a('v_add_u32 v%d, 0x%x, v%d' % (r + b, b * BANK, r))
    for i in range(4):
        a('v_mov_b32 v%d, 0x3f803f80' % (ONES + i))
    eoff = 256 if k1 else 1024

    def reads(ks):
        b = GB[ks % 3]
        ab, ao = divmod(aaddr(ks), BANK)
        wb, wo = divmod(waddr(ks), BANK)
        a('ds_read_b128 %s, v%d offset:%d' % (vr(b, 4), VA + ab, ao))
        a('ds_read_b128 %s, v%d offset:%d' % (vr(b + 4, 4), VP + ab, ao))
        for seg in range(3):
            for e in range(2):
                a('ds_read_b64_tr_b16 %s, v%d offset:%d' % (vr(b + 8 + 4 * seg + 2 * e, 2), VW + wb, wo + seg * 2048 + e * eoff))
        for e in range(2):
            a('ds_read_b64_tr_b16 %s, v%d offset:%d' % (vr(b + 20 + 2 * e, 2), VC + wb, wo + e * eoff))

    bar(a, bn + '0')
    stamp(a, st[0])
    reads(0)
    bar(a, bn + '1')
    reads(1)
    for ks in range(16):
        b = GB[ks % 3]

        def cop(r):
            return '0' if ks == 0 else vr(r, 4)
        mf = []
        for p in range(2):
            for seg in range(3):
                ac = ACC + 4 * (3 * p + seg)
                mf.append('v_mfma_f32_16x16x32_bf16 %s, %s, %s, %s' % (vr(ac, 4), vr(b + 8 + 4 * seg, 4), vr(b + 4 * p, 4), cop(ac)))
        mf.append('v_mfma_f32_16x16x32_bf16 %s, %s, %s, %s' % (vr(CSA, 4), vr(b + 20, 4), vr(ONES, 4), cop(CSA)))
        if k1:
            mf.append('v_mfma_f32_16x16x32_bf16 %s, %s, %s, %s' % (vr(RS, 4), vr(ONES, 4), vr(b, 4), cop(RS)))
            mf.append('v_mfma_f32_16x16x32_bf16 %s, %s, %s, %s' % (vr(GR, 4), vr(b, 4), vr(b, 4), cop(GR)))
        a('s_waitcnt lgkmcnt(%d)' % (10 if ks < 15 else 0))
        for m in mf[:BPOS]:
            a(m)
        hook(a, ks, 0)
        if ks + 2 < 16:
            if ks + 2 in gstart:
                bar(a, bn + str(gstart[ks + 2]))
            reads(ks + 2)
        hook(a, ks, 1)
        for m in mf[BPOS:]:
            a(m)
    stamp(a, st[1])
    a('v_lshlrev_b32 v15, 4, v2')
    a('s_lshl_b32 s27, s26, 6')
    a('s_add_u32 s27, s27, 0x%x' % XCH)
    a('v_add_u32 v14, s27, v15')
    a('ds_write_b128 v14, %s' % vr(CSA, 4))

    def finish_stats(SUM, SQ, M, RD):
        a('v_mul_f32 v%d, 0x3b000000, v%d' % (SUM, SUM))
        a('v_mul_f32 v%d, 0x3b000000, v%d' % (SQ, SQ))
        a('v_fma_f32 v%d, -v%d, v%d, v%d' % (SQ, SUM, SUM, SQ))
        a('v_max_f32 v%d, 0, v%d' % (SQ, SQ))
        bf16r(a, M, SUM)
        bf16r(a, SQ, SQ)
        a('v_add_f32 v%d, 0x3727c5ac, v%d' % (SQ, SQ))
        bf16r(a, SQ, SQ)
        a('v_sqrt_f32 v%d, v%d' % (SQ, SQ))
        bf16r(a, SQ, SQ)
        a('v_rcp_f32 v%d, v%d' % (RD, SQ))

    if k1:
        SUM, SQ = 72, 73
        a('v_cmp_eq_u32 vcc, 1, v5')
        a('v_cndmask_b32 v%d, v%d, v%d, vcc' % (SQ, GR, GR + 1))
        a('v_cmp_eq_u32 vcc, 2, v5')
        a('v_cndmask_b32 v%d, v%d, v%d, vcc' % (SQ, SQ, GR + 2))
        a('v_cmp_eq_u32 vcc, 3, v5')
        a('v_cndmask_b32 v%d, v%d, v%d, vcc' % (SQ, SQ, GR + 3))
        a('v_cmp_eq_u32 vcc, v2, v4')
        a('v_cndmask_b32 v%d, 0, v%d, vcc' % (SQ, SQ))
        a('v_mov_b32 v%d, v%d' % (SUM, RS))
        butterfly(a, [('v_add_f32', SQ, 76)])
        finish_stats(SUM, SQ, 36, 37)
        a('s_lshl_b32 s27, s20, 7')
        a('s_add_u32 s27, s27, 0x%x' % (XCH + 512))
        a('v_lshlrev_b32 v74, 3, v3')
        a('v_add_u32 v75, s27, v74')
        a('ds_write_b64 v75, v[36:37]')
        a('v_xor_b32 v75, 0x80, v75')
    a('s_lshl_b32 s27, s36, 6')
    a('s_add_u32 s27, s27, 0x%x' % XCH)
    a('v_add_u32 v15, s27, v15')
    a('s_waitcnt lgkmcnt(0)')
    bar(a, en)
    if k1:
        a('ds_read_b64 v[38:39], v75')
    for seg in range(3):
        a('ds_read_b128 %s, v15 offset:%d' % (vr(132 + 4 * seg, 4), seg * 128))
    if not k1:
        return
    for p in range(2):
        for seg in range(3):
            if p == 0:
                a('s_waitcnt lgkmcnt(%d)' % (2 - seg))
            ac = ACC + 4 * (3 * p + seg)
            for r in range(4):
                a('v_fma_f32 v%d, -v%d, v%d, v%d' % (ac + r, 36 + 2 * p, 132 + 4 * seg + r, ac + r))
            for r in range(4):
                a('v_mul_f32 v%d, v%d, v%d' % (ac + r, 37 + 2 * p, ac + r))
    gemm96_main.finish_stats = finish_stats


S_MASK, S_PART, S_PQ = 96, 98, 99
V_PART, V_L8 = 164, 165


def cons_k1(a):
    XCH = XCH1

    def extra(a):
        if LT1:
            a('s_and_b32 s30, s2, 1')
            a('s_or_b32 s30, s30, s20')
            a('s_cmp_lg_u32 s30, 0')
            a('s_cbranch_scc1 k1_nlt')
            a('s_lshr_b32 s30, s2, 3')
            a('s_mul_i32 s30, s30, %d' % (48 * 1024))
            a('v_min_u32 v15, 47, v1')
            a('v_lshlrev_b32 v15, 10, v15')
            a('buffer_load_dword v156, v15, %s, s30 offen offset:384' % sr(S_WQ))
            a.label('k1_nlt')
        a('s_lshl_b32 s31, s34, 10')
        a('s_lshl_b32 s27, s36, 9')
        a('s_add_u32 s31, s31, s27')
        a('s_lshl_b32 s30, s24, 12')
        a('s_add_u32 s%d, s30, s31' % S_PQ)
        a('s_xor_b32 s29, s%d, 0x10000' % S_PQ)
        a('v_lshlrev_b32 v%d, 3, v1' % V_L8)
        for i in range(4):
            a('v_mov_b32 v%d, -1' % (28 + i))
        a('buffer_store_dwordx2 v[28:29], v%d, %s, s%d offen sc1' % (V_L8, sr(S_WS), S_PQ))
        a('buffer_store_dwordx2 v[28:29], v%d, %s, s29 offen sc1' % (V_L8, sr(S_WS)))
        a('s_lshl_b32 s30, s33, 5')
        a('s_lshl_b32 s31, s34, 1')
        a('s_add_u32 s30, s30, s31')
        a('s_lshr_b32 s31, s20, 2')
        a('s_add_u32 s30, s30, s31')
        a('s_mul_i32 s30, s30, %d' % PSTR)
        a('s_add_u32 s30, s30, 0x%x' % WS_PART)
        a('s_and_b32 s31, s20, 3')
        a('s_lshl_b32 s27, s31, 10')
        a('s_lshl_b32 s28, s31, 6')
        a('s_add_u32 s28, s28, %d' % (2048 - 128))
        a('s_cmp_lt_u32 s31, 2')
        a('s_cselect_b32 s27, s27, s28')
        a('s_cselect_b64 s[%d:%d], -1, 0' % (S_MASK, S_MASK + 1))
        a('s_add_u32 s%d, s30, s27' % S_PART)
        a('v_lshlrev_b32 v%d, 4, v2' % V_PART)
        a('v_cndmask_b32 v%d, v%d, v6, s[%d:%d]' % (V_PART, V_PART, S_MASK, S_MASK + 1))
        a('s_mov_b32 s26, 0x00010001')
        a('s_mov_b32 s27, 0x00010001')
        a('s_or_b64 s[%d:%d], s[%d:%d], s[26:27]' % (S_MASK, S_MASK + 1, S_MASK, S_MASK + 1))
        a('s_mov_b64 exec, s[%d:%d]' % (S_MASK, S_MASK + 1))
        a('buffer_store_dwordx4 v[28:31], v%d, %s, s%d offen sc1' % (V_PART, sr(S_WS), S_PART))
        a('s_mov_b64 exec, -1')
        a('s_and_b32 s30, s2, 7')
        a('s_lshl_b32 s30, s30, 8')
        a('s_add_u32 s30, s30, 0x%x' % WS_FLAG)
        a('s_lshr_b32 s31, s2, 3')
        a('s_lshl_b32 s27, s20, 5')
        a('s_add_u32 s27, s27, s31')
        a('s_add_u32 s%d, s30, s27' % F0)
        a('s_and_b32 s27, s31, 3')
        a('s_lshl_b32 s27, s27, 6')
        a('s_lshr_b32 s28, s31, 2')
        a('s_lshl_b32 s28, s28, 3')
        a('s_add_u32 s27, s27, s28')
        a('s_add_u32 s27, s27, s20')
        a('s_add_u32 s27, s27, 2048')
        a('s_add_u32 s%d, s30, s27' % F1)
        a('s_and_b32 s27, s31, 1')
        a('s_lshl_b32 s27, s27, 7')
        a('s_and_b32 s28, s31, 30')
        a('s_add_u32 s27, s27, s28')
        a('s_lshr_b32 s28, s20, 1')
        a('s_lshl_b32 s28, s28, 5')
        a('s_add_u32 s27, s27, s28')
        a('s_add_u32 s27, s27, s36')
        a('s_add_u32 s27, s27, 4096')
        a('s_add_u32 s%d, s30, s27' % F2)
        a('v_mov_b32 v15, s%d' % F0)
        a('v_writelane_b32 v15, s%d, 1' % F1)
        a('v_writelane_b32 v15, s%d, 2' % F2)
        a('v_mov_b32 v23, 0')
        a('s_mov_b64 exec, 7')
        a('buffer_store_byte v23, v15, %s, 0 offen sc1' % sr(S_WS))
        a('s_mov_b64 exec, -1')
        fin_rest(a)
        a('v_lshrrev_b32 v157, 1, v1')
        a('v_lshlrev_b32 v157, 7, v157')
        a('v_lshlrev_b32 v24, 2, v2')
        a('v_sub_u32 v24, v3, v24')
        a('v_mov_b32 v26, 0x3f80')
        a('v_mov_b32 v27, 0x3f800000')
        a('v_cmp_eq_u32 vcc, 0, v24')
        a('v_cndmask_b32 v20, 0, v26, vcc')
        a('v_cmp_eq_u32 vcc, 1, v24')
        a('v_cndmask_b32 v21, 0, v27, vcc')
        a('v_or_b32 v20, v20, v21')
        a('v_cmp_eq_u32 vcc, 2, v24')
        a('v_cndmask_b32 v21, 0, v26, vcc')
        a('v_cmp_eq_u32 vcc, 3, v24')
        a('v_cndmask_b32 v25, 0, v27, vcc')
        a('v_or_b32 v21, v21, v25')
        a('v_lshl_add_u32 v22, v2, 2, v4')
        a('v_lshlrev_b32 v22, 5, v22')
        a('v_lshl_add_u32 v22, v5, 3, v22')
        a('s_lshl_b32 s30, s36, 9')
        a('s_add_u32 s30, s30, 0x%x' % (XCH + 2048))
        a('v_add_u32 v22, s30, v22')

    def hook(a, ks, ph):
        if ks == RDY_KS and ph == 0:
            assert ks + 2 in GST
            a('s_waitcnt vmcnt(0)')
        if ks == RDY_KS and ph == 1:
            a('s_cmp_lg_u32 s20, 0')
            a('s_cbranch_scc1 c_nrdy')
            a('s_getreg_b32 s30, hwreg(HW_REG_XCC_ID, 0, 4)')
            a('s_or_b32 s30, s30, 0x80')
            a('s_and_b32 s31, s2, 7')
            a('s_lshl_b32 s31, s31, 5')
            a('s_lshr_b32 s29, s2, 3')
            a('s_add_u32 s31, s31, s29')
            a('v_mov_b32 v23, s30')
            a('v_mov_b32 v24, 0')
            a('s_mov_b64 exec, 1')
            a('buffer_store_byte v23, v24, %s, s31 offen sc1' % sr(S_DBG))
            a('s_mov_b64 exec, -1')
            a.label('c_nrdy')
        if ph == 1 and ks in T_KS:
            assert ks > RDY_KS
            lb = uid('t')
            a('s_cmp_lg_u32 s20, %d' % (ks & 7))
            a('s_cbranch_scc1 %s' % lb)
            touch_item(a, 157, 156)
            a.label(lb)

    gemm96_main(a, 'k1', lambda ks: (ks % NS1) * SLOT, lambda ks: (ks % NS1) * SLOT + 6144, XCH, 'g', 'e1', extra, hook, (2, 3))
    a('ds_read_b64_tr_b16 v[26:27], v22')
    a('v_mov_b32 v23, 0x%x' % CTRL)
    a('ds_read_b32 v24, v23')
    PK = 144
    for t in range(6):
        a('v_cvt_pk_bf16_f32 v%d, v%d, v%d' % (PK + 2 * t, ACC + 4 * t, ACC + 4 * t + 1))
        a('v_cvt_pk_bf16_f32 v%d, v%d, v%d' % (PK + 1 + 2 * t, ACC + 4 * t + 2, ACC + 4 * t + 3))
    a('s_waitcnt lgkmcnt(0)')
    a('v_readfirstlane_b32 s%d, v24' % FAST)
    PB = 48
    for s in range(4):
        src = PK + 2 * (3 * (s & 1) + (1 - (s >> 1)))
        a('v_mfma_f32_16x16x16_bf16 %s, v[26:27], %s, 0' % (vr(PB + 4 * s, 4), vr(src, 2)))
    TV = 64
    for p in range(2):
        a('v_mfma_f32_16x16x16_bf16 %s, %s, v[20:21], 0' % (vr(TV + 4 * p, 4), vr(PK + 2 * (3 * p + 2), 2)))
    TB = 72
    for s in (2, 3, 0, 1):
        p = PB + 4 * s
        a('v_cvt_pk_bf16_f32 v%d, v%d, v%d' % (TB + 12 * s + 2, p, p + 1))
        a('v_cvt_pk_bf16_f32 v%d, v%d, v%d' % (TB + 12 * s + 3, p + 2, p + 3))
    a('s_xor_b32 s30, s%d, 0x10000' % S_PQ)
    a('buffer_store_dwordx2 %s, v%d, %s, s%d offen sc1' % (vr(TB + 12 * 2 + 2, 2), V_L8, sr(S_WS), S_PQ))
    a('buffer_store_dwordx2 %s, v%d, %s, s30 offen sc1' % (vr(TB + 12 * 3 + 2, 2), V_L8, sr(S_WS)))
    FB = 120
    softmax_sets(a, 2, PB, TB, FB, 28)
    for p in range(2):
        for pm in range(2):
            a('v_mfma_f32_16x16x16_bf16 %s, %s, v[20:21], 0' % (vr(72 + 4 * (2 * p + pm), 4), vr(FB + 4 * p + 2 * pm, 2)))
    for p in range(2):
        a('v_cvt_pk_bf16_f32 v%d, v%d, v%d' % (88 + 2 * p, TV + 4 * p, TV + 4 * p + 1))
        a('v_cvt_pk_bf16_f32 v%d, v%d, v%d' % (89 + 2 * p, TV + 4 * p + 2, TV + 4 * p + 3))
    for i in range(4):
        a('v_cvt_pk_bf16_f32 v%d, v%d, v%d' % (92 + 2 * i, 72 + 4 * i, 73 + 4 * i))
        a('v_cvt_pk_bf16_f32 v%d, v%d, v%d' % (93 + 2 * i, 74 + 4 * i, 75 + 4 * i))
    RB = 128
    for p in range(2):
        for pm in range(2):
            r1, r2 = RB + 4 * pm, RB + 4 * (2 + pm)
            a('v_mfma_f32_16x16x16_bf16 %s, %s, %s, %s' % (vr(r1, 4), vr(92 + 2 * (2 * p + pm), 2), vr(88 + 2 * p, 2), '0' if p == 0 else vr(r1, 4)))
            a('v_mfma_f32_16x16x16_bf16 %s, %s, v[16:17], %s' % (vr(r2, 4), vr(92 + 2 * (2 * p + pm), 2), '0' if p == 0 else vr(r2, 4)))
    a('s_lshl_b32 s30, s20, 12')
    a('v_add_u32 v23, s30, v6')
    for i in range(4):
        a('ds_write_b128 v23, %s offset:%d' % (vr(RB + 4 * i, 4), i * 1024))
    a('s_lshl_b32 s30, s20, 10')
    a('v_add_u32 v24, s30, v6')
    ko_setup(a)
    a('s_waitcnt lgkmcnt(0)')
    bar(a, 'e2')
    for m in range(4):
        a('ds_read_b128 %s, v24 offset:%d' % (vr(48 + 4 * m, 4), m * 8192))
    for m in range(1, 4):
        a('s_waitcnt lgkmcnt(%d)' % (3 - m))
        for r in range(4):
            a('v_add_f32 v%d, v%d, v%d' % (48 + r, 48 + r, 48 + 4 * m + r))
    a('s_mov_b64 exec, s[%d:%d]' % (S_MASK, S_MASK + 1))
    a('buffer_store_dwordx4 v[48:51], v%d, %s, s%d offen sc1' % (V_PART, sr(S_WS), S_PART))
    a('s_mov_b64 exec, -1')
    stamp(a, 4)


def ko_setup(a):
    a('s_lshr_b32 s21, s2, 3')
    a('s_and_b32 s22, s2, 7')
    a('s_lshl_b32 s22, s22, 3')
    a('s_add_u32 s22, s22, s20')
    a('s_lshl_b32 s22, s22, 17')
    a('s_lshl_b32 s23, s21, 9')
    a('s_add_u32 s22, s22, s23')
    a('s_add_u32 s23, s22, 0x10000')
    a('v_lshlrev_b32 v7, 3, v1')
    a('s_lshr_b32 s24, s20, 1')
    a('s_lshl_b32 s24, s24, 7')
    a('s_add_u32 s24, s24, s21')
    a('s_mul_i32 s24, s24, %d' % PSTR)
    a('s_add_u32 s24, s24, 0x%x' % WS_PART)
    a('s_and_b32 s25, s20, 1')
    a('s_lshl_b32 s26, s25, 10')
    a('s_lshl_b32 s27, s25, 6')
    a('s_add_u32 s26, s26, s24')
    a('s_add_u32 s27, s27, s24')
    a('s_add_u32 s27, s27, 2048')
    a('v_lshlrev_b32 v8, 4, v2')
    for s in range(2):
        a('buffer_load_dwordx2 %s, v7, %s, s%d offen sc1' % (vr(24 + 12 * s + 2, 2), sr(S_WS), 22 + s))


def cons_ko(a):
    PB, TB, FB = 16, 24, 52
    a('s_mov_b32 s28, %d' % TMO)
    a('s_waitcnt vmcnt(1)')
    a('s_branch ko_pqc')
    a.label('ko_pq')
    for s in range(2):
        a('buffer_load_dwordx2 %s, v7, %s, s%d offen sc1' % (vr(TB + 12 * s + 2, 2), sr(S_WS), 22 + s))
    a('s_waitcnt vmcnt(0)')
    a.label('ko_pqc')
    a('s_sub_u32 s28, s28, 1')
    a('s_cbranch_scc1 ko_pq_ok')
    a('v_max3_u32 v9, v%d, v%d, v%d' % (TB + 2, TB + 3, TB + 14))
    a('v_max_u32 v9, v9, v%d' % (TB + 15))
    a('v_cmp_eq_u32 vcc, -1, v9')
    a('s_cbranch_vccnz ko_pq')
    a.label('ko_pq_ok')
    stamp(a, 5)
    KV, ZZ = 64, 80

    def part_loads():
        for j in range(4):
            a('s_add_u32 s30, s26, %d' % (32 * PSTR * j))
            a('s_add_u32 s31, s27, %d' % (32 * PSTR * j))
            a('buffer_load_dwordx4 %s, v6, %s, s30 offen sc1' % (vr(KV + 4 * j, 4), sr(S_WS)))
            a('buffer_load_dwordx4 %s, v8, %s, s31 offen sc1' % (vr(ZZ + 4 * j, 4), sr(S_WS)))
    a('s_lshl_b32 s30, s20, 11')
    a('s_add_u32 s30, s30, 0x%x' % KOX)
    a('v_add_u32 v9, s30, v6')
    softmax_sets(a, 2, PB, TB, FB, 10)
    a('s_mov_b32 s28, %d' % TMO)
    a.label('ko_pp')
    part_loads()
    a('s_sub_u32 s28, s28, 1')
    a('s_cbranch_scc1 ko_pp_ok')
    a('s_waitcnt vmcnt(0)')
    a('v_max3_u32 v11, v%d, v%d, v%d' % (KV, KV + 1, KV + 2))
    a('v_max3_u32 v12, v%d, v%d, v%d' % (KV + 3, KV + 4, KV + 5))
    for i in range(6, 30, 4):
        a('v_max3_u32 v11, v11, v%d, v%d' % (KV + i, KV + i + 1))
        a('v_max3_u32 v12, v12, v%d, v%d' % (KV + i + 2, KV + i + 3))
    a('v_max3_u32 v11, v11, v%d, v%d' % (KV + 30, KV + 31))
    a('v_max_u32 v11, v11, v12')
    a('v_cmp_eq_u32 vcc, -1, v11')
    a('s_cbranch_vccnz ko_pp')
    a.label('ko_pp_ok')
    a('s_waitcnt vmcnt(0)')
    stamp(a, 6)
    for B in (KV, ZZ):
        for r in range(4):
            a('v_add_f32 v%d, v%d, v%d' % (B + r, B + r, B + 4 + r))
            a('v_add_f32 v%d, v%d, v%d' % (B + 8 + r, B + 8 + r, B + 12 + r))
        for r in range(4):
            a('v_add_f32 v%d, v%d, v%d' % (B + r, B + r, B + 8 + r))
    a('ds_write_b128 v9, %s' % vr(KV, 4))
    a('ds_write_b128 v9, %s offset:1024' % vr(ZZ, 4))
    a('s_waitcnt lgkmcnt(0)')
    bar(a, 'o1')
    RD = 64
    for t in range(2):
        for kz in range(2):
            for qd in range(4):
                a('ds_read_b128 %s, v6 offset:%d' % (vr(RD + 4 * (8 * t + 4 * kz + qd), 4), KOX + (2 * qd + t) * 2048 + kz * 1024))
    OPA = 128
    for t in range(2):
        for kz in range(2):
            i = 2 * t + kz
            B = RD + 16 * i
            a('s_waitcnt lgkmcnt(%d)' % (12 - 4 * i))
            for r in range(4):
                a('v_add_f32 v%d, v%d, v%d' % (B + r, B + r, B + 4 + r))
                a('v_add_f32 v%d, v%d, v%d' % (B + 8 + r, B + 8 + r, B + 12 + r))
            for r in range(4):
                a('v_add_f32 v%d, v%d, v%d' % (B + r, B + r, B + 8 + r))
            a('v_cvt_pk_bf16_f32 v%d, v%d, v%d' % (OPA + 4 * kz + 2 * t, B, B + 1))
            a('v_cvt_pk_bf16_f32 v%d, v%d, v%d' % (OPA + 4 * kz + 2 * t + 1, B + 2, B + 3))
    ND = 64
    for s in range(2):
        a('v_mfma_f32_16x16x32_bf16 %s, %s, %s, 0' % (vr(ND + 8 * s, 4), vr(OPA, 4), vr(FB + 4 * s, 4)))
        a('v_mfma_f32_16x16x32_bf16 %s, %s, %s, 0' % (vr(ND + 8 * s + 4, 4), vr(OPA + 4, 4), vr(FB + 4 * s, 4)))
    for s in range(2):
        n = ND + 8 * s
        d = n + 4
        T = 16 + 8 * s
        a('v_cvt_pk_bf16_f32 v%d, v%d, v%d' % (T, d, d))
        a('v_cvt_pk_bf16_f32 v%d, v%d, v%d' % (T + 1, n, n + 1))
        a('v_cvt_pk_bf16_f32 v%d, v%d, v%d' % (T + 2, n + 2, n + 3))
        a('v_lshlrev_b32 v%d, 16, v%d' % (T, T))
        a('v_add_f32 v%d, 0x358637bd, v%d' % (T, T))
        a('v_cvt_pk_bf16_f32 v%d, v%d, v%d' % (T, T, T))
        a('v_lshlrev_b32 v%d, 16, v%d' % (T, T))
        a('v_rcp_f32 v%d, v%d' % (T, T))
        a('v_lshlrev_b32 v%d, 16, v%d' % (T + 3, T + 1))
        a('v_and_b32 v%d, 0xffff0000, v%d' % (T + 4, T + 1))
        a('v_lshlrev_b32 v%d, 16, v%d' % (T + 5, T + 2))
        a('v_and_b32 v%d, 0xffff0000, v%d' % (T + 6, T + 2))
        for i in range(4):
            a('v_mul_f32 v%d, v%d, v%d' % (T + 3 + i, T, T + 3 + i))
        a('v_cvt_pk_bf16_f32 v%d, v%d, v%d' % (T, T + 3, T + 4))
        a('v_cvt_pk_bf16_f32 v%d, v%d, v%d' % (T + 1, T + 5, T + 6))
        gstore(a, 'buffer_store_dwordx2 %s, v7, %s, s%d offen' % (vr(T, 2), sr(S_WS), 22 + s))


def w64_addr(a, k2, WA, base):
    map64(a)
    a('s_lshr_b32 s23, s20, 1')
    a('s_add_u32 s24, s21, s23')
    a('s_and_b32 s25, s20, 1')
    a('v_lshl_add_u32 v14, v2, %d, v4' % (2 if k2 else 3))
    a('v_lshlrev_b32 v14, 7, v14')
    a('v_lshl_add_u32 v14, v5, 3, v14')
    a('v_and_b32 v15, 1, v2')
    a('v_lshlrev_b32 v15, 1, v15')
    a('v_lshrrev_b32 v13, 1, v4')
    a('v_or_b32 v15, v15, v13')
    a('s_lshl_b32 s26, s25, 1')
    a('v_xor_b32 v15, s26, v15')
    a('v_lshl_add_u32 v14, v15, 5, v14')
    a('s_lshl_b32 s26, s25, 12')
    a('s_add_u32 s26, s26, 0x%x' % base)
    a('v_add_u32 v%d, s26, v14' % WA)
    for s in range(1, 4):
        a('v_xor_b32 v%d, %d, v%d' % (WA + s, 32 * s, WA))


def cons_k2(a):
    WA, AC, AF, WB, XR = 8, 16, 32, 64, 164
    w64_addr(a, True, WA, W2B)
    a('s_lshl_b32 s26, s23, 11')
    a('s_lshl_b32 s27, s25, 6')
    a('s_add_u32 s26, s26, s27')
    a('s_add_u32 s26, s26, 0x%x' % XT)
    a('v_lshlrev_b32 v13, 7, v3')
    a('v_lshl_add_u32 v13, v2, 3, v13')
    a('v_add_u32 v13, s26, v13')
    set_flag(a, F0, 14, 15)
    bar(a, 'd1')
    stamp(a, 7)

    def wreads(i, b):
        for s in range(4):
            for e in range(2):
                a('ds_read_b64_tr_b16 %s, v%d offset:%d' % (vr(WB + 16 * b + 4 * s + 2 * e, 2), WA + s, i * 8192 + e * 2048))
    for nt in range(2):
        a('ds_read_b64 %s, v13 offset:%d' % (vr(XR + 2 * nt, 2), nt * 32))
    for i in range(6):
        wreads(i, i)
    a('s_and_b32 s30, s2, 7')
    a('s_lshl_b32 s30, s30, 8')
    a('s_and_b32 s31, s24, 15')
    a('s_lshr_b32 s31, s31, 1')
    a('s_lshl_b32 s31, s31, 5')
    a('s_add_u32 s30, s30, s31')
    a('s_add_u32 s30, s30, 0x%x' % WS_FLAG)
    a('v_lshlrev_b32 v14, 2, v1')
    a('s_lshl_b32 s29, s24, 16')
    a('s_lshl_b32 s31, s25, 10')
    a('s_add_u32 s27, s29, s31')
    a('s_lshl_b32 s32, s20, 11')
    a('s_add_u32 s32, s32, 0x%x' % KOX)
    a('v_add_u32 v12, s32, v6')
    a('v_xor_b32 v13, 0x800, v12')
    poll_flags(a, 30, 8, 14, 15)
    stamp(a, 8)
    for i in range(8):
        if i and i % 2 == 0:
            a('s_add_u32 s27, s27, 4096')
        for e in range(2):
            a('buffer_load_dwordx2 %s, v7, %s, s27 offen offset:%d sc1' % (vr(AF + 4 * i + 2 * e, 2), sr(S_WS), (i % 2) * 2048 + e * 512))
    a('s_lshl_b32 s31, s22, 4')
    a('s_add_u32 s28, s29, s31')
    a('s_lshl_b32 s31, s25, 10')
    a('s_add_u32 s28, s28, s31')
    a('s_add_u32 s28, s28, 0x%x' % OFF_H)
    a('v_lshlrev_b32 v14, 4, v3')
    a('s_lshr_b32 s31, s22, 7')
    a('s_and_b32 s26, s31, 1')
    a('s_lshl_b32 s26, s26, 10')
    a('s_add_u32 s29, s29, s26')
    a('s_lshr_b32 s31, s31, 1')
    a('s_lshl_b32 s31, s31, 8')
    a('s_add_u32 s29, s29, s31')
    a('s_lshl_b32 s31, s25, 3')
    a('s_add_u32 s29, s29, s31')
    a('s_add_u32 s29, s29, 0x%x' % OFF_S)
    for i in range(8):
        b = i % 6
        lg = {0: 0, 6: 8, 7: 0}.get(i)
        a('s_waitcnt vmcnt(%d)%s' % (14 - 2 * i, '' if lg is None else ' lgkmcnt(%d)' % lg))
        for s in (2, 3, 0, 1):
            a('v_mfma_f32_16x16x32_bf16 %s, %s, %s, %s' % (vr(AC + 4 * s, 4), vr(WB + 16 * b + 4 * s, 4), vr(AF + 4 * i, 4), '0' if i == 0 else vr(AC + 4 * s, 4)))
        if i < 2:
            wreads(6 + i, i)
    stamp(a, 9)
    for s in range(2):
        a('ds_write_b128 v12, %s offset:%d' % (vr(AC + 8 + 4 * s, 4), s * 1024))
    T = 40
    for i in range(4):
        a('v_lshlrev_b32 v%d, 16, v%d' % (T + 2 * i, XR + i))
        a('v_and_b32 v%d, 0xffff0000, v%d' % (T + 2 * i + 1, XR + i))
    a('v_mov_b32 v52, 0x3f803f80')
    a('s_waitcnt lgkmcnt(0)')
    bar(a, 'x2')
    for s in range(2):
        a('ds_read_b128 %s, v13 offset:%d' % (vr(32 + 4 * s, 4), s * 1024))
    OUTR = HKEEP
    S1, S2 = 54, 55
    for s in range(2):
        a('s_waitcnt lgkmcnt(%d)' % (1 - s))
        for r in range(4):
            a('v_add_f32 v%d, v%d, v%d' % (AC + 4 * s + r, AC + 4 * s + r, 32 + 4 * s + r))
    for i in range(8):
        a('v_add_f32 v%d, v%d, v%d' % (T + i, T + i, AC + i))
    for i in range(4):
        a('v_cvt_pk_bf16_f32 v%d, v%d, v%d' % (OUTR + i, T + 2 * i, T + 2 * i + 1))
    gstore(a, 'buffer_store_dwordx4 %s, v6, %s, s28 offen' % (vr(OUTR, 4), sr(S_WS)))
    for i in range(4):
        a('v_dot2_f32_bf16 v%d, v%d, v52, %s' % (S1, OUTR + i, 'v%d' % S1 if i else '0'))
        a('v_dot2_f32_bf16 v%d, v%d, v%d, %s' % (S2, OUTR + i, OUTR + i, 'v%d' % S2 if i else '0'))
    butterfly(a, [('v_add_f32', S1, 52), ('v_add_f32', S2, 53)])
    gstore(a, 'buffer_store_dwordx2 v[54:55], v14, %s, s29 offen' % sr(S_WS))
    set_flag(a, F1, 56, 57)
    stamp(a, 10)


def cons_k3(a):
    map3(a)
    STR, B1R = 20, 120

    def extra(a):
        a('v_lshlrev_b32 v46, 3, v2')
        a('s_lshl_b32 s30, s36, 5')
        a('s_add_u32 s30, s30, s22')
        for seg in range(3):
            a('buffer_load_dwordx2 %s, v46, %s, s30 offen offset:%d' % (vr(B1R + 2 * seg, 2), sr(S_B1), seg * 64))

    def hook(a, ks, ph):
        if ks == 6 and ph == 1:
            for p in range(2):
                a('s_lshl_b32 s30, s%d, 12' % (24 if p == 0 else 37))
                a('s_add_u32 s30, s30, 0x%x' % OFF_S)
                for i in range(2):
                    a('buffer_load_dwordx4 %s, v6, %s, s30 offen offset:%d sc1' % (vr(STR + 8 * p + 4 * i, 4), sr(S_WS), i * 1024))
        if ks == 13 and ph == 1:
            a('s_waitcnt vmcnt(0)')
            for p in range(2):
                b = STR + 8 * p
                a('v_add_f32 v%d, v%d, v%d' % (b, b, b + 2))
                a('v_add_f32 v%d, v%d, v%d' % (b + 1, b + 1, b + 3))
                a('v_add_f32 v%d, v%d, v%d' % (b + 4, b + 4, b + 6))
                a('v_add_f32 v%d, v%d, v%d' % (b + 5, b + 5, b + 7))
            for p in range(2):
                b = STR + 8 * p
                a('v_add_f32 v%d, v%d, v%d' % (b, b, b + 4))
                a('v_add_f32 v%d, v%d, v%d' % (b + 1, b + 1, b + 5))
            butterfly(a, [('v_add_f32', STR, STR + 2), ('v_add_f32', STR + 1, STR + 3), ('v_add_f32', STR + 8, STR + 10), ('v_add_f32', STR + 9, STR + 11)])
        if ks == 14 and ph == 1:
            gemm96_main.finish_stats(STR, STR + 1, 36, 37)
            gemm96_main.finish_stats(STR + 8, STR + 9, 38, 39)
        if ks == 15 and ph == 1:
            a('s_lshl_b32 s27, s36, 9')
            a('s_mul_i32 s25, s34, 3 * 1024')
            a('s_add_u32 s25, s25, s27')
            for p in range(2):
                a('s_lshl_b32 s%d, s%d, 12' % (28 + p, 24 if p == 0 else 37))
            a('v_and_b32 v22, 1, v2')
            a('v_cmp_eq_u32 vcc, 0, v22')
            a('v_mov_b32 v22, s28')
            a('v_mov_b32 v23, s29')
            a('v_cndmask_b32 v22, v23, v22, vcc')
            a('v_lshrrev_b32 v23, 1, v2')
            a('v_lshl_add_u32 v22, v23, 8, v22')
            a('v_lshl_add_u32 v22, v3, 4, v22')
            for seg in range(3):
                b = B1R + 2 * seg
                B = 72 + 4 * seg
                a('v_lshlrev_b32 v%d, 16, v%d' % (B, b))
                a('v_and_b32 v%d, 0xffff0000, v%d' % (B + 1, b))
                a('v_lshlrev_b32 v%d, 16, v%d' % (B + 2, b + 1))
                a('v_and_b32 v%d, 0xffff0000, v%d' % (B + 3, b + 1))

    gemm96_main(a, 'k3', lambda ks: W3A[ks], a3addr, XCH3, 'q', 'e3', extra, hook, (11, 12))
    a('s_cmp_eq_u32 s34, 15')
    a('s_cbranch_scc1 k3_done')
    for seg in range(3):
        if seg == 1:
            a('s_cmp_eq_u32 s34, 14')
            a('s_cbranch_scc1 k3_done')
        a('s_waitcnt lgkmcnt(%d)' % (2 - seg))
        B = 72 + 4 * seg
        for p in range(2):
            ac = ACC + 4 * (3 * p + seg)
            for r in range(4):
                a('v_fma_f32 v%d, -v%d, v%d, v%d' % (ac + r, 36 + 2 * p, 132 + 4 * seg + r, ac + r))
        for p in range(2):
            ac = ACC + 4 * (3 * p + seg)
            for r in range(4):
                a('v_fma_f32 v%d, v%d, v%d, v%d' % (ac + r, 37 + 2 * p, ac + r, B + r))
        for p in range(2):
            ac = ACC + 4 * (3 * p + seg)
            for r in range(4):
                a('v_mul_f32 v%d, v%d, |v%d|' % (ac + r, ac + r, ac + r))
        for p in range(2):
            ac = ACC + 4 * (3 * p + seg)
            T = 144 + 2 * (2 * seg + p)
            a('v_cvt_pk_bf16_f32 v%d, v%d, v%d' % (T, ac, ac + 1))
            a('v_cvt_pk_bf16_f32 v%d, v%d, v%d' % (T + 1, ac + 2, ac + 3))
        for p in range(2):
            T = 144 + 2 * (2 * seg + p)
            a('v_pk_max_i16 v%d, v%d, 0' % (T, T))
            a('v_pk_max_i16 v%d, v%d, 0' % (T + 1, T + 1))
        T = 144 + 4 * seg
        a('v_permlane16_swap_b32 v%d, v%d' % (T, T + 2))
        a('v_permlane16_swap_b32 v%d, v%d' % (T + 1, T + 3))
        gstore(a, 'buffer_store_dwordx4 %s, v22, %s, s25 offen offset:%d' % (vr(T, 4), sr(S_WS), seg * 1024))
    a.label('k3_done')


def cons_k4(a):
    WA, AC, WB, AF, BR = 8, 24, 40, 88, 164
    NAF = 18
    w64_addr(a, False, 16, 0)
    for s in range(4):
        a('v_mov_b32 v%d, v%d' % (WA + s, 16 + s))
    for b in (2, 1):
        for s in range(4):
            a('v_add_u32 v%d, 0x%x, v%d' % (WA + 4 * b + s, b * BANK, WA + s))

    def wreads(i):
        wb, wo = divmod(8192 * W4P[i], BANK)
        for s in range(4):
            for e in range(2):
                a('ds_read_b64_tr_b16 %s, v%d offset:%d' % (vr(WB + 16 * (i % 3) + 4 * s + 2 * e, 2), WA + 4 * wb + s, wo + e * 512))
    wreads(0)
    wreads(1)
    set_flag(a, F2, 21, 22)
    stamp(a, 13)
    a('s_lshl_b32 s27, s25, 6')
    a('s_add_u32 s27, s27, s22')
    a('v_lshlrev_b32 v21, 3, v2')
    for nt in range(2):
        a('buffer_load_dwordx2 %s, v21, %s, s27 offen offset:%d' % (vr(BR + 2 * nt, 2), sr(S_B2), nt * 32))
    a('s_lshl_b32 s26, s24, 14')
    a('s_add_u32 s26, s26, s27')
    a('v_and_b32 v20, 1, v2')
    a('v_lshlrev_b32 v20, 5, v20')
    a('v_lshrrev_b32 v22, 1, v2')
    a('v_lshl_add_u32 v20, v22, 4, v20')
    a('v_lshl_add_u32 v20, v3, 10, v20')
    a('s_and_b32 s30, s2, 7')
    a('s_lshl_b32 s30, s30, 8')
    a('s_and_b32 s31, s24, 15')
    a('s_lshr_b32 s31, s31, 1')
    a('s_lshl_b32 s31, s31, 5')
    a('s_add_u32 s30, s30, s31')
    a('s_add_u32 s30, s30, 0x%x' % (WS_FLAG + 4096))
    a('v_lshlrev_b32 v22, 2, v1')
    a('s_lshl_b32 s29, s24, 16')
    a('s_lshl_b32 s31, s25, 10')
    a('s_add_u32 s29, s29, s31')
    a('s_lshl_b32 s32, s20, 11')
    assert W4P[3] == W4P[2] + 1 or True
    a('s_lshr_b32 s31, s20, 2')
    a('s_cmp_eq_u32 s31, 0')
    a('s_mov_b32 s31, 0x%x' % (8192 * W4P[3] - 8192))
    a('s_cselect_b32 s31, 0x%x, s31' % (8192 * W4P[2]))
    a('s_add_u32 s32, s32, s31')
    a('v_add_u32 v7, s32, v6')
    a('s_waitcnt lgkmcnt(0)')
    bar(a, 'r0')
    poll_flags(a, 30, 8, 22, 23)
    stamp(a, 14)
    q = {}

    def aload(i):
        a('s_add_u32 s31, s29, %d' % ((i // 2) * 4096))
        q[i] = a('buffer_load_dwordx4 %s, v6, %s, s31 offen offset:%d sc1' % (vr(AF + 4 * (i % NAF), 4), sr(S_WS), (i % 2) * 2048))
    for i in range(NAF):
        aload(i)
    for i in range(NP4):
        b = i % 3
        if i == R1_AT:
            a('s_waitcnt lgkmcnt(0)')
            bar(a, 'r1')
        a.wait_vm(q[i], ' lgkmcnt(%d)' % (8 if i + 1 < NP4 else 0))
        if i + 2 < NP4:
            wreads(i + 2)
        if i == NP4 - 1:
            a('s_cmp_eq_u32 s25, 1')
            a('s_cbranch_scc1 k4_skip')
        for s in (2, 3, 0, 1):
            a('v_mfma_f32_16x16x32_bf16 %s, %s, %s, %s' % (vr(AC + 4 * s, 4), vr(WB + 16 * b + 4 * s, 4), vr(AF + 4 * (i % NAF), 4), '0' if i == 0 else vr(AC + 4 * s, 4)))
        if i + NAF < NP4:
            aload(i + NAF)
    a.label('k4_skip')
    a('s_nop 7')
    for s in range(2):
        a('ds_write_b128 v7, %s offset:%d' % (vr(AC + 8 + 4 * s, 4), s * 1024))
    a('v_xor_b32 v7, 0x800, v7')
    HB = 96
    for i in range(4):
        a('v_lshlrev_b32 v%d, 16, v%d' % (HB + 2 * i, HKEEP + i))
        a('v_and_b32 v%d, 0xffff0000, v%d' % (HB + 2 * i + 1, HKEEP + i))
        a('v_lshlrev_b32 v%d, 16, v%d' % (104 + i, BR + i))
        a('v_and_b32 v%d, 0xffff0000, v%d' % (BR + i, BR + i))
    for i in range(4):
        a('v_add_f32 v%d, v%d, v%d' % (HB + 2 * i, HB + 2 * i, 104 + i))
        a('v_add_f32 v%d, v%d, v%d' % (HB + 2 * i + 1, HB + 2 * i + 1, BR + i))
    a('s_waitcnt lgkmcnt(0)')
    bar(a, 'x4')
    for s in range(2):
        a('ds_read_b128 %s, v7 offset:%d' % (vr(112 + 4 * s, 4), s * 1024))
    for s in range(2):
        a('s_waitcnt lgkmcnt(%d)' % (1 - s))
        for r in range(4):
            a('v_add_f32 v%d, v%d, v%d' % (AC + 4 * s + r, AC + 4 * s + r, 112 + 4 * s + r))
    O = 56
    for i in range(8):
        a('v_add_f32 v%d, v%d, v%d' % (HB + i, HB + i, AC + i))
    for i in range(4):
        a('v_cvt_pk_bf16_f32 v%d, v%d, v%d' % (O + i, HB + 2 * i, HB + 2 * i + 1))
    a('v_permlane16_swap_b32 v%d, v%d' % (O, O + 2))
    a('v_permlane16_swap_b32 v%d, v%d' % (O + 1, O + 3))
    a('buffer_store_dwordx4 %s, v20, %s, s26 offen' % (vr(O, 4), sr(S_OUT)))


def ring_loop(a, nk, ns, lag, per, issue, groups, bn, post=None):
    last = {}
    issued = 0
    for j, (lo, hi) in enumerate(groups):
        while issued < nk:
            i = issued
            ok = (i < ns or (j >= 1 and groups[j - 1][0] - 2 >= i - ns)) and (i - lo + 1) * per <= 62 and (i < hi or i < lo + lag)
            if not ok:
                break
            last[i] = issue(i)
            issued += 1
        assert issued >= hi, (j, issued, hi)
        a.wait_vm(last[hi - 1])
        if bn == 'g':
            stamp(a, 3 + j, 1)
        if bn == 'q':
            stamp(a, 3 + j, 3)
        bar(a, bn + str(j))
        if post and j in post:
            post[j]()


def prod_w(a):
    a.label('prod_w')
    a.hist = []
    a.vm_issued = 0
    a.bars = []
    a('s_sub_u32 s35, s20, 8')
    a('s_lshl_b32 s32, s35, 10')

    def w96_addr(k1, wstride, reg):
        a('s_mul_i32 s31, s35, %d' % (16 * wstride))
        a('s_add_u32 s31, s31, s22')
        a('v_lshrrev_b32 v%d, 2, v1' % reg)
        a('v_mul_u32_u24 v%d, 0x%x, v%d' % (reg, wstride, reg))
        a('v_bfe_u32 v15, v1, %d, 1' % (5 if k1 else 4))
        a('v_lshlrev_b32 v15, 1, v15')
        a('v_xor_b32 v15, v15, v5')
        a('v_lshl_add_u32 v%d, v15, 4, v%d' % (reg, reg))
        a('v_add_u32 v%d, s31, v%d' % (reg, reg))
    w96_addr(True, 3072, 7)

    def wissue1(i):
        a('s_add_u32 s29, s39, %d' % i)
        a('s_and_b32 s29, s29, 15')
        a('s_mul_i32 s29, s29, %d' % (32 * 3072))
        for seg in range(3):
            a('s_add_u32 m0, s32, 0x%x' % ((i % NS1) * SLOT + seg * 2048))
            a('s_add_u32 s30, s29, 0x%x' % (seg * 1024))
            q = a('buffer_load_dwordx4 v7, %s, s30 offen lds' % sr(S_WQ))
        if i == 2:
            a('s_mov_b32 m0, 0x%x' % (XCH1 + 2048))
            a('s_lshl_b32 s30, s34, 10')
            a('buffer_load_dwordx4 v6, %s, s30 offen lds' % sr(S_WP))
        return q
    ring_loop(a, 16, NS1, LAG1, 3, wissue1, G96, 'g')
    fin_rest(a)
    map64(a)
    a('s_lshl_b32 s31, s35, 13')
    a('s_add_u32 s31, s31, s22')
    a('v_lshrrev_b32 v8, 3, v1')
    a('v_bfe_u32 v9, v1, 1, 2')
    a('v_and_b32 v10, 1, v1')
    a('v_lshlrev_b32 v10, 4, v10')
    a('v_lshl_add_u32 v8, v8, 10, v10')
    a('v_add_u32 v8, s31, v8')
    a('v_bfe_u32 v10, v1, 4, 2')
    a('v_xor_b32 v10, v9, v10')
    a('v_lshl_add_u32 v11, v10, 5, v8')
    a('v_bfe_u32 v10, v1, 4, 1')
    a('v_xor_b32 v10, v9, v10')
    a('s_lshl_b32 s30, s35, 1')
    a('v_xor_b32 v10, s30, v10')
    a('v_lshl_add_u32 v12, v10, 5, v8')
    a('v_lshl_add_u32 v13, v9, 5, v8')
    a('s_lshl_b32 s36, s21, 14')

    def w2x():
        for i in range(8):
            for j in range(0, 8, 2):
                a('s_add_u32 m0, s32, 0x%x' % (W2B + 8192 * i + j * 1024))
                a('s_mov_b32 s30, 0x%x' % ((i * 64 + 8 * j) * 1024))
                a('buffer_load_dwordx4 v11, %s, s30 offen lds' % sr(S_WO))
        for j in range(0, 8, 2):
            a('s_add_u32 m0, s32, 0x%x' % (XT + j * 1024))
            a('s_add_u32 s30, s36, 0x%x' % (j * 8192))
            q = a('buffer_load_dwordx4 v13, %s, s30 offen lds' % sr(S_X))
        return q
    W2AT = env('W2AT', 1)
    if W2AT == 0:
        q_w2 = w2x()
    map3(a)
    w96_addr(False, 2752, 7)
    bar(a, 'e1')
    if W2AT == 1:
        q_w2 = w2x()
    bar(a, 'e2')
    if W2AT == 2:
        q_w2 = w2x()
    q3 = {}

    def w3(i):
        for seg in range(3):
            a('s_add_u32 m0, s32, 0x%x' % (W3A[i] + seg * 2048))
            a('s_mov_b32 s30, 0x%x' % (i * 32 * 2752 + seg * 64))
            q3[i] = a('buffer_load_dwordx4 v7, %s, s30 offen lds' % sr(S_W1))
    bar(a, 'o1')
    if W2AT == 3:
        q_w2 = w2x()
    W3N = env('W3N', 0)
    for i in range(W3N):
        w3(i)
    a.wait_vm(q_w2)
    bar(a, 'd1')
    for i in range(W3N, 10):
        w3(i)
    bar(a, 'x2')
    w3(10)
    w3(11)
    q4 = {}
    nxt = [0]

    def w4(after):
        while nxt[0] < NP4 and W4T[nxt[0]] == after:
            i = nxt[0]
            n = 8 if i < NP4 - 1 else 4
            for j in range(0, n, 2):
                a('s_add_u32 m0, s32, 0x%x' % (8192 * W4P[i] + j * 1024))
                a('s_mov_b32 s30, 0x%x' % ((i * 64 + 8 * j) * 1024))
                q4[i] = a('buffer_load_dwordx4 v12, %s, s30 offen lds' % sr(S_W2))
            nxt[0] += 1
    for g, (lo, hi) in enumerate(G96):
        a.wait_vm(q3[hi - 1])
        stamp(a, 3 + g, 3)
        bar(a, 'q%d' % g)
        if g == 0:
            for k in (12, 13, 14):
                w3(k)
        if g == 2:
            w3(15)
        w4('q%d' % g)
    a.wait_vm(q4[1])
    bar(a, 'e3')
    w4('e3')
    a.wait_vm(q4[NPUB0 - 1])
    stamp(a, 12, 3)
    bar(a, 'r0')
    w4('r0')
    assert nxt[0] == NP4
    a('s_waitcnt vmcnt(0)')
    stamp(a, 13, 3)
    bar(a, 'r1')
    stamp_store(a)
    a('s_endpgm')


def prod_a(a):
    a.label('prod_a')
    a.hist = []
    a.vm_issued = 0
    a.bars = []
    nt = 4
    a('s_sub_u32 s35, s20, 10')
    a('s_mul_i32 s32, s35, %d' % (nt * 1024))
    a('s_mul_i32 s31, s35, %d' % (nt * 16))
    a('s_add_u32 s31, s31, s21')
    a('s_lshl_b32 s31, s31, 10')
    a('v_lshlrev_b32 v15, 1, v2')
    a('v_mov_b32 v14, 0x78')
    a('v_lshrrev_b32 v15, v15, v14')
    a('v_and_b32 v15, 3, v15')
    a('v_xor_b32 v15, v15, v5')
    a('v_lshrrev_b32 v7, 2, v1')
    a('v_lshlrev_b32 v7, 10, v7')
    a('v_lshl_add_u32 v7, v15, 4, v7')
    a('v_add_u32 v7, s31, v7')

    def aissue1(i):
        a('s_add_u32 s29, s39, %d' % i)
        a('s_and_b32 s29, s29, 15')
        a('s_lshl_b32 s29, s29, 6')
        for rt in range(nt):
            a('s_add_u32 m0, s32, 0x%x' % ((i % NS1) * SLOT + 6144 + rt * 1024))
            a('s_add_u32 s30, s29, 0x%x' % (rt * 16384))
            q = a('buffer_load_dwordx4 v7, %s, s30 offen lds' % sr(S_X))
        return q
    ring_loop(a, 16, NS1, LAG1, nt, aissue1, G96, 'g')
    fin_rest(a)
    a('v_lshlrev_b32 v23, 2, v1')
    a('s_cmp_lg_u32 s20, 10')
    a('s_cbranch_scc1 pa_nr')
    a('s_mov_b32 s28, %d' % (4 * TMO))
    a('s_mov_b32 s29, 0')
    a.label('pa_rp')
    a('buffer_load_dword v22, v23, %s, 0 offen sc1' % sr(S_DBG))
    a('s_sub_u32 s28, s28, 1')
    a('s_cbranch_scc1 pa_rd')
    a('s_waitcnt vmcnt(0)')
    a('v_and_b32 v24, 0x80808080, v22')
    a('v_cmp_ne_u32 vcc, 0x80808080, v24')
    a('s_cbranch_vccnz pa_rp')
    a('s_getreg_b32 s30, hwreg(HW_REG_XCC_ID, 0, 4)')
    a('s_or_b32 s30, s30, 0x80')
    a('s_mul_i32 s30, s30, 0x01010101')
    a('v_cmp_ne_u32 vcc, s30, v22')
    a('s_and_b32 s31, s2, 7')
    a('s_lshl_b32 s31, s31, 3')
    a('s_lshr_b64 s[26:27], vcc, s31')
    a('s_and_b32 s26, s26, 0xff')
    a('s_cmp_eq_u32 s26, 0')
    a('s_cselect_b32 s29, %d, 0' % (0 if FORCE_SLOW else 1))
    a.label('pa_rd')
    a('s_waitcnt vmcnt(0)')
    a('v_mov_b32 v24, s29')
    a('v_mov_b32 v25, 0x%x' % CTRL)
    a('ds_write_b32 v25, v24')
    a('s_and_b32 s30, s2, 7')
    a('s_lshl_b32 s30, s30, 8')
    a('s_add_u32 s30, s30, 0x%x' % WS_FLAG)
    a('v_and_b32 v24, 1, v1')
    a('v_lshlrev_b32 v24, 7, v24')
    a('v_bfe_u32 v25, v1, 1, 2')
    a('v_min_u32 v25, 2, v25')
    a('v_lshl_add_u32 v24, v25, 11, v24')
    a('buffer_load_dword v27, v24, %s, s30 offen sc1' % sr(S_WS))
    a('s_waitcnt lgkmcnt(0)')
    a.label('pa_nr')
    a.vm_issued -= 2
    a('v_lshrrev_b32 v26, 1, v1')
    a('v_lshlrev_b32 v26, 7, v26')

    def paced(n):
        if not n:
            return
        lb, le = uid('pt'), uid('pe')
        a('s_cmp_lg_u32 s20, 11')
        a('s_cbranch_scc1 %s' % lb)
        for w in range(2):
            if w:
                a('s_branch %s' % le)
                a.label(lb)
                a('s_sleep %d' % (T_SL // 2))
            m = (n + 1 - w) // 2
            for i in range(m):
                if touch_item(a, 26, 27):
                    a.vm_issued -= 1
                    if i + 1 < m:
                        a('s_sleep %d' % T_SL)
        a.label(le)
    paced(T_PA[0])
    bar(a, 'e1')
    paced(T_PA[1])
    bar(a, 'e2')
    paced(T_PA[2])
    bar(a, 'o1')
    paced(T_PA[3])
    bar(a, 'd1')
    paced(T_PA[4])
    map3(a)
    a('s_mul_i32 s31, s35, %d' % (nt * 16))
    a('s_add_u32 s31, s31, s21')
    a('s_lshl_b32 s31, s31, 12')
    a('v_add_u32 v7, s31, v6')
    a('s_and_b32 s36, s2, 7')
    a('s_lshl_b32 s36, s36, 8')
    a('s_lshr_b32 s31, s2, 3')
    a('s_and_b32 s31, s31, 1')
    a('s_lshl_b32 s31, s31, 1')
    a('s_add_u32 s31, s31, s35')
    a('s_lshl_b32 s31, s31, 6')
    a('s_add_u32 s36, s36, s31')
    a('s_add_u32 s36, s36, 0x%x' % (WS_FLAG + 2048))
    bar(a, 'x2')
    poll_flags(a, 36, 16, 23, 22)
    stamp(a, 2, 3)

    def aissue3(i):
        for rt in range(nt):
            a('s_add_u32 m0, s32, 0x%x' % (a3addr(i) + rt * 1024))
            a('s_mov_b32 s30, 0x%x' % (OFF_H + rt * 65536 + i * 1024))
            q = a('buffer_load_dwordx4 v7, %s, s30 offen sc1 lds' % sr(S_WS))
        return q
    ring_loop(a, 16, 8, env('LAG3', 8), nt, aissue3, G96, 'q')
    paced(T_PA[5])
    stamp_store(a)
    a('s_endpgm')


def gen(a):
    a.raw('.globl %s' % NAME)
    a.raw('.p2align 8')
    a.raw('.type %s,@function' % NAME)
    a.label(NAME)
    a.bars = []
    a('s_cmp_ge_u32 s2, 256')
    a('s_cbranch_scc1 mega_exit')
    stamp_real(a, 0)
    stamp(a, 1)
    for s, off in ((S_X, 0), (S_WQ, 8), (S_WP, 16), (S_WS, 88), (S_WO, 24), (S_W1, 40), (S_W2, 56), (S_B1, 48), (S_B2, 64), (S_OUT, 72), (S_DBG, 80)):
        srd(a, s, off)
    lane_decomp(a)
    a('s_add_u32 s21, s20, 8')
    a('s_sub_u32 s20, s20, 4')
    a('s_cselect_b32 s20, s21, s20')
    a('s_mov_b32 s%d, 0' % FAST)
    a('s_and_b32 s30, s2, 7')
    a('s_lshr_b32 s31, s2, 3')
    a('s_lshr_b32 s21, s30, 1')
    a('s_lshl_b32 s21, s21, 2')
    a('s_and_b32 s22, s31, 3')
    a('s_add_u32 s33, s21, s22')
    a('s_and_b32 s21, s30, 1')
    a('s_lshl_b32 s21, s21, 3')
    a('s_lshr_b32 s22, s31, 2')
    a('s_add_u32 s34, s21, s22')
    a('s_lshl_b32 s21, s33, 7')
    a('s_lshl_b32 s22, s34, 6')
    a('s_lshl_b32 s39, s33, 1')
    a('s_add_u32 s39, s39, s34')
    a('s_lshl_b32 s39, s39, 1')
    a('s_waitcnt lgkmcnt(0)')
    srd_fin(a, S_X, 2048 * 1024)
    srd_fin(a, S_WQ, 512 * 3072)
    srd_fin(a, S_WP, 16384)
    srd_fin(a, S_WS, WS_SIZE)
    a('s_cmp_ge_u32 s20, 10')
    a('s_cbranch_scc1 prod_a')
    a('s_cmp_ge_u32 s20, 8')
    a('s_cbranch_scc1 prod_w')
    cons_k1(a)
    cons_ko(a)
    cons_k2(a)
    cons_k3(a)
    cons_k4(a)
    stamp_store(a)
    a.label('mega_exit')
    a('s_endpgm')
    bc = a.bars
    prod_w(a)
    assert a.bars == bc[:len(a.bars)], (a.bars, bc)
    prod_a(a)
    assert a.bars == bc[:len(a.bars)], (a.bars, bc)


def build():
    if NAME == 'mega_kernel':
        head = '; @launch kernel=%s grid=(256,1,1) block=(768,1,1) lds=163840\n' % NAME
    else:
        head = '; @launch grid=(256,1,1) block=(768,1,1) lds=163840\n'
    head += '.amdgcn_target "amdgcn-amd-amdhsa--gfx950"\n.text\n'
    a = Asm()
    gen(a)
    d = '''.section .rodata,"a"
.p2align 6
.amdhsa_kernel %s
  .amdhsa_next_free_vgpr 168
  .amdhsa_next_free_sgpr 102
  .amdhsa_accum_offset 168
  .amdhsa_group_segment_fixed_size 0
  .amdhsa_kernarg_size 96
  .amdhsa_user_sgpr_count 2
  .amdhsa_user_sgpr_kernarg_segment_ptr 1
  .amdhsa_system_sgpr_workgroup_id_x 1
.end_amdhsa_kernel
''' % NAME
    return head + a.text() + d


if __name__ == '__main__':
    open(sys.argv[1], 'w').write(build())
    if os.environ.get('V'):
        print('W4P', W4P, 'W4T', W4T, 'NPUB0', NPUB0, 'R1_AT', R1_AT, 'touch used', _tnext[0], 'of', len(TITEMS))
```

```python
import sys, os
sys.path.insert(0, os.path.dirname(__file__))
from dsl import Asm
from gen2 import MB, PSTR, env, vr, srd, srd_fin, bf16r, butterfly, lane_decomp, mk_groups, softmax_sets

NAME = os.environ.get('KNAME', 'mega_kernel')
STAMP = os.environ.get('STAMP')
OFF_H, OFF_S = 44032, 60416
WS_PART = 8 * MB
WS_FLAG = 9 * MB + 512 * 1024
WS_STAMP = 15 * MB
WS_SIZE = 16 * MB
FORCE_SLOW = env('FORCE_SLOW', 0)
TMO = 4096

S_X, S_WQ, S_WP, S_WS = 4, 8, 12, 16
S_WO, S_W1, S_W2, S_B1, S_B2, S_OUT, S_DBG = 40, 44, 48, 52, 56, 60, 64
FAST = 3
F0, F1, F2 = 0, 1, 39
BANK = 57344
SLOT = 14336
NS1 = 11
XCH1 = NS1 * SLOT
XCH3 = 159744
CTRL = 161792
KOX = 32768
W2B = 73728
XT = W2B + 65536
LAG1 = env('LAG1', 5)
RDY_KS = env('RDY_KS', 4)
POIS_KS = env('POIS_KS', 0)
RDY_AT = env('RDY_AT', 1)
WAIT_KS = env('WAIT_KS', 4)
LT1 = env('LT1', 1)
BPOS = env('BPOS', 3)
PST = env('PST', 0)

TCNT = {'wo': 4, 'x': 2, 'w1': 11, 'w2': 11, 'Fh': 3, 'Fr': 4}
TITEMS = []
for _e in os.environ.get('TLIST', 'wo,x,Fh,w2').split(','):
    if _e:
        _m, _, _hi = _e.partition(':')
        TITEMS += [(_m, i) for i in range(int(_hi or TCNT[_m]))]
T_KS = [int(v) for v in os.environ.get('T_KS', '6,6,7,7,8,8,9,9,9,10,10,10,11,11,11,12,12,12,13,13').split(',') if v]
T_PA = [int(v) for v in os.environ.get('T_PA', '0,0,0,0,0,0').split(',')]
T_SL = env('T_SL', 7)
_tnext = [0]


def sr(s):
    return 's[%d:%d]' % (s, s + 3)


def touch_item(a, vaddr, vdst, s0=30, s1=31):
    if _tnext[0] >= len(TITEMS):
        return False
    m, i = TITEMS[_tnext[0]]
    _tnext[0] += 1
    share_base(a, m, s0, s1)
    a('s_add_u32 s%d, s%d, %d' % (s0, s0, min(i * 4096, SREG[m][1] - 4096)))
    a('buffer_load_dword v%d, v%d, %s, s%d offen %s' % (vdst, vaddr, sr(SREG[m][0]), s0, 'sc1' if m[0] == 'F' else ''))
    return True


SCNT = {'wo': 128, 'x': 64, 'w1': 344, 'w2': 344, 'Fh': 72, 'Fr': 108}
SREG = {'wo': (S_WO, 16384), 'x': (S_X, 8192), 'w1': (S_W1, 44032), 'w2': (S_W2, 44032), 'Fh': (S_WS, 9216), 'Fr': (S_WS, 13824)}
SLINES = []
for _e in os.environ.get('SLIST', 'w1,Fr').split(','):
    if _e:
        _m, _, _lo = _e.partition(':')
        SLINES += [(_m, i) for i in range(int(_lo or 0), SCNT[_m], 2)]
SP_B = env('SP_B', 7)


def _il(n, d):
    return [int(v) for v in os.environ.get(n, d).split(',')]


SP_S = env('SP_S', 0)
SP_G = _il('SP_G', '0,1,0,1,0,1,0,1,0')
SP_H = _il('SP_H', '0,1,0,1,0,1,0,1,0')
SP_W = _il('SP_W', '2,2,1,2,1')
SP_A = _il('SP_A', '1,2,1,2,0')
SP_C = _il('SP_C', '0,0,0,0,0')
SP_Q = _il('SP_Q', '1,0,1,1,0,1,0,1,0')
_slots = [('C', 'st', b) for b in range(SP_S)]
for _g in range(9):
    _slots += [('W', 'g%d' % _g, b) for b in range(SP_G[_g])] + [('A', 'g%d' % _g, b) for b in range(SP_H[_g])]
for _w, _nm in enumerate(('e1', 'e2', 'o1', 'd1', 'x2')):
    for _b in range(8):
        for _k, _l in (('W', SP_W), ('A', SP_A), ('C', SP_C)):
            if _b < _l[_w]:
                _slots.append((_k, _nm, _b))
for _g in range(9):
    _slots += [(k, 'q%d' % _g, b) for b in range(SP_Q[_g]) for k in 'WA']
SASSIGN = {}
_pos = 0
for _sl in _slots:
    _it = []
    while len(_it) < SP_B and _pos < len(SLINES):
        if _sl[0] == 'C':
            _n = min(4, SCNT[SLINES[_pos][0]] // 2 - SLINES[_pos][1] // 2)
            _it.append((SLINES[_pos][0], min(SLINES[_pos][1], SCNT[SLINES[_pos][0]] - 8)))
            _pos += _n
        else:
            _it.append(SLINES[_pos])
            _pos += 1
    SASSIGN[_sl] = _it


def share_base(a, m, r, t):
    a('s_lshr_b32 s%d, s2, 3' % r)
    if m[0] in 'xF':
        a('s_and_b32 s%d, s2, 7' % t)
        a('s_lshl_b32 s%d, s%d, 5' % (t, t))
        a('s_add_u32 s%d, s%d, s%d' % (r, r, t))
    if m[0] == 'F':
        a('s_and_b32 s%d, s%d, 1' % (t, r))
        a('s_mul_i32 s%d, s%d, %d' % (t, t, SREG[m][1]))
        a('s_lshr_b32 s%d, s%d, 1' % (r, r))
        a('s_lshl_b32 s%d, s%d, 16' % (r, r))
        a('s_add_u32 s%d, s%d, s%d' % (r, r, t))
        a('s_add_u32 s%d, s%d, %d' % (r, r, OFF_H if m == 'Fh' else 16384))
    else:
        a('s_mul_i32 s%d, s%d, %d' % (r, r, SREG[m][1]))


def sp_batches(a, kind, win, only=None):
    b = 0
    r, t, w = (30, 31, 20) if kind == 'C' else (24, 27, 35)
    while (kind, win, b) in SASSIGN:
        if SASSIGN[(kind, win, b)] and only in (None, b):
            if b and only is None:
                a('s_waitcnt lgkmcnt(0)')
            cur = None
            for m, i in SASSIGN[(kind, win, b)]:
                if cur != m:
                    share_base(a, m, r, t)
                    a('s_lshl_b32 s%d, s%d, 7' % (t, w))
                    a('s_add_u32 s%d, s%d, s%d' % (r, r, t))
                    cur = m
                a('s_buffer_load_dwordx2 s[100:101], %s, s%d offset:0x%x' % (sr(SREG[m][0]), r, i * 128 + 60))
        b += 1


def stamp(a, i, ps=None):
    if ps is not None and ps != PST:
        return
    if STAMP:
        a('s_memtime s[%d:%d]' % (68 + 2 * i, 69 + 2 * i))


def stamp_real(a, i):
    if STAMP:
        a('s_memrealtime s[%d:%d]' % (68 + 2 * i, 69 + 2 * i))


NSTAMP = 17


def stamp_store(a):
    if not STAMP:
        return
    stamp(a, 15)
    stamp_real(a, 16)
    a('s_waitcnt lgkmcnt(0)')
    a('s_mul_i32 s38, s2, 12')
    a('s_add_u32 s38, s38, s20')
    a('s_lshl_b32 s38, s38, 7')
    a('s_add_u32 s38, s38, 0x%x' % WS_STAMP)
    a('v_mov_b32 v0, 0')
    for i in range(NSTAMP):
        a('v_mov_b32 v1, s%d' % (68 + 2 * i))
        a('buffer_store_dword v1, v0, %s, s38 offen offset:%d' % (sr(S_WS), i * 4))


def bar(a, name):
    a('s_barrier')
    a.bars.append(name)


_uid = [0]


def uid(p):
    _uid[0] += 1
    return 'L%s%d' % (p, _uid[0])


def gstore(a, text):
    ls, le = uid('s'), uid('e')
    a('s_cmp_eq_u32 s%d, 0' % FAST)
    a('s_cbranch_scc1 %s' % ls)
    a(text)
    a('s_branch %s' % le)
    a.label(ls)
    a(text + ' sc1')
    a.label(le)
    a.vm_issued -= 1


def set_flag(a, sf, t0, t1):
    a('v_mov_b32 v%d, 1' % t0)
    a('v_mov_b32 v%d, 0' % t1)
    a('s_waitcnt vmcnt(0)')
    a('s_mov_b64 exec, 1')
    gstore(a, 'buffer_store_byte v%d, v%d, %s, s%d offen' % (t0, t1, sr(S_WS), sf))
    a('s_mov_b64 exec, -1')


def poll_flags(a, sbase, nlanes, vaddr, vt):
    a('s_mov_b64 exec, 0x%x' % ((1 << nlanes) - 1))
    a('s_mov_b32 s28, %d' % (4 * TMO))
    lp, lo = uid('p'), uid('ok')
    a.label(lp)
    a('buffer_load_dword v%d, v%d, %s, s%d offen sc1' % (vt, vaddr, sr(S_WS), sbase))
    a('s_sub_u32 s28, s28, 1')
    a('s_cbranch_scc1 %s' % lo)
    a('s_waitcnt vmcnt(0)')
    a('v_cmp_ne_u32 vcc, 0x01010101, v%d' % vt)
    a('s_cbranch_vccnz %s' % lp)
    a.label(lo)
    a('s_waitcnt vmcnt(0)')
    a('s_mov_b64 exec, -1')


def fin_rest(a):
    srd_fin(a, S_WO, 512 * 1024)
    srd_fin(a, S_W1, 512 * 2752)
    srd_fin(a, S_W2, 1376 * 1024)
    srd_fin(a, S_B1, 2752)
    srd_fin(a, S_B2, 1024)
    srd_fin(a, S_OUT, 2048 * 1024)
    srd_fin(a, S_DBG, 256)


def map64(a):
    a('s_and_b32 s30, s2, 7')
    a('s_lshr_b32 s31, s2, 3')
    a('s_lshl_b32 s21, s30, 2')
    a('s_and_b32 s22, s31, 3')
    a('s_add_u32 s21, s21, s22')
    a('s_lshr_b32 s22, s31, 2')
    a('s_lshl_b32 s21, s21, 2')
    a('s_lshl_b32 s22, s22, 7')


def map3(a):
    a('s_and_b32 s30, s2, 7')
    a('s_lshr_b32 s31, s2, 3')
    a('s_lshl_b32 s21, s30, 1')
    a('s_and_b32 s22, s31, 1')
    a('s_add_u32 s33, s21, s22')
    a('s_lshr_b32 s34, s31, 1')
    a('s_lshl_b32 s21, s33, 7')
    a('s_min_u32 s22, s34, 14')
    a('s_mul_i32 s22, s22, 192')


G96 = mk_groups(16, '1,1,2')
GST = [lo for lo, hi in G96]
W3A = {9: 151552, 10: 139264, 11: 145408, 15: 0}
for _m in range(5):
    W3A[_m] = 6144 * _m
for _m in range(4):
    W3A[5 + _m] = 49152 + 6144 * _m
for _m in range(3):
    W3A[12 + _m] = 30720 + 6144 * _m


def a3addr(i):
    return W2B + 8192 * (i % 8)


NP4 = 22
_last = {}
for _ks in range(16):
    for _lo, _n in ((W3A[_ks], 6144), (a3addr(_ks), 8192)):
        for _p in range(_lo // 8192, (_lo + _n - 1) // 8192 + 1):
            _last[_p] = max(_last.get(_p, -1), _ks)
W4Q0 = env('W4Q0', 3)


def _free_bar(ks):
    for g in range(len(GST)):
        if GST[g] - 2 >= ks:
            return max(g, W4Q0)
    return 9


_ordp = sorted(range(19), key=lambda p: (_free_bar(_last[p]), p))
W4P = _ordp + [19, _ordp[0], _ordp[1]]
W4T = [('q%d' % _free_bar(_last[p]) if _free_bar(_last[p]) < 9 else 'e3') for p in _ordp] + ['r0', 'r0', 'r0']
NPUB0 = sum(1 for t in W4T if t[0] == 'q')
R1_AT = NPUB0 - 2

GB = (48, 72, 132)
ACC = 96
RS, GR, CSA = 120, 124, 128
ONES = 16
VW, VC, VA, VP = 8, 11, 40, 43
HKEEP = 160


def gemm96_main(a, mode, waddr, aaddr, XCH, bn, en, extra, hook, st):
    k1 = mode == 'k1'
    gstart = {lo: g for g, (lo, hi) in enumerate(G96)}
    a('s_lshl_b32 s23, s20, 4')
    a('s_add_u32 s24, s21, s23')
    a('s_xor_b32 s37, s24, 16')
    a('s_and_b32 s36, s20, 1')
    extra(a)
    a('v_lshl_add_u32 v8, v2, %d, v4' % (3 if k1 else 2))
    a('v_lshlrev_b32 v8, 6, v8')
    a('v_lshl_add_u32 v8, v5, 3, v8')
    a('v_and_b32 v15, 1, v2')
    a('v_lshlrev_b32 v15, 5, v15')
    a('s_sub_u32 s26, s20, 6')
    a('s_cmp_lt_u32 s20, 6')
    a('s_cselect_b32 s26, s20, s26')
    a('s_lshr_b32 s27, s26, 1')
    a('s_lshl_b32 s27, s27, 11')
    a('s_lshl_b32 s28, s36, 5')
    a('v_xor_b32 v15, s28, v15')
    a('v_add_u32 v%d, v8, v15' % VW)
    a('v_add_u32 v%d, s27, v%d' % (VC, VW))
    a('s_lshl_b32 s35, s20, 10')
    if k1:
        a('v_lshlrev_b32 v15, 1, v4')
        a('v_mov_b32 v14, 0x78')
        a('v_lshrrev_b32 v15, v15, v14')
        a('v_and_b32 v15, 3, v15')
        a('v_xor_b32 v15, v15, v2')
        a('v_lshlrev_b32 v15, 4, v15')
        a('v_lshl_add_u32 v15, v3, 6, v15')
        a('v_add_u32 v%d, s35, v15' % VA)
    else:
        a('v_add_u32 v%d, s35, v6' % VA)
    a('v_xor_b32 v%d, 0x400, v%d' % (VP, VA))
    for b in range(1, 3):
        for r in (VW, VC, VA, VP):
            a('v_add_u32 v%d, 0x%x, v%d' % (r + b, b * BANK, r))
    for i in range(4):
        a('v_mov_b32 v%d, 0x3f803f80' % (ONES + i))
    eoff = 256 if k1 else 1024

    def reads(ks):
        b = GB[ks % 3]
        ab, ao = divmod(aaddr(ks), BANK)
        wb, wo = divmod(waddr(ks), BANK)
        a('ds_read_b128 %s, v%d offset:%d' % (vr(b, 4), VA + ab, ao))
        a('ds_read_b128 %s, v%d offset:%d' % (vr(b + 4, 4), VP + ab, ao))
        for seg in range(3):
            for e in range(2):
                a('ds_read_b64_tr_b16 %s, v%d offset:%d' % (vr(b + 8 + 4 * seg + 2 * e, 2), VW + wb, wo + seg * 2048 + e * eoff))
        for e in range(2):
            a('ds_read_b64_tr_b16 %s, v%d offset:%d' % (vr(b + 20 + 2 * e, 2), VC + wb, wo + e * eoff))

    if not k1:
        a('s_waitcnt lgkmcnt(0)')
    hook(a, -2, 0)
    bar(a, bn + '0')
    stamp(a, st[0])
    reads(0)
    hook(a, -2, 1)
    bar(a, bn + '1')
    reads(1)
    for ks in range(16):
        b = GB[ks % 3]

        def cop(r):
            return '0' if ks == 0 else vr(r, 4)
        mf = []
        for p in range(2):
            for seg in range(3):
                ac = ACC + 4 * (3 * p + seg)
                mf.append('v_mfma_f32_16x16x32_bf16 %s, %s, %s, %s' % (vr(ac, 4), vr(b + 8 + 4 * seg, 4), vr(b + 4 * p, 4), cop(ac)))
        mf.append('v_mfma_f32_16x16x32_bf16 %s, %s, %s, %s' % (vr(CSA, 4), vr(b + 20, 4), vr(ONES, 4), cop(CSA)))
        if k1:
            mf.append('v_mfma_f32_16x16x32_bf16 %s, %s, %s, %s' % (vr(RS, 4), vr(ONES, 4), vr(b, 4), cop(RS)))
            mf.append('v_mfma_f32_16x16x32_bf16 %s, %s, %s, %s' % (vr(GR, 4), vr(b, 4), vr(b, 4), cop(GR)))
        a('s_waitcnt lgkmcnt(%d)' % (10 if ks < 15 else 0))
        for m in mf[:BPOS]:
            a(m)
        hook(a, ks, 0)
        if ks + 2 < 16:
            if ks + 2 in gstart:
                bar(a, bn + str(gstart[ks + 2]))
            reads(ks + 2)
        hook(a, ks, 1)
        for m in mf[BPOS:]:
            a(m)
    stamp(a, st[1])
    a('v_lshlrev_b32 v15, 4, v2')
    a('s_lshl_b32 s27, s26, 6')
    a('s_add_u32 s27, s27, 0x%x' % XCH)
    a('v_add_u32 v14, s27, v15')
    a('ds_write_b128 v14, %s' % vr(CSA, 4))

    def finish_stats(SUM, SQ, M, RD):
        a('v_mul_f32 v%d, 0x3b000000, v%d' % (SUM, SUM))
        a('v_mul_f32 v%d, 0x3b000000, v%d' % (SQ, SQ))
        a('v_fma_f32 v%d, -v%d, v%d, v%d' % (SQ, SUM, SUM, SQ))
        a('v_max_f32 v%d, 0, v%d' % (SQ, SQ))
        bf16r(a, M, SUM)
        bf16r(a, SQ, SQ)
        a('v_add_f32 v%d, 0x3727c5ac, v%d' % (SQ, SQ))
        bf16r(a, SQ, SQ)
        a('v_sqrt_f32 v%d, v%d' % (SQ, SQ))
        bf16r(a, SQ, SQ)
        a('v_rcp_f32 v%d, v%d' % (RD, SQ))

    if k1:
        SUM, SQ = 72, 73
        a('v_cmp_eq_u32 vcc, 1, v5')
        a('v_cndmask_b32 v%d, v%d, v%d, vcc' % (SQ, GR, GR + 1))
        a('v_cmp_eq_u32 vcc, 2, v5')
        a('v_cndmask_b32 v%d, v%d, v%d, vcc' % (SQ, SQ, GR + 2))
        a('v_cmp_eq_u32 vcc, 3, v5')
        a('v_cndmask_b32 v%d, v%d, v%d, vcc' % (SQ, SQ, GR + 3))
        a('v_cmp_eq_u32 vcc, v2, v4')
        a('v_cndmask_b32 v%d, 0, v%d, vcc' % (SQ, SQ))
        a('v_mov_b32 v%d, v%d' % (SUM, RS))
        butterfly(a, [('v_add_f32', SQ, 76)])
        finish_stats(SUM, SQ, 36, 37)
        a('s_lshl_b32 s27, s20, 7')
        a('s_add_u32 s27, s27, 0x%x' % (XCH + 512))
        a('v_lshlrev_b32 v74, 3, v3')
        a('v_add_u32 v75, s27, v74')
        a('ds_write_b64 v75, v[36:37]')
        a('v_xor_b32 v75, 0x80, v75')
    a('s_lshl_b32 s27, s36, 6')
    a('s_add_u32 s27, s27, 0x%x' % XCH)
    a('v_add_u32 v15, s27, v15')
    hook(a, 16, 0)
    a('s_waitcnt lgkmcnt(0)')
    bar(a, en)
    if k1:
        a('ds_read_b64 v[38:39], v75')
    for seg in range(3):
        a('ds_read_b128 %s, v15 offset:%d' % (vr(132 + 4 * seg, 4), seg * 128))
    hook(a, 16, 1)
    if not k1:
        return
    for p in range(2):
        for seg in range(3):
            if p == 0:
                a('s_waitcnt lgkmcnt(%d)' % (2 - seg))
            ac = ACC + 4 * (3 * p + seg)
            for r in range(4):
                a('v_fma_f32 v%d, -v%d, v%d, v%d' % (ac + r, 36 + 2 * p, 132 + 4 * seg + r, ac + r))
            for r in range(4):
                a('v_mul_f32 v%d, v%d, v%d' % (ac + r, 37 + 2 * p, ac + r))
    gemm96_main.finish_stats = finish_stats


S_MASK, S_PART, S_PQ = 96, 98, 99
V_PART, V_L8 = 164, 165


def cons_k1(a):
    XCH = XCH1

    def extra(a):
        if LT1:
            a('s_and_b32 s30, s2, 1')
            a('s_or_b32 s30, s30, s20')
            a('s_cmp_lg_u32 s30, 0')
            a('s_cbranch_scc1 k1_nlt')
            a('s_lshr_b32 s30, s2, 3')
            a('s_mul_i32 s30, s30, %d' % (48 * 1024))
            a('v_min_u32 v15, 47, v1')
            a('v_lshlrev_b32 v15, 10, v15')
            a('buffer_load_dword v156, v15, %s, s30 offen offset:384' % sr(S_WQ))
            a.label('k1_nlt')
        a('s_lshl_b32 s31, s34, 10')
        a('s_lshl_b32 s27, s36, 9')
        a('s_add_u32 s31, s31, s27')
        a('s_lshl_b32 s30, s24, 12')
        a('s_add_u32 s%d, s30, s31' % S_PQ)
        a('s_xor_b32 s29, s%d, 0x10000' % S_PQ)
        a('v_lshlrev_b32 v%d, 3, v1' % V_L8)
        for i in range(4):
            a('v_mov_b32 v%d, -1' % (28 + i))
        a('s_lshl_b32 s30, s33, 5')
        a('s_lshl_b32 s31, s34, 1')
        a('s_add_u32 s30, s30, s31')
        a('s_lshr_b32 s31, s20, 2')
        a('s_add_u32 s30, s30, s31')
        a('s_mul_i32 s30, s30, %d' % PSTR)
        a('s_add_u32 s30, s30, 0x%x' % WS_PART)
        a('s_and_b32 s31, s20, 3')
        a('s_lshl_b32 s27, s31, 10')
        a('s_lshl_b32 s28, s31, 6')
        a('s_add_u32 s28, s28, %d' % (2048 - 128))
        a('s_cmp_lt_u32 s31, 2')
        a('s_cselect_b32 s27, s27, s28')
        a('s_cselect_b64 s[%d:%d], -1, 0' % (S_MASK, S_MASK + 1))
        a('s_add_u32 s%d, s30, s27' % S_PART)
        a('v_lshlrev_b32 v%d, 4, v2' % V_PART)
        a('v_cndmask_b32 v%d, v%d, v6, s[%d:%d]' % (V_PART, V_PART, S_MASK, S_MASK + 1))
        a('s_mov_b32 s26, 0x00010001')
        a('s_mov_b32 s27, 0x00010001')
        a('s_or_b64 s[%d:%d], s[%d:%d], s[26:27]' % (S_MASK, S_MASK + 1, S_MASK, S_MASK + 1))
        a('s_and_b32 s30, s2, 7')
        a('s_lshl_b32 s30, s30, 8')
        a('s_add_u32 s30, s30, 0x%x' % WS_FLAG)
        a('s_lshr_b32 s31, s2, 3')
        a('s_lshl_b32 s27, s20, 5')
        a('s_add_u32 s27, s27, s31')
        a('s_add_u32 s%d, s30, s27' % F0)
        a('s_and_b32 s27, s31, 3')
        a('s_lshl_b32 s27, s27, 6')
        a('s_lshr_b32 s28, s31, 2')
        a('s_lshl_b32 s28, s28, 3')
        a('s_add_u32 s27, s27, s28')
        a('s_add_u32 s27, s27, s20')
        a('s_add_u32 s27, s27, 2048')
        a('s_add_u32 s%d, s30, s27' % F1)
        a('s_and_b32 s27, s31, 1')
        a('s_lshl_b32 s27, s27, 7')
        a('s_and_b32 s28, s31, 30')
        a('s_add_u32 s27, s27, s28')
        a('s_lshr_b32 s28, s20, 1')
        a('s_lshl_b32 s28, s28, 5')
        a('s_add_u32 s27, s27, s28')
        a('s_add_u32 s27, s27, s36')
        a('s_add_u32 s27, s27, 4096')
        a('s_add_u32 s%d, s30, s27' % F2)
        fin_rest(a)
        a('v_lshrrev_b32 v157, 1, v1')
        a('v_lshlrev_b32 v157, 7, v157')
        a('v_lshlrev_b32 v24, 2, v2')
        a('v_sub_u32 v24, v3, v24')
        a('v_mov_b32 v26, 0x3f80')
        a('v_mov_b32 v27, 0x3f800000')
        a('v_cmp_eq_u32 vcc, 0, v24')
        a('v_cndmask_b32 v20, 0, v26, vcc')
        a('v_cmp_eq_u32 vcc, 1, v24')
        a('v_cndmask_b32 v21, 0, v27, vcc')
        a('v_or_b32 v20, v20, v21')
        a('v_cmp_eq_u32 vcc, 2, v24')
        a('v_cndmask_b32 v21, 0, v26, vcc')
        a('v_cmp_eq_u32 vcc, 3, v24')
        a('v_cndmask_b32 v25, 0, v27, vcc')
        a('v_or_b32 v21, v21, v25')
        a('v_lshl_add_u32 v22, v2, 2, v4')
        a('v_lshlrev_b32 v22, 5, v22')
        a('v_lshl_add_u32 v22, v5, 3, v22')
        a('s_lshl_b32 s30, s36, 9')
        a('s_add_u32 s30, s30, 0x%x' % (XCH + 2048))
        a('v_add_u32 v22, s30, v22')
        sp_batches(a, 'C', 'st')

        if POIS_KS < -2:
            poison(a)

    def poison(a):
        a('s_xor_b32 s29, s%d, 0x10000' % S_PQ)
        a('buffer_store_dwordx2 v[28:29], v%d, %s, s%d offen sc1' % (V_L8, sr(S_WS), S_PQ))
        a('buffer_store_dwordx2 v[28:29], v%d, %s, s29 offen sc1' % (V_L8, sr(S_WS)))
        a('s_mov_b64 exec, s[%d:%d]' % (S_MASK, S_MASK + 1))
        a('buffer_store_dwordx4 v[28:31], v%d, %s, s%d offen sc1' % (V_PART, sr(S_WS), S_PART))
        a('s_mov_b64 exec, -1')
        a('s_lshr_b32 s30, s2, 3')
        a('s_or_b32 s30, s30, s20')
        a('s_cmp_lg_u32 s30, 0')
        a('s_cbranch_scc1 k1_nfc')
        a('v_lshlrev_b32 v23, 11, v2')
        a('v_lshl_add_u32 v23, v3, 4, v23')
        for i in range(4):
            a('v_mov_b32 v%d, 0' % (24 + i))
        a('s_mov_b32 s30, -1')
        a('s_mov_b32 s31, 0xffff')
        a('s_mov_b64 exec, s[30:31]')
        a('buffer_store_dwordx4 v[24:27], v23, %s, s%d offen sc1' % (sr(S_WS), F0))
        a('s_mov_b64 exec, -1')
        a.label('k1_nfc')

    def hook(a, ks, ph):
        if ks == POIS_KS and ph == 1:
            poison(a)
        if ks == WAIT_KS and ph == 0:
            assert any(WAIT_KS <= k <= RDY_KS and (k + 2 in GST or k == 16) for k in range(-2, 17)) and POIS_KS < WAIT_KS
            a('s_waitcnt vmcnt(0)')
        if ks == RDY_KS and ph == 1:
            a('s_cmp_lg_u32 s20, 0')
            a('s_cbranch_scc1 c_nrdy')
            a('s_getreg_b32 s30, hwreg(HW_REG_XCC_ID, 0, 4)')
            a('s_and_b32 s31, s2, 7')
            a('s_lshl_b32 s31, s31, 5')
            if RDY_AT:
                a('s_mul_i32 s29, s30, s30')
                a('s_lshl_b32 s29, s29, 18')
                a('s_lshl_b32 s30, s30, 8')
                a('s_add_u32 s30, s30, s29')
                a('s_add_u32 s30, s30, 1')
            else:
                a('s_or_b32 s30, s30, 0x80')
                a('s_lshr_b32 s29, s2, 3')
                a('s_add_u32 s31, s31, s29')
            a('v_mov_b32 v23, s30')
            a('v_mov_b32 v24, 0')
            a('s_mov_b64 exec, 1')
            if RDY_AT:
                a('buffer_atomic_add v23, v24, %s, s31 offen' % sr(S_DBG))
            else:
                a('buffer_store_byte v23, v24, %s, s31 offen sc1' % sr(S_DBG))
            a('s_mov_b64 exec, -1')
            a.label('c_nrdy')
        for oc in range(T_KS.count(ks) if ph == 1 else 0):
            lb = uid('t')
            a('s_cmp_lg_u32 s20, %d' % ((ks + 3 * oc) & 7))
            a('s_cbranch_scc1 %s' % lb)
            touch_item(a, 157, 156)
            a.label(lb)

    gemm96_main(a, 'k1', lambda ks: (ks % NS1) * SLOT, lambda ks: (ks % NS1) * SLOT + 6144, XCH, 'g', 'e1', extra, hook, (2, 3))
    a('ds_read_b64_tr_b16 v[26:27], v22')
    PK = 144
    for t in range(6):
        a('v_cvt_pk_bf16_f32 v%d, v%d, v%d' % (PK + 2 * t, ACC + 4 * t, ACC + 4 * t + 1))
        a('v_cvt_pk_bf16_f32 v%d, v%d, v%d' % (PK + 1 + 2 * t, ACC + 4 * t + 2, ACC + 4 * t + 3))
    a('s_waitcnt lgkmcnt(0)')
    PB = 48
    for s in range(4):
        src = PK + 2 * (3 * (s & 1) + (1 - (s >> 1)))
        a('v_mfma_f32_16x16x16_bf16 %s, v[26:27], %s, 0' % (vr(PB + 4 * s, 4), vr(src, 2)))
    TV = 64
    for p in range(2):
        a('v_mfma_f32_16x16x16_bf16 %s, %s, v[20:21], 0' % (vr(TV + 4 * p, 4), vr(PK + 2 * (3 * p + 2), 2)))
    TB = 72
    for s in (2, 3, 0, 1):
        p = PB + 4 * s
        a('v_cvt_pk_bf16_f32 v%d, v%d, v%d' % (TB + 12 * s + 2, p, p + 1))
        a('v_cvt_pk_bf16_f32 v%d, v%d, v%d' % (TB + 12 * s + 3, p + 2, p + 3))
    a('s_xor_b32 s30, s%d, 0x10000' % S_PQ)
    a('buffer_store_dwordx2 %s, v%d, %s, s%d offen sc1' % (vr(TB + 12 * 2 + 2, 2), V_L8, sr(S_WS), S_PQ))
    a('buffer_store_dwordx2 %s, v%d, %s, s30 offen sc1' % (vr(TB + 12 * 3 + 2, 2), V_L8, sr(S_WS)))
    FB = 120
    sp_batches(a, 'C', 'e1')
    softmax_sets(a, 2, PB, TB, FB, 28)
    for p in range(2):
        for pm in range(2):
            a('v_mfma_f32_16x16x16_bf16 %s, %s, v[20:21], 0' % (vr(72 + 4 * (2 * p + pm), 4), vr(FB + 4 * p + 2 * pm, 2)))
    for p in range(2):
        a('v_cvt_pk_bf16_f32 v%d, v%d, v%d' % (88 + 2 * p, TV + 4 * p, TV + 4 * p + 1))
        a('v_cvt_pk_bf16_f32 v%d, v%d, v%d' % (89 + 2 * p, TV + 4 * p + 2, TV + 4 * p + 3))
    for i in range(4):
        a('v_cvt_pk_bf16_f32 v%d, v%d, v%d' % (92 + 2 * i, 72 + 4 * i, 73 + 4 * i))
        a('v_cvt_pk_bf16_f32 v%d, v%d, v%d' % (93 + 2 * i, 74 + 4 * i, 75 + 4 * i))
    RB = 128
    for p in range(2):
        for pm in range(2):
            r1, r2 = RB + 4 * pm, RB + 4 * (2 + pm)
            a('v_mfma_f32_16x16x16_bf16 %s, %s, %s, %s' % (vr(r1, 4), vr(92 + 2 * (2 * p + pm), 2), vr(88 + 2 * p, 2), '0' if p == 0 else vr(r1, 4)))
            a('v_mfma_f32_16x16x16_bf16 %s, %s, v[16:17], %s' % (vr(r2, 4), vr(92 + 2 * (2 * p + pm), 2), '0' if p == 0 else vr(r2, 4)))
    a('s_lshl_b32 s30, s20, 12')
    a('v_add_u32 v23, s30, v6')
    for i in range(4):
        a('ds_write_b128 v23, %s offset:%d' % (vr(RB + 4 * i, 4), i * 1024))
    a('s_lshl_b32 s30, s20, 10')
    a('v_add_u32 v24, s30, v6')
    ko_setup(a)
    a('s_waitcnt lgkmcnt(0)')
    a('v_mov_b32 v22, 0x%x' % CTRL)
    bar(a, 'e2')
    a('ds_read_b32 v23, v22')
    for m in range(4):
        a('ds_read_b128 %s, v24 offset:%d' % (vr(48 + 4 * m, 4), m * 8192))
    for m in range(1, 4):
        a('s_waitcnt lgkmcnt(%d)' % (3 - m))
        for r in range(4):
            a('v_add_f32 v%d, v%d, v%d' % (48 + r, 48 + r, 48 + 4 * m + r))
    a('s_mov_b64 exec, s[%d:%d]' % (S_MASK, S_MASK + 1))
    a('buffer_store_dwordx4 v[48:51], v%d, %s, s%d offen sc1' % (V_PART, sr(S_WS), S_PART))
    a('s_mov_b64 exec, -1')
    stamp(a, 4)
    a('s_mov_b32 s28, %d' % (64 * TMO))
    a.label('c_rw')
    a('v_readfirstlane_b32 s%d, v23' % FAST)
    a('s_sub_u32 s28, s28, 1')
    a('s_cbranch_scc1 c_rok')
    a('ds_read_b32 v23, v22')
    a('s_sleep 1')
    a('s_cmp_eq_u32 s%d, 0' % FAST)
    a('s_waitcnt lgkmcnt(0)')
    a('s_cbranch_scc1 c_rw')
    a.label('c_rok')
    a('s_lshr_b32 s%d, s%d, 1' % (FAST, FAST))


def ko_setup(a):
    a('s_lshr_b32 s21, s2, 3')
    a('s_and_b32 s22, s2, 7')
    a('s_lshl_b32 s22, s22, 3')
    a('s_add_u32 s22, s22, s20')
    a('s_lshl_b32 s22, s22, 17')
    a('s_lshl_b32 s23, s21, 9')
    a('s_add_u32 s22, s22, s23')
    a('s_add_u32 s23, s22, 0x10000')
    a('v_lshlrev_b32 v7, 3, v1')
    a('s_lshr_b32 s24, s20, 1')
    a('s_lshl_b32 s24, s24, 7')
    a('s_add_u32 s24, s24, s21')
    a('s_mul_i32 s24, s24, %d' % PSTR)
    a('s_add_u32 s24, s24, 0x%x' % WS_PART)
    a('s_and_b32 s25, s20, 1')
    a('s_lshl_b32 s26, s25, 10')
    a('s_lshl_b32 s27, s25, 6')
    a('s_add_u32 s26, s26, s24')
    a('s_add_u32 s27, s27, s24')
    a('s_add_u32 s27, s27, 2048')
    a('v_lshlrev_b32 v8, 4, v2')


def cons_ko(a):
    PB, TB, FB = 16, 24, 52
    a('s_mov_b32 s28, %d' % TMO)
    a.label('ko_pq')
    for s in range(2):
        a('buffer_load_dwordx2 %s, v7, %s, s%d offen sc1' % (vr(TB + 12 * s + 2, 2), sr(S_WS), 22 + s))
    a('s_waitcnt vmcnt(0)')
    a.label('ko_pqc')
    a('s_sub_u32 s28, s28, 1')
    a('s_cbranch_scc1 ko_pq_ok')
    a('v_max3_u32 v9, v%d, v%d, v%d' % (TB + 2, TB + 3, TB + 14))
    a('v_max_u32 v9, v9, v%d' % (TB + 15))
    a('v_cmp_eq_u32 vcc, -1, v9')
    a('s_cbranch_vccnz ko_pq')
    a.label('ko_pq_ok')
    stamp(a, 5)
    KV, ZZ = 64, 80

    def part_loads():
        for j in range(4):
            a('s_add_u32 s30, s26, %d' % (32 * PSTR * j))
            a('s_add_u32 s31, s27, %d' % (32 * PSTR * j))
            a('buffer_load_dwordx4 %s, v6, %s, s30 offen sc1' % (vr(KV + 4 * j, 4), sr(S_WS)))
            a('buffer_load_dwordx4 %s, v8, %s, s31 offen sc1' % (vr(ZZ + 4 * j, 4), sr(S_WS)))
    a('s_lshl_b32 s30, s20, 11')
    a('s_add_u32 s30, s30, 0x%x' % KOX)
    a('v_add_u32 v9, s30, v6')
    sp_batches(a, 'C', 'e2', only=0)
    softmax_sets(a, 2, PB, TB, FB, 10)
    if SASSIGN.get(('C', 'e2', 1)):
        a('s_waitcnt lgkmcnt(0)')
        sp_batches(a, 'C', 'e2', only=1)
    a('s_mov_b32 s28, %d' % TMO)
    a.label('ko_pp')
    part_loads()
    a('s_sub_u32 s28, s28, 1')
    a('s_cbranch_scc1 ko_pp_ok')
    a('s_waitcnt vmcnt(0)')
    a('v_max3_u32 v11, v%d, v%d, v%d' % (KV, KV + 1, KV + 2))
    a('v_max3_u32 v12, v%d, v%d, v%d' % (KV + 3, KV + 4, KV + 5))
    for i in range(6, 30, 4):
        a('v_max3_u32 v11, v11, v%d, v%d' % (KV + i, KV + i + 1))
        a('v_max3_u32 v12, v12, v%d, v%d' % (KV + i + 2, KV + i + 3))
    a('v_max3_u32 v11, v11, v%d, v%d' % (KV + 30, KV + 31))
    a('v_max_u32 v11, v11, v12')
    a('v_cmp_eq_u32 vcc, -1, v11')
    a('s_cbranch_vccnz ko_pp')
    a.label('ko_pp_ok')
    a('s_waitcnt vmcnt(0)')
    stamp(a, 6)
    for B in (KV, ZZ):
        for r in range(4):
            a('v_add_f32 v%d, v%d, v%d' % (B + r, B + r, B + 4 + r))
            a('v_add_f32 v%d, v%d, v%d' % (B + 8 + r, B + 8 + r, B + 12 + r))
        for r in range(4):
            a('v_add_f32 v%d, v%d, v%d' % (B + r, B + r, B + 8 + r))
    a('ds_write_b128 v9, %s' % vr(KV, 4))
    a('ds_write_b128 v9, %s offset:1024' % vr(ZZ, 4))
    a('s_waitcnt lgkmcnt(0)')
    bar(a, 'o1')
    RD = 64
    for t in range(2):
        for kz in range(2):
            for qd in range(4):
                a('ds_read_b128 %s, v6 offset:%d' % (vr(RD + 4 * (8 * t + 4 * kz + qd), 4), KOX + (2 * qd + t) * 2048 + kz * 1024))
    OPA = 128
    for t in range(2):
        for kz in range(2):
            i = 2 * t + kz
            B = RD + 16 * i
            a('s_waitcnt lgkmcnt(%d)' % (12 - 4 * i))
            for r in range(4):
                a('v_add_f32 v%d, v%d, v%d' % (B + r, B + r, B + 4 + r))
                a('v_add_f32 v%d, v%d, v%d' % (B + 8 + r, B + 8 + r, B + 12 + r))
            for r in range(4):
                a('v_add_f32 v%d, v%d, v%d' % (B + r, B + r, B + 8 + r))
            a('v_cvt_pk_bf16_f32 v%d, v%d, v%d' % (OPA + 4 * kz + 2 * t, B, B + 1))
            a('v_cvt_pk_bf16_f32 v%d, v%d, v%d' % (OPA + 4 * kz + 2 * t + 1, B + 2, B + 3))
    ND = 64
    for s in range(2):
        a('v_mfma_f32_16x16x32_bf16 %s, %s, %s, 0' % (vr(ND + 8 * s, 4), vr(OPA, 4), vr(FB + 4 * s, 4)))
        a('v_mfma_f32_16x16x32_bf16 %s, %s, %s, 0' % (vr(ND + 8 * s + 4, 4), vr(OPA + 4, 4), vr(FB + 4 * s, 4)))
    for s in range(2):
        n = ND + 8 * s
        d = n + 4
        T = 16 + 8 * s
        a('v_cvt_pk_bf16_f32 v%d, v%d, v%d' % (T, d, d))
        a('v_cvt_pk_bf16_f32 v%d, v%d, v%d' % (T + 1, n, n + 1))
        a('v_cvt_pk_bf16_f32 v%d, v%d, v%d' % (T + 2, n + 2, n + 3))
        a('v_lshlrev_b32 v%d, 16, v%d' % (T, T))
        a('v_add_f32 v%d, 0x358637bd, v%d' % (T, T))
        a('v_cvt_pk_bf16_f32 v%d, v%d, v%d' % (T, T, T))
        a('v_lshlrev_b32 v%d, 16, v%d' % (T, T))
        a('v_rcp_f32 v%d, v%d' % (T, T))
        a('v_lshlrev_b32 v%d, 16, v%d' % (T + 3, T + 1))
        a('v_and_b32 v%d, 0xffff0000, v%d' % (T + 4, T + 1))
        a('v_lshlrev_b32 v%d, 16, v%d' % (T + 5, T + 2))
        a('v_and_b32 v%d, 0xffff0000, v%d' % (T + 6, T + 2))
        for i in range(4):
            a('v_mul_f32 v%d, v%d, v%d' % (T + 3 + i, T, T + 3 + i))
        a('v_cvt_pk_bf16_f32 v%d, v%d, v%d' % (T, T + 3, T + 4))
        a('v_cvt_pk_bf16_f32 v%d, v%d, v%d' % (T + 1, T + 5, T + 6))
        gstore(a, 'buffer_store_dwordx2 %s, v7, %s, s%d offen' % (vr(T, 2), sr(S_WS), 22 + s))


def w64_addr(a, k2, WA, base):
    map64(a)
    a('s_lshr_b32 s23, s20, 1')
    a('s_add_u32 s24, s21, s23')
    a('s_and_b32 s25, s20, 1')
    a('v_lshl_add_u32 v14, v2, %d, v4' % (2 if k2 else 3))
    a('v_lshlrev_b32 v14, 7, v14')
    a('v_lshl_add_u32 v14, v5, 3, v14')
    a('v_and_b32 v15, 1, v2')
    a('v_lshlrev_b32 v15, 1, v15')
    a('v_lshrrev_b32 v13, 1, v4')
    a('v_or_b32 v15, v15, v13')
    a('s_lshl_b32 s26, s25, 1')
    a('v_xor_b32 v15, s26, v15')
    a('v_lshl_add_u32 v14, v15, 5, v14')
    a('s_lshl_b32 s26, s25, 12')
    a('s_add_u32 s26, s26, 0x%x' % base)
    a('v_add_u32 v%d, s26, v14' % WA)
    for s in range(1, 4):
        a('v_xor_b32 v%d, %d, v%d' % (WA + s, 32 * s, WA))


def cons_k2(a):
    WA, AC, AF, WB, XR = 8, 16, 32, 64, 164
    w64_addr(a, True, WA, W2B)
    a('s_lshl_b32 s26, s23, 11')
    a('s_lshl_b32 s27, s25, 6')
    a('s_add_u32 s26, s26, s27')
    a('s_add_u32 s26, s26, 0x%x' % XT)
    a('v_lshlrev_b32 v13, 7, v3')
    a('v_lshl_add_u32 v13, v2, 3, v13')
    a('v_add_u32 v13, s26, v13')
    set_flag(a, F0, 14, 15)
    bar(a, 'd1')
    stamp(a, 7)

    def wreads(i, b):
        for s in range(4):
            for e in range(2):
                a('ds_read_b64_tr_b16 %s, v%d offset:%d' % (vr(WB + 16 * b + 4 * s + 2 * e, 2), WA + s, i * 8192 + e * 2048))
    for nt in range(2):
        a('ds_read_b64 %s, v13 offset:%d' % (vr(XR + 2 * nt, 2), nt * 32))
    for i in range(6):
        wreads(i, i)
    sp_batches(a, 'C', 'd1')
    a('s_and_b32 s30, s2, 7')
    a('s_lshl_b32 s30, s30, 8')
    a('s_and_b32 s31, s24, 15')
    a('s_lshr_b32 s31, s31, 1')
    a('s_lshl_b32 s31, s31, 5')
    a('s_add_u32 s30, s30, s31')
    a('s_add_u32 s30, s30, 0x%x' % WS_FLAG)
    a('v_lshlrev_b32 v14, 2, v1')
    a('s_lshl_b32 s29, s24, 16')
    a('s_lshl_b32 s31, s25, 10')
    a('s_add_u32 s27, s29, s31')
    a('s_lshl_b32 s32, s20, 11')
    a('s_add_u32 s32, s32, 0x%x' % KOX)
    a('v_add_u32 v12, s32, v6')
    a('v_xor_b32 v13, 0x800, v12')
    poll_flags(a, 30, 8, 14, 15)
    stamp(a, 8)
    for i in range(8):
        if i and i % 2 == 0:
            a('s_add_u32 s27, s27, 4096')
        for e in range(2):
            a('buffer_load_dwordx2 %s, v7, %s, s27 offen offset:%d sc1' % (vr(AF + 4 * i + 2 * e, 2), sr(S_WS), (i % 2) * 2048 + e * 512))
    a('s_lshl_b32 s31, s22, 4')
    a('s_add_u32 s28, s29, s31')
    a('s_lshl_b32 s31, s25, 10')
    a('s_add_u32 s28, s28, s31')
    a('s_add_u32 s28, s28, 0x%x' % OFF_H)
    a('v_lshlrev_b32 v14, 4, v3')
    a('s_lshr_b32 s31, s22, 7')
    a('s_and_b32 s26, s31, 1')
    a('s_lshl_b32 s26, s26, 10')
    a('s_add_u32 s29, s29, s26')
    a('s_lshr_b32 s31, s31, 1')
    a('s_lshl_b32 s31, s31, 8')
    a('s_add_u32 s29, s29, s31')
    a('s_lshl_b32 s31, s25, 3')
    a('s_add_u32 s29, s29, s31')
    a('s_add_u32 s29, s29, 0x%x' % OFF_S)
    for i in range(8):
        b = i % 6
        lg = {0: 0, 6: 8, 7: 0}.get(i)
        a('s_waitcnt vmcnt(%d)%s' % (14 - 2 * i, '' if lg is None else ' lgkmcnt(%d)' % lg))
        for s in (2, 3, 0, 1):
            a('v_mfma_f32_16x16x32_bf16 %s, %s, %s, %s' % (vr(AC + 4 * s, 4), vr(WB + 16 * b + 4 * s, 4), vr(AF + 4 * i, 4), '0' if i == 0 else vr(AC + 4 * s, 4)))
        if i < 2:
            wreads(6 + i, i)
    stamp(a, 9)
    for s in range(2):
        a('ds_write_b128 v12, %s offset:%d' % (vr(AC + 8 + 4 * s, 4), s * 1024))
    T = 40
    for i in range(4):
        a('v_lshlrev_b32 v%d, 16, v%d' % (T + 2 * i, XR + i))
        a('v_and_b32 v%d, 0xffff0000, v%d' % (T + 2 * i + 1, XR + i))
    a('v_mov_b32 v52, 0x3f803f80')
    a('s_waitcnt lgkmcnt(0)')
    bar(a, 'x2')
    for s in range(2):
        a('ds_read_b128 %s, v13 offset:%d' % (vr(32 + 4 * s, 4), s * 1024))
    OUTR = HKEEP
    S1, S2 = 54, 55
    for s in range(2):
        a('s_waitcnt lgkmcnt(%d)' % (1 - s))
        for r in range(4):
            a('v_add_f32 v%d, v%d, v%d' % (AC + 4 * s + r, AC + 4 * s + r, 32 + 4 * s + r))
    for i in range(8):
        a('v_add_f32 v%d, v%d, v%d' % (T + i, T + i, AC + i))
    for i in range(4):
        a('v_cvt_pk_bf16_f32 v%d, v%d, v%d' % (OUTR + i, T + 2 * i, T + 2 * i + 1))
    gstore(a, 'buffer_store_dwordx4 %s, v6, %s, s28 offen' % (vr(OUTR, 4), sr(S_WS)))
    for i in range(4):
        a('v_dot2_f32_bf16 v%d, v%d, v52, %s' % (S1, OUTR + i, 'v%d' % S1 if i else '0'))
        a('v_dot2_f32_bf16 v%d, v%d, v%d, %s' % (S2, OUTR + i, OUTR + i, 'v%d' % S2 if i else '0'))
    butterfly(a, [('v_add_f32', S1, 52), ('v_add_f32', S2, 53)])
    gstore(a, 'buffer_store_dwordx2 v[54:55], v14, %s, s29 offen' % sr(S_WS))
    set_flag(a, F1, 56, 57)
    stamp(a, 10)
    sp_batches(a, 'C', 'x2')


def cons_k3(a):
    map3(a)
    STR, B1R = 20, 120

    def extra(a):
        a('v_lshlrev_b32 v46, 3, v2')
        a('s_lshl_b32 s30, s36, 5')
        a('s_add_u32 s30, s30, s22')
        for seg in range(3):
            a('buffer_load_dwordx2 %s, v46, %s, s30 offen offset:%d' % (vr(B1R + 2 * seg, 2), sr(S_B1), seg * 64))

    def hook(a, ks, ph):
        if ks == 6 and ph == 1:
            for p in range(2):
                a('s_lshl_b32 s30, s%d, 12' % (24 if p == 0 else 37))
                a('s_add_u32 s30, s30, 0x%x' % OFF_S)
                for i in range(2):
                    a('buffer_load_dwordx4 %s, v6, %s, s30 offen offset:%d sc1' % (vr(STR + 8 * p + 4 * i, 4), sr(S_WS), i * 1024))
        if ks == 13 and ph == 1:
            a('s_waitcnt vmcnt(0)')
            for p in range(2):
                b = STR + 8 * p
                a('v_add_f32 v%d, v%d, v%d' % (b, b, b + 2))
                a('v_add_f32 v%d, v%d, v%d' % (b + 1, b + 1, b + 3))
                a('v_add_f32 v%d, v%d, v%d' % (b + 4, b + 4, b + 6))
                a('v_add_f32 v%d, v%d, v%d' % (b + 5, b + 5, b + 7))
            for p in range(2):
                b = STR + 8 * p
                a('v_add_f32 v%d, v%d, v%d' % (b, b, b + 4))
                a('v_add_f32 v%d, v%d, v%d' % (b + 1, b + 1, b + 5))
            butterfly(a, [('v_add_f32', STR, STR + 2), ('v_add_f32', STR + 1, STR + 3), ('v_add_f32', STR + 8, STR + 10), ('v_add_f32', STR + 9, STR + 11)])
        if ks == 14 and ph == 1:
            gemm96_main.finish_stats(STR, STR + 1, 36, 37)
            gemm96_main.finish_stats(STR + 8, STR + 9, 38, 39)
        if ks == 15 and ph == 1:
            a('s_lshl_b32 s27, s36, 9')
            a('s_mul_i32 s25, s34, 3 * 1024')
            a('s_add_u32 s25, s25, s27')
            for p in range(2):
                a('s_lshl_b32 s%d, s%d, 12' % (28 + p, 24 if p == 0 else 37))
            a('v_and_b32 v22, 1, v2')
            a('v_cmp_eq_u32 vcc, 0, v22')
            a('v_mov_b32 v22, s28')
            a('v_mov_b32 v23, s29')
            a('v_cndmask_b32 v22, v23, v22, vcc')
            a('v_lshrrev_b32 v23, 1, v2')
            a('v_lshl_add_u32 v22, v23, 8, v22')
            a('v_lshl_add_u32 v22, v3, 4, v22')
            for seg in range(3):
                b = B1R + 2 * seg
                B = 72 + 4 * seg
                a('v_lshlrev_b32 v%d, 16, v%d' % (B, b))
                a('v_and_b32 v%d, 0xffff0000, v%d' % (B + 1, b))
                a('v_lshlrev_b32 v%d, 16, v%d' % (B + 2, b + 1))
                a('v_and_b32 v%d, 0xffff0000, v%d' % (B + 3, b + 1))

    gemm96_main(a, 'k3', lambda ks: W3A[ks], a3addr, XCH3, 'q', 'e3', extra, hook, (11, 12))
    a('s_cmp_eq_u32 s34, 15')
    a('s_cbranch_scc1 k3_done')
    for seg in range(3):
        if seg == 1:
            a('s_cmp_eq_u32 s34, 14')
            a('s_cbranch_scc1 k3_done')
        a('s_waitcnt lgkmcnt(%d)' % (2 - seg))
        B = 72 + 4 * seg
        for p in range(2):
            ac = ACC + 4 * (3 * p + seg)
            for r in range(4):
                a('v_fma_f32 v%d, -v%d, v%d, v%d' % (ac + r, 36 + 2 * p, 132 + 4 * seg + r, ac + r))
        for p in range(2):
            ac = ACC + 4 * (3 * p + seg)
            for r in range(4):
                a('v_fma_f32 v%d, v%d, v%d, v%d' % (ac + r, 37 + 2 * p, ac + r, B + r))
        for p in range(2):
            ac = ACC + 4 * (3 * p + seg)
            for r in range(4):
                a('v_mul_f32 v%d, v%d, |v%d|' % (ac + r, ac + r, ac + r))
        for p in range(2):
            ac = ACC + 4 * (3 * p + seg)
            T = 144 + 2 * (2 * seg + p)
            a('v_cvt_pk_bf16_f32 v%d, v%d, v%d' % (T, ac, ac + 1))
            a('v_cvt_pk_bf16_f32 v%d, v%d, v%d' % (T + 1, ac + 2, ac + 3))
        for p in range(2):
            T = 144 + 2 * (2 * seg + p)
            a('v_pk_max_i16 v%d, v%d, 0' % (T, T))
            a('v_pk_max_i16 v%d, v%d, 0' % (T + 1, T + 1))
        T = 144 + 4 * seg
        a('v_permlane16_swap_b32 v%d, v%d' % (T, T + 2))
        a('v_permlane16_swap_b32 v%d, v%d' % (T + 1, T + 3))
        gstore(a, 'buffer_store_dwordx4 %s, v22, %s, s25 offen offset:%d' % (vr(T, 4), sr(S_WS), seg * 1024))
    a.label('k3_done')


def cons_k4(a):
    WA, AC, WB, AF, BR = 8, 24, 40, 88, 164
    NAF = 18
    w64_addr(a, False, 16, 0)
    for s in range(4):
        a('v_mov_b32 v%d, v%d' % (WA + s, 16 + s))
    for b in (2, 1):
        for s in range(4):
            a('v_add_u32 v%d, 0x%x, v%d' % (WA + 4 * b + s, b * BANK, WA + s))

    def wreads(i):
        wb, wo = divmod(8192 * W4P[i], BANK)
        for s in range(4):
            for e in range(2):
                a('ds_read_b64_tr_b16 %s, v%d offset:%d' % (vr(WB + 16 * (i % 3) + 4 * s + 2 * e, 2), WA + 4 * wb + s, wo + e * 512))
    wreads(0)
    wreads(1)
    set_flag(a, F2, 21, 22)
    stamp(a, 13)
    a('s_lshl_b32 s27, s25, 6')
    a('s_add_u32 s27, s27, s22')
    a('v_lshlrev_b32 v21, 3, v2')
    for nt in range(2):
        a('buffer_load_dwordx2 %s, v21, %s, s27 offen offset:%d' % (vr(BR + 2 * nt, 2), sr(S_B2), nt * 32))
    a('s_lshl_b32 s26, s24, 14')
    a('s_add_u32 s26, s26, s27')
    a('v_and_b32 v20, 1, v2')
    a('v_lshlrev_b32 v20, 5, v20')
    a('v_lshrrev_b32 v22, 1, v2')
    a('v_lshl_add_u32 v20, v22, 4, v20')
    a('v_lshl_add_u32 v20, v3, 10, v20')
    a('s_and_b32 s30, s2, 7')
    a('s_lshl_b32 s30, s30, 8')
    a('s_and_b32 s31, s24, 15')
    a('s_lshr_b32 s31, s31, 1')
    a('s_lshl_b32 s31, s31, 5')
    a('s_add_u32 s30, s30, s31')
    a('s_add_u32 s30, s30, 0x%x' % (WS_FLAG + 4096))
    a('v_lshlrev_b32 v22, 2, v1')
    a('s_lshl_b32 s29, s24, 16')
    a('s_lshl_b32 s31, s25, 10')
    a('s_add_u32 s29, s29, s31')
    a('s_lshl_b32 s32, s20, 11')
    assert W4P[3] == W4P[2] + 1 or True
    a('s_lshr_b32 s31, s20, 2')
    a('s_cmp_eq_u32 s31, 0')
    a('s_mov_b32 s31, 0x%x' % (8192 * W4P[3] - 8192))
    a('s_cselect_b32 s31, 0x%x, s31' % (8192 * W4P[2]))
    a('s_add_u32 s32, s32, s31')
    a('v_add_u32 v7, s32, v6')
    a('s_waitcnt lgkmcnt(0)')
    bar(a, 'r0')
    poll_flags(a, 30, 8, 22, 23)
    stamp(a, 14)
    q = {}

    def aload(i):
        a('s_add_u32 s31, s29, %d' % ((i // 2) * 4096))
        q[i] = a('buffer_load_dwordx4 %s, v6, %s, s31 offen offset:%d %s' % (vr(AF + 4 * (i % NAF), 4), sr(S_WS), (i % 2) * 2048, os.environ.get('K4POL', 'sc1')))
    K4D = env('K4D', 5)
    for i in range(K4D):
        aload(i)
    for i in range(NP4):
        b = i % 3
        if i == R1_AT:
            a('s_waitcnt lgkmcnt(0)')
            bar(a, 'r1')
        a.wait_vm(q[i], ' lgkmcnt(%d)' % (8 if i + 1 < NP4 else 0))
        if i + K4D < NP4:
            aload(i + K4D)
        if i + 2 < NP4:
            wreads(i + 2)
        if i == NP4 - 1:
            a('s_cmp_eq_u32 s25, 1')
            a('s_cbranch_scc1 k4_skip')
        for s in (2, 3, 0, 1):
            a('v_mfma_f32_16x16x32_bf16 %s, %s, %s, %s' % (vr(AC + 4 * s, 4), vr(WB + 16 * b + 4 * s, 4), vr(AF + 4 * (i % NAF), 4), '0' if i == 0 else vr(AC + 4 * s, 4)))
    a.label('k4_skip')
    a('s_nop 7')
    for s in range(2):
        a('ds_write_b128 v7, %s offset:%d' % (vr(AC + 8 + 4 * s, 4), s * 1024))
    a('v_xor_b32 v7, 0x800, v7')
    HB = 96
    for i in range(4):
        a('v_lshlrev_b32 v%d, 16, v%d' % (HB + 2 * i, HKEEP + i))
        a('v_and_b32 v%d, 0xffff0000, v%d' % (HB + 2 * i + 1, HKEEP + i))
        a('v_lshlrev_b32 v%d, 16, v%d' % (104 + i, BR + i))
        a('v_and_b32 v%d, 0xffff0000, v%d' % (BR + i, BR + i))
    for i in range(4):
        a('v_add_f32 v%d, v%d, v%d' % (HB + 2 * i, HB + 2 * i, 104 + i))
        a('v_add_f32 v%d, v%d, v%d' % (HB + 2 * i + 1, HB + 2 * i + 1, BR + i))
    a('s_waitcnt lgkmcnt(0)')
    bar(a, 'x4')
    for s in range(2):
        a('ds_read_b128 %s, v7 offset:%d' % (vr(112 + 4 * s, 4), s * 1024))
    for s in range(2):
        a('s_waitcnt lgkmcnt(%d)' % (1 - s))
        for r in range(4):
            a('v_add_f32 v%d, v%d, v%d' % (AC + 4 * s + r, AC + 4 * s + r, 112 + 4 * s + r))
    O = 56
    for i in range(8):
        a('v_add_f32 v%d, v%d, v%d' % (HB + i, HB + i, AC + i))
    for i in range(4):
        a('v_cvt_pk_bf16_f32 v%d, v%d, v%d' % (O + i, HB + 2 * i, HB + 2 * i + 1))
    a('v_permlane16_swap_b32 v%d, v%d' % (O, O + 2))
    a('v_permlane16_swap_b32 v%d, v%d' % (O + 1, O + 3))
    a('buffer_store_dwordx4 %s, v20, %s, s26 offen' % (vr(O, 4), sr(S_OUT)))


def ring_loop(a, nk, ns, lag, per, issue, groups, bn, post=None, pre=None):
    last = {}
    issued = 0
    for j, (lo, hi) in enumerate(groups):
        while issued < nk:
            i = issued
            ok = (i < ns or (j >= 1 and groups[j - 1][0] - 2 >= i - ns)) and (i - lo + 1) * per <= 62 and (i < hi or i < lo + (lag if j < env('LAGJ', 1) or bn != 'g' else env('LAG1B', 5)))
            if not ok:
                break
            last[i] = issue(i)
            issued += 1
        assert issued >= hi, (j, issued, hi)
        if pre:
            pre(j)
        a.wait_vm(last[hi - 1])
        if bn == 'g':
            stamp(a, 3 + j, 1)
        if bn == 'q':
            stamp(a, 3 + j, 3)
        bar(a, bn + str(j))
        if post and j in post:
            post[j]()


def prod_w(a):
    a.label('prod_w')
    a.hist = []
    a.vm_issued = 0
    a.bars = []
    a('s_sub_u32 s35, s20, 8')
    a('s_lshl_b32 s32, s35, 10')

    def w96_addr(k1, wstride, reg):
        a('s_mul_i32 s31, s35, %d' % (16 * wstride))
        a('s_add_u32 s31, s31, s22')
        a('v_lshrrev_b32 v%d, 2, v1' % reg)
        a('v_mul_u32_u24 v%d, 0x%x, v%d' % (reg, wstride, reg))
        a('v_bfe_u32 v15, v1, %d, 1' % (5 if k1 else 4))
        a('v_lshlrev_b32 v15, 1, v15')
        a('v_xor_b32 v15, v15, v5')
        a('v_lshl_add_u32 v%d, v15, 4, v%d' % (reg, reg))
        a('v_add_u32 v%d, s31, v%d' % (reg, reg))
    w96_addr(True, 3072, 7)

    def wissue1(i):
        a('s_add_u32 s29, s39, %d' % i)
        a('s_and_b32 s29, s29, 15')
        a('s_mul_i32 s29, s29, %d' % (32 * 3072))
        for seg in range(3):
            a('s_add_u32 m0, s32, 0x%x' % ((i % NS1) * SLOT + seg * 2048))
            a('s_add_u32 s30, s29, 0x%x' % (seg * 1024))
            q = a('buffer_load_dwordx4 v7, %s, s30 offen lds' % sr(S_WQ))
        if i == 2:
            a('s_mov_b32 m0, 0x%x' % (XCH1 + 2048))
            a('s_lshl_b32 s30, s34, 10')
            a('buffer_load_dwordx4 v6, %s, s30 offen lds' % sr(S_WP))
        return q
    def pre(j):
        if j == 1:
            fin_rest(a)
        if j >= 1:
            sp_batches(a, 'W', 'g%d' % (j - 1))
    ring_loop(a, 16, NS1, LAG1, 3, wissue1, G96, 'g', pre=pre)
    sp_batches(a, 'W', 'g8')
    map64(a)
    a('s_lshl_b32 s31, s35, 13')
    a('s_add_u32 s31, s31, s22')
    a('v_lshrrev_b32 v8, 3, v1')
    a('v_bfe_u32 v9, v1, 1, 2')
    a('v_and_b32 v10, 1, v1')
    a('v_lshlrev_b32 v10, 4, v10')
    a('v_lshl_add_u32 v8, v8, 10, v10')
    a('v_add_u32 v8, s31, v8')
    a('v_bfe_u32 v10, v1, 4, 2')
    a('v_xor_b32 v10, v9, v10')
    a('v_lshl_add_u32 v11, v10, 5, v8')
    a('v_bfe_u32 v10, v1, 4, 1')
    a('v_xor_b32 v10, v9, v10')
    a('s_lshl_b32 s30, s35, 1')
    a('v_xor_b32 v10, s30, v10')
    a('v_lshl_add_u32 v12, v10, 5, v8')
    a('v_lshl_add_u32 v13, v9, 5, v8')
    a('s_lshl_b32 s36, s21, 14')

    def w2x():
        for i in range(8):
            for j in range(0, 8, 2):
                a('s_add_u32 m0, s32, 0x%x' % (W2B + 8192 * i + j * 1024))
                a('s_mov_b32 s30, 0x%x' % ((i * 64 + 8 * j) * 1024))
                a('buffer_load_dwordx4 v11, %s, s30 offen lds' % sr(S_WO))
        for j in range(0, 8, 2):
            a('s_add_u32 m0, s32, 0x%x' % (XT + j * 1024))
            a('s_add_u32 s30, s36, 0x%x' % (j * 8192))
            q = a('buffer_load_dwordx4 v13, %s, s30 offen lds' % sr(S_X))
        return q
    W2AT = env('W2AT', 1)
    if W2AT == 0:
        q_w2 = w2x()
    map3(a)
    w96_addr(False, 2752, 7)
    bar(a, 'e1')
    if W2AT == 1:
        q_w2 = w2x()
    sp_batches(a, 'W', 'e1')
    bar(a, 'e2')
    if W2AT == 2:
        q_w2 = w2x()
    sp_batches(a, 'W', 'e2')
    q3 = {}

    def w3(i):
        for seg in range(3):
            a('s_add_u32 m0, s32, 0x%x' % (W3A[i] + seg * 2048))
            a('s_mov_b32 s30, 0x%x' % (i * 32 * 2752 + seg * 64))
            q3[i] = a('buffer_load_dwordx4 v7, %s, s30 offen lds' % sr(S_W1))
    bar(a, 'o1')
    if W2AT == 3:
        q_w2 = w2x()
    W3N = env('W3N', 0)
    for i in range(W3N):
        w3(i)
    sp_batches(a, 'W', 'o1')
    a.wait_vm(q_w2)
    bar(a, 'd1')
    for i in range(W3N, 10):
        w3(i)
    sp_batches(a, 'W', 'd1')
    bar(a, 'x2')
    w3(10)
    w3(11)
    sp_batches(a, 'W', 'x2')
    q4 = {}
    nxt = [0]

    def w4(after):
        while nxt[0] < NP4 and W4T[nxt[0]] == after:
            i = nxt[0]
            n = 8 if i < NP4 - 1 else 4
            for j in range(0, n, 2):
                a('s_add_u32 m0, s32, 0x%x' % (8192 * W4P[i] + j * 1024))
                a('s_mov_b32 s30, 0x%x' % ((i * 64 + 8 * j) * 1024))
                q4[i] = a('buffer_load_dwordx4 v12, %s, s30 offen lds' % sr(S_W2))
            nxt[0] += 1
    for g, (lo, hi) in enumerate(G96):
        a.wait_vm(q3[hi - 1])
        stamp(a, 3 + g, 3)
        bar(a, 'q%d' % g)
        if g == 0:
            for k in (12, 13, 14):
                w3(k)
        if g == 2:
            w3(15)
        w4('q%d' % g)
        sp_batches(a, 'W', 'q%d' % g)
    a.wait_vm(q4[1])
    bar(a, 'e3')
    if env('W4SL', 0):
        a('s_sleep %d' % env('W4SL', 0))
    w4('e3')
    a.wait_vm(q4[NPUB0 - 1])
    stamp(a, 12, 3)
    bar(a, 'r0')
    w4('r0')
    assert nxt[0] == NP4
    a('s_waitcnt vmcnt(0)')
    stamp(a, 13, 3)
    bar(a, 'r1')
    stamp_store(a)
    a('s_endpgm')


def prod_a(a):
    a.label('prod_a')
    a.hist = []
    a.vm_issued = 0
    a.bars = []
    nt = 4
    a('s_sub_u32 s35, s20, 10')
    a('s_mul_i32 s32, s35, %d' % (nt * 1024))
    a('s_mul_i32 s31, s35, %d' % (nt * 16))
    a('s_add_u32 s31, s31, s21')
    a('s_lshl_b32 s31, s31, 10')
    a('v_lshlrev_b32 v15, 1, v2')
    a('v_mov_b32 v14, 0x78')
    a('v_lshrrev_b32 v15, v15, v14')
    a('v_and_b32 v15, 3, v15')
    a('v_xor_b32 v15, v15, v5')
    a('v_lshrrev_b32 v7, 2, v1')
    a('v_lshlrev_b32 v7, 10, v7')
    a('v_lshl_add_u32 v7, v15, 4, v7')
    a('v_add_u32 v7, s31, v7')

    def aissue1(i):
        a('s_add_u32 s29, s39, %d' % i)
        a('s_and_b32 s29, s29, 15')
        a('s_lshl_b32 s29, s29, 6')
        for rt in range(nt):
            a('s_add_u32 m0, s32, 0x%x' % ((i % NS1) * SLOT + 6144 + rt * 1024))
            a('s_add_u32 s30, s29, 0x%x' % (rt * 16384))
            q = a('buffer_load_dwordx4 v7, %s, s30 offen lds' % sr(S_X))
        return q
    a('v_lshlrev_b32 v23, 2, v1')
    RDY_G = env('RDY_G', 9)

    def pre(j):
        if j == 1:
            fin_rest(a)
        if j >= 1:
            sp_batches(a, 'A', 'g%d' % (j - 1))
        if j == 0:
            a('v_mov_b32 v24, 0')
            a('v_mov_b32 v25, 0x%x' % CTRL)
            a('ds_write_b32 v25, v24')
            a('s_waitcnt lgkmcnt(0)')
    ring_loop(a, 16, NS1, LAG1, nt, aissue1, G96, 'g', pre=pre)
    a('v_lshrrev_b32 v26, 1, v1')
    a('v_lshlrev_b32 v26, 7, v26')

    def ready_check(tag, tries):
        L = lambda n: 'pa_%s%s' % (n, tag)
        a('s_cmp_lg_u32 s20, 10')
        a('s_cbranch_scc1 %s' % L('nr'))
        a('s_cmp_lg_u32 s3, 0')
        a('s_cbranch_scc1 %s' % L('nr'))
        a('s_mov_b32 s28, %d' % tries)
        a('s_mov_b32 s29, 1')
        a('s_branch %s' % L('r1'))
        a.label(L('rp'))
        a('s_sleep 4')
        a.label(L('r1'))
        a('s_sub_u32 s28, s28, 1')
        a('s_cbranch_scc1 %s' % (L('nr') if tries < 16 else L('rd')))
        a('buffer_load_dword v22, v23, %s, 0 offen sc1' % sr(S_DBG))
        a('s_waitcnt vmcnt(0)')
        a('v_and_b32 v24, 0xff, v22')
        a('v_cmp_ne_u32 vcc, 32, v24')
        a('s_and_b32 vcc_lo, vcc_lo, 0x01010101')
        a('s_and_b32 vcc_hi, vcc_hi, 0x01010101')
        a('s_cmp_lg_u64 vcc, 0')
        a('s_cbranch_scc1 %s' % L('rp'))
        a('s_getreg_b32 s30, hwreg(HW_REG_XCC_ID, 0, 4)')
        a('s_mul_i32 s31, s30, s30')
        a('s_lshl_b32 s31, s31, 23')
        a('s_lshl_b32 s30, s30, 13')
        a('s_add_u32 s30, s30, s31')
        a('s_add_u32 s30, s30, 32')
        a('v_cmp_ne_u32 vcc, s30, v22')
        a('s_and_b32 s31, s2, 7')
        a('s_lshl_b32 s31, s31, 3')
        a('s_lshr_b64 s[26:27], vcc, s31')
        a('s_and_b32 s26, s26, 1')
        a('s_cmp_eq_u32 s26, 0')
        a('s_cselect_b32 s29, %d, 1' % (1 if FORCE_SLOW else 3))
        a.label(L('rd'))
        stamp(a, 12, 1)
        a('s_mov_b32 s3, 1')
        a('v_mov_b32 v24, s29')
        a('v_mov_b32 v25, 0x%x' % CTRL)
        a('ds_write_b32 v25, v24')
        a('s_and_b32 s30, s2, 7')
        a('s_lshl_b32 s30, s30, 8')
        a('s_add_u32 s30, s30, 0x%x' % WS_FLAG)
        a('v_and_b32 v24, 1, v1')
        a('v_lshlrev_b32 v24, 7, v24')
        a('v_bfe_u32 v25, v1, 1, 2')
        a('v_min_u32 v25, 2, v25')
        a('v_lshl_add_u32 v24, v25, 11, v24')
        a('buffer_load_dword v27, v24, %s, s30 offen sc1' % sr(S_WS))
        a.label(L('nr'))
        a.vm_issued -= 2

    def paced(n):
        if not n:
            return
        lb, le = uid('pt'), uid('pe')
        a('s_cmp_lg_u32 s20, 11')
        a('s_cbranch_scc1 %s' % lb)
        for w in range(2):
            if w:
                a('s_branch %s' % le)
                a.label(lb)
                a('s_sleep %d' % (T_SL // 2))
            m = (n + 1 - w) // 2
            for i in range(m):
                if touch_item(a, 26, 27):
                    a.vm_issued -= 1
                    if i + 1 < m:
                        a('s_sleep %d' % T_SL)
        a.label(le)
    paced(T_PA[0])
    bar(a, 'e1')
    sp_batches(a, 'A', 'e1', only=0)
    if T_PA[1]:
        a('s_sleep %d' % env('T_D1', 10))
    paced(T_PA[1])
    if SASSIGN.get(('A', 'e1', 1)):
        a('s_waitcnt lgkmcnt(0)')
        sp_batches(a, 'A', 'e1', only=1)
    a('s_sleep %d' % env('RDY_SL', 8))
    ready_check('a', 1)
    bar(a, 'e2')
    ready_check('b', 4 * TMO)
    paced(T_PA[2])
    sp_batches(a, 'A', 'e2')
    bar(a, 'o1')
    paced(T_PA[3])
    sp_batches(a, 'A', 'o1')
    bar(a, 'd1')
    paced(T_PA[4])
    sp_batches(a, 'A', 'd1')
    map3(a)
    a('s_mul_i32 s31, s35, %d' % (nt * 16))
    a('s_add_u32 s31, s31, s21')
    a('s_lshl_b32 s31, s31, 12')
    a('v_add_u32 v7, s31, v6')
    a('s_and_b32 s36, s2, 7')
    a('s_lshl_b32 s36, s36, 8')
    a('s_lshr_b32 s31, s2, 3')
    a('s_and_b32 s31, s31, 1')
    a('s_lshl_b32 s31, s31, 1')
    a('s_add_u32 s31, s31, s35')
    a('s_lshl_b32 s31, s31, 6')
    a('s_add_u32 s36, s36, s31')
    a('s_add_u32 s36, s36, 0x%x' % (WS_FLAG + 2048))
    bar(a, 'x2')
    poll_flags(a, 36, 16, 23, 22)
    stamp(a, 2, 3)

    def aissue3(i):
        for rt in range(nt):
            a('s_add_u32 m0, s32, 0x%x' % (a3addr(i) + rt * 1024))
            a('s_mov_b32 s30, 0x%x' % (OFF_H + rt * 65536 + i * 1024))
            q = a('buffer_load_dwordx4 v7, %s, s30 offen sc1 lds' % sr(S_WS))
        return q
    ring_loop(a, 16, 8, env('LAG3', 8), nt, aissue3, G96, 'q', pre=lambda j: sp_batches(a, 'A', 'q%d' % (j - 1)))
    paced(T_PA[5])
    stamp_store(a)
    a('s_endpgm')


def gen(a):
    a.raw('.globl %s' % NAME)
    a.raw('.p2align 8')
    a.raw('.type %s,@function' % NAME)
    a.label(NAME)
    a.bars = []
    a('s_cmp_ge_u32 s2, 256')
    a('s_cbranch_scc1 mega_exit')
    stamp_real(a, 0)
    stamp(a, 1)
    for s, off in ((S_X, 0), (S_WQ, 8), (S_WP, 16), (S_WS, 88), (S_WO, 24), (S_W1, 40), (S_W2, 56), (S_B1, 48), (S_B2, 64), (S_OUT, 72), (S_DBG, 80)):
        srd(a, s, off)
    lane_decomp(a)
    a('s_add_u32 s21, s20, 8')
    a('s_sub_u32 s20, s20, 4')
    a('s_cselect_b32 s20, s21, s20')
    a('s_mov_b32 s%d, 0' % FAST)
    a('s_and_b32 s30, s2, 7')
    a('s_lshr_b32 s31, s2, 3')
    a('s_lshr_b32 s21, s30, 1')
    a('s_lshl_b32 s21, s21, 2')
    a('s_and_b32 s22, s31, 3')
    a('s_add_u32 s33, s21, s22')
    a('s_and_b32 s21, s30, 1')
    a('s_lshl_b32 s21, s21, 3')
    a('s_lshr_b32 s22, s31, 2')
    a('s_add_u32 s34, s21, s22')
    a('s_lshl_b32 s21, s33, 7')
    a('s_lshl_b32 s22, s34, 6')
    a('s_lshl_b32 s39, s33, 1')
    a('s_add_u32 s39, s39, s34')
    a('s_lshl_b32 s39, s39, 1')
    a('s_waitcnt lgkmcnt(0)')
    srd_fin(a, S_X, 2048 * 1024)
    srd_fin(a, S_WQ, 512 * 3072)
    srd_fin(a, S_WP, 16384)
    srd_fin(a, S_WS, WS_SIZE)
    a('s_cmp_ge_u32 s20, 10')
    a('s_cbranch_scc1 prod_a')
    a('s_cmp_ge_u32 s20, 8')
    a('s_cbranch_scc1 prod_w')
    cons_k1(a)
    cons_ko(a)
    cons_k2(a)
    cons_k3(a)
    cons_k4(a)
    stamp_store(a)
    a.label('mega_exit')
    a('s_endpgm')
    bc = a.bars
    prod_w(a)
    assert a.bars == bc[:len(a.bars)], (a.bars, bc)
    prod_a(a)
    assert a.bars == bc[:len(a.bars)], (a.bars, bc)


def build():
    if NAME == 'mega_kernel':
        head = '; @launch kernel=%s grid=(256,1,1) block=(768,1,1) lds=163840\n' % NAME
    else:
        head = '; @launch grid=(256,1,1) block=(768,1,1) lds=163840\n'
    head += '.amdgcn_target "amdgcn-amd-amdhsa--gfx950"\n.text\n'
    a = Asm()
    gen(a)
    d = '''.section .rodata,"a"
.p2align 6
.amdhsa_kernel %s
  .amdhsa_next_free_vgpr 168
  .amdhsa_next_free_sgpr 102
  .amdhsa_accum_offset 168
  .amdhsa_group_segment_fixed_size 0
  .amdhsa_kernarg_size 96
  .amdhsa_user_sgpr_count 2
  .amdhsa_user_sgpr_kernarg_segment_ptr 1
  .amdhsa_system_sgpr_workgroup_id_x 1
.end_amdhsa_kernel
''' % NAME
    return head + a.text() + d


if __name__ == '__main__':
    open(sys.argv[1], 'w').write(build())
    if os.environ.get('V'):
        print('W4P', W4P, 'W4T', W4T, 'NPUB0', NPUB0, 'R1_AT', R1_AT, 'touch used', _tnext[0], 'of', len(TITEMS), 'sp', _pos, 'of', len(SLINES))
```

```python
import sys, os
sys.path.insert(0, os.path.dirname(__file__))
from dsl import Asm
from gen2 import MB, env, vr, srd, srd_fin, bf16r, butterfly, lane_decomp, mk_groups, softmax_sets

NAME = os.environ.get('KNAME', 'mega_kernel')
STAMP = os.environ.get('STAMP')
OFF_H, OFF_S = 44032, 60416
PSTR = 1152
WS_PART = 8 * MB
WS_FLAG = 9 * MB + 512 * 1024
WS_STAMP = 15 * MB
WS_SIZE = 16 * MB
FORCE_SLOW = env('FORCE_SLOW', 0)
TMO = 4096

S_X, S_WQ, S_WP, S_WS = 4, 8, 12, 16
S_WO, S_W1, S_W2, S_B1, S_B2, S_OUT, S_DBG = 40, 44, 48, 52, 56, 60, 64
FAST = 3
F0, F1, F2 = 0, 1, 39
BANK = 57344
SLOT = 14336
NS1 = 11
XCH1 = NS1 * SLOT
XCH3 = 159744
CTRL = 161792
KOX = 32768
W2B = 73728
XT = W2B + 65536
LAG1 = env('LAG1', 5)
RDY_KS = env('RDY_KS', 4)
POIS_KS = env('POIS_KS', 0)
RDY_AT = env('RDY_AT', 1)
WAIT_KS = env('WAIT_KS', 4)
LT1 = env('LT1', 1)
BPOS = env('BPOS', 1)
ILV = env('ILV', 1)
PST = env('PST', 0)

TCNT = {'wo': 4, 'x': 2, 'w1': 11, 'w2': 11, 'Fh': 3, 'Fr': 4}
TITEMS = []
for _e in os.environ.get('TLIST', 'wo,x,Fh,w1').split(','):
    if _e:
        _m, _, _hi = _e.partition(':')
        TITEMS += [(_m, i) for i in range(int(_hi or TCNT[_m]))]
T_KS = [int(v) for v in os.environ.get('T_KS', '6,6,7,7,8,8,9,9,9,10,10,10,11,11,11,12,12,12,13,13').split(',') if v]
T_PA = [int(v) for v in os.environ.get('T_PA', '0,0,0,0,0,0').split(',')]
T_SL = env('T_SL', 7)
_tnext = [0]


def NT(m):
    return 'nt ' if m in os.environ.get('NTL', '').split(',') else ''


def sr(s):
    return 's[%d:%d]' % (s, s + 3)


def touch_item(a, vaddr, vdst, s0=30, s1=31):
    if _tnext[0] >= len(TITEMS):
        return False
    m, i = TITEMS[_tnext[0]]
    _tnext[0] += 1
    share_base(a, m, s0, s1)
    a('s_add_u32 s%d, s%d, %d' % (s0, s0, min(i * 4096, SREG[m][1] - 4096)))
    a('buffer_load_dword v%d, v%d, %s, s%d offen %s' % (vdst, vaddr, sr(SREG[m][0]), s0, 'sc1' if m[0] == 'F' else ''))
    return True


SCNT = {'wo': 128, 'x': 64, 'w1': 344, 'w2': 344, 'Fh': 72, 'Fr': 108}
SREG = {'wo': (S_WO, 16384), 'x': (S_X, 8192), 'w1': (S_W1, 44032), 'w2': (S_W2, 44032), 'Fh': (S_WS, 9216), 'Fr': (S_WS, 13824)}
SLINES = []
for _e in os.environ.get('SLIST', 'w2,Fr').split(','):
    if _e:
        _m, _, _lo = _e.partition(':')
        SLINES += [(_m, i) for i in range(int(_lo or 0), SCNT[_m], 2)]
SP_B = env('SP_B', 7)


def _il(n, d):
    return [int(v) for v in os.environ.get(n, d).split(',')]


SP_S = env('SP_S', 0)
SP_G = _il('SP_G', '1,0,1,0,1,0,1,0,1')
SP_H = _il('SP_H', '1,0,1,0,1,0,1,0,1')
SP_W = _il('SP_W', '2,2,1,2,1')
SP_A = _il('SP_A', '1,2,1,2,1')
SP_C = _il('SP_C', '0,0,0,0,0')
SP_Q = _il('SP_Q', '1,0,0,0,1,0,0,0,0')
SP_Q2 = _il('SP_Q2', '1,0,0,0,1,0,0,1,0')
_slots = [('C', 'st', b) for b in range(SP_S)]
for _g in range(9):
    _slots += [('W', 'g%d' % _g, b) for b in range(SP_G[_g])] + [('A', 'g%d' % _g, b) for b in range(SP_H[_g])]
for _w, _nm in enumerate(('e1', 'e2', 'o1', 'd1', 'x2')):
    for _b in range(8):
        for _k, _l in (('W', SP_W), ('A', SP_A), ('C', SP_C)):
            if _b < _l[_w]:
                _slots.append((_k, _nm, _b))
for _g in range(9):
    _slots += [('W', 'q%d' % _g, b) for b in range(SP_Q2[_g])] + [('A', 'q%d' % _g, b) for b in range(SP_Q[_g])]
SASSIGN = {}
_pos = 0
for _sl in _slots:
    _it = []
    while len(_it) < SP_B and _pos < len(SLINES):
        if _sl[0] == 'C':
            _n = min(4, SCNT[SLINES[_pos][0]] // 2 - SLINES[_pos][1] // 2)
            _it.append((SLINES[_pos][0], min(SLINES[_pos][1], SCNT[SLINES[_pos][0]] - 8)))
            _pos += _n
        else:
            _it.append(SLINES[_pos])
            _pos += 1
    SASSIGN[_sl] = _it


def share_base(a, m, r, t):
    a('s_lshr_b32 s%d, s2, 3' % r)
    if m[0] in 'xF':
        a('s_and_b32 s%d, s2, 7' % t)
        a('s_lshl_b32 s%d, s%d, 5' % (t, t))
        a('s_add_u32 s%d, s%d, s%d' % (r, r, t))
    if m[0] == 'F':
        a('s_and_b32 s%d, s%d, 1' % (t, r))
        a('s_mul_i32 s%d, s%d, %d' % (t, t, SREG[m][1]))
        a('s_lshr_b32 s%d, s%d, 1' % (r, r))
        a('s_lshl_b32 s%d, s%d, 16' % (r, r))
        a('s_add_u32 s%d, s%d, s%d' % (r, r, t))
        a('s_add_u32 s%d, s%d, %d' % (r, r, OFF_H if m == 'Fh' else 16384))
    else:
        a('s_mul_i32 s%d, s%d, %d' % (r, r, SREG[m][1]))


def sp_batches(a, kind, win, only=None):
    b = 0
    r, t, w = (30, 31, 20) if kind == 'C' else (24, 27, 35)
    while (kind, win, b) in SASSIGN:
        if SASSIGN[(kind, win, b)] and only in (None, b):
            if b and only is None:
                a('s_waitcnt lgkmcnt(0)')
            cur = None
            for m, i in SASSIGN[(kind, win, b)]:
                if cur != m:
                    share_base(a, m, r, t)
                    a('s_lshl_b32 s%d, s%d, 7' % (t, w))
                    a('s_add_u32 s%d, s%d, s%d' % (r, r, t))
                    cur = m
                a('s_buffer_load_dwordx2 s[100:101], %s, s%d offset:0x%x' % (sr(SREG[m][0]), r, i * 128 + 60))
        b += 1


def stamp(a, i, ps=None):
    if ps is not None and ps != PST:
        return
    if STAMP:
        a('s_memtime s[%d:%d]' % (68 + 2 * i, 69 + 2 * i))


def stamp_real(a, i):
    if STAMP:
        a('s_memrealtime s[%d:%d]' % (68 + 2 * i, 69 + 2 * i))


NSTAMP = 17


def stamp_store(a):
    if not STAMP:
        return
    stamp(a, 15)
    stamp_real(a, 16)
    a('s_waitcnt lgkmcnt(0)')
    a('s_mul_i32 s38, s2, 12')
    a('s_add_u32 s38, s38, s20')
    a('s_lshl_b32 s38, s38, 7')
    a('s_add_u32 s38, s38, 0x%x' % WS_STAMP)
    a('v_mov_b32 v0, 0')
    for i in range(NSTAMP):
        a('v_mov_b32 v1, s%d' % (68 + 2 * i))
        a('buffer_store_dword v1, v0, %s, s38 offen offset:%d' % (sr(S_WS), i * 4))


PBAR = {'e1': 2, 'e2': 3, 'o1': 4, 'd1': 5, 'x2': 6, 'q0': 7, 'e3': 8, 'r0': 9, 'r1': 10, 'g8': 11, 'q8': 12}


def bar(a, name):
    if getattr(a, 'isprod', 0) and name in PBAR:
        stamp(a, PBAR[name], 2)
    a('s_barrier')
    a.bars.append(name)


_uid = [0]


def uid(p):
    _uid[0] += 1
    return 'L%s%d' % (p, _uid[0])


def gstore(a, text):
    ls, le = uid('s'), uid('e')
    a('s_cmp_eq_u32 s%d, 0' % FAST)
    a('s_cbranch_scc1 %s' % ls)
    a(text)
    a('s_branch %s' % le)
    a.label(ls)
    a(text + ' sc1')
    a.label(le)
    a.vm_issued -= 1


def set_flag(a, sf, t0, t1):
    a('v_mov_b32 v%d, 1' % t0)
    a('v_mov_b32 v%d, 0' % t1)
    a('s_waitcnt vmcnt(0)')
    a('s_mov_b64 exec, 1')
    gstore(a, 'buffer_store_byte v%d, v%d, %s, s%d offen' % (t0, t1, sr(S_WS), sf))
    a('s_mov_b64 exec, -1')


def poll_flags(a, sbase, nlanes, vaddr, vt):
    a('s_mov_b64 exec, 0x%x' % ((1 << nlanes) - 1))
    a('s_mov_b32 s28, %d' % (4 * TMO))
    lp, lo = uid('p'), uid('ok')
    a.label(lp)
    a('buffer_load_dword v%d, v%d, %s, s%d offen sc1' % (vt, vaddr, sr(S_WS), sbase))
    a('s_sub_u32 s28, s28, 1')
    a('s_cbranch_scc1 %s' % lo)
    a('s_waitcnt vmcnt(0)')
    a('v_cmp_ne_u32 vcc, 0x01010101, v%d' % vt)
    a('s_cbranch_vccnz %s' % lp)
    a.label(lo)
    a('s_waitcnt vmcnt(0)')
    a('s_mov_b64 exec, -1')


def fin_rest(a):
    srd_fin(a, S_WO, 512 * 1024)
    srd_fin(a, S_W1, 512 * 2752)
    srd_fin(a, S_W2, 1376 * 1024)
    srd_fin(a, S_B1, 2752)
    srd_fin(a, S_B2, 1024)
    srd_fin(a, S_OUT, 2048 * 1024)
    srd_fin(a, S_DBG, 256)


def map64(a):
    a('s_and_b32 s30, s2, 7')
    a('s_lshr_b32 s31, s2, 3')
    a('s_lshl_b32 s21, s30, 2')
    a('s_and_b32 s22, s31, 3')
    a('s_add_u32 s21, s21, s22')
    a('s_lshr_b32 s22, s31, 2')
    a('s_lshl_b32 s21, s21, 2')
    a('s_lshl_b32 s22, s22, 7')


def map3(a):
    a('s_and_b32 s30, s2, 7')
    a('s_lshr_b32 s31, s2, 3')
    a('s_lshl_b32 s21, s30, 1')
    a('s_and_b32 s22, s31, 1')
    a('s_add_u32 s33, s21, s22')
    a('s_lshr_b32 s34, s31, 1')
    a('s_lshl_b32 s21, s33, 7')
    a('s_min_u32 s22, s34, 14')
    a('s_mul_i32 s22, s22, 192')


G96 = mk_groups(16, '1,1,2')
GST = [lo for lo, hi in G96]
W3A = {9: 151552, 10: 139264, 11: 145408, 15: 0}
for _m in range(5):
    W3A[_m] = 6144 * _m
for _m in range(4):
    W3A[5 + _m] = 49152 + 6144 * _m
for _m in range(3):
    W3A[12 + _m] = 30720 + 6144 * _m


def a3addr(i):
    return W2B + 8192 * (i % 8)


NP4 = 22
_last = {}
for _ks in range(16):
    for _lo, _n in ((W3A[_ks], 6144), (a3addr(_ks), 8192)):
        for _p in range(_lo // 8192, (_lo + _n - 1) // 8192 + 1):
            _last[_p] = max(_last.get(_p, -1), _ks)
W4Q0 = env('W4Q0', 3)


def _free_bar(ks):
    for g in range(len(GST)):
        if GST[g] - 2 >= ks:
            return max(g, W4Q0)
    return 9


_ordp = sorted(range(19), key=lambda p: (_free_bar(_last[p]), p))
W4P = _ordp + [19, _ordp[0], _ordp[1]]
W4T = [('q%d' % _free_bar(_last[p]) if _free_bar(_last[p]) < 9 else 'e3') for p in _ordp] + ['r0', 'r0', 'r0']
NPUB0 = sum(1 for t in W4T if t[0] == 'q')
R1_AT = NPUB0 - 2

GB = (48, 72, 132)
ACC = 96
RS, GR, CSA = 120, 124, 128
ONES = 16
VW, VC, VA, VP = 8, 11, 40, 43
HKEEP = 160


def gemm96_main(a, mode, waddr, aaddr, XCH, bn, en, extra, hook, st):
    k1 = mode == 'k1'
    gstart = {lo: g for g, (lo, hi) in enumerate(G96)}
    a('s_lshl_b32 s23, s20, 4')
    a('s_add_u32 s24, s21, s23')
    a('s_xor_b32 s37, s24, 16')
    a('s_and_b32 s36, s20, 1')
    extra(a)
    a('v_lshl_add_u32 v8, v2, %d, v4' % (3 if k1 else 2))
    a('v_lshlrev_b32 v8, 6, v8')
    a('v_lshl_add_u32 v8, v5, 3, v8')
    a('v_and_b32 v15, 1, v2')
    a('v_lshlrev_b32 v15, 5, v15')
    a('s_sub_u32 s26, s20, 6')
    a('s_cmp_lt_u32 s20, 6')
    a('s_cselect_b32 s26, s20, s26')
    a('s_lshr_b32 s27, s26, 1')
    a('s_lshl_b32 s27, s27, 11')
    a('s_lshl_b32 s28, s36, 5')
    a('v_xor_b32 v15, s28, v15')
    a('v_add_u32 v%d, v8, v15' % VW)
    a('v_add_u32 v%d, s27, v%d' % (VC, VW))
    a('s_lshl_b32 s35, s20, 10')
    if k1:
        a('v_lshlrev_b32 v15, 1, v4')
        a('v_mov_b32 v14, 0x78')
        a('v_lshrrev_b32 v15, v15, v14')
        a('v_and_b32 v15, 3, v15')
        a('v_xor_b32 v15, v15, v2')
        a('v_lshlrev_b32 v15, 4, v15')
        a('v_lshl_add_u32 v15, v3, 6, v15')
        a('v_add_u32 v%d, s35, v15' % VA)
    else:
        a('v_add_u32 v%d, s35, v6' % VA)
    a('v_xor_b32 v%d, 0x400, v%d' % (VP, VA))
    for b in range(1, 3):
        for r in (VW, VC, VA, VP):
            a('v_add_u32 v%d, 0x%x, v%d' % (r + b, b * BANK, r))
    for i in range(4):
        a('v_mov_b32 v%d, 0x3f803f80' % (ONES + i))
    eoff = 256 if k1 else 1024

    def rlist(ks):
        b = GB[ks % 3]
        ab, ao = divmod(aaddr(ks), BANK)
        wb, wo = divmod(waddr(ks), BANK)
        r = ['ds_read_b128 %s, v%d offset:%d' % (vr(b, 4), VA + ab, ao)]
        for seg in range(3):
            for e in range(2):
                r.append('ds_read_b64_tr_b16 %s, v%d offset:%d' % (vr(b + 8 + 4 * seg + 2 * e, 2), VW + wb, wo + seg * 2048 + e * eoff))
            if seg == 1:
                r.append('ds_read_b128 %s, v%d offset:%d' % (vr(b + 4, 4), VP + ab, ao))
        for e in range(2):
            r.append('ds_read_b64_tr_b16 %s, v%d offset:%d' % (vr(b + 20 + 2 * e, 2), VC + wb, wo + e * eoff))
        return r

    def reads(ks):
        for r in rlist(ks):
            a(r)

    if not k1:
        a('s_waitcnt lgkmcnt(0)')
    hook(a, -2, 0)
    bar(a, bn + '0')
    stamp(a, st[0])
    reads(0)
    hook(a, -2, 1)
    bar(a, bn + '1')
    reads(1)
    for ks in range(16):
        b = GB[ks % 3]

        def cop(r):
            return '0' if ks == 0 else vr(r, 4)
        mf = []
        for p in range(2):
            for seg in range(3):
                ac = ACC + 4 * (3 * p + seg)
                mf.append('v_mfma_f32_16x16x32_bf16 %s, %s, %s, %s' % (vr(ac, 4), vr(b + 8 + 4 * seg, 4), vr(b + 4 * p, 4), cop(ac)))
        mf.append('v_mfma_f32_16x16x32_bf16 %s, %s, %s, %s' % (vr(CSA, 4), vr(b + 20, 4), vr(ONES, 4), cop(CSA)))
        if k1:
            mf.append('v_mfma_f32_16x16x32_bf16 %s, %s, %s, %s' % (vr(RS, 4), vr(ONES, 4), vr(b, 4), cop(RS)))
            mf.append('v_mfma_f32_16x16x32_bf16 %s, %s, %s, %s' % (vr(GR, 4), vr(b, 4), vr(b, 4), cop(GR)))
        a('s_waitcnt lgkmcnt(%d)' % (10 if ks < 15 else 0))
        for m in mf[:BPOS]:
            a(m)
        hook(a, ks, 0)
        rl = []
        if ks + 2 < 16:
            if ks + 2 in gstart:
                bar(a, bn + str(gstart[ks + 2]))
            rl = rlist(ks + 2)
        rest = mf[BPOS:]
        if ILV:
            per = -(-len(rl) // max(1, len(rest) - ILV + 1))
            for m in rest:
                for r in rl[:per]:
                    a(r)
                rl = rl[per:]
                a(m)
            assert not rl
            hook(a, ks, 1)
        else:
            for r in rl:
                a(r)
            hook(a, ks, 1)
            for m in rest:
                a(m)
    stamp(a, st[1])
    a('v_lshlrev_b32 v15, 4, v2')
    a('s_lshl_b32 s27, s26, 6')
    a('s_add_u32 s27, s27, 0x%x' % XCH)
    a('v_add_u32 v14, s27, v15')
    a('ds_write_b128 v14, %s' % vr(CSA, 4))

    def finish_stats(SUM, SQ, M, RD):
        a('v_mul_f32 v%d, 0x3b000000, v%d' % (SUM, SUM))
        a('v_mul_f32 v%d, 0x3b000000, v%d' % (SQ, SQ))
        a('v_fma_f32 v%d, -v%d, v%d, v%d' % (SQ, SUM, SUM, SQ))
        a('v_max_f32 v%d, 0, v%d' % (SQ, SQ))
        bf16r(a, M, SUM)
        bf16r(a, SQ, SQ)
        a('v_add_f32 v%d, 0x3727c5ac, v%d' % (SQ, SQ))
        bf16r(a, SQ, SQ)
        a('v_sqrt_f32 v%d, v%d' % (SQ, SQ))
        bf16r(a, SQ, SQ)
        a('v_rcp_f32 v%d, v%d' % (RD, SQ))

    if k1:
        SUM, SQ = 72, 73
        a('v_cmp_eq_u32 vcc, 1, v5')
        a('v_cndmask_b32 v%d, v%d, v%d, vcc' % (SQ, GR, GR + 1))
        a('v_cmp_eq_u32 vcc, 2, v5')
        a('v_cndmask_b32 v%d, v%d, v%d, vcc' % (SQ, SQ, GR + 2))
        a('v_cmp_eq_u32 vcc, 3, v5')
        a('v_cndmask_b32 v%d, v%d, v%d, vcc' % (SQ, SQ, GR + 3))
        a('v_cmp_eq_u32 vcc, v2, v4')
        a('v_cndmask_b32 v%d, 0, v%d, vcc' % (SQ, SQ))
        a('v_mov_b32 v%d, v%d' % (SUM, RS))
        butterfly(a, [('v_add_f32', SQ, 76)])
        finish_stats(SUM, SQ, 36, 37)
        a('s_lshl_b32 s27, s20, 7')
        a('s_add_u32 s27, s27, 0x%x' % (XCH + 512))
        a('v_lshlrev_b32 v74, 3, v3')
        a('v_add_u32 v75, s27, v74')
        a('ds_write_b64 v75, v[36:37]')
        a('v_xor_b32 v75, 0x80, v75')
    a('s_lshl_b32 s27, s36, 6')
    a('s_add_u32 s27, s27, 0x%x' % XCH)
    a('v_add_u32 v15, s27, v15')
    hook(a, 16, 0)
    a('s_waitcnt lgkmcnt(0)')
    bar(a, en)
    if k1:
        a('ds_read_b64 v[38:39], v75')
    for seg in range(3):
        a('ds_read_b128 %s, v15 offset:%d' % (vr(132 + 4 * seg, 4), seg * 128))
    hook(a, 16, 1)
    if not k1:
        return
    for p in range(2):
        for seg in range(3):
            if p == 0:
                a('s_waitcnt lgkmcnt(%d)' % (2 - seg))
            ac = ACC + 4 * (3 * p + seg)
            for r in range(4):
                a('v_fma_f32 v%d, -v%d, v%d, v%d' % (ac + r, 36 + 2 * p, 132 + 4 * seg + r, ac + r))
            for r in range(4):
                a('v_mul_f32 v%d, v%d, v%d' % (ac + r, 37 + 2 * p, ac + r))
    gemm96_main.finish_stats = finish_stats


S_MASK, S_PART, S_PQ = 96, 98, 99
V_PART, V_L8 = 164, 165


def part_store(a, r, cvt):
    lz, le = uid('z'), uid('e')
    a('s_bitcmp1_b32 s20, 1')
    a('s_cbranch_scc1 %s' % lz)
    if cvt:
        a('v_cvt_pk_bf16_f32 v%d, v%d, v%d' % (r, r, r + 1))
        a('v_cvt_pk_bf16_f32 v%d, v%d, v%d' % (r + 1, r + 2, r + 3))
    a('buffer_store_dwordx2 %s, v%d, %s, s%d offen sc1' % (vr(r, 2), V_L8, sr(S_WS), S_PART))
    a('s_branch %s' % le)
    a.label(lz)
    a('s_mov_b64 exec, s[%d:%d]' % (S_MASK, S_MASK + 1))
    a('buffer_store_dwordx4 %s, v%d, %s, s%d offen sc1' % (vr(r, 4), V_PART, sr(S_WS), S_PART))
    a('s_mov_b64 exec, -1')
    a.label(le)


def cons_k1(a):
    XCH = XCH1

    def extra(a):
        if LT1:
            a('s_and_b32 s30, s2, 1')
            a('s_or_b32 s30, s30, s20')
            a('s_cmp_lg_u32 s30, 0')
            a('s_cbranch_scc1 k1_nlt')
            a('s_lshr_b32 s30, s2, 3')
            a('s_mul_i32 s30, s30, %d' % (48 * 1024))
            a('v_min_u32 v15, 47, v1')
            a('v_lshlrev_b32 v15, 10, v15')
            a('buffer_load_dword v156, v15, %s, s30 offen offset:384' % sr(S_WQ))
            a.label('k1_nlt')
        a('s_lshl_b32 s31, s34, 10')
        a('s_lshl_b32 s27, s36, 9')
        a('s_add_u32 s31, s31, s27')
        a('s_lshl_b32 s30, s24, 12')
        a('s_add_u32 s%d, s30, s31' % S_PQ)
        a('s_xor_b32 s29, s%d, 0x10000' % S_PQ)
        a('v_lshlrev_b32 v%d, 3, v1' % V_L8)
        for i in range(4):
            a('v_mov_b32 v%d, -1' % (28 + i))
        a('s_lshl_b32 s30, s33, 5')
        a('s_lshl_b32 s31, s34, 1')
        a('s_add_u32 s30, s30, s31')
        a('s_lshr_b32 s31, s20, 2')
        a('s_add_u32 s30, s30, s31')
        a('s_mul_i32 s30, s30, %d' % PSTR)
        a('s_add_u32 s30, s30, 0x%x' % WS_PART)
        a('s_and_b32 s31, s20, 3')
        a('s_lshl_b32 s27, s31, 9')
        a('s_lshl_b32 s28, s31, 6')
        a('s_add_u32 s28, s28, %d' % (1024 - 128))
        a('s_cmp_lt_u32 s31, 2')
        a('s_cselect_b32 s27, s27, s28')
        a('s_add_u32 s%d, s30, s27' % S_PART)
        a('v_lshlrev_b32 v%d, 4, v2' % V_PART)
        a('s_mov_b32 s%d, 0x00010001' % S_MASK)
        a('s_mov_b32 s%d, 0x00010001' % (S_MASK + 1))
        a('s_and_b32 s30, s2, 7')
        a('s_lshl_b32 s30, s30, 8')
        a('s_add_u32 s30, s30, 0x%x' % WS_FLAG)
        a('s_lshr_b32 s31, s2, 3')
        a('s_lshl_b32 s27, s20, 5')
        a('s_add_u32 s27, s27, s31')
        a('s_add_u32 s%d, s30, s27' % F0)
        a('s_and_b32 s27, s31, 3')
        a('s_lshl_b32 s27, s27, 6')
        a('s_lshr_b32 s28, s31, 2')
        a('s_lshl_b32 s28, s28, 3')
        a('s_add_u32 s27, s27, s28')
        a('s_add_u32 s27, s27, s20')
        a('s_add_u32 s27, s27, 2048')
        a('s_add_u32 s%d, s30, s27' % F1)
        a('s_and_b32 s27, s31, 1')
        a('s_lshl_b32 s27, s27, 7')
        a('s_and_b32 s28, s31, 30')
        a('s_add_u32 s27, s27, s28')
        a('s_lshr_b32 s28, s20, 1')
        a('s_lshl_b32 s28, s28, 5')
        a('s_add_u32 s27, s27, s28')
        a('s_add_u32 s27, s27, s36')
        a('s_add_u32 s27, s27, 4096')
        a('s_add_u32 s%d, s30, s27' % F2)
        fin_rest(a)
        a('v_lshrrev_b32 v157, 1, v1')
        a('v_lshlrev_b32 v157, 7, v157')
        a('v_lshlrev_b32 v24, 2, v2')
        a('v_sub_u32 v24, v3, v24')
        a('v_mov_b32 v26, 0x3f80')
        a('v_mov_b32 v27, 0x3f800000')
        a('v_cmp_eq_u32 vcc, 0, v24')
        a('v_cndmask_b32 v20, 0, v26, vcc')
        a('v_cmp_eq_u32 vcc, 1, v24')
        a('v_cndmask_b32 v21, 0, v27, vcc')
        a('v_or_b32 v20, v20, v21')
        a('v_cmp_eq_u32 vcc, 2, v24')
        a('v_cndmask_b32 v21, 0, v26, vcc')
        a('v_cmp_eq_u32 vcc, 3, v24')
        a('v_cndmask_b32 v25, 0, v27, vcc')
        a('v_or_b32 v21, v21, v25')
        a('v_lshl_add_u32 v22, v2, 2, v4')
        a('v_lshlrev_b32 v22, 5, v22')
        a('v_lshl_add_u32 v22, v5, 3, v22')
        a('s_lshl_b32 s30, s36, 9')
        a('s_add_u32 s30, s30, 0x%x' % (XCH + 2048))
        a('v_add_u32 v22, s30, v22')
        sp_batches(a, 'C', 'st')

        if POIS_KS < -2:
            poison(a)

    def poison(a):
        a('s_xor_b32 s29, s%d, 0x10000' % S_PQ)
        a('buffer_store_dwordx2 v[28:29], v%d, %s, s%d offen sc1' % (V_L8, sr(S_WS), S_PQ))
        a('buffer_store_dwordx2 v[28:29], v%d, %s, s29 offen sc1' % (V_L8, sr(S_WS)))
        part_store(a, 28, False)
        a('s_lshr_b32 s30, s2, 3')
        a('s_or_b32 s30, s30, s20')
        a('s_cmp_lg_u32 s30, 0')
        a('s_cbranch_scc1 k1_nfc')
        a('v_lshlrev_b32 v23, 11, v2')
        a('v_lshl_add_u32 v23, v3, 4, v23')
        for i in range(4):
            a('v_mov_b32 v%d, 0' % (24 + i))
        a('s_mov_b32 s30, -1')
        a('s_mov_b32 s31, 0xffff')
        a('s_mov_b64 exec, s[30:31]')
        a('buffer_store_dwordx4 v[24:27], v23, %s, s%d offen sc1' % (sr(S_WS), F0))
        a('s_mov_b64 exec, -1')
        a.label('k1_nfc')

    def hook(a, ks, ph):
        if ks == POIS_KS and ph == 1:
            poison(a)
        if ks == WAIT_KS and ph == 0:
            assert any(WAIT_KS <= k <= RDY_KS and (k + 2 in GST or k == 16) for k in range(-2, 17)) and POIS_KS < WAIT_KS
            a('s_waitcnt vmcnt(0)')
        if ks == RDY_KS and ph == 1:
            a('s_cmp_lg_u32 s20, 0')
            a('s_cbranch_scc1 c_nrdy')
            a('s_getreg_b32 s30, hwreg(HW_REG_XCC_ID, 0, 4)')
            a('s_and_b32 s31, s2, 7')
            a('s_lshl_b32 s31, s31, 5')
            if RDY_AT:
                a('s_mul_i32 s29, s30, s30')
                a('s_lshl_b32 s29, s29, 18')
                a('s_lshl_b32 s30, s30, 8')
                a('s_add_u32 s30, s30, s29')
                a('s_add_u32 s30, s30, 1')
            else:
                a('s_or_b32 s30, s30, 0x80')
                a('s_lshr_b32 s29, s2, 3')
                a('s_add_u32 s31, s31, s29')
            a('v_mov_b32 v23, s30')
            a('v_mov_b32 v24, 0')
            a('s_mov_b64 exec, 1')
            if RDY_AT:
                a('buffer_atomic_add v23, v24, %s, s31 offen' % sr(S_DBG))
            else:
                a('buffer_store_byte v23, v24, %s, s31 offen sc1' % sr(S_DBG))
            a('s_mov_b64 exec, -1')
            a.label('c_nrdy')
        for oc in range(T_KS.count(ks) if ph == 1 else 0):
            lb = uid('t')
            a('s_cmp_lg_u32 s20, %d' % ((ks + 3 * oc) & 7))
            a('s_cbranch_scc1 %s' % lb)
            touch_item(a, 157, 156)
            a.label(lb)

    gemm96_main(a, 'k1', lambda ks: (ks % NS1) * SLOT, lambda ks: (ks % NS1) * SLOT + 6144, XCH, 'g', 'e1', extra, hook, (2, 3))
    a('ds_read_b64_tr_b16 v[26:27], v22')
    PK = 144
    for t in range(6):
        a('v_cvt_pk_bf16_f32 v%d, v%d, v%d' % (PK + 2 * t, ACC + 4 * t, ACC + 4 * t + 1))
        a('v_cvt_pk_bf16_f32 v%d, v%d, v%d' % (PK + 1 + 2 * t, ACC + 4 * t + 2, ACC + 4 * t + 3))
    a('s_waitcnt lgkmcnt(0)')
    PB = 48
    for s in range(4):
        src = PK + 2 * (3 * (s & 1) + (1 - (s >> 1)))
        a('v_mfma_f32_16x16x16_bf16 %s, v[26:27], %s, 0' % (vr(PB + 4 * s, 4), vr(src, 2)))
    TV = 64
    for p in range(2):
        a('v_mfma_f32_16x16x16_bf16 %s, %s, v[20:21], 0' % (vr(TV + 4 * p, 4), vr(PK + 2 * (3 * p + 2), 2)))
    TB = 72
    for s in (2, 3, 0, 1):
        p = PB + 4 * s
        a('v_cvt_pk_bf16_f32 v%d, v%d, v%d' % (TB + 12 * s + 2, p, p + 1))
        a('v_cvt_pk_bf16_f32 v%d, v%d, v%d' % (TB + 12 * s + 3, p + 2, p + 3))
    def pq_stores():
        a('s_xor_b32 s30, s%d, 0x10000' % S_PQ)
        a('buffer_store_dwordx2 %s, v%d, %s, s%d offen sc1' % (vr(TB + 12 * 2 + 2, 2), V_L8, sr(S_WS), S_PQ))
        a('buffer_store_dwordx2 %s, v%d, %s, s30 offen sc1' % (vr(TB + 12 * 3 + 2, 2), V_L8, sr(S_WS)))
    if not env('PQL', 1):
        pq_stores()
    FB = 120
    sp_batches(a, 'C', 'e1')
    softmax_sets(a, 2, PB, TB, FB, 28)
    if env('PQL', 1):
        pq_stores()
    for p in range(2):
        for pm in range(2):
            a('v_mfma_f32_16x16x16_bf16 %s, %s, v[20:21], 0' % (vr(72 + 4 * (2 * p + pm), 4), vr(FB + 4 * p + 2 * pm, 2)))
    for p in range(2):
        a('v_cvt_pk_bf16_f32 v%d, v%d, v%d' % (88 + 2 * p, TV + 4 * p, TV + 4 * p + 1))
        a('v_cvt_pk_bf16_f32 v%d, v%d, v%d' % (89 + 2 * p, TV + 4 * p + 2, TV + 4 * p + 3))
    for i in range(4):
        a('v_cvt_pk_bf16_f32 v%d, v%d, v%d' % (92 + 2 * i, 72 + 4 * i, 73 + 4 * i))
        a('v_cvt_pk_bf16_f32 v%d, v%d, v%d' % (93 + 2 * i, 74 + 4 * i, 75 + 4 * i))
    RB = 128
    for p in range(2):
        for pm in range(2):
            r1, r2 = RB + 4 * pm, RB + 4 * (2 + pm)
            a('v_mfma_f32_16x16x16_bf16 %s, %s, %s, %s' % (vr(r1, 4), vr(92 + 2 * (2 * p + pm), 2), vr(88 + 2 * p, 2), '0' if p == 0 else vr(r1, 4)))
            a('v_mfma_f32_16x16x16_bf16 %s, %s, v[16:17], %s' % (vr(r2, 4), vr(92 + 2 * (2 * p + pm), 2), '0' if p == 0 else vr(r2, 4)))
    a('s_lshl_b32 s30, s20, 12')
    a('v_add_u32 v23, s30, v6')
    for i in range(4):
        a('ds_write_b128 v23, %s offset:%d' % (vr(RB + 4 * i, 4), i * 1024))
    a('s_lshl_b32 s30, s20, 10')
    a('v_add_u32 v24, s30, v6')
    ko_setup(a)
    a('s_waitcnt lgkmcnt(0)')
    a('v_mov_b32 v22, 0x%x' % CTRL)
    bar(a, 'e2')
    a('ds_read_b32 v23, v22')
    for m in range(4):
        a('ds_read_b128 %s, v24 offset:%d' % (vr(48 + 4 * m, 4), m * 8192))
    for m in range(1, 4):
        a('s_waitcnt lgkmcnt(%d)' % (3 - m))
        for r in range(4):
            a('v_add_f32 v%d, v%d, v%d' % (48 + r, 48 + r, 48 + 4 * m + r))
    part_store(a, 48, True)
    stamp(a, 4)
    a('s_mov_b32 s28, %d' % (64 * TMO))
    a.label('c_rw')
    a('v_readfirstlane_b32 s%d, v23' % FAST)
    a('s_sub_u32 s28, s28, 1')
    a('s_cbranch_scc1 c_rok')
    a('ds_read_b32 v23, v22')
    a('s_sleep 1')
    a('s_cmp_eq_u32 s%d, 0' % FAST)
    a('s_waitcnt lgkmcnt(0)')
    a('s_cbranch_scc1 c_rw')
    a.label('c_rok')
    a('s_lshr_b32 s%d, s%d, 1' % (FAST, FAST))


def ko_setup(a):
    a('s_lshr_b32 s21, s2, 3')
    a('s_and_b32 s22, s2, 7')
    a('s_lshl_b32 s22, s22, 3')
    a('s_add_u32 s22, s22, s20')
    a('s_lshl_b32 s22, s22, 17')
    a('s_lshl_b32 s23, s21, 9')
    a('s_add_u32 s22, s22, s23')
    a('s_add_u32 s23, s22, 0x10000')
    a('v_lshlrev_b32 v7, 3, v1')
    a('s_lshr_b32 s24, s20, 1')
    a('s_lshl_b32 s24, s24, 7')
    a('s_add_u32 s24, s24, s21')
    a('s_mul_i32 s24, s24, %d' % PSTR)
    a('s_add_u32 s24, s24, 0x%x' % WS_PART)
    a('s_and_b32 s25, s20, 1')
    a('s_lshl_b32 s26, s25, 9')
    a('s_lshl_b32 s27, s25, 6')
    a('s_add_u32 s26, s26, s24')
    a('s_add_u32 s27, s27, s24')
    a('s_add_u32 s27, s27, 1024')
    a('v_lshlrev_b32 v8, 4, v2')


def cons_ko(a):
    PB, TB, FB = 16, 24, 52
    KV, ZZ = 64, 80

    def part_loads():
        for j in range(4):
            a('s_add_u32 s30, s26, %d' % (32 * PSTR * j))
            a('s_add_u32 s31, s27, %d' % (32 * PSTR * j))
            a('buffer_load_dwordx2 %s, v7, %s, s30 offen sc1 %s' % (vr(KV + 4 * j, 2), sr(S_WS), NT('pt')))
            a('buffer_load_dwordx4 %s, v8, %s, s31 offen sc1' % (vr(ZZ + 4 * j, 4), sr(S_WS)))

    def pq_loads():
        for s in range(2):
            a('buffer_load_dwordx2 %s, v7, %s, s%d offen sc1' % (vr(TB + 12 * s + 2, 2), sr(S_WS), 22 + s))
    a('s_mov_b32 s28, %d' % TMO)
    KO_E = env('KO_E', 0)
    a.label('ko_pq')
    pq_loads()
    a('s_waitcnt vmcnt(0)')
    a.label('ko_pqc')
    a('s_sub_u32 s28, s28, 1')
    a('s_cbranch_scc1 ko_pq_ok')
    a('v_max3_u32 v9, v%d, v%d, v%d' % (TB + 2, TB + 3, TB + 14))
    a('v_max_u32 v9, v9, v%d' % (TB + 15))
    a('v_cmp_eq_u32 vcc, -1, v9')
    a('s_cbranch_vccnz ko_pq')
    a.label('ko_pq_ok')
    stamp(a, 5)
    if KO_E:
        part_loads()
    a('s_lshl_b32 s30, s20, 11')
    a('s_add_u32 s30, s30, 0x%x' % KOX)
    a('v_add_u32 v9, s30, v6')
    softmax_sets(a, 2, PB, TB, FB, 10)
    a('s_mov_b32 s28, %d' % TMO)
    if KO_E:
        a('s_branch ko_ppc')
    a.label('ko_pp')
    part_loads()
    a.label('ko_ppc')
    a('s_sub_u32 s28, s28, 1')
    a('s_cbranch_scc1 ko_pp_ok')
    a('s_waitcnt vmcnt(0)')
    a('v_max3_u32 v11, v%d, v%d, v%d' % (KV, KV + 1, KV + 4))
    a('v_max3_u32 v12, v%d, v%d, v%d' % (KV + 5, KV + 8, KV + 9))
    a('v_max3_u32 v11, v11, v%d, v%d' % (KV + 12, KV + 13))
    for i in range(0, 16, 4):
        a('v_max3_u32 v12, v12, v%d, v%d' % (ZZ + i, ZZ + i + 1))
        a('v_max3_u32 v11, v11, v%d, v%d' % (ZZ + i + 2, ZZ + i + 3))
    a('v_max_u32 v11, v11, v12')
    a('v_cmp_eq_u32 vcc, -1, v11')
    a('s_cbranch_vccnz ko_pp')
    a.label('ko_pp_ok')
    a('s_waitcnt vmcnt(0)')
    stamp(a, 6)
    for j in range(4):
        r = KV + 4 * j
        a('v_and_b32 v%d, 0xffff0000, v%d' % (r + 3, r + 1))
        a('v_lshlrev_b32 v%d, 16, v%d' % (r + 2, r + 1))
        a('v_and_b32 v%d, 0xffff0000, v%d' % (r + 1, r))
        a('v_lshlrev_b32 v%d, 16, v%d' % (r, r))
    for B in (KV, ZZ):
        for r in range(4):
            a('v_add_f32 v%d, v%d, v%d' % (B + r, B + r, B + 4 + r))
            a('v_add_f32 v%d, v%d, v%d' % (B + 8 + r, B + 8 + r, B + 12 + r))
        for r in range(4):
            a('v_add_f32 v%d, v%d, v%d' % (B + r, B + r, B + 8 + r))
    a('ds_write_b128 v9, %s' % vr(KV, 4))
    a('ds_write_b128 v9, %s offset:1024' % vr(ZZ, 4))
    a('s_waitcnt lgkmcnt(0)')
    bar(a, 'o1')
    RD = 64
    for t in range(2):
        for kz in range(2):
            for qd in range(4):
                a('ds_read_b128 %s, v6 offset:%d' % (vr(RD + 4 * (8 * t + 4 * kz + qd), 4), KOX + (2 * qd + t) * 2048 + kz * 1024))
    OPA = 128
    for t in range(2):
        for kz in range(2):
            i = 2 * t + kz
            B = RD + 16 * i
            a('s_waitcnt lgkmcnt(%d)' % (12 - 4 * i))
            for r in range(4):
                a('v_add_f32 v%d, v%d, v%d' % (B + r, B + r, B + 4 + r))
                a('v_add_f32 v%d, v%d, v%d' % (B + 8 + r, B + 8 + r, B + 12 + r))
            for r in range(4):
                a('v_add_f32 v%d, v%d, v%d' % (B + r, B + r, B + 8 + r))
            a('v_cvt_pk_bf16_f32 v%d, v%d, v%d' % (OPA + 4 * kz + 2 * t, B, B + 1))
            a('v_cvt_pk_bf16_f32 v%d, v%d, v%d' % (OPA + 4 * kz + 2 * t + 1, B + 2, B + 3))
    ND = 64
    for s in range(2):
        a('v_mfma_f32_16x16x32_bf16 %s, %s, %s, 0' % (vr(ND + 8 * s, 4), vr(OPA, 4), vr(FB + 4 * s, 4)))
        a('v_mfma_f32_16x16x32_bf16 %s, %s, %s, 0' % (vr(ND + 8 * s + 4, 4), vr(OPA + 4, 4), vr(FB + 4 * s, 4)))
    for s in range(2):
        n = ND + 8 * s
        d = n + 4
        T = 16 + 8 * s
        a('v_cvt_pk_bf16_f32 v%d, v%d, v%d' % (T, d, d))
        a('v_cvt_pk_bf16_f32 v%d, v%d, v%d' % (T + 1, n, n + 1))
        a('v_cvt_pk_bf16_f32 v%d, v%d, v%d' % (T + 2, n + 2, n + 3))
        a('v_lshlrev_b32 v%d, 16, v%d' % (T, T))
        a('v_add_f32 v%d, 0x358637bd, v%d' % (T, T))
        a('v_cvt_pk_bf16_f32 v%d, v%d, v%d' % (T, T, T))
        a('v_lshlrev_b32 v%d, 16, v%d' % (T, T))
        a('v_rcp_f32 v%d, v%d' % (T, T))
        a('v_lshlrev_b32 v%d, 16, v%d' % (T + 3, T + 1))
        a('v_and_b32 v%d, 0xffff0000, v%d' % (T + 4, T + 1))
        a('v_lshlrev_b32 v%d, 16, v%d' % (T + 5, T + 2))
        a('v_and_b32 v%d, 0xffff0000, v%d' % (T + 6, T + 2))
        for i in range(4):
            a('v_mul_f32 v%d, v%d, v%d' % (T + 3 + i, T, T + 3 + i))
        a('v_cvt_pk_bf16_f32 v%d, v%d, v%d' % (T, T + 3, T + 4))
        a('v_cvt_pk_bf16_f32 v%d, v%d, v%d' % (T + 1, T + 5, T + 6))
        gstore(a, 'buffer_store_dwordx2 %s, v7, %s, s%d offen' % (vr(T, 2), sr(S_WS), 22 + s))


def w64_addr(a, k2, WA, base):
    map64(a)
    a('s_lshr_b32 s23, s20, 1')
    a('s_add_u32 s24, s21, s23')
    a('s_and_b32 s25, s20, 1')
    a('v_lshl_add_u32 v14, v2, %d, v4' % (2 if k2 else 3))
    a('v_lshlrev_b32 v14, 7, v14')
    a('v_lshl_add_u32 v14, v5, 3, v14')
    a('v_and_b32 v15, 1, v2')
    a('v_lshlrev_b32 v15, 1, v15')
    a('v_lshrrev_b32 v13, 1, v4')
    a('v_or_b32 v15, v15, v13')
    a('s_lshl_b32 s26, s25, 1')
    a('v_xor_b32 v15, s26, v15')
    a('v_lshl_add_u32 v14, v15, 5, v14')
    a('s_lshl_b32 s26, s25, 12')
    a('s_add_u32 s26, s26, 0x%x' % base)
    a('v_add_u32 v%d, s26, v14' % WA)
    for s in range(1, 4):
        a('v_xor_b32 v%d, %d, v%d' % (WA + s, 32 * s, WA))


def cons_k2(a):
    WA, AC, AF, WB, XR = 8, 16, 32, 64, 164
    w64_addr(a, True, WA, W2B)
    a('s_lshl_b32 s26, s23, 11')
    a('s_lshl_b32 s27, s25, 6')
    a('s_add_u32 s26, s26, s27')
    a('s_add_u32 s26, s26, 0x%x' % XT)
    a('v_lshlrev_b32 v13, 7, v3')
    a('v_lshl_add_u32 v13, v2, 3, v13')
    a('v_add_u32 v13, s26, v13')
    set_flag(a, F0, 14, 15)
    bar(a, 'd1')
    stamp(a, 7)

    def wreads(i, b):
        for s in range(4):
            for e in range(2):
                a('ds_read_b64_tr_b16 %s, v%d offset:%d' % (vr(WB + 16 * b + 4 * s + 2 * e, 2), WA + s, i * 8192 + e * 2048))
    for nt in range(2):
        a('ds_read_b64 %s, v13 offset:%d' % (vr(XR + 2 * nt, 2), nt * 32))
    for i in range(6):
        wreads(i, i)
    sp_batches(a, 'C', 'd1')
    a('s_and_b32 s30, s2, 7')
    a('s_lshl_b32 s30, s30, 8')
    a('s_and_b32 s31, s24, 15')
    a('s_lshr_b32 s31, s31, 1')
    a('s_lshl_b32 s31, s31, 5')
    a('s_add_u32 s30, s30, s31')
    a('s_add_u32 s30, s30, 0x%x' % WS_FLAG)
    a('v_lshlrev_b32 v14, 2, v1')
    a('s_lshl_b32 s29, s24, 16')
    a('s_lshl_b32 s31, s25, 10')
    a('s_add_u32 s27, s29, s31')
    a('s_lshl_b32 s32, s20, 11')
    a('s_add_u32 s32, s32, 0x%x' % KOX)
    a('v_add_u32 v12, s32, v6')
    a('v_xor_b32 v13, 0x800, v12')
    poll_flags(a, 30, 8, 14, 15)
    stamp(a, 8)
    for i in range(8):
        if i and i % 2 == 0:
            a('s_add_u32 s27, s27, 4096')
        for e in range(2):
            a('buffer_load_dwordx2 %s, v7, %s, s27 offen offset:%d sc1' % (vr(AF + 4 * i + 2 * e, 2), sr(S_WS), (i % 2) * 2048 + e * 512))
    a('s_lshl_b32 s31, s22, 4')
    a('s_add_u32 s28, s29, s31')
    a('s_lshl_b32 s31, s25, 10')
    a('s_add_u32 s28, s28, s31')
    a('s_add_u32 s28, s28, 0x%x' % OFF_H)
    a('v_lshlrev_b32 v14, 4, v3')
    a('s_lshr_b32 s31, s22, 7')
    a('s_and_b32 s26, s31, 1')
    a('s_lshl_b32 s26, s26, 10')
    a('s_add_u32 s29, s29, s26')
    a('s_lshr_b32 s31, s31, 1')
    a('s_lshl_b32 s31, s31, 8')
    a('s_add_u32 s29, s29, s31')
    a('s_lshl_b32 s31, s25, 3')
    a('s_add_u32 s29, s29, s31')
    a('s_add_u32 s29, s29, 0x%x' % OFF_S)
    for i in range(8):
        b = i % 6
        lg = {0: 0, 6: 8, 7: 0}.get(i)
        a('s_waitcnt vmcnt(%d)%s' % (14 - 2 * i, '' if lg is None else ' lgkmcnt(%d)' % lg))
        for s in (2, 3, 0, 1):
            a('v_mfma_f32_16x16x32_bf16 %s, %s, %s, %s' % (vr(AC + 4 * s, 4), vr(WB + 16 * b + 4 * s, 4), vr(AF + 4 * i, 4), '0' if i == 0 else vr(AC + 4 * s, 4)))
        if i < 2:
            wreads(6 + i, i)
    stamp(a, 9)
    for s in range(2):
        a('ds_write_b128 v12, %s offset:%d' % (vr(AC + 8 + 4 * s, 4), s * 1024))
    T = 40
    for i in range(4):
        a('v_lshlrev_b32 v%d, 16, v%d' % (T + 2 * i, XR + i))
        a('v_and_b32 v%d, 0xffff0000, v%d' % (T + 2 * i + 1, XR + i))
    a('v_mov_b32 v52, 0x3f803f80')
    a('s_waitcnt lgkmcnt(0)')
    bar(a, 'x2')
    for s in range(2):
        a('ds_read_b128 %s, v13 offset:%d' % (vr(32 + 4 * s, 4), s * 1024))
    OUTR = HKEEP
    S1, S2 = 54, 55
    for s in range(2):
        a('s_waitcnt lgkmcnt(%d)' % (1 - s))
        for r in range(4):
            a('v_add_f32 v%d, v%d, v%d' % (AC + 4 * s + r, AC + 4 * s + r, 32 + 4 * s + r))
    for i in range(8):
        a('v_add_f32 v%d, v%d, v%d' % (T + i, T + i, AC + i))
    for i in range(4):
        a('v_cvt_pk_bf16_f32 v%d, v%d, v%d' % (OUTR + i, T + 2 * i, T + 2 * i + 1))
    gstore(a, 'buffer_store_dwordx4 %s, v6, %s, s28 offen' % (vr(OUTR, 4), sr(S_WS)))
    for i in range(4):
        a('v_dot2_f32_bf16 v%d, v%d, v52, %s' % (S1, OUTR + i, 'v%d' % S1 if i else '0'))
        a('v_dot2_f32_bf16 v%d, v%d, v%d, %s' % (S2, OUTR + i, OUTR + i, 'v%d' % S2 if i else '0'))
    butterfly(a, [('v_add_f32', S1, 52), ('v_add_f32', S2, 53)])
    gstore(a, 'buffer_store_dwordx2 v[54:55], v14, %s, s29 offen' % sr(S_WS))
    set_flag(a, F1, 56, 57)
    stamp(a, 10)
    sp_batches(a, 'C', 'x2')


def cons_k3(a):
    map3(a)
    STR, B1R = 20, 120

    def extra(a):
        a('v_lshlrev_b32 v46, 3, v2')
        a('s_lshl_b32 s30, s36, 5')
        a('s_add_u32 s30, s30, s22')
        for seg in range(3):
            a('buffer_load_dwordx2 %s, v46, %s, s30 offen offset:%d' % (vr(B1R + 2 * seg, 2), sr(S_B1), seg * 64))

    def hook(a, ks, ph):
        if ks == 6 and ph == 1:
            for p in range(2):
                a('s_lshl_b32 s30, s%d, 12' % (24 if p == 0 else 37))
                a('s_add_u32 s30, s30, 0x%x' % OFF_S)
                for i in range(2):
                    a('buffer_load_dwordx4 %s, v6, %s, s30 offen offset:%d sc1' % (vr(STR + 8 * p + 4 * i, 4), sr(S_WS), i * 1024))
        if ks == 13 and ph == 1:
            a('s_waitcnt vmcnt(0)')
            for p in range(2):
                b = STR + 8 * p
                a('v_add_f32 v%d, v%d, v%d' % (b, b, b + 2))
                a('v_add_f32 v%d, v%d, v%d' % (b + 1, b + 1, b + 3))
                a('v_add_f32 v%d, v%d, v%d' % (b + 4, b + 4, b + 6))
                a('v_add_f32 v%d, v%d, v%d' % (b + 5, b + 5, b + 7))
            for p in range(2):
                b = STR + 8 * p
                a('v_add_f32 v%d, v%d, v%d' % (b, b, b + 4))
                a('v_add_f32 v%d, v%d, v%d' % (b + 1, b + 1, b + 5))
            butterfly(a, [('v_add_f32', STR, STR + 2), ('v_add_f32', STR + 1, STR + 3), ('v_add_f32', STR + 8, STR + 10), ('v_add_f32', STR + 9, STR + 11)])
        if ks == 14 and ph == 1:
            gemm96_main.finish_stats(STR, STR + 1, 36, 37)
            gemm96_main.finish_stats(STR + 8, STR + 9, 38, 39)
        if ks == 15 and ph == 1:
            a('s_lshl_b32 s27, s36, 9')
            a('s_mul_i32 s25, s34, 3 * 1024')
            a('s_add_u32 s25, s25, s27')
            for p in range(2):
                a('s_lshl_b32 s%d, s%d, 12' % (28 + p, 24 if p == 0 else 37))
            a('v_and_b32 v22, 1, v2')
            a('v_cmp_eq_u32 vcc, 0, v22')
            a('v_mov_b32 v22, s28')
            a('v_mov_b32 v23, s29')
            a('v_cndmask_b32 v22, v23, v22, vcc')
            a('v_lshrrev_b32 v23, 1, v2')
            a('v_lshl_add_u32 v22, v23, 8, v22')
            a('v_lshl_add_u32 v22, v3, 4, v22')
            for seg in range(3):
                b = B1R + 2 * seg
                B = 72 + 4 * seg
                a('v_lshlrev_b32 v%d, 16, v%d' % (B, b))
                a('v_and_b32 v%d, 0xffff0000, v%d' % (B + 1, b))
                a('v_lshlrev_b32 v%d, 16, v%d' % (B + 2, b + 1))
                a('v_and_b32 v%d, 0xffff0000, v%d' % (B + 3, b + 1))

    gemm96_main(a, 'k3', lambda ks: W3A[ks], a3addr, XCH3, 'q', 'e3', extra, hook, (11, 12))
    a('s_cmp_eq_u32 s34, 15')
    a('s_cbranch_scc1 k3_done')
    for seg in range(3):
        if seg == 1:
            a('s_cmp_eq_u32 s34, 14')
            a('s_cbranch_scc1 k3_done')
        a('s_waitcnt lgkmcnt(%d)' % (2 - seg))
        B = 72 + 4 * seg
        for p in range(2):
            ac = ACC + 4 * (3 * p + seg)
            for r in range(4):
                a('v_fma_f32 v%d, -v%d, v%d, v%d' % (ac + r, 36 + 2 * p, 132 + 4 * seg + r, ac + r))
        for p in range(2):
            ac = ACC + 4 * (3 * p + seg)
            for r in range(4):
                a('v_fma_f32 v%d, v%d, v%d, v%d' % (ac + r, 37 + 2 * p, ac + r, B + r))
        for p in range(2):
            ac = ACC + 4 * (3 * p + seg)
            for r in range(4):
                a('v_mul_f32 v%d, v%d, |v%d|' % (ac + r, ac + r, ac + r))
        for p in range(2):
            ac = ACC + 4 * (3 * p + seg)
            T = 144 + 2 * (2 * seg + p)
            a('v_cvt_pk_bf16_f32 v%d, v%d, v%d' % (T, ac, ac + 1))
            a('v_cvt_pk_bf16_f32 v%d, v%d, v%d' % (T + 1, ac + 2, ac + 3))
        for p in range(2):
            T = 144 + 2 * (2 * seg + p)
            a('v_pk_max_i16 v%d, v%d, 0' % (T, T))
            a('v_pk_max_i16 v%d, v%d, 0' % (T + 1, T + 1))
        T = 144 + 4 * seg
        a('v_permlane16_swap_b32 v%d, v%d' % (T, T + 2))
        a('v_permlane16_swap_b32 v%d, v%d' % (T + 1, T + 3))
        gstore(a, 'buffer_store_dwordx4 %s, v22, %s, s25 offen offset:%d' % (vr(T, 4), sr(S_WS), seg * 1024))
    a.label('k3_done')


def cons_k4(a):
    WA, AC, WB, AF, BR = 8, 24, 40, 88, 164
    NAF = 18
    w64_addr(a, False, 16, 0)
    for s in range(4):
        a('v_mov_b32 v%d, v%d' % (WA + s, 16 + s))
    for b in (2, 1):
        for s in range(4):
            a('v_add_u32 v%d, 0x%x, v%d' % (WA + 4 * b + s, b * BANK, WA + s))

    def wreads(i):
        wb, wo = divmod(8192 * W4P[i], BANK)
        for s in range(4):
            for e in range(2):
                a('ds_read_b64_tr_b16 %s, v%d offset:%d' % (vr(WB + 16 * (i % 3) + 4 * s + 2 * e, 2), WA + 4 * wb + s, wo + e * 512))
    wreads(0)
    wreads(1)
    set_flag(a, F2, 21, 22)
    stamp(a, 13)
    a('s_lshl_b32 s27, s25, 6')
    a('s_add_u32 s27, s27, s22')
    a('v_lshlrev_b32 v21, 3, v2')
    for nt in range(2):
        a('buffer_load_dwordx2 %s, v21, %s, s27 offen offset:%d' % (vr(BR + 2 * nt, 2), sr(S_B2), nt * 32))
    a('s_lshl_b32 s26, s24, 14')
    a('s_add_u32 s26, s26, s27')
    a('v_and_b32 v20, 1, v2')
    a('v_lshlrev_b32 v20, 5, v20')
    a('v_lshrrev_b32 v22, 1, v2')
    a('v_lshl_add_u32 v20, v22, 4, v20')
    a('v_lshl_add_u32 v20, v3, 10, v20')
    a('s_and_b32 s30, s2, 7')
    a('s_lshl_b32 s30, s30, 8')
    a('s_and_b32 s31, s24, 15')
    a('s_lshr_b32 s31, s31, 1')
    a('s_lshl_b32 s31, s31, 5')
    a('s_add_u32 s30, s30, s31')
    a('s_add_u32 s30, s30, 0x%x' % (WS_FLAG + 4096))
    a('v_lshlrev_b32 v22, 2, v1')
    a('s_lshl_b32 s29, s24, 16')
    a('s_lshl_b32 s31, s25, 10')
    a('s_add_u32 s29, s29, s31')
    a('s_lshl_b32 s32, s20, 11')
    assert W4P[3] == W4P[2] + 1 or True
    a('s_lshr_b32 s31, s20, 2')
    a('s_cmp_eq_u32 s31, 0')
    a('s_mov_b32 s31, 0x%x' % (8192 * W4P[3] - 8192))
    a('s_cselect_b32 s31, 0x%x, s31' % (8192 * W4P[2]))
    a('s_add_u32 s32, s32, s31')
    a('v_add_u32 v7, s32, v6')
    a('s_waitcnt lgkmcnt(0)')
    bar(a, 'r0')
    poll_flags(a, 30, 8, 22, 23)
    stamp(a, 14)
    q = {}

    def aload(i):
        a('s_add_u32 s31, s29, %d' % ((i // 2) * 4096))
        q[i] = a('buffer_load_dwordx4 %s, v6, %s, s31 offen offset:%d %s' % (vr(AF + 4 * (i % NAF), 4), sr(S_WS), (i % 2) * 2048, os.environ.get('K4POL', 'sc1')))
    K4D = env('K4D', 5)
    for i in range(K4D):
        aload(i)
    for i in range(NP4):
        b = i % 3
        if i == R1_AT:
            a('s_waitcnt lgkmcnt(0)')
            bar(a, 'r1')
        a.wait_vm(q[i], ' lgkmcnt(%d)' % (8 if i + 1 < NP4 else 0))
        if i + K4D < NP4:
            aload(i + K4D)
        if i + 2 < NP4:
            wreads(i + 2)
        if i == NP4 - 1:
            a('s_cmp_eq_u32 s25, 1')
            a('s_cbranch_scc1 k4_skip')
        for s in (2, 3, 0, 1):
            a('v_mfma_f32_16x16x32_bf16 %s, %s, %s, %s' % (vr(AC + 4 * s, 4), vr(WB + 16 * b + 4 * s, 4), vr(AF + 4 * (i % NAF), 4), '0' if i == 0 else vr(AC + 4 * s, 4)))
    a.label('k4_skip')
    a('s_nop 7')
    for s in range(2):
        a('ds_write_b128 v7, %s offset:%d' % (vr(AC + 8 + 4 * s, 4), s * 1024))
    a('v_xor_b32 v7, 0x800, v7')
    HB = 96
    for i in range(4):
        a('v_lshlrev_b32 v%d, 16, v%d' % (HB + 2 * i, HKEEP + i))
        a('v_and_b32 v%d, 0xffff0000, v%d' % (HB + 2 * i + 1, HKEEP + i))
        a('v_lshlrev_b32 v%d, 16, v%d' % (104 + i, BR + i))
        a('v_and_b32 v%d, 0xffff0000, v%d' % (BR + i, BR + i))
    for i in range(4):
        a('v_add_f32 v%d, v%d, v%d' % (HB + 2 * i, HB + 2 * i, 104 + i))
        a('v_add_f32 v%d, v%d, v%d' % (HB + 2 * i + 1, HB + 2 * i + 1, BR + i))
    a('s_waitcnt lgkmcnt(0)')
    bar(a, 'x4')
    for s in range(2):
        a('ds_read_b128 %s, v7 offset:%d' % (vr(112 + 4 * s, 4), s * 1024))
    for s in range(2):
        a('s_waitcnt lgkmcnt(%d)' % (1 - s))
        for r in range(4):
            a('v_add_f32 v%d, v%d, v%d' % (AC + 4 * s + r, AC + 4 * s + r, 112 + 4 * s + r))
    O = 56
    for i in range(8):
        a('v_add_f32 v%d, v%d, v%d' % (HB + i, HB + i, AC + i))
    for i in range(4):
        a('v_cvt_pk_bf16_f32 v%d, v%d, v%d' % (O + i, HB + 2 * i, HB + 2 * i + 1))
    a('v_permlane16_swap_b32 v%d, v%d' % (O, O + 2))
    a('v_permlane16_swap_b32 v%d, v%d' % (O + 1, O + 3))
    a('buffer_store_dwordx4 %s, v20, %s, s26 offen' % (vr(O, 4), sr(S_OUT)))


def ring_loop(a, nk, ns, lag, per, issue, groups, bn, post=None, pre=None):
    last = {}
    issued = 0
    for j, (lo, hi) in enumerate(groups):
        while issued < nk:
            i = issued
            ok = (i < ns or (j >= 1 and groups[j - 1][0] - 2 >= i - ns)) and (i - lo + 1) * per <= 62 and (i < hi or i < lo + (lag if j < env('LAGJ', 1) or bn != 'g' else env('LAG1B', 5)))
            if not ok:
                break
            last[i] = issue(i)
            issued += 1
        assert issued >= hi, (j, issued, hi)
        if pre:
            pre(j)
        a.wait_vm(last[hi - 1])
        if bn == 'g':
            stamp(a, 3 + j, 1)
        if bn == 'q':
            stamp(a, 3 + j, 3)
        bar(a, bn + str(j))
        if post and j in post:
            post[j]()


NSTG = env('NSTG', 0)
STG_W = _il('STG_W', '0,12,6,8,8')
STG_SL = env('STG_SL', 3)
STG0 = 28


STG_P0 = env('STG_P0', 8)
STGP = list(range(STG_P0, STG_P0 + NSTG))


class Stager:
    def __init__(self, a, on):
        self.a, self.on, self.n, self.q = a, on and NSTG, 0, {}

    def setup(self):
        a = self.a
        if not self.on:
            return
        a('s_lshl_b32 s30, s35, 10')
        a('v_add_u32 v16, s30, v6')
        a('v_add_u32 v17, 0x%x, v16' % BANK)
        a('v_add_u32 v18, 0x%x, v16' % (2 * BANK))

    def load(self, win):
        a = self.a
        for c in range(STG_W[win] if self.on else 0):
            if self.n >= 4 * NSTG:
                return
            i, j = STGP[self.n // 4], 2 * (self.n % 4)
            if c and c % 2 == 0 and STG_SL:
                a('s_sleep %d' % STG_SL)
            a('s_mov_b32 s30, 0x%x' % ((i * 64 + 8 * j) * 1024))
            self.q[self.n] = a('buffer_load_dwordx4 %s, v12, %s, s30 offen' % (vr(STG0 + 4 * self.n, 4), sr(S_W2)))
            self.n += 1

    def write(self, after):
        a = self.a
        for k, i in enumerate(STGP if self.on else []):
            if W4T[i] == after:
                assert self.n >= 4 * NSTG
                a.wait_vm(max(self.q[4 * k + 3], a.vm_issued - 63))
                for e in range(4):
                    b, o = divmod(8192 * W4P[i] + 2 * e * 1024, BANK)
                    a('ds_write_b128 v%d, %s offset:%d' % (16 + b, vr(STG0 + 4 * (4 * k + e), 4), o))


def k4w_addr(a):
    a('s_lshl_b32 s31, s35, 13')
    a('s_add_u32 s31, s31, s22')
    a('v_lshrrev_b32 v8, 3, v1')
    a('v_bfe_u32 v9, v1, 1, 2')
    a('v_and_b32 v10, 1, v1')
    a('v_lshlrev_b32 v10, 4, v10')
    a('v_lshl_add_u32 v8, v8, 10, v10')
    a('v_add_u32 v8, s31, v8')
    a('v_bfe_u32 v10, v1, 4, 1')
    a('v_xor_b32 v10, v9, v10')
    a('s_lshl_b32 s30, s35, 1')
    a('v_xor_b32 v10, s30, v10')
    a('v_lshl_add_u32 v12, v10, 5, v8')


def prod_w(a):
    a.label('prod_w')
    a.isprod = 1
    a.hist = []
    a.vm_issued = 0
    a.bars = []
    a('s_sub_u32 s35, s20, 8')
    a('s_lshl_b32 s32, s35, 10')

    def w96_addr(k1, wstride, reg):
        a('s_mul_i32 s31, s35, %d' % (16 * wstride))
        a('s_add_u32 s31, s31, s22')
        a('v_lshrrev_b32 v%d, 2, v1' % reg)
        a('v_mul_u32_u24 v%d, 0x%x, v%d' % (reg, wstride, reg))
        a('v_bfe_u32 v15, v1, %d, 1' % (5 if k1 else 4))
        a('v_lshlrev_b32 v15, 1, v15')
        a('v_xor_b32 v15, v15, v5')
        a('v_lshl_add_u32 v%d, v15, 4, v%d' % (reg, reg))
        a('v_add_u32 v%d, s31, v%d' % (reg, reg))
    w96_addr(True, 3072, 7)

    def wissue1(i):
        a('s_add_u32 s29, s39, %d' % i)
        a('s_and_b32 s29, s29, 15')
        a('s_mul_i32 s29, s29, %d' % (32 * 3072))
        for seg in range(3):
            a('s_add_u32 m0, s32, 0x%x' % ((i % NS1) * SLOT + seg * 2048))
            a('s_add_u32 s30, s29, 0x%x' % (seg * 1024))
            q = a('buffer_load_dwordx4 v7, %s, s30 offen %slds' % (sr(S_WQ), NT('wq')))
        if i == 2:
            a('s_mov_b32 m0, 0x%x' % (XCH1 + 2048))
            a('s_lshl_b32 s30, s34, 10')
            a('buffer_load_dwordx4 v6, %s, s30 offen lds' % sr(S_WP))
        return q
    def pre(j):
        if j == 1:
            fin_rest(a)
        if j >= 1:
            sp_batches(a, 'W', 'g%d' % (j - 1))
    ring_loop(a, 16, NS1, LAG1, 3, wissue1, G96, 'g', pre=pre)
    sp_batches(a, 'W', 'g8')
    map64(a)
    k4w_addr(a)
    a('v_bfe_u32 v10, v1, 4, 2')
    a('v_xor_b32 v10, v9, v10')
    a('v_lshl_add_u32 v11, v10, 5, v8')
    stg = Stager(a, 1)
    stg.setup()
    a('v_lshl_add_u32 v13, v9, 5, v8')
    a('s_lshl_b32 s36, s21, 14')

    def w2x():
        for i in range(8):
            for j in range(0, 8, 2):
                a('s_add_u32 m0, s32, 0x%x' % (W2B + 8192 * i + j * 1024))
                a('s_mov_b32 s30, 0x%x' % ((i * 64 + 8 * j) * 1024))
                a('buffer_load_dwordx4 v11, %s, s30 offen %slds' % (sr(S_WO), NT('wo')))
        for j in range(0, 8, 2):
            a('s_add_u32 m0, s32, 0x%x' % (XT + j * 1024))
            a('s_add_u32 s30, s36, 0x%x' % (j * 8192))
            q = a('buffer_load_dwordx4 v13, %s, s30 offen lds' % sr(S_X))
        return q
    W2AT = env('W2AT', 1)
    if W2AT == 0:
        q_w2 = w2x()
    map3(a)
    w96_addr(False, 2752, 7)
    bar(a, 'e1')
    if W2AT == 1:
        if env('W2SL', 0):
            a('s_sleep %d' % env('W2SL', 0))
        q_w2 = w2x()
    sp_batches(a, 'W', 'e1', only=0)
    stg.load(0)
    for _b in range(1, 4):
        if SASSIGN.get(('W', 'e1', _b)):
            a('s_waitcnt lgkmcnt(0)')
            sp_batches(a, 'W', 'e1', only=_b)
    bar(a, 'e2')
    if W2AT == 2:
        q_w2 = w2x()
    sp_batches(a, 'W', 'e2', only=0)
    stg.load(1)
    for _b in range(1, 4):
        if SASSIGN.get(('W', 'e2', _b)):
            a('s_waitcnt lgkmcnt(0)')
            sp_batches(a, 'W', 'e2', only=_b)
    q3 = {}

    def w3(i):
        for seg in range(3):
            a('s_add_u32 m0, s32, 0x%x' % (W3A[i] + seg * 2048))
            a('s_mov_b32 s30, 0x%x' % (i * 32 * 2752 + seg * 64))
            q3[i] = a('buffer_load_dwordx4 v7, %s, s30 offen %slds' % (sr(S_W1), NT('w1')))
    bar(a, 'o1')
    if W2AT == 3:
        q_w2 = w2x()
    W3N = env('W3N', 5)
    for i in range(W3N):
        w3(i)
    sp_batches(a, 'W', 'o1', only=0)
    stg.load(2)
    for _b in range(1, 4):
        if SASSIGN.get(('W', 'o1', _b)):
            a('s_waitcnt lgkmcnt(0)')
            sp_batches(a, 'W', 'o1', only=_b)
    a.wait_vm(q_w2)
    bar(a, 'd1')
    for i in range(W3N, 10):
        w3(i)
    sp_batches(a, 'W', 'd1', only=0)
    stg.load(3)
    for _b in range(1, 4):
        if SASSIGN.get(('W', 'd1', _b)):
            a('s_waitcnt lgkmcnt(0)')
            sp_batches(a, 'W', 'd1', only=_b)
    bar(a, 'x2')
    w3(10)
    w3(11)
    sp_batches(a, 'W', 'x2', only=0)
    stg.load(4)
    for _b in range(1, 4):
        if SASSIGN.get(('W', 'x2', _b)):
            a('s_waitcnt lgkmcnt(0)')
            sp_batches(a, 'W', 'x2', only=_b)
    q4 = {}
    nxt = [0]

    def w4(after):
        while nxt[0] < NP4 and W4T[nxt[0]] == after:
            i = nxt[0]
            n = 8 if i < NP4 - 1 else 4
            for j in range(0, n if i not in STGP else 0, 2):
                a('s_add_u32 m0, s32, 0x%x' % (8192 * W4P[i] + j * 1024))
                a('s_mov_b32 s30, 0x%x' % ((i * 64 + 8 * j) * 1024))
                q4[i] = a('buffer_load_dwordx4 v12, %s, s30 offen lds' % sr(S_W2))
            nxt[0] += 1
    for g, (lo, hi) in enumerate(G96):
        a.wait_vm(q3[hi - 1])
        stamp(a, 3 + g, 3)
        bar(a, 'q%d' % g)
        if g == 0:
            for k in (12, 13, 14):
                w3(k)
        if g == 2:
            w3(15)
        stg.write('q%d' % g)
        w4('q%d' % g)
        sp_batches(a, 'W', 'q%d' % g)
    assert 0 not in STGP and 1 not in STGP
    a.wait_vm(q4[1])
    bar(a, 'e3')
    stg.write('e3')
    if env('W4SL', 0):
        a('s_sleep %d' % env('W4SL', 0))
    w4('e3')
    a.wait_vm(max(q4[i] for i in range(NPUB0) if i in q4), ' lgkmcnt(0)' if NSTG else '')
    stamp(a, 12, 3)
    bar(a, 'r0')
    w4('r0')
    assert nxt[0] == NP4
    a('s_waitcnt vmcnt(0) lgkmcnt(0)')
    stamp(a, 13, 3)
    bar(a, 'r1')
    stamp_store(a)
    a('s_endpgm')


def prod_a(a):
    a.label('prod_a')
    a.hist = []
    a.vm_issued = 0
    a.bars = []
    nt = 4
    a('s_sub_u32 s35, s20, 10')
    a('s_mul_i32 s32, s35, %d' % (nt * 1024))
    a('s_mul_i32 s31, s35, %d' % (nt * 16))
    a('s_add_u32 s31, s31, s21')
    a('s_lshl_b32 s31, s31, 10')
    a('v_lshlrev_b32 v15, 1, v2')
    a('v_mov_b32 v14, 0x78')
    a('v_lshrrev_b32 v15, v15, v14')
    a('v_and_b32 v15, 3, v15')
    a('v_xor_b32 v15, v15, v5')
    a('v_lshrrev_b32 v7, 2, v1')
    a('v_lshlrev_b32 v7, 10, v7')
    a('v_lshl_add_u32 v7, v15, 4, v7')
    a('v_add_u32 v7, s31, v7')

    def aissue1(i):
        a('s_add_u32 s29, s39, %d' % i)
        a('s_and_b32 s29, s29, 15')
        a('s_lshl_b32 s29, s29, 6')
        for rt in range(nt):
            a('s_add_u32 m0, s32, 0x%x' % ((i % NS1) * SLOT + 6144 + rt * 1024))
            a('s_add_u32 s30, s29, 0x%x' % (rt * 16384))
            q = a('buffer_load_dwordx4 v7, %s, s30 offen %slds' % (sr(S_X), NT('x')))
        return q
    a('v_lshlrev_b32 v23, 2, v1')
    RDY_G = env('RDY_G', 9)

    def pre(j):
        if j == 1:
            fin_rest(a)
        if j >= 1:
            sp_batches(a, 'A', 'g%d' % (j - 1))
        if j == 0:
            a('v_mov_b32 v24, 0')
            a('v_mov_b32 v25, 0x%x' % CTRL)
            a('ds_write_b32 v25, v24')
            a('s_waitcnt lgkmcnt(0)')
    ring_loop(a, 16, NS1, LAG1, nt, aissue1, G96, 'g', pre=pre)
    sp_batches(a, 'A', 'g8')
    a('v_lshrrev_b32 v26, 1, v1')
    a('v_lshlrev_b32 v26, 7, v26')

    def ready_check(tag, tries):
        L = lambda n: 'pa_%s%s' % (n, tag)
        a('s_cmp_lg_u32 s20, 10')
        a('s_cbranch_scc1 %s' % L('nr'))
        a('s_cmp_lg_u32 s3, 0')
        a('s_cbranch_scc1 %s' % L('nr'))
        a('s_mov_b32 s28, %d' % tries)
        a('s_mov_b32 s29, 1')
        a('s_branch %s' % L('r1'))
        a.label(L('rp'))
        a('s_sleep 4')
        a.label(L('r1'))
        a('s_sub_u32 s28, s28, 1')
        a('s_cbranch_scc1 %s' % (L('nr') if tries < 16 else L('rd')))
        a('buffer_load_dword v22, v23, %s, 0 offen sc1' % sr(S_DBG))
        a('s_waitcnt vmcnt(0)')
        a('v_and_b32 v24, 0xff, v22')
        a('v_cmp_ne_u32 vcc, 32, v24')
        a('s_and_b32 vcc_lo, vcc_lo, 0x01010101')
        a('s_and_b32 vcc_hi, vcc_hi, 0x01010101')
        a('s_cmp_lg_u64 vcc, 0')
        a('s_cbranch_scc1 %s' % L('rp'))
        a('s_getreg_b32 s30, hwreg(HW_REG_XCC_ID, 0, 4)')
        a('s_mul_i32 s31, s30, s30')
        a('s_lshl_b32 s31, s31, 23')
        a('s_lshl_b32 s30, s30, 13')
        a('s_add_u32 s30, s30, s31')
        a('s_add_u32 s30, s30, 32')
        a('v_cmp_ne_u32 vcc, s30, v22')
        a('s_and_b32 s31, s2, 7')
        a('s_lshl_b32 s31, s31, 3')
        a('s_lshr_b64 s[26:27], vcc, s31')
        a('s_and_b32 s26, s26, 1')
        a('s_cmp_eq_u32 s26, 0')
        a('s_cselect_b32 s29, %d, 1' % (1 if FORCE_SLOW else 3))
        a.label(L('rd'))
        stamp(a, 12, 1)
        a('s_mov_b32 s3, 1')
        a('v_mov_b32 v24, s29')
        a('v_mov_b32 v25, 0x%x' % CTRL)
        a('ds_write_b32 v25, v24')
        a('s_and_b32 s30, s2, 7')
        a('s_lshl_b32 s30, s30, 8')
        a('s_add_u32 s30, s30, 0x%x' % WS_FLAG)
        a('v_and_b32 v24, 1, v1')
        a('v_lshlrev_b32 v24, 7, v24')
        a('v_bfe_u32 v25, v1, 1, 2')
        a('v_min_u32 v25, 2, v25')
        a('v_lshl_add_u32 v24, v25, 11, v24')
        a('buffer_load_dword v27, v24, %s, s30 offen sc1' % sr(S_WS))
        a.label(L('nr'))
        a.vm_issued -= 2

    def paced(n):
        if not n:
            return
        lb, le = uid('pt'), uid('pe')
        a('s_cmp_lg_u32 s20, 11')
        a('s_cbranch_scc1 %s' % lb)
        for w in range(2):
            if w:
                a('s_branch %s' % le)
                a.label(lb)
                a('s_sleep %d' % (T_SL // 2))
            m = (n + 1 - w) // 2
            for i in range(m):
                if touch_item(a, 26, 27):
                    a.vm_issued -= 1
                    if i + 1 < m:
                        a('s_sleep %d' % T_SL)
        a.label(le)
    paced(T_PA[0])
    stg = Stager(a, 0)
    stg.setup()
    bar(a, 'e1')
    sp_batches(a, 'A', 'e1', only=0)
    if T_PA[1]:
        a('s_sleep %d' % env('T_D1', 10))
    paced(T_PA[1])
    if SASSIGN.get(('A', 'e1', 1)):
        a('s_waitcnt lgkmcnt(0)')
        sp_batches(a, 'A', 'e1', only=1)
    stg.load(0)
    a('s_sleep %d' % env('RDY_SL', 8))
    ready_check('a', 1)
    bar(a, 'e2')
    ready_check('b', 4 * TMO)
    paced(T_PA[2])
    sp_batches(a, 'A', 'e2', only=0)
    stg.load(1)
    for _b in range(1, 4):
        if SASSIGN.get(('A', 'e2', _b)):
            a('s_waitcnt lgkmcnt(0)')
            sp_batches(a, 'A', 'e2', only=_b)
    bar(a, 'o1')
    paced(T_PA[3])
    sp_batches(a, 'A', 'o1', only=0)
    stg.load(2)
    for _b in range(1, 4):
        if SASSIGN.get(('A', 'o1', _b)):
            a('s_waitcnt lgkmcnt(0)')
            sp_batches(a, 'A', 'o1', only=_b)
    bar(a, 'd1')
    paced(T_PA[4])
    sp_batches(a, 'A', 'd1', only=0)
    stg.load(3)
    for _b in range(1, 4):
        if SASSIGN.get(('A', 'd1', _b)):
            a('s_waitcnt lgkmcnt(0)')
            sp_batches(a, 'A', 'd1', only=_b)
    map3(a)
    a('s_mul_i32 s31, s35, %d' % (nt * 16))
    a('s_add_u32 s31, s31, s21')
    a('s_lshl_b32 s31, s31, 12')
    a('v_add_u32 v7, s31, v6')
    a('s_and_b32 s36, s2, 7')
    a('s_lshl_b32 s36, s36, 8')
    a('s_lshr_b32 s31, s2, 3')
    a('s_and_b32 s31, s31, 1')
    a('s_lshl_b32 s31, s31, 1')
    a('s_add_u32 s31, s31, s35')
    a('s_lshl_b32 s31, s31, 6')
    a('s_add_u32 s36, s36, s31')
    a('s_add_u32 s36, s36, 0x%x' % (WS_FLAG + 2048))
    bar(a, 'x2')
    sp_batches(a, 'A', 'x2', only=0)
    poll_flags(a, 36, 16, 23, 22)
    stamp(a, 2, 3)

    def aissue3(i):
        for rt in range(nt):
            a('s_add_u32 m0, s32, 0x%x' % (a3addr(i) + rt * 1024))
            a('s_mov_b32 s30, 0x%x' % (OFF_H + rt * 65536 + i * 1024))
            q = a('buffer_load_dwordx4 v7, %s, s30 offen sc1 lds' % sr(S_WS))
        return q
    ring_loop(a, 16, 8, env('LAG3', 8), nt, aissue3, G96, 'q', pre=lambda j: (stg.write('q%d' % (j - 1)), sp_batches(a, 'A', 'q%d' % (j - 1))))
    sp_batches(a, 'A', 'q8')
    paced(T_PA[5])
    stamp_store(a)
    a('s_endpgm')


def gen(a):
    a.raw('.globl %s' % NAME)
    a.raw('.p2align 8')
    a.raw('.type %s,@function' % NAME)
    a.label(NAME)
    a.bars = []
    a('s_cmp_ge_u32 s2, 256')
    a('s_cbranch_scc1 mega_exit')
    stamp_real(a, 0)
    stamp(a, 1)
    for s, off in ((S_X, 0), (S_WQ, 8), (S_WP, 16), (S_WS, 88), (S_WO, 24), (S_W1, 40), (S_W2, 56), (S_B1, 48), (S_B2, 64), (S_OUT, 72), (S_DBG, 80)):
        srd(a, s, off)
    lane_decomp(a)
    a('s_add_u32 s21, s20, 8')
    a('s_sub_u32 s20, s20, 4')
    a('s_cselect_b32 s20, s21, s20')
    a('s_mov_b32 s%d, 0' % FAST)
    a('s_and_b32 s30, s2, 7')
    a('s_lshr_b32 s31, s2, 3')
    a('s_lshr_b32 s21, s30, 1')
    a('s_lshl_b32 s21, s21, 2')
    a('s_and_b32 s22, s31, 3')
    a('s_add_u32 s33, s21, s22')
    a('s_and_b32 s21, s30, 1')
    a('s_lshl_b32 s21, s21, 3')
    a('s_lshr_b32 s22, s31, 2')
    a('s_add_u32 s34, s21, s22')
    a('s_lshl_b32 s21, s33, 7')
    a('s_lshl_b32 s22, s34, 6')
    a('s_lshl_b32 s39, s33, 1')
    a('s_add_u32 s39, s39, s34')
    a('s_lshl_b32 s39, s39, 1')
    a('s_waitcnt lgkmcnt(0)')
    srd_fin(a, S_X, 2048 * 1024)
    srd_fin(a, S_WQ, 512 * 3072)
    srd_fin(a, S_WP, 16384)
    srd_fin(a, S_WS, WS_SIZE)
    a('s_cmp_ge_u32 s20, 10')
    a('s_cbranch_scc1 prod_a')
    a('s_cmp_ge_u32 s20, 8')
    a('s_cbranch_scc1 prod_w')
    cons_k1(a)
    cons_ko(a)
    cons_k2(a)
    cons_k3(a)
    cons_k4(a)
    stamp_store(a)
    a.label('mega_exit')
    a('s_endpgm')
    bc = a.bars
    prod_w(a)
    assert a.bars == bc[:len(a.bars)], (a.bars, bc)
    prod_a(a)
    assert a.bars == bc[:len(a.bars)], (a.bars, bc)


def build():
    if NAME == 'mega_kernel':
        head = '; @launch kernel=%s grid=(256,1,1) block=(768,1,1) lds=163840\n' % NAME
    else:
        head = '; @launch grid=(256,1,1) block=(768,1,1) lds=163840\n'
    head += '.amdgcn_target "amdgcn-amd-amdhsa--gfx950"\n.text\n'
    a = Asm()
    gen(a)
    d = '''.section .rodata,"a"
.p2align 6
.amdhsa_kernel %s
  .amdhsa_next_free_vgpr 168
  .amdhsa_next_free_sgpr 102
  .amdhsa_accum_offset 168
  .amdhsa_group_segment_fixed_size 0
  .amdhsa_kernarg_size 96
  .amdhsa_user_sgpr_count 2
  .amdhsa_user_sgpr_kernarg_segment_ptr 1
  .amdhsa_system_sgpr_workgroup_id_x 1
.end_amdhsa_kernel
''' % NAME
    return head + a.text() + d


if __name__ == '__main__':
    open(sys.argv[1], 'w').write(build())
    if os.environ.get('V'):
        print('W4P', W4P, 'W4T', W4T, 'NPUB0', NPUB0, 'R1_AT', R1_AT, 'touch used', _tnext[0], 'of', len(TITEMS), 'sp', _pos, 'of', len(SLINES))
```

```python
import sys, os
sys.path.insert(0, os.path.dirname(__file__))
from dsl import Asm
from gen2 import MB, env, vr, srd, srd_fin, bf16r, butterfly, lane_decomp, mk_groups, softmax_sets

NAME = os.environ.get('KNAME', 'mega_kernel')
STAMP = os.environ.get('STAMP')
OFF_H, OFF_S = 44032, 60416
PSTR = 1152
WS_PART = 8 * MB
WS_FLAG = 9 * MB + 512 * 1024
WS_STAMP = 15 * MB
WS_SIZE = 16 * MB
FORCE_SLOW = env('FORCE_SLOW', 0)
TMO = 4096

S_X, S_WQ, S_WP, S_WS = 4, 8, 12, 16
S_WO, S_W1, S_W2, S_B1, S_B2, S_OUT, S_DBG = 40, 44, 48, 52, 56, 60, 64
FAST = 3
F0, F1, F2 = 0, 1, 39
BANK = 57344
SLOT = 14336
NS1 = 11
XCH1 = NS1 * SLOT
XCH3 = 159744
CTRL = 161792
KOX = 32768
W2B = 73728
XT = W2B + 65536
LAG1 = env('LAG1', 5)
RDY_KS = env('RDY_KS', 4)
POIS_KS = env('POIS_KS', 0)
RDY_AT = env('RDY_AT', 1)
WAIT_KS = env('WAIT_KS', 4)
LT1 = env('LT1', 1)
BPOS = env('BPOS', 1)
ILV = env('ILV', 1)
PST = env('PST', 0)

TCNT = {'wo': 4, 'x': 2, 'w1': 11, 'w2': 11, 'Fh': 3, 'Fr': 4}
TITEMS = []
for _e in os.environ.get('TLIST', 'wo,x,Fh,w1').split(','):
    if _e:
        _m, _, _hi = _e.partition(':')
        TITEMS += [(_m, i) for i in range(int(_hi or TCNT[_m]))]
T_KS = [int(v) for v in os.environ.get('T_KS', '6,6,7,7,8,8,9,9,9,10,10,10,11,11,11,12,12,12,13,13').split(',') if v]
T_PA = [int(v) for v in os.environ.get('T_PA', '0,0,0,0,0,0').split(',')]
T_SL = env('T_SL', 7)
_tnext = [0]


def NT(m):
    return 'nt ' if m in os.environ.get('NTL', '').split(',') else ''


def sr(s):
    return 's[%d:%d]' % (s, s + 3)


def touch_item(a, vaddr, vdst, s0=30, s1=31):
    if _tnext[0] >= len(TITEMS):
        return False
    m, i = TITEMS[_tnext[0]]
    _tnext[0] += 1
    share_base(a, m, s0, s1)
    a('s_add_u32 s%d, s%d, %d' % (s0, s0, min(i * 4096, SREG[m][1] - 4096)))
    a('buffer_load_dword v%d, v%d, %s, s%d offen %s' % (vdst, vaddr, sr(SREG[m][0]), s0, 'sc1' if m[0] == 'F' else ''))
    return True


SCNT = {'wo': 128, 'x': 64, 'w1': 344, 'w2': 344, 'Fh': 72, 'Fr': 108}
SREG = {'wo': (S_WO, 16384), 'x': (S_X, 8192), 'w1': (S_W1, 44032), 'w2': (S_W2, 44032), 'Fh': (S_WS, 9216), 'Fr': (S_WS, 13824)}
SLINES = []
for _e in os.environ.get('SLIST', 'w2,Fr').split(','):
    if _e:
        _m, _, _lo = _e.partition(':')
        SLINES += [(_m, i) for i in range(int(_lo or 0), SCNT[_m], 2)]
SP_B = env('SP_B', 7)


def _il(n, d):
    return [int(v) for v in os.environ.get(n, d).split(',')]


SP_S = env('SP_S', 0)
SP_G = _il('SP_G', '1,0,1,0,1,0,1,0,1')
SP_H = _il('SP_H', '1,0,1,0,1,0,1,0,1')
SP_W = _il('SP_W', '2,2,1,2,1')
SP_A = _il('SP_A', '1,2,1,2,1')
SP_C = _il('SP_C', '0,0,0,0,0')
SP_Q = _il('SP_Q', '1,0,0,0,1,0,0,0,0')
SP_Q2 = _il('SP_Q2', '1,0,0,0,1,0,0,1,0')
_slots = [('C', 'st', b) for b in range(SP_S)]
for _g in range(9):
    _slots += [('W', 'g%d' % _g, b) for b in range(SP_G[_g])] + [('A', 'g%d' % _g, b) for b in range(SP_H[_g])]
for _w, _nm in enumerate(('e1', 'e2', 'o1', 'd1', 'x2')):
    for _b in range(8):
        for _k, _l in (('W', SP_W), ('A', SP_A), ('C', SP_C)):
            if _b < _l[_w]:
                _slots.append((_k, _nm, _b))
for _g in range(9):
    _slots += [('W', 'q%d' % _g, b) for b in range(SP_Q2[_g])] + [('A', 'q%d' % _g, b) for b in range(SP_Q[_g])]
SASSIGN = {}
_pos = 0
for _sl in _slots:
    _it = []
    while len(_it) < SP_B and _pos < len(SLINES):
        if _sl[0] == 'C':
            _n = min(4, SCNT[SLINES[_pos][0]] // 2 - SLINES[_pos][1] // 2)
            _it.append((SLINES[_pos][0], min(SLINES[_pos][1], SCNT[SLINES[_pos][0]] - 8)))
            _pos += _n
        else:
            _it.append(SLINES[_pos])
            _pos += 1
    SASSIGN[_sl] = _it


def share_base(a, m, r, t):
    a('s_lshr_b32 s%d, s2, 3' % r)
    if m[0] in 'xF':
        a('s_and_b32 s%d, s2, 7' % t)
        a('s_lshl_b32 s%d, s%d, 5' % (t, t))
        a('s_add_u32 s%d, s%d, s%d' % (r, r, t))
    if m[0] == 'F':
        a('s_and_b32 s%d, s%d, 1' % (t, r))
        a('s_mul_i32 s%d, s%d, %d' % (t, t, SREG[m][1]))
        a('s_lshr_b32 s%d, s%d, 1' % (r, r))
        a('s_lshl_b32 s%d, s%d, 16' % (r, r))
        a('s_add_u32 s%d, s%d, s%d' % (r, r, t))
        a('s_add_u32 s%d, s%d, %d' % (r, r, OFF_H if m == 'Fh' else 16384))
    else:
        a('s_mul_i32 s%d, s%d, %d' % (r, r, SREG[m][1]))


def sp_batches(a, kind, win, only=None):
    b = 0
    r, t, w = (30, 31, 20) if kind == 'C' else (24, 27, 35)
    while (kind, win, b) in SASSIGN:
        if SASSIGN[(kind, win, b)] and only in (None, b):
            if b and only is None:
                a('s_waitcnt lgkmcnt(0)')
            cur = None
            for m, i in SASSIGN[(kind, win, b)]:
                if cur != m:
                    share_base(a, m, r, t)
                    a('s_lshl_b32 s%d, s%d, 7' % (t, w))
                    a('s_add_u32 s%d, s%d, s%d' % (r, r, t))
                    cur = m
                a('s_buffer_load_dwordx2 s[100:101], %s, s%d offset:0x%x' % (sr(SREG[m][0]), r, i * 128 + 60))
        b += 1


def stamp(a, i, ps=None):
    if ps is not None and ps != PST:
        return
    if STAMP:
        a('s_memtime s[%d:%d]' % (68 + 2 * i, 69 + 2 * i))


def stamp_real(a, i):
    if STAMP:
        a('s_memrealtime s[%d:%d]' % (68 + 2 * i, 69 + 2 * i))


NSTAMP = 17


def stamp_store(a):
    if not STAMP:
        return
    stamp(a, 15)
    stamp_real(a, 16)
    a('s_waitcnt lgkmcnt(0)')
    a('s_mul_i32 s38, s2, 12')
    a('s_add_u32 s38, s38, s20')
    a('s_lshl_b32 s38, s38, 7')
    a('s_add_u32 s38, s38, 0x%x' % WS_STAMP)
    a('v_mov_b32 v0, 0')
    for i in range(NSTAMP):
        a('v_mov_b32 v1, s%d' % (68 + 2 * i))
        a('buffer_store_dword v1, v0, %s, s38 offen offset:%d' % (sr(S_WS), i * 4))


PBAR = {'e1': 2, 'e2': 3, 'o1': 4, 'd1': 5, 'x2': 6, 'q0': 7, 'e3': 8, 'r0': 9, 'r1': 10, 'g8': 11, 'q8': 12}


def bar(a, name):
    if getattr(a, 'isprod', 0) and name in PBAR:
        stamp(a, PBAR[name], 2)
    a('s_barrier')
    a.bars.append(name)


_uid = [0]


def uid(p):
    _uid[0] += 1
    return 'L%s%d' % (p, _uid[0])


def gstore(a, text):
    ls, le = uid('s'), uid('e')
    a('s_cmp_eq_u32 s%d, 0' % FAST)
    a('s_cbranch_scc1 %s' % ls)
    a(text)
    a('s_branch %s' % le)
    a.label(ls)
    a(text + ' sc1')
    a.label(le)
    a.vm_issued -= 1


def set_flag(a, sf, t0, t1):
    a('v_mov_b32 v%d, 1' % t0)
    a('v_mov_b32 v%d, 0' % t1)
    a('s_waitcnt vmcnt(0)')
    a('s_mov_b64 exec, 1')
    gstore(a, 'buffer_store_byte v%d, v%d, %s, s%d offen' % (t0, t1, sr(S_WS), sf))
    a('s_mov_b64 exec, -1')


def poll_flags(a, sbase, nlanes, vaddr, vt):
    a('s_mov_b64 exec, 0x%x' % ((1 << nlanes) - 1))
    a('s_mov_b32 s28, %d' % (4 * TMO))
    lp, lo = uid('p'), uid('ok')
    a.label(lp)
    a('buffer_load_dword v%d, v%d, %s, s%d offen sc1' % (vt, vaddr, sr(S_WS), sbase))
    a('s_sub_u32 s28, s28, 1')
    a('s_cbranch_scc1 %s' % lo)
    a('s_waitcnt vmcnt(0)')
    a('v_cmp_ne_u32 vcc, 0x01010101, v%d' % vt)
    a('s_cbranch_vccnz %s' % lp)
    a.label(lo)
    a('s_waitcnt vmcnt(0)')
    a('s_mov_b64 exec, -1')


WBL = env('WBL', 0)


def wbl(a, bit, wave):
    if not (WBL & bit):
        return
    l = uid('wbl')
    a('s_lshr_b32 s30, s2, 3')
    a('s_cmp_lg_u32 s30, %d' % env('WBJ', 31))
    a('s_cbranch_scc1 %s' % l)
    a('s_cmp_lg_u32 s20, %d' % wave)
    a('s_cbranch_scc1 %s' % l)
    a.raw('    buffer_wbl2 sc1')
    if bit == 2:
        a.raw('    s_waitcnt vmcnt(0)')
    a.label(l)


def fin_rest(a):
    srd_fin(a, S_WO, 512 * 1024)
    srd_fin(a, S_W1, 512 * 2752)
    srd_fin(a, S_W2, 1376 * 1024)
    srd_fin(a, S_B1, 2752)
    srd_fin(a, S_B2, 1024)
    srd_fin(a, S_OUT, 2048 * 1024)
    srd_fin(a, S_DBG, 256)


def map64(a):
    a('s_and_b32 s30, s2, 7')
    a('s_lshr_b32 s31, s2, 3')
    a('s_lshl_b32 s21, s30, 2')
    a('s_and_b32 s22, s31, 3')
    a('s_add_u32 s21, s21, s22')
    a('s_lshr_b32 s22, s31, 2')
    a('s_lshl_b32 s21, s21, 2')
    a('s_lshl_b32 s22, s22, 7')


def map3(a):
    a('s_and_b32 s30, s2, 7')
    a('s_lshr_b32 s31, s2, 3')
    a('s_lshl_b32 s21, s30, 1')
    a('s_and_b32 s22, s31, 1')
    a('s_add_u32 s33, s21, s22')
    a('s_lshr_b32 s34, s31, 1')
    a('s_lshl_b32 s21, s33, 7')
    a('s_min_u32 s22, s34, 14')
    a('s_mul_i32 s22, s22, 192')


G96 = mk_groups(16, '1,1,2')
GST = [lo for lo, hi in G96]
W3A = {9: 151552, 10: 139264, 11: 145408, 15: 0}
for _m in range(5):
    W3A[_m] = 6144 * _m
for _m in range(4):
    W3A[5 + _m] = 49152 + 6144 * _m
for _m in range(3):
    W3A[12 + _m] = 30720 + 6144 * _m


def a3addr(i):
    return W2B + 8192 * (i % 8)


NP4 = 22
_last = {}
for _ks in range(16):
    for _lo, _n in ((W3A[_ks], 6144), (a3addr(_ks), 8192)):
        for _p in range(_lo // 8192, (_lo + _n - 1) // 8192 + 1):
            _last[_p] = max(_last.get(_p, -1), _ks)
W4Q0 = env('W4Q0', 3)


def _free_bar(ks):
    for g in range(len(GST)):
        if GST[g] - 2 >= ks:
            return max(g, W4Q0)
    return 9


_ordp = sorted(range(19), key=lambda p: (_free_bar(_last[p]), p))
W4P = _ordp + [19, _ordp[0], _ordp[1]]
W4T = [('q%d' % _free_bar(_last[p]) if _free_bar(_last[p]) < 9 else 'e3') for p in _ordp] + ['r0', 'r0', 'r0']
NPUB0 = sum(1 for t in W4T if t[0] == 'q')
R1_AT = NPUB0 - 2

GB = (48, 72, 132)
ACC = 96
RS, GR, CSA = 120, 124, 128
ONES = 16
VW, VC, VA, VP = 8, 11, 40, 43
HKEEP = 160


def gemm96_main(a, mode, waddr, aaddr, XCH, bn, en, extra, hook, st):
    k1 = mode == 'k1'
    gstart = {lo: g for g, (lo, hi) in enumerate(G96)}
    a('s_lshl_b32 s23, s20, 4')
    a('s_add_u32 s24, s21, s23')
    a('s_xor_b32 s37, s24, 16')
    a('s_and_b32 s36, s20, 1')
    extra(a)
    a('v_lshl_add_u32 v8, v2, %d, v4' % (3 if k1 else 2))
    a('v_lshlrev_b32 v8, 6, v8')
    a('v_lshl_add_u32 v8, v5, 3, v8')
    a('v_and_b32 v15, 1, v2')
    a('v_lshlrev_b32 v15, 5, v15')
    a('s_sub_u32 s26, s20, 6')
    a('s_cmp_lt_u32 s20, 6')
    a('s_cselect_b32 s26, s20, s26')
    a('s_lshr_b32 s27, s26, 1')
    a('s_lshl_b32 s27, s27, 11')
    a('s_lshl_b32 s28, s36, 5')
    a('v_xor_b32 v15, s28, v15')
    a('v_add_u32 v%d, v8, v15' % VW)
    a('v_add_u32 v%d, s27, v%d' % (VC, VW))
    a('s_lshl_b32 s35, s20, 10')
    if k1:
        a('v_lshlrev_b32 v15, 1, v4')
        a('v_mov_b32 v14, 0x78')
        a('v_lshrrev_b32 v15, v15, v14')
        a('v_and_b32 v15, 3, v15')
        a('v_xor_b32 v15, v15, v2')
        a('v_lshlrev_b32 v15, 4, v15')
        a('v_lshl_add_u32 v15, v3, 6, v15')
        a('v_add_u32 v%d, s35, v15' % VA)
    else:
        a('v_add_u32 v%d, s35, v6' % VA)
    a('v_xor_b32 v%d, 0x400, v%d' % (VP, VA))
    for b in range(1, 3):
        for r in (VW, VC, VA, VP):
            a('v_add_u32 v%d, 0x%x, v%d' % (r + b, b * BANK, r))
    for i in range(4):
        a('v_mov_b32 v%d, 0x3f803f80' % (ONES + i))
    eoff = 256 if k1 else 1024

    def rlist(ks):
        b = GB[ks % 3]
        ab, ao = divmod(aaddr(ks), BANK)
        wb, wo = divmod(waddr(ks), BANK)
        r = ['ds_read_b128 %s, v%d offset:%d' % (vr(b, 4), VA + ab, ao)]
        for seg in range(3):
            for e in range(2):
                r.append('ds_read_b64_tr_b16 %s, v%d offset:%d' % (vr(b + 8 + 4 * seg + 2 * e, 2), VW + wb, wo + seg * 2048 + e * eoff))
            if seg == 1:
                r.append('ds_read_b128 %s, v%d offset:%d' % (vr(b + 4, 4), VP + ab, ao))
        for e in range(2):
            r.append('ds_read_b64_tr_b16 %s, v%d offset:%d' % (vr(b + 20 + 2 * e, 2), VC + wb, wo + e * eoff))
        return r

    def reads(ks):
        for r in rlist(ks):
            a(r)

    if not k1:
        a('s_waitcnt lgkmcnt(0)')
    hook(a, -2, 0)
    bar(a, bn + '0')
    stamp(a, st[0])
    reads(0)
    hook(a, -2, 1)
    bar(a, bn + '1')
    reads(1)
    for ks in range(16):
        b = GB[ks % 3]

        def cop(r):
            return '0' if ks == 0 else vr(r, 4)
        mf = []
        for p in range(2):
            for seg in range(3):
                ac = ACC + 4 * (3 * p + seg)
                mf.append('v_mfma_f32_16x16x32_bf16 %s, %s, %s, %s' % (vr(ac, 4), vr(b + 8 + 4 * seg, 4), vr(b + 4 * p, 4), cop(ac)))
        mf.append('v_mfma_f32_16x16x32_bf16 %s, %s, %s, %s' % (vr(CSA, 4), vr(b + 20, 4), vr(ONES, 4), cop(CSA)))
        if k1:
            mf.append('v_mfma_f32_16x16x32_bf16 %s, %s, %s, %s' % (vr(RS, 4), vr(ONES, 4), vr(b, 4), cop(RS)))
            mf.append('v_mfma_f32_16x16x32_bf16 %s, %s, %s, %s' % (vr(GR, 4), vr(b, 4), vr(b, 4), cop(GR)))
        a('s_waitcnt lgkmcnt(%d)' % (10 if ks < 15 else 0))
        for m in mf[:BPOS]:
            a(m)
        hook(a, ks, 0)
        rl = []
        if ks + 2 < 16:
            if ks + 2 in gstart:
                bar(a, bn + str(gstart[ks + 2]))
            rl = rlist(ks + 2)
        rest = mf[BPOS:]
        if ILV:
            per = -(-len(rl) // max(1, len(rest) - ILV + 1))
            for m in rest:
                for r in rl[:per]:
                    a(r)
                rl = rl[per:]
                a(m)
            assert not rl
            hook(a, ks, 1)
        else:
            for r in rl:
                a(r)
            hook(a, ks, 1)
            for m in rest:
                a(m)
    stamp(a, st[1])
    a('v_lshlrev_b32 v15, 4, v2')
    a('s_lshl_b32 s27, s26, 6')
    a('s_add_u32 s27, s27, 0x%x' % XCH)
    a('v_add_u32 v14, s27, v15')
    a('ds_write_b128 v14, %s' % vr(CSA, 4))

    def finish_stats(SUM, SQ, M, RD):
        a('v_mul_f32 v%d, 0x3b000000, v%d' % (SUM, SUM))
        a('v_mul_f32 v%d, 0x3b000000, v%d' % (SQ, SQ))
        a('v_fma_f32 v%d, -v%d, v%d, v%d' % (SQ, SUM, SUM, SQ))
        a('v_max_f32 v%d, 0, v%d' % (SQ, SQ))
        bf16r(a, M, SUM)
        bf16r(a, SQ, SQ)
        a('v_add_f32 v%d, 0x3727c5ac, v%d' % (SQ, SQ))
        bf16r(a, SQ, SQ)
        a('v_sqrt_f32 v%d, v%d' % (SQ, SQ))
        bf16r(a, SQ, SQ)
        a('v_rcp_f32 v%d, v%d' % (RD, SQ))

    if k1:
        SUM, SQ = 72, 73
        a('v_cmp_eq_u32 vcc, 1, v5')
        a('v_cndmask_b32 v%d, v%d, v%d, vcc' % (SQ, GR, GR + 1))
        a('v_cmp_eq_u32 vcc, 2, v5')
        a('v_cndmask_b32 v%d, v%d, v%d, vcc' % (SQ, SQ, GR + 2))
        a('v_cmp_eq_u32 vcc, 3, v5')
        a('v_cndmask_b32 v%d, v%d, v%d, vcc' % (SQ, SQ, GR + 3))
        a('v_cmp_eq_u32 vcc, v2, v4')
        a('v_cndmask_b32 v%d, 0, v%d, vcc' % (SQ, SQ))
        a('v_mov_b32 v%d, v%d' % (SUM, RS))
        butterfly(a, [('v_add_f32', SQ, 76)])
        finish_stats(SUM, SQ, 36, 37)
        a('s_lshl_b32 s27, s20, 7')
        a('s_add_u32 s27, s27, 0x%x' % (XCH + 512))
        a('v_lshlrev_b32 v74, 3, v3')
        a('v_add_u32 v75, s27, v74')
        a('ds_write_b64 v75, v[36:37]')
        a('v_xor_b32 v75, 0x80, v75')
    a('s_lshl_b32 s27, s36, 6')
    a('s_add_u32 s27, s27, 0x%x' % XCH)
    a('v_add_u32 v15, s27, v15')
    hook(a, 16, 0)
    a('s_waitcnt lgkmcnt(0)')
    bar(a, en)
    if k1:
        a('ds_read_b64 v[38:39], v75')
    for seg in range(3):
        a('ds_read_b128 %s, v15 offset:%d' % (vr(132 + 4 * seg, 4), seg * 128))
    hook(a, 16, 1)
    if not k1:
        return
    for p in range(2):
        for seg in range(3):
            if p == 0:
                a('s_waitcnt lgkmcnt(%d)' % (2 - seg))
            ac = ACC + 4 * (3 * p + seg)
            for r in range(4):
                a('v_fma_f32 v%d, -v%d, v%d, v%d' % (ac + r, 36 + 2 * p, 132 + 4 * seg + r, ac + r))
            for r in range(4):
                a('v_mul_f32 v%d, v%d, v%d' % (ac + r, 37 + 2 * p, ac + r))
    gemm96_main.finish_stats = finish_stats


S_MASK, S_PART, S_PQ = 96, 98, 99
V_PART, V_L8 = 164, 165


def part_store(a, r, cvt):
    lz, le = uid('z'), uid('e')
    a('s_bitcmp1_b32 s20, 1')
    a('s_cbranch_scc1 %s' % lz)
    if cvt:
        a('v_cvt_pk_bf16_f32 v%d, v%d, v%d' % (r, r, r + 1))
        a('v_cvt_pk_bf16_f32 v%d, v%d, v%d' % (r + 1, r + 2, r + 3))
    a('buffer_store_dwordx2 %s, v%d, %s, s%d offen sc1' % (vr(r, 2), V_L8, sr(S_WS), S_PART))
    a('s_branch %s' % le)
    a.label(lz)
    a('s_mov_b64 exec, s[%d:%d]' % (S_MASK, S_MASK + 1))
    a('buffer_store_dwordx4 %s, v%d, %s, s%d offen sc1' % (vr(r, 4), V_PART, sr(S_WS), S_PART))
    a('s_mov_b64 exec, -1')
    a.label(le)


def cons_k1(a):
    XCH = XCH1

    def extra(a):
        if LT1:
            a('s_and_b32 s30, s2, 1')
            a('s_or_b32 s30, s30, s20')
            a('s_cmp_lg_u32 s30, 0')
            a('s_cbranch_scc1 k1_nlt')
            a('s_lshr_b32 s30, s2, 3')
            a('s_mul_i32 s30, s30, %d' % (48 * 1024))
            a('v_min_u32 v15, 47, v1')
            a('v_lshlrev_b32 v15, 10, v15')
            a('buffer_load_dword v156, v15, %s, s30 offen offset:384' % sr(S_WQ))
            a.label('k1_nlt')
        a('s_lshl_b32 s31, s34, 10')
        a('s_lshl_b32 s27, s36, 9')
        a('s_add_u32 s31, s31, s27')
        a('s_lshl_b32 s30, s24, 12')
        a('s_add_u32 s%d, s30, s31' % S_PQ)
        a('s_xor_b32 s29, s%d, 0x10000' % S_PQ)
        a('v_lshlrev_b32 v%d, 3, v1' % V_L8)
        for i in range(4):
            a('v_mov_b32 v%d, -1' % (28 + i))
        a('s_lshl_b32 s30, s33, 5')
        a('s_lshl_b32 s31, s34, 1')
        a('s_add_u32 s30, s30, s31')
        a('s_lshr_b32 s31, s20, 2')
        a('s_add_u32 s30, s30, s31')
        a('s_mul_i32 s30, s30, %d' % PSTR)
        a('s_add_u32 s30, s30, 0x%x' % WS_PART)
        a('s_and_b32 s31, s20, 3')
        a('s_lshl_b32 s27, s31, 9')
        a('s_lshl_b32 s28, s31, 6')
        a('s_add_u32 s28, s28, %d' % (1024 - 128))
        a('s_cmp_lt_u32 s31, 2')
        a('s_cselect_b32 s27, s27, s28')
        a('s_add_u32 s%d, s30, s27' % S_PART)
        a('v_lshlrev_b32 v%d, 4, v2' % V_PART)
        a('s_mov_b32 s%d, 0x00010001' % S_MASK)
        a('s_mov_b32 s%d, 0x00010001' % (S_MASK + 1))
        a('s_and_b32 s30, s2, 7')
        a('s_lshl_b32 s30, s30, 8')
        a('s_add_u32 s30, s30, 0x%x' % WS_FLAG)
        a('s_lshr_b32 s31, s2, 3')
        a('s_lshl_b32 s27, s20, 5')
        a('s_add_u32 s27, s27, s31')
        a('s_add_u32 s%d, s30, s27' % F0)
        a('s_and_b32 s27, s31, 3')
        a('s_lshl_b32 s27, s27, 6')
        a('s_lshr_b32 s28, s31, 2')
        a('s_lshl_b32 s28, s28, 3')
        a('s_add_u32 s27, s27, s28')
        a('s_add_u32 s27, s27, s20')
        a('s_add_u32 s27, s27, 2048')
        a('s_add_u32 s%d, s30, s27' % F1)
        a('s_and_b32 s27, s31, 1')
        a('s_lshl_b32 s27, s27, 7')
        a('s_and_b32 s28, s31, 30')
        a('s_add_u32 s27, s27, s28')
        a('s_lshr_b32 s28, s20, 1')
        a('s_lshl_b32 s28, s28, 5')
        a('s_add_u32 s27, s27, s28')
        a('s_add_u32 s27, s27, s36')
        a('s_add_u32 s27, s27, 4096')
        a('s_add_u32 s%d, s30, s27' % F2)
        fin_rest(a)
        a('v_lshrrev_b32 v157, 1, v1')
        a('v_lshlrev_b32 v157, 7, v157')
        a('v_lshlrev_b32 v24, 2, v2')
        a('v_sub_u32 v24, v3, v24')
        a('v_mov_b32 v26, 0x3f80')
        a('v_mov_b32 v27, 0x3f800000')
        a('v_cmp_eq_u32 vcc, 0, v24')
        a('v_cndmask_b32 v20, 0, v26, vcc')
        a('v_cmp_eq_u32 vcc, 1, v24')
        a('v_cndmask_b32 v21, 0, v27, vcc')
        a('v_or_b32 v20, v20, v21')
        a('v_cmp_eq_u32 vcc, 2, v24')
        a('v_cndmask_b32 v21, 0, v26, vcc')
        a('v_cmp_eq_u32 vcc, 3, v24')
        a('v_cndmask_b32 v25, 0, v27, vcc')
        a('v_or_b32 v21, v21, v25')
        a('v_lshl_add_u32 v22, v2, 2, v4')
        a('v_lshlrev_b32 v22, 5, v22')
        a('v_lshl_add_u32 v22, v5, 3, v22')
        a('s_lshl_b32 s30, s36, 9')
        a('s_add_u32 s30, s30, 0x%x' % (XCH + 2048))
        a('v_add_u32 v22, s30, v22')
        sp_batches(a, 'C', 'st')

        if POIS_KS < -2:
            poison(a)

    def poison(a):
        a('s_xor_b32 s29, s%d, 0x10000' % S_PQ)
        a('buffer_store_dwordx2 v[28:29], v%d, %s, s%d offen sc1' % (V_L8, sr(S_WS), S_PQ))
        a('buffer_store_dwordx2 v[28:29], v%d, %s, s29 offen sc1' % (V_L8, sr(S_WS)))
        part_store(a, 28, False)
        a('s_lshr_b32 s30, s2, 3')
        a('s_or_b32 s30, s30, s20')
        a('s_cmp_lg_u32 s30, 0')
        a('s_cbranch_scc1 k1_nfc')
        a('v_lshlrev_b32 v23, 11, v2')
        a('v_lshl_add_u32 v23, v3, 4, v23')
        for i in range(4):
            a('v_mov_b32 v%d, 0' % (24 + i))
        a('s_mov_b32 s30, -1')
        a('s_mov_b32 s31, 0xffff')
        a('s_mov_b64 exec, s[30:31]')
        a('buffer_store_dwordx4 v[24:27], v23, %s, s%d offen sc1' % (sr(S_WS), F0))
        a('s_mov_b64 exec, -1')
        a.label('k1_nfc')

    def hook(a, ks, ph):
        if ks == POIS_KS and ph == 1:
            poison(a)
        if ks == WAIT_KS and ph == 0:
            assert any(WAIT_KS <= k <= RDY_KS and (k + 2 in GST or k == 16) for k in range(-2, 17)) and POIS_KS < WAIT_KS
            a('s_waitcnt vmcnt(0)')
        if ks == RDY_KS and ph == 1:
            a('s_cmp_lg_u32 s20, 0')
            a('s_cbranch_scc1 c_nrdy')
            a('s_getreg_b32 s30, hwreg(HW_REG_XCC_ID, 0, 4)')
            a('s_and_b32 s31, s2, 7')
            a('s_lshl_b32 s31, s31, 5')
            if RDY_AT:
                a('s_mul_i32 s29, s30, s30')
                a('s_lshl_b32 s29, s29, 18')
                a('s_lshl_b32 s30, s30, 8')
                a('s_add_u32 s30, s30, s29')
                a('s_add_u32 s30, s30, 1')
            else:
                a('s_or_b32 s30, s30, 0x80')
                a('s_lshr_b32 s29, s2, 3')
                a('s_add_u32 s31, s31, s29')
            a('v_mov_b32 v23, s30')
            a('v_mov_b32 v24, 0')
            a('s_mov_b64 exec, 1')
            if RDY_AT:
                a('buffer_atomic_add v23, v24, %s, s31 offen' % sr(S_DBG))
            else:
                a('buffer_store_byte v23, v24, %s, s31 offen sc1' % sr(S_DBG))
            a('s_mov_b64 exec, -1')
            a.label('c_nrdy')
        for oc in range(T_KS.count(ks) if ph == 1 else 0):
            lb = uid('t')
            a('s_cmp_lg_u32 s20, %d' % ((ks + 3 * oc) & 7))
            a('s_cbranch_scc1 %s' % lb)
            touch_item(a, 157, 156)
            a.label(lb)

    gemm96_main(a, 'k1', lambda ks: (ks % NS1) * SLOT, lambda ks: (ks % NS1) * SLOT + 6144, XCH, 'g', 'e1', extra, hook, (2, 3))
    a('ds_read_b64_tr_b16 v[26:27], v22')
    PK = 144
    for t in range(6):
        a('v_cvt_pk_bf16_f32 v%d, v%d, v%d' % (PK + 2 * t, ACC + 4 * t, ACC + 4 * t + 1))
        a('v_cvt_pk_bf16_f32 v%d, v%d, v%d' % (PK + 1 + 2 * t, ACC + 4 * t + 2, ACC + 4 * t + 3))
    a('s_waitcnt lgkmcnt(0)')
    PB = 48
    for s in range(4):
        src = PK + 2 * (3 * (s & 1) + (1 - (s >> 1)))
        a('v_mfma_f32_16x16x16_bf16 %s, v[26:27], %s, 0' % (vr(PB + 4 * s, 4), vr(src, 2)))
    TV = 64
    for p in range(2):
        a('v_mfma_f32_16x16x16_bf16 %s, %s, v[20:21], 0' % (vr(TV + 4 * p, 4), vr(PK + 2 * (3 * p + 2), 2)))
    TB = 72
    for s in (2, 3, 0, 1):
        p = PB + 4 * s
        a('v_cvt_pk_bf16_f32 v%d, v%d, v%d' % (TB + 12 * s + 2, p, p + 1))
        a('v_cvt_pk_bf16_f32 v%d, v%d, v%d' % (TB + 12 * s + 3, p + 2, p + 3))
    def pq_stores():
        a('s_xor_b32 s30, s%d, 0x10000' % S_PQ)
        a('buffer_store_dwordx2 %s, v%d, %s, s%d offen sc1' % (vr(TB + 12 * 2 + 2, 2), V_L8, sr(S_WS), S_PQ))
        a('buffer_store_dwordx2 %s, v%d, %s, s30 offen sc1' % (vr(TB + 12 * 3 + 2, 2), V_L8, sr(S_WS)))
    if not env('PQL', 1):
        pq_stores()
    FB = 120
    sp_batches(a, 'C', 'e1')
    softmax_sets(a, 2, PB, TB, FB, 28)
    if env('PQL', 1):
        pq_stores()
    for p in range(2):
        for pm in range(2):
            a('v_mfma_f32_16x16x16_bf16 %s, %s, v[20:21], 0' % (vr(72 + 4 * (2 * p + pm), 4), vr(FB + 4 * p + 2 * pm, 2)))
    for p in range(2):
        a('v_cvt_pk_bf16_f32 v%d, v%d, v%d' % (88 + 2 * p, TV + 4 * p, TV + 4 * p + 1))
        a('v_cvt_pk_bf16_f32 v%d, v%d, v%d' % (89 + 2 * p, TV + 4 * p + 2, TV + 4 * p + 3))
    for i in range(4):
        a('v_cvt_pk_bf16_f32 v%d, v%d, v%d' % (92 + 2 * i, 72 + 4 * i, 73 + 4 * i))
        a('v_cvt_pk_bf16_f32 v%d, v%d, v%d' % (93 + 2 * i, 74 + 4 * i, 75 + 4 * i))
    RB = 128
    for p in range(2):
        for pm in range(2):
            r1, r2 = RB + 4 * pm, RB + 4 * (2 + pm)
            a('v_mfma_f32_16x16x16_bf16 %s, %s, %s, %s' % (vr(r1, 4), vr(92 + 2 * (2 * p + pm), 2), vr(88 + 2 * p, 2), '0' if p == 0 else vr(r1, 4)))
            a('v_mfma_f32_16x16x16_bf16 %s, %s, v[16:17], %s' % (vr(r2, 4), vr(92 + 2 * (2 * p + pm), 2), '0' if p == 0 else vr(r2, 4)))
    a('s_lshl_b32 s30, s20, 12')
    a('v_add_u32 v23, s30, v6')
    for i in range(4):
        a('ds_write_b128 v23, %s offset:%d' % (vr(RB + 4 * i, 4), i * 1024))
    a('s_lshl_b32 s30, s20, 10')
    a('v_add_u32 v24, s30, v6')
    ko_setup(a)
    a('s_waitcnt lgkmcnt(0)')
    a('v_mov_b32 v22, 0x%x' % CTRL)
    bar(a, 'e2')
    a('ds_read_b32 v23, v22')
    for m in range(4):
        a('ds_read_b128 %s, v24 offset:%d' % (vr(48 + 4 * m, 4), m * 8192))
    for m in range(1, 4):
        a('s_waitcnt lgkmcnt(%d)' % (3 - m))
        for r in range(4):
            a('v_add_f32 v%d, v%d, v%d' % (48 + r, 48 + r, 48 + 4 * m + r))
    part_store(a, 48, True)
    stamp(a, 4)
    a('s_mov_b32 s28, %d' % (64 * TMO))
    a.label('c_rw')
    a('v_readfirstlane_b32 s%d, v23' % FAST)
    a('s_sub_u32 s28, s28, 1')
    a('s_cbranch_scc1 c_rok')
    a('ds_read_b32 v23, v22')
    a('s_sleep 1')
    a('s_cmp_eq_u32 s%d, 0' % FAST)
    a('s_waitcnt lgkmcnt(0)')
    a('s_cbranch_scc1 c_rw')
    a.label('c_rok')
    a('s_lshr_b32 s%d, s%d, 1' % (FAST, FAST))


def ko_setup(a):
    a('s_lshr_b32 s21, s2, 3')
    a('s_and_b32 s22, s2, 7')
    a('s_lshl_b32 s22, s22, 3')
    a('s_add_u32 s22, s22, s20')
    a('s_lshl_b32 s22, s22, 17')
    a('s_lshl_b32 s23, s21, 9')
    a('s_add_u32 s22, s22, s23')
    a('s_add_u32 s23, s22, 0x10000')
    a('v_lshlrev_b32 v7, 3, v1')
    a('s_lshr_b32 s24, s20, 1')
    a('s_lshl_b32 s24, s24, 7')
    a('s_add_u32 s24, s24, s21')
    a('s_mul_i32 s24, s24, %d' % PSTR)
    a('s_add_u32 s24, s24, 0x%x' % WS_PART)
    a('s_and_b32 s25, s20, 1')
    a('s_lshl_b32 s26, s25, 9')
    a('s_lshl_b32 s27, s25, 6')
    a('s_add_u32 s26, s26, s24')
    a('s_add_u32 s27, s27, s24')
    a('s_add_u32 s27, s27, 1024')
    a('v_lshlrev_b32 v8, 4, v2')


def cons_ko(a):
    PB, TB, FB = 16, 24, 52
    KV, ZZ = 64, 80

    def part_loads():
        for j in range(4):
            a('s_add_u32 s30, s26, %d' % (32 * PSTR * j))
            a('s_add_u32 s31, s27, %d' % (32 * PSTR * j))
            a('buffer_load_dwordx2 %s, v7, %s, s30 offen sc1 %s' % (vr(KV + 4 * j, 2), sr(S_WS), NT('pt')))
            a('buffer_load_dwordx4 %s, v8, %s, s31 offen sc1' % (vr(ZZ + 4 * j, 4), sr(S_WS)))

    def pq_loads():
        for s in range(2):
            a('buffer_load_dwordx2 %s, v7, %s, s%d offen sc1' % (vr(TB + 12 * s + 2, 2), sr(S_WS), 22 + s))
    a('s_mov_b32 s28, %d' % TMO)
    KO_E = env('KO_E', 0)
    a.label('ko_pq')
    pq_loads()
    a('s_waitcnt vmcnt(0)')
    a.label('ko_pqc')
    a('s_sub_u32 s28, s28, 1')
    a('s_cbranch_scc1 ko_pq_ok')
    a('v_max3_u32 v9, v%d, v%d, v%d' % (TB + 2, TB + 3, TB + 14))
    a('v_max_u32 v9, v9, v%d' % (TB + 15))
    a('v_cmp_eq_u32 vcc, -1, v9')
    a('s_cbranch_vccnz ko_pq')
    a.label('ko_pq_ok')
    stamp(a, 5)
    if KO_E:
        part_loads()
    a('s_lshl_b32 s30, s20, 11')
    a('s_add_u32 s30, s30, 0x%x' % KOX)
    a('v_add_u32 v9, s30, v6')
    softmax_sets(a, 2, PB, TB, FB, 10)
    a('s_mov_b32 s28, %d' % TMO)
    if KO_E:
        a('s_branch ko_ppc')
    a.label('ko_pp')
    part_loads()
    a.label('ko_ppc')
    a('s_sub_u32 s28, s28, 1')
    a('s_cbranch_scc1 ko_pp_ok')
    a('s_waitcnt vmcnt(0)')
    a('v_max3_u32 v11, v%d, v%d, v%d' % (KV, KV + 1, KV + 4))
    a('v_max3_u32 v12, v%d, v%d, v%d' % (KV + 5, KV + 8, KV + 9))
    a('v_max3_u32 v11, v11, v%d, v%d' % (KV + 12, KV + 13))
    for i in range(0, 16, 4):
        a('v_max3_u32 v12, v12, v%d, v%d' % (ZZ + i, ZZ + i + 1))
        a('v_max3_u32 v11, v11, v%d, v%d' % (ZZ + i + 2, ZZ + i + 3))
    a('v_max_u32 v11, v11, v12')
    a('v_cmp_eq_u32 vcc, -1, v11')
    a('s_cbranch_vccnz ko_pp')
    a.label('ko_pp_ok')
    a('s_waitcnt vmcnt(0)')
    stamp(a, 6)
    for j in range(4):
        r = KV + 4 * j
        a('v_and_b32 v%d, 0xffff0000, v%d' % (r + 3, r + 1))
        a('v_lshlrev_b32 v%d, 16, v%d' % (r + 2, r + 1))
        a('v_and_b32 v%d, 0xffff0000, v%d' % (r + 1, r))
        a('v_lshlrev_b32 v%d, 16, v%d' % (r, r))
    for B in (KV, ZZ):
        for r in range(4):
            a('v_add_f32 v%d, v%d, v%d' % (B + r, B + r, B + 4 + r))
            a('v_add_f32 v%d, v%d, v%d' % (B + 8 + r, B + 8 + r, B + 12 + r))
        for r in range(4):
            a('v_add_f32 v%d, v%d, v%d' % (B + r, B + r, B + 8 + r))
    a('ds_write_b128 v9, %s' % vr(KV, 4))
    a('ds_write_b128 v9, %s offset:1024' % vr(ZZ, 4))
    a('s_waitcnt lgkmcnt(0)')
    bar(a, 'o1')
    RD = 64
    for t in range(2):
        for kz in range(2):
            for qd in range(4):
                a('ds_read_b128 %s, v6 offset:%d' % (vr(RD + 4 * (8 * t + 4 * kz + qd), 4), KOX + (2 * qd + t) * 2048 + kz * 1024))
    OPA = 128
    for t in range(2):
        for kz in range(2):
            i = 2 * t + kz
            B = RD + 16 * i
            a('s_waitcnt lgkmcnt(%d)' % (12 - 4 * i))
            for r in range(4):
                a('v_add_f32 v%d, v%d, v%d' % (B + r, B + r, B + 4 + r))
                a('v_add_f32 v%d, v%d, v%d' % (B + 8 + r, B + 8 + r, B + 12 + r))
            for r in range(4):
                a('v_add_f32 v%d, v%d, v%d' % (B + r, B + r, B + 8 + r))
            a('v_cvt_pk_bf16_f32 v%d, v%d, v%d' % (OPA + 4 * kz + 2 * t, B, B + 1))
            a('v_cvt_pk_bf16_f32 v%d, v%d, v%d' % (OPA + 4 * kz + 2 * t + 1, B + 2, B + 3))
    ND = 64
    for s in range(2):
        a('v_mfma_f32_16x16x32_bf16 %s, %s, %s, 0' % (vr(ND + 8 * s, 4), vr(OPA, 4), vr(FB + 4 * s, 4)))
        a('v_mfma_f32_16x16x32_bf16 %s, %s, %s, 0' % (vr(ND + 8 * s + 4, 4), vr(OPA + 4, 4), vr(FB + 4 * s, 4)))
    for s in range(2):
        n = ND + 8 * s
        d = n + 4
        T = 16 + 8 * s
        a('v_cvt_pk_bf16_f32 v%d, v%d, v%d' % (T, d, d))
        a('v_cvt_pk_bf16_f32 v%d, v%d, v%d' % (T + 1, n, n + 1))
        a('v_cvt_pk_bf16_f32 v%d, v%d, v%d' % (T + 2, n + 2, n + 3))
        a('v_lshlrev_b32 v%d, 16, v%d' % (T, T))
        a('v_add_f32 v%d, 0x358637bd, v%d' % (T, T))
        a('v_cvt_pk_bf16_f32 v%d, v%d, v%d' % (T, T, T))
        a('v_lshlrev_b32 v%d, 16, v%d' % (T, T))
        a('v_rcp_f32 v%d, v%d' % (T, T))
        a('v_lshlrev_b32 v%d, 16, v%d' % (T + 3, T + 1))
        a('v_and_b32 v%d, 0xffff0000, v%d' % (T + 4, T + 1))
        a('v_lshlrev_b32 v%d, 16, v%d' % (T + 5, T + 2))
        a('v_and_b32 v%d, 0xffff0000, v%d' % (T + 6, T + 2))
        for i in range(4):
            a('v_mul_f32 v%d, v%d, v%d' % (T + 3 + i, T, T + 3 + i))
        a('v_cvt_pk_bf16_f32 v%d, v%d, v%d' % (T, T + 3, T + 4))
        a('v_cvt_pk_bf16_f32 v%d, v%d, v%d' % (T + 1, T + 5, T + 6))
        gstore(a, 'buffer_store_dwordx2 %s, v7, %s, s%d offen' % (vr(T, 2), sr(S_WS), 22 + s))


def w64_addr(a, k2, WA, base):
    map64(a)
    a('s_lshr_b32 s23, s20, 1')
    a('s_add_u32 s24, s21, s23')
    a('s_and_b32 s25, s20, 1')
    a('v_lshl_add_u32 v14, v2, %d, v4' % (2 if k2 else 3))
    a('v_lshlrev_b32 v14, 7, v14')
    a('v_lshl_add_u32 v14, v5, 3, v14')
    a('v_and_b32 v15, 1, v2')
    a('v_lshlrev_b32 v15, 1, v15')
    a('v_lshrrev_b32 v13, 1, v4')
    a('v_or_b32 v15, v15, v13')
    a('s_lshl_b32 s26, s25, 1')
    a('v_xor_b32 v15, s26, v15')
    a('v_lshl_add_u32 v14, v15, 5, v14')
    a('s_lshl_b32 s26, s25, 12')
    a('s_add_u32 s26, s26, 0x%x' % base)
    a('v_add_u32 v%d, s26, v14' % WA)
    for s in range(1, 4):
        a('v_xor_b32 v%d, %d, v%d' % (WA + s, 32 * s, WA))


def cons_k2(a):
    WA, AC, AF, WB, XR = 8, 16, 32, 64, 164
    w64_addr(a, True, WA, W2B)
    a('s_lshl_b32 s26, s23, 11')
    a('s_lshl_b32 s27, s25, 6')
    a('s_add_u32 s26, s26, s27')
    a('s_add_u32 s26, s26, 0x%x' % XT)
    a('v_lshlrev_b32 v13, 7, v3')
    a('v_lshl_add_u32 v13, v2, 3, v13')
    a('v_add_u32 v13, s26, v13')
    set_flag(a, F0, 14, 15)
    bar(a, 'd1')
    stamp(a, 7)

    def wreads(i, b):
        for s in range(4):
            for e in range(2):
                a('ds_read_b64_tr_b16 %s, v%d offset:%d' % (vr(WB + 16 * b + 4 * s + 2 * e, 2), WA + s, i * 8192 + e * 2048))
    for nt in range(2):
        a('ds_read_b64 %s, v13 offset:%d' % (vr(XR + 2 * nt, 2), nt * 32))
    for i in range(6):
        wreads(i, i)
    sp_batches(a, 'C', 'd1')
    a('s_and_b32 s30, s2, 7')
    a('s_lshl_b32 s30, s30, 8')
    a('s_and_b32 s31, s24, 15')
    a('s_lshr_b32 s31, s31, 1')
    a('s_lshl_b32 s31, s31, 5')
    a('s_add_u32 s30, s30, s31')
    a('s_add_u32 s30, s30, 0x%x' % WS_FLAG)
    a('v_lshlrev_b32 v14, 2, v1')
    a('s_lshl_b32 s29, s24, 16')
    a('s_lshl_b32 s31, s25, 10')
    a('s_add_u32 s27, s29, s31')
    a('s_lshl_b32 s32, s20, 11')
    a('s_add_u32 s32, s32, 0x%x' % KOX)
    a('v_add_u32 v12, s32, v6')
    a('v_xor_b32 v13, 0x800, v12')
    poll_flags(a, 30, 8, 14, 15)
    stamp(a, 8)
    for i in range(8):
        if i and i % 2 == 0:
            a('s_add_u32 s27, s27, 4096')
        for e in range(2):
            a('buffer_load_dwordx2 %s, v7, %s, s27 offen offset:%d sc1' % (vr(AF + 4 * i + 2 * e, 2), sr(S_WS), (i % 2) * 2048 + e * 512))
    a('s_lshl_b32 s31, s22, 4')
    a('s_add_u32 s28, s29, s31')
    a('s_lshl_b32 s31, s25, 10')
    a('s_add_u32 s28, s28, s31')
    a('s_add_u32 s28, s28, 0x%x' % OFF_H)
    a('v_lshlrev_b32 v14, 4, v3')
    a('s_lshr_b32 s31, s22, 7')
    a('s_and_b32 s26, s31, 1')
    a('s_lshl_b32 s26, s26, 10')
    a('s_add_u32 s29, s29, s26')
    a('s_lshr_b32 s31, s31, 1')
    a('s_lshl_b32 s31, s31, 8')
    a('s_add_u32 s29, s29, s31')
    a('s_lshl_b32 s31, s25, 3')
    a('s_add_u32 s29, s29, s31')
    a('s_add_u32 s29, s29, 0x%x' % OFF_S)
    for i in range(8):
        b = i % 6
        lg = {0: 0, 6: 8, 7: 0}.get(i)
        a('s_waitcnt vmcnt(%d)%s' % (14 - 2 * i, '' if lg is None else ' lgkmcnt(%d)' % lg))
        for s in (2, 3, 0, 1):
            a('v_mfma_f32_16x16x32_bf16 %s, %s, %s, %s' % (vr(AC + 4 * s, 4), vr(WB + 16 * b + 4 * s, 4), vr(AF + 4 * i, 4), '0' if i == 0 else vr(AC + 4 * s, 4)))
        if i < 2:
            wreads(6 + i, i)
    stamp(a, 9)
    for s in range(2):
        a('ds_write_b128 v12, %s offset:%d' % (vr(AC + 8 + 4 * s, 4), s * 1024))
    T = 40
    for i in range(4):
        a('v_lshlrev_b32 v%d, 16, v%d' % (T + 2 * i, XR + i))
        a('v_and_b32 v%d, 0xffff0000, v%d' % (T + 2 * i + 1, XR + i))
    a('v_mov_b32 v52, 0x3f803f80')
    a('s_waitcnt lgkmcnt(0)')
    bar(a, 'x2')
    for s in range(2):
        a('ds_read_b128 %s, v13 offset:%d' % (vr(32 + 4 * s, 4), s * 1024))
    OUTR = HKEEP
    S1, S2 = 54, 55
    for s in range(2):
        a('s_waitcnt lgkmcnt(%d)' % (1 - s))
        for r in range(4):
            a('v_add_f32 v%d, v%d, v%d' % (AC + 4 * s + r, AC + 4 * s + r, 32 + 4 * s + r))
    for i in range(8):
        a('v_add_f32 v%d, v%d, v%d' % (T + i, T + i, AC + i))
    for i in range(4):
        a('v_cvt_pk_bf16_f32 v%d, v%d, v%d' % (OUTR + i, T + 2 * i, T + 2 * i + 1))
    gstore(a, 'buffer_store_dwordx4 %s, v6, %s, s28 offen' % (vr(OUTR, 4), sr(S_WS)))
    for i in range(4):
        a('v_dot2_f32_bf16 v%d, v%d, v52, %s' % (S1, OUTR + i, 'v%d' % S1 if i else '0'))
        a('v_dot2_f32_bf16 v%d, v%d, v%d, %s' % (S2, OUTR + i, OUTR + i, 'v%d' % S2 if i else '0'))
    butterfly(a, [('v_add_f32', S1, 52), ('v_add_f32', S2, 53)])
    gstore(a, 'buffer_store_dwordx2 v[54:55], v14, %s, s29 offen' % sr(S_WS))
    set_flag(a, F1, 56, 57)
    stamp(a, 10)
    sp_batches(a, 'C', 'x2')


def cons_k3(a):
    map3(a)
    STR, B1R = 20, 120

    def extra(a):
        a('v_lshlrev_b32 v46, 3, v2')
        a('s_lshl_b32 s30, s36, 5')
        a('s_add_u32 s30, s30, s22')
        for seg in range(3):
            a('buffer_load_dwordx2 %s, v46, %s, s30 offen offset:%d' % (vr(B1R + 2 * seg, 2), sr(S_B1), seg * 64))

    def hook(a, ks, ph):
        if ks == 6 and ph == 1:
            for p in range(2):
                a('s_lshl_b32 s30, s%d, 12' % (24 if p == 0 else 37))
                a('s_add_u32 s30, s30, 0x%x' % OFF_S)
                for i in range(2):
                    a('buffer_load_dwordx4 %s, v6, %s, s30 offen offset:%d sc1' % (vr(STR + 8 * p + 4 * i, 4), sr(S_WS), i * 1024))
        if ks == 13 and ph == 1:
            a('s_waitcnt vmcnt(0)')
            for p in range(2):
                b = STR + 8 * p
                a('v_add_f32 v%d, v%d, v%d' % (b, b, b + 2))
                a('v_add_f32 v%d, v%d, v%d' % (b + 1, b + 1, b + 3))
                a('v_add_f32 v%d, v%d, v%d' % (b + 4, b + 4, b + 6))
                a('v_add_f32 v%d, v%d, v%d' % (b + 5, b + 5, b + 7))
            for p in range(2):
                b = STR + 8 * p
                a('v_add_f32 v%d, v%d, v%d' % (b, b, b + 4))
                a('v_add_f32 v%d, v%d, v%d' % (b + 1, b + 1, b + 5))
            butterfly(a, [('v_add_f32', STR, STR + 2), ('v_add_f32', STR + 1, STR + 3), ('v_add_f32', STR + 8, STR + 10), ('v_add_f32', STR + 9, STR + 11)])
        if ks == 14 and ph == 1:
            gemm96_main.finish_stats(STR, STR + 1, 36, 37)
            gemm96_main.finish_stats(STR + 8, STR + 9, 38, 39)
        if ks == 15 and ph == 1:
            a('s_lshl_b32 s27, s36, 9')
            a('s_mul_i32 s25, s34, 3 * 1024')
            a('s_add_u32 s25, s25, s27')
            for p in range(2):
                a('s_lshl_b32 s%d, s%d, 12' % (28 + p, 24 if p == 0 else 37))
            a('v_and_b32 v22, 1, v2')
            a('v_cmp_eq_u32 vcc, 0, v22')
            a('v_mov_b32 v22, s28')
            a('v_mov_b32 v23, s29')
            a('v_cndmask_b32 v22, v23, v22, vcc')
            a('v_lshrrev_b32 v23, 1, v2')
            a('v_lshl_add_u32 v22, v23, 8, v22')
            a('v_lshl_add_u32 v22, v3, 4, v22')
            for seg in range(3):
                b = B1R + 2 * seg
                B = 72 + 4 * seg
                a('v_lshlrev_b32 v%d, 16, v%d' % (B, b))
                a('v_and_b32 v%d, 0xffff0000, v%d' % (B + 1, b))
                a('v_lshlrev_b32 v%d, 16, v%d' % (B + 2, b + 1))
                a('v_and_b32 v%d, 0xffff0000, v%d' % (B + 3, b + 1))

    gemm96_main(a, 'k3', lambda ks: W3A[ks], a3addr, XCH3, 'q', 'e3', extra, hook, (11, 12))
    a('s_cmp_eq_u32 s34, 15')
    a('s_cbranch_scc1 k3_done')
    for seg in range(3):
        if seg == 1:
            a('s_cmp_eq_u32 s34, 14')
            a('s_cbranch_scc1 k3_done')
        a('s_waitcnt lgkmcnt(%d)' % (2 - seg))
        B = 72 + 4 * seg
        for p in range(2):
            ac = ACC + 4 * (3 * p + seg)
            for r in range(4):
                a('v_fma_f32 v%d, -v%d, v%d, v%d' % (ac + r, 36 + 2 * p, 132 + 4 * seg + r, ac + r))
        for p in range(2):
            ac = ACC + 4 * (3 * p + seg)
            for r in range(4):
                a('v_fma_f32 v%d, v%d, v%d, v%d' % (ac + r, 37 + 2 * p, ac + r, B + r))
        for p in range(2):
            ac = ACC + 4 * (3 * p + seg)
            for r in range(4):
                a('v_mul_f32 v%d, v%d, |v%d|' % (ac + r, ac + r, ac + r))
        for p in range(2):
            ac = ACC + 4 * (3 * p + seg)
            T = 144 + 2 * (2 * seg + p)
            a('v_cvt_pk_bf16_f32 v%d, v%d, v%d' % (T, ac, ac + 1))
            a('v_cvt_pk_bf16_f32 v%d, v%d, v%d' % (T + 1, ac + 2, ac + 3))
        for p in range(2):
            T = 144 + 2 * (2 * seg + p)
            a('v_pk_max_i16 v%d, v%d, 0' % (T, T))
            a('v_pk_max_i16 v%d, v%d, 0' % (T + 1, T + 1))
        T = 144 + 4 * seg
        a('v_permlane16_swap_b32 v%d, v%d' % (T, T + 2))
        a('v_permlane16_swap_b32 v%d, v%d' % (T + 1, T + 3))
        gstore(a, 'buffer_store_dwordx4 %s, v22, %s, s25 offen offset:%d' % (vr(T, 4), sr(S_WS), seg * 1024))
    a.label('k3_done')


def cons_k4(a):
    WA, AC, WB, AF, BR = 8, 24, 40, 88, 164
    NAF = 18
    w64_addr(a, False, 16, 0)
    for s in range(4):
        a('v_mov_b32 v%d, v%d' % (WA + s, 16 + s))
    for b in (2, 1):
        for s in range(4):
            a('v_add_u32 v%d, 0x%x, v%d' % (WA + 4 * b + s, b * BANK, WA + s))

    def wreads(i):
        wb, wo = divmod(8192 * W4P[i], BANK)
        for s in range(4):
            for e in range(2):
                a('ds_read_b64_tr_b16 %s, v%d offset:%d' % (vr(WB + 16 * (i % 3) + 4 * s + 2 * e, 2), WA + 4 * wb + s, wo + e * 512))
    wreads(0)
    wreads(1)
    set_flag(a, F2, 21, 22)
    stamp(a, 13)
    a('s_lshl_b32 s27, s25, 6')
    a('s_add_u32 s27, s27, s22')
    a('v_lshlrev_b32 v21, 3, v2')
    for nt in range(2):
        a('buffer_load_dwordx2 %s, v21, %s, s27 offen offset:%d' % (vr(BR + 2 * nt, 2), sr(S_B2), nt * 32))
    a('s_lshl_b32 s26, s24, 14')
    a('s_add_u32 s26, s26, s27')
    a('v_and_b32 v20, 1, v2')
    a('v_lshlrev_b32 v20, 5, v20')
    a('v_lshrrev_b32 v22, 1, v2')
    a('v_lshl_add_u32 v20, v22, 4, v20')
    a('v_lshl_add_u32 v20, v3, 10, v20')
    a('s_and_b32 s30, s2, 7')
    a('s_lshl_b32 s30, s30, 8')
    a('s_and_b32 s31, s24, 15')
    a('s_lshr_b32 s31, s31, 1')
    a('s_lshl_b32 s31, s31, 5')
    a('s_add_u32 s30, s30, s31')
    a('s_add_u32 s30, s30, 0x%x' % (WS_FLAG + 4096))
    a('v_lshlrev_b32 v22, 2, v1')
    a('s_lshl_b32 s29, s24, 16')
    a('s_lshl_b32 s31, s25, 10')
    a('s_add_u32 s29, s29, s31')
    a('s_lshl_b32 s32, s20, 11')
    assert W4P[3] == W4P[2] + 1 or True
    a('s_lshr_b32 s31, s20, 2')
    a('s_cmp_eq_u32 s31, 0')
    a('s_mov_b32 s31, 0x%x' % (8192 * W4P[3] - 8192))
    a('s_cselect_b32 s31, 0x%x, s31' % (8192 * W4P[2]))
    a('s_add_u32 s32, s32, s31')
    a('v_add_u32 v7, s32, v6')
    a('s_waitcnt lgkmcnt(0)')
    bar(a, 'r0')
    poll_flags(a, 30, 8, 22, 23)
    stamp(a, 14)
    q = {}

    def aload(i):
        a('s_add_u32 s31, s29, %d' % ((i // 2) * 4096))
        q[i] = a('buffer_load_dwordx4 %s, v6, %s, s31 offen offset:%d %s' % (vr(AF + 4 * (i % NAF), 4), sr(S_WS), (i % 2) * 2048, os.environ.get('K4POL', 'sc1')))
    K4D = env('K4D', 5)
    for i in range(K4D):
        aload(i)
    for i in range(NP4):
        b = i % 3
        if i == R1_AT:
            a('s_waitcnt lgkmcnt(0)')
            bar(a, 'r1')
        a.wait_vm(q[i], ' lgkmcnt(%d)' % (8 if i + 1 < NP4 else 0))
        if i + K4D < NP4:
            aload(i + K4D)
        if i + 2 < NP4:
            wreads(i + 2)
        if i == NP4 - 1:
            a('s_cmp_eq_u32 s25, 1')
            a('s_cbranch_scc1 k4_skip')
        for s in (2, 3, 0, 1):
            a('v_mfma_f32_16x16x32_bf16 %s, %s, %s, %s' % (vr(AC + 4 * s, 4), vr(WB + 16 * b + 4 * s, 4), vr(AF + 4 * (i % NAF), 4), '0' if i == 0 else vr(AC + 4 * s, 4)))
    a.label('k4_skip')
    a('s_nop 7')
    for s in range(2):
        a('ds_write_b128 v7, %s offset:%d' % (vr(AC + 8 + 4 * s, 4), s * 1024))
    a('v_xor_b32 v7, 0x800, v7')
    HB = 96
    for i in range(4):
        a('v_lshlrev_b32 v%d, 16, v%d' % (HB + 2 * i, HKEEP + i))
        a('v_and_b32 v%d, 0xffff0000, v%d' % (HB + 2 * i + 1, HKEEP + i))
        a('v_lshlrev_b32 v%d, 16, v%d' % (104 + i, BR + i))
        a('v_and_b32 v%d, 0xffff0000, v%d' % (BR + i, BR + i))
    for i in range(4):
        a('v_add_f32 v%d, v%d, v%d' % (HB + 2 * i, HB + 2 * i, 104 + i))
        a('v_add_f32 v%d, v%d, v%d' % (HB + 2 * i + 1, HB + 2 * i + 1, BR + i))
    a('s_waitcnt lgkmcnt(0)')
    bar(a, 'x4')
    for s in range(2):
        a('ds_read_b128 %s, v7 offset:%d' % (vr(112 + 4 * s, 4), s * 1024))
    for s in range(2):
        a('s_waitcnt lgkmcnt(%d)' % (1 - s))
        for r in range(4):
            a('v_add_f32 v%d, v%d, v%d' % (AC + 4 * s + r, AC + 4 * s + r, 112 + 4 * s + r))
    O = 56
    for i in range(8):
        a('v_add_f32 v%d, v%d, v%d' % (HB + i, HB + i, AC + i))
    for i in range(4):
        a('v_cvt_pk_bf16_f32 v%d, v%d, v%d' % (O + i, HB + 2 * i, HB + 2 * i + 1))
    a('v_permlane16_swap_b32 v%d, v%d' % (O, O + 2))
    a('v_permlane16_swap_b32 v%d, v%d' % (O + 1, O + 3))
    a('buffer_store_dwordx4 %s, v20, %s, s26 offen' % (vr(O, 4), sr(S_OUT)))


def ring_loop(a, nk, ns, lag, per, issue, groups, bn, post=None, pre=None):
    last = {}
    issued = 0
    for j, (lo, hi) in enumerate(groups):
        while issued < nk:
            i = issued
            ok = (i < ns or (j >= 1 and groups[j - 1][0] - 2 >= i - ns)) and (i - lo + 1) * per <= 62 and (i < hi or i < lo + (lag if j < env('LAGJ', 1) or bn != 'g' else env('LAG1B', 5)))
            if not ok:
                break
            last[i] = issue(i)
            issued += 1
        assert issued >= hi, (j, issued, hi)
        if pre:
            pre(j)
        a.wait_vm(last[hi - 1])
        if bn == 'g':
            stamp(a, 3 + j, 1)
        if bn == 'q':
            stamp(a, 3 + j, 3)
        bar(a, bn + str(j))
        if post and j in post:
            post[j]()


NSTG = env('NSTG', 0)
STG_W = _il('STG_W', '0,12,6,8,8')
STG_SL = env('STG_SL', 3)
STG0 = 28


STG_P0 = env('STG_P0', 8)
STGP = list(range(STG_P0, STG_P0 + NSTG))


class Stager:
    def __init__(self, a, on):
        self.a, self.on, self.n, self.q = a, on and NSTG, 0, {}

    def setup(self):
        a = self.a
        if not self.on:
            return
        a('s_lshl_b32 s30, s35, 10')
        a('v_add_u32 v16, s30, v6')
        a('v_add_u32 v17, 0x%x, v16' % BANK)
        a('v_add_u32 v18, 0x%x, v16' % (2 * BANK))

    def load(self, win):
        a = self.a
        for c in range(STG_W[win] if self.on else 0):
            if self.n >= 4 * NSTG:
                return
            i, j = STGP[self.n // 4], 2 * (self.n % 4)
            if c and c % 2 == 0 and STG_SL:
                a('s_sleep %d' % STG_SL)
            a('s_mov_b32 s30, 0x%x' % ((i * 64 + 8 * j) * 1024))
            self.q[self.n] = a('buffer_load_dwordx4 %s, v12, %s, s30 offen' % (vr(STG0 + 4 * self.n, 4), sr(S_W2)))
            self.n += 1

    def write(self, after):
        a = self.a
        for k, i in enumerate(STGP if self.on else []):
            if W4T[i] == after:
                assert self.n >= 4 * NSTG
                a.wait_vm(max(self.q[4 * k + 3], a.vm_issued - 63))
                for e in range(4):
                    b, o = divmod(8192 * W4P[i] + 2 * e * 1024, BANK)
                    a('ds_write_b128 v%d, %s offset:%d' % (16 + b, vr(STG0 + 4 * (4 * k + e), 4), o))


def k4w_addr(a):
    a('s_lshl_b32 s31, s35, 13')
    a('s_add_u32 s31, s31, s22')
    a('v_lshrrev_b32 v8, 3, v1')
    a('v_bfe_u32 v9, v1, 1, 2')
    a('v_and_b32 v10, 1, v1')
    a('v_lshlrev_b32 v10, 4, v10')
    a('v_lshl_add_u32 v8, v8, 10, v10')
    a('v_add_u32 v8, s31, v8')
    a('v_bfe_u32 v10, v1, 4, 1')
    a('v_xor_b32 v10, v9, v10')
    a('s_lshl_b32 s30, s35, 1')
    a('v_xor_b32 v10, s30, v10')
    a('v_lshl_add_u32 v12, v10, 5, v8')


def prod_w(a):
    a.label('prod_w')
    a.isprod = 1
    a.hist = []
    a.vm_issued = 0
    a.bars = []
    a('s_sub_u32 s35, s20, 8')
    a('s_lshl_b32 s32, s35, 10')

    def w96_addr(k1, wstride, reg):
        a('s_mul_i32 s31, s35, %d' % (16 * wstride))
        a('s_add_u32 s31, s31, s22')
        a('v_lshrrev_b32 v%d, 2, v1' % reg)
        a('v_mul_u32_u24 v%d, 0x%x, v%d' % (reg, wstride, reg))
        a('v_bfe_u32 v15, v1, %d, 1' % (5 if k1 else 4))
        a('v_lshlrev_b32 v15, 1, v15')
        a('v_xor_b32 v15, v15, v5')
        a('v_lshl_add_u32 v%d, v15, 4, v%d' % (reg, reg))
        a('v_add_u32 v%d, s31, v%d' % (reg, reg))
    w96_addr(True, 3072, 7)

    def wissue1(i):
        a('s_add_u32 s29, s39, %d' % i)
        a('s_and_b32 s29, s29, 15')
        a('s_mul_i32 s29, s29, %d' % (32 * 3072))
        for seg in range(3):
            a('s_add_u32 m0, s32, 0x%x' % ((i % NS1) * SLOT + seg * 2048))
            a('s_add_u32 s30, s29, 0x%x' % (seg * 1024))
            q = a('buffer_load_dwordx4 v7, %s, s30 offen %slds' % (sr(S_WQ), NT('wq')))
        if i == 2:
            a('s_mov_b32 m0, 0x%x' % (XCH1 + 2048))
            a('s_lshl_b32 s30, s34, 10')
            a('buffer_load_dwordx4 v6, %s, s30 offen lds' % sr(S_WP))
        return q
    def pre(j):
        if j == 1:
            fin_rest(a)
        if j >= 1:
            sp_batches(a, 'W', 'g%d' % (j - 1))
    ring_loop(a, 16, NS1, LAG1, 3, wissue1, G96, 'g', pre=pre)
    sp_batches(a, 'W', 'g8')
    map64(a)
    k4w_addr(a)
    a('v_bfe_u32 v10, v1, 4, 2')
    a('v_xor_b32 v10, v9, v10')
    a('v_lshl_add_u32 v11, v10, 5, v8')
    stg = Stager(a, 1)
    stg.setup()
    a('v_lshl_add_u32 v13, v9, 5, v8')
    a('s_lshl_b32 s36, s21, 14')

    def w2x():
        for i in range(8):
            for j in range(0, 8, 2):
                a('s_add_u32 m0, s32, 0x%x' % (W2B + 8192 * i + j * 1024))
                a('s_mov_b32 s30, 0x%x' % ((i * 64 + 8 * j) * 1024))
                a('buffer_load_dwordx4 v11, %s, s30 offen %slds' % (sr(S_WO), NT('wo')))
        for j in range(0, 8, 2):
            a('s_add_u32 m0, s32, 0x%x' % (XT + j * 1024))
            a('s_add_u32 s30, s36, 0x%x' % (j * 8192))
            q = a('buffer_load_dwordx4 v13, %s, s30 offen lds' % sr(S_X))
        return q
    W2AT = env('W2AT', 1)
    if W2AT == 0:
        q_w2 = w2x()
    map3(a)
    w96_addr(False, 2752, 7)
    bar(a, 'e1')
    if W2AT == 1:
        if env('W2SL', 0):
            a('s_sleep %d' % env('W2SL', 0))
        q_w2 = w2x()
    sp_batches(a, 'W', 'e1', only=0)
    stg.load(0)
    for _b in range(1, 4):
        if SASSIGN.get(('W', 'e1', _b)):
            a('s_waitcnt lgkmcnt(0)')
            sp_batches(a, 'W', 'e1', only=_b)
    bar(a, 'e2')
    if W2AT == 2:
        q_w2 = w2x()
    sp_batches(a, 'W', 'e2', only=0)
    stg.load(1)
    for _b in range(1, 4):
        if SASSIGN.get(('W', 'e2', _b)):
            a('s_waitcnt lgkmcnt(0)')
            sp_batches(a, 'W', 'e2', only=_b)
    q3 = {}

    def w3(i):
        for seg in range(3):
            a('s_add_u32 m0, s32, 0x%x' % (W3A[i] + seg * 2048))
            a('s_mov_b32 s30, 0x%x' % (i * 32 * 2752 + seg * 64))
            q3[i] = a('buffer_load_dwordx4 v7, %s, s30 offen %slds' % (sr(S_W1), NT('w1')))
    bar(a, 'o1')
    if W2AT == 3:
        q_w2 = w2x()
    W3N = env('W3N', 5)
    for i in range(W3N):
        w3(i)
    sp_batches(a, 'W', 'o1', only=0)
    stg.load(2)
    for _b in range(1, 4):
        if SASSIGN.get(('W', 'o1', _b)):
            a('s_waitcnt lgkmcnt(0)')
            sp_batches(a, 'W', 'o1', only=_b)
    a.wait_vm(q_w2)
    bar(a, 'd1')
    for i in range(W3N, 10):
        w3(i)
    sp_batches(a, 'W', 'd1', only=0)
    stg.load(3)
    for _b in range(1, 4):
        if SASSIGN.get(('W', 'd1', _b)):
            a('s_waitcnt lgkmcnt(0)')
            sp_batches(a, 'W', 'd1', only=_b)
    bar(a, 'x2')
    w3(10)
    w3(11)
    sp_batches(a, 'W', 'x2', only=0)
    stg.load(4)
    for _b in range(1, 4):
        if SASSIGN.get(('W', 'x2', _b)):
            a('s_waitcnt lgkmcnt(0)')
            sp_batches(a, 'W', 'x2', only=_b)
    q4 = {}
    nxt = [0]

    def w4(after):
        while nxt[0] < NP4 and W4T[nxt[0]] == after:
            i = nxt[0]
            n = 8 if i < NP4 - 1 else 4
            for j in range(0, n if i not in STGP else 0, 2):
                a('s_add_u32 m0, s32, 0x%x' % (8192 * W4P[i] + j * 1024))
                a('s_mov_b32 s30, 0x%x' % ((i * 64 + 8 * j) * 1024))
                q4[i] = a('buffer_load_dwordx4 v12, %s, s30 offen lds' % sr(S_W2))
            nxt[0] += 1
    for g, (lo, hi) in enumerate(G96):
        a.wait_vm(q3[hi - 1])
        stamp(a, 3 + g, 3)
        bar(a, 'q%d' % g)
        if g == 0:
            for k in (12, 13, 14):
                w3(k)
        if g == 2:
            w3(15)
        stg.write('q%d' % g)
        w4('q%d' % g)
        sp_batches(a, 'W', 'q%d' % g)
    assert 0 not in STGP and 1 not in STGP
    a.wait_vm(q4[1])
    bar(a, 'e3')
    stg.write('e3')
    if env('W4SL', 0):
        a('s_sleep %d' % env('W4SL', 0))
    w4('e3')
    a.wait_vm(max(q4[i] for i in range(NPUB0) if i in q4), ' lgkmcnt(0)' if NSTG else '')
    stamp(a, 12, 3)
    bar(a, 'r0')
    w4('r0')
    assert nxt[0] == NP4
    a('s_waitcnt vmcnt(0) lgkmcnt(0)')
    stamp(a, 13, 3)
    wbl(a, 1, 8)
    bar(a, 'r1')
    wbl(a, 2, 8)
    stamp_store(a)
    a('s_endpgm')


def prod_a(a):
    a.label('prod_a')
    a.hist = []
    a.vm_issued = 0
    a.bars = []
    nt = 4
    a('s_sub_u32 s35, s20, 10')
    a('s_mul_i32 s32, s35, %d' % (nt * 1024))
    a('s_mul_i32 s31, s35, %d' % (nt * 16))
    a('s_add_u32 s31, s31, s21')
    a('s_lshl_b32 s31, s31, 10')
    a('v_lshlrev_b32 v15, 1, v2')
    a('v_mov_b32 v14, 0x78')
    a('v_lshrrev_b32 v15, v15, v14')
    a('v_and_b32 v15, 3, v15')
    a('v_xor_b32 v15, v15, v5')
    a('v_lshrrev_b32 v7, 2, v1')
    a('v_lshlrev_b32 v7, 10, v7')
    a('v_lshl_add_u32 v7, v15, 4, v7')
    a('v_add_u32 v7, s31, v7')

    def aissue1(i):
        a('s_add_u32 s29, s39, %d' % i)
        a('s_and_b32 s29, s29, 15')
        a('s_lshl_b32 s29, s29, 6')
        for rt in range(nt):
            a('s_add_u32 m0, s32, 0x%x' % ((i % NS1) * SLOT + 6144 + rt * 1024))
            a('s_add_u32 s30, s29, 0x%x' % (rt * 16384))
            q = a('buffer_load_dwordx4 v7, %s, s30 offen %slds' % (sr(S_X), NT('x')))
        return q
    a('v_lshlrev_b32 v23, 2, v1')
    RDY_G = env('RDY_G', 9)

    def pre(j):
        if j == 1:
            fin_rest(a)
        if j >= 1:
            sp_batches(a, 'A', 'g%d' % (j - 1))
        if j == 0:
            a('v_mov_b32 v24, 0')
            a('v_mov_b32 v25, 0x%x' % CTRL)
            a('ds_write_b32 v25, v24')
            a('s_waitcnt lgkmcnt(0)')
    ring_loop(a, 16, NS1, LAG1, nt, aissue1, G96, 'g', pre=pre)
    sp_batches(a, 'A', 'g8')
    a('v_lshrrev_b32 v26, 1, v1')
    a('v_lshlrev_b32 v26, 7, v26')

    def ready_check(tag, tries):
        L = lambda n: 'pa_%s%s' % (n, tag)
        a('s_cmp_lg_u32 s20, 10')
        a('s_cbranch_scc1 %s' % L('nr'))
        a('s_cmp_lg_u32 s3, 0')
        a('s_cbranch_scc1 %s' % L('nr'))
        a('s_mov_b32 s28, %d' % tries)
        a('s_mov_b32 s29, 1')
        a('s_branch %s' % L('r1'))
        a.label(L('rp'))
        a('s_sleep 4')
        a.label(L('r1'))
        a('s_sub_u32 s28, s28, 1')
        a('s_cbranch_scc1 %s' % (L('nr') if tries < 16 else L('rd')))
        a('buffer_load_dword v22, v23, %s, 0 offen sc1' % sr(S_DBG))
        a('s_waitcnt vmcnt(0)')
        a('v_and_b32 v24, 0xff, v22')
        a('v_cmp_ne_u32 vcc, 32, v24')
        a('s_and_b32 vcc_lo, vcc_lo, 0x01010101')
        a('s_and_b32 vcc_hi, vcc_hi, 0x01010101')
        a('s_cmp_lg_u64 vcc, 0')
        a('s_cbranch_scc1 %s' % L('rp'))
        a('s_getreg_b32 s30, hwreg(HW_REG_XCC_ID, 0, 4)')
        a('s_mul_i32 s31, s30, s30')
        a('s_lshl_b32 s31, s31, 23')
        a('s_lshl_b32 s30, s30, 13')
        a('s_add_u32 s30, s30, s31')
        a('s_add_u32 s30, s30, 32')
        a('v_cmp_ne_u32 vcc, s30, v22')
        a('s_and_b32 s31, s2, 7')
        a('s_lshl_b32 s31, s31, 3')
        a('s_lshr_b64 s[26:27], vcc, s31')
        a('s_and_b32 s26, s26, 1')
        a('s_cmp_eq_u32 s26, 0')
        a('s_cselect_b32 s29, %d, 1' % (1 if FORCE_SLOW else 3))
        a.label(L('rd'))
        stamp(a, 12, 1)
        a('s_mov_b32 s3, 1')
        a('v_mov_b32 v24, s29')
        a('v_mov_b32 v25, 0x%x' % CTRL)
        a('ds_write_b32 v25, v24')
        a('s_and_b32 s30, s2, 7')
        a('s_lshl_b32 s30, s30, 8')
        a('s_add_u32 s30, s30, 0x%x' % WS_FLAG)
        a('v_and_b32 v24, 1, v1')
        a('v_lshlrev_b32 v24, 7, v24')
        a('v_bfe_u32 v25, v1, 1, 2')
        a('v_min_u32 v25, 2, v25')
        a('v_lshl_add_u32 v24, v25, 11, v24')
        a('buffer_load_dword v27, v24, %s, s30 offen sc1' % sr(S_WS))
        a.label(L('nr'))
        a.vm_issued -= 2

    def paced(n):
        if not n:
            return
        lb, le = uid('pt'), uid('pe')
        a('s_cmp_lg_u32 s20, 11')
        a('s_cbranch_scc1 %s' % lb)
        for w in range(2):
            if w:
                a('s_branch %s' % le)
                a.label(lb)
                a('s_sleep %d' % (T_SL // 2))
            m = (n + 1 - w) // 2
            for i in range(m):
                if touch_item(a, 26, 27):
                    a.vm_issued -= 1
                    if i + 1 < m:
                        a('s_sleep %d' % T_SL)
        a.label(le)
    paced(T_PA[0])
    stg = Stager(a, 0)
    stg.setup()
    bar(a, 'e1')
    sp_batches(a, 'A', 'e1', only=0)
    if T_PA[1]:
        a('s_sleep %d' % env('T_D1', 10))
    paced(T_PA[1])
    if SASSIGN.get(('A', 'e1', 1)):
        a('s_waitcnt lgkmcnt(0)')
        sp_batches(a, 'A', 'e1', only=1)
    stg.load(0)
    a('s_sleep %d' % env('RDY_SL', 8))
    ready_check('a', 1)
    bar(a, 'e2')
    ready_check('b', 4 * TMO)
    paced(T_PA[2])
    sp_batches(a, 'A', 'e2', only=0)
    stg.load(1)
    for _b in range(1, 4):
        if SASSIGN.get(('A', 'e2', _b)):
            a('s_waitcnt lgkmcnt(0)')
            sp_batches(a, 'A', 'e2', only=_b)
    bar(a, 'o1')
    paced(T_PA[3])
    sp_batches(a, 'A', 'o1', only=0)
    stg.load(2)
    for _b in range(1, 4):
        if SASSIGN.get(('A', 'o1', _b)):
            a('s_waitcnt lgkmcnt(0)')
            sp_batches(a, 'A', 'o1', only=_b)
    bar(a, 'd1')
    paced(T_PA[4])
    sp_batches(a, 'A', 'd1', only=0)
    stg.load(3)
    for _b in range(1, 4):
        if SASSIGN.get(('A', 'd1', _b)):
            a('s_waitcnt lgkmcnt(0)')
            sp_batches(a, 'A', 'd1', only=_b)
    map3(a)
    a('s_mul_i32 s31, s35, %d' % (nt * 16))
    a('s_add_u32 s31, s31, s21')
    a('s_lshl_b32 s31, s31, 12')
    a('v_add_u32 v7, s31, v6')
    a('s_and_b32 s36, s2, 7')
    a('s_lshl_b32 s36, s36, 8')
    a('s_lshr_b32 s31, s2, 3')
    a('s_and_b32 s31, s31, 1')
    a('s_lshl_b32 s31, s31, 1')
    a('s_add_u32 s31, s31, s35')
    a('s_lshl_b32 s31, s31, 6')
    a('s_add_u32 s36, s36, s31')
    a('s_add_u32 s36, s36, 0x%x' % (WS_FLAG + 2048))
    bar(a, 'x2')
    sp_batches(a, 'A', 'x2', only=0)
    poll_flags(a, 36, 16, 23, 22)
    stamp(a, 2, 3)

    def aissue3(i):
        for rt in range(nt):
            a('s_add_u32 m0, s32, 0x%x' % (a3addr(i) + rt * 1024))
            a('s_mov_b32 s30, 0x%x' % (OFF_H + rt * 65536 + i * 1024))
            q = a('buffer_load_dwordx4 v7, %s, s30 offen sc1 lds' % sr(S_WS))
        return q
    ring_loop(a, 16, 8, env('LAG3', 8), nt, aissue3, G96, 'q', pre=lambda j: (stg.write('q%d' % (j - 1)), sp_batches(a, 'A', 'q%d' % (j - 1))))
    sp_batches(a, 'A', 'q8')
    paced(T_PA[5])
    wbl(a, 4, 10)
    stamp_store(a)
    a('s_endpgm')


def gen(a):
    a.raw('.globl %s' % NAME)
    a.raw('.p2align 8')
    a.raw('.type %s,@function' % NAME)
    a.label(NAME)
    a.bars = []
    a('s_cmp_ge_u32 s2, 256')
    a('s_cbranch_scc1 mega_exit')
    stamp_real(a, 0)
    stamp(a, 1)
    for s, off in ((S_X, 0), (S_WQ, 8), (S_WP, 16), (S_WS, 88), (S_WO, 24), (S_W1, 40), (S_W2, 56), (S_B1, 48), (S_B2, 64), (S_OUT, 72), (S_DBG, 80)):
        srd(a, s, off)
    lane_decomp(a)
    a('s_add_u32 s21, s20, 8')
    a('s_sub_u32 s20, s20, 4')
    a('s_cselect_b32 s20, s21, s20')
    a('s_mov_b32 s%d, 0' % FAST)
    a('s_and_b32 s30, s2, 7')
    a('s_lshr_b32 s31, s2, 3')
    a('s_lshr_b32 s21, s30, 1')
    a('s_lshl_b32 s21, s21, 2')
    a('s_and_b32 s22, s31, 3')
    a('s_add_u32 s33, s21, s22')
    a('s_and_b32 s21, s30, 1')
    a('s_lshl_b32 s21, s21, 3')
    a('s_lshr_b32 s22, s31, 2')
    a('s_add_u32 s34, s21, s22')
    a('s_lshl_b32 s21, s33, 7')
    a('s_lshl_b32 s22, s34, 6')
    a('s_lshl_b32 s39, s33, 1')
    a('s_add_u32 s39, s39, s34')
    a('s_lshl_b32 s39, s39, 1')
    a('s_waitcnt lgkmcnt(0)')
    srd_fin(a, S_X, 2048 * 1024)
    srd_fin(a, S_WQ, 512 * 3072)
    srd_fin(a, S_WP, 16384)
    srd_fin(a, S_WS, WS_SIZE)
    a('s_cmp_ge_u32 s20, 10')
    a('s_cbranch_scc1 prod_a')
    a('s_cmp_ge_u32 s20, 8')
    a('s_cbranch_scc1 prod_w')
    cons_k1(a)
    cons_ko(a)
    cons_k2(a)
    cons_k3(a)
    cons_k4(a)
    stamp_store(a)
    a.label('mega_exit')
    a('s_endpgm')
    bc = a.bars
    prod_w(a)
    assert a.bars == bc[:len(a.bars)], (a.bars, bc)
    prod_a(a)
    assert a.bars == bc[:len(a.bars)], (a.bars, bc)


def build():
    if NAME == 'mega_kernel':
        head = '; @launch kernel=%s grid=(256,1,1) block=(768,1,1) lds=163840\n' % NAME
    else:
        head = '; @launch grid=(256,1,1) block=(768,1,1) lds=163840\n'
    head += '.amdgcn_target "amdgcn-amd-amdhsa--gfx950"\n.text\n'
    a = Asm()
    gen(a)
    d = '''.section .rodata,"a"
.p2align 6
.amdhsa_kernel %s
  .amdhsa_next_free_vgpr 168
  .amdhsa_next_free_sgpr 102
  .amdhsa_accum_offset 168
  .amdhsa_group_segment_fixed_size 0
  .amdhsa_kernarg_size 96
  .amdhsa_user_sgpr_count 2
  .amdhsa_user_sgpr_kernarg_segment_ptr 1
  .amdhsa_system_sgpr_workgroup_id_x 1
.end_amdhsa_kernel
''' % NAME
    return head + a.text() + d


if __name__ == '__main__':
    open(sys.argv[1], 'w').write(build())
    if os.environ.get('V'):
        print('W4P', W4P, 'W4T', W4T, 'NPUB0', NPUB0, 'R1_AT', R1_AT, 'touch used', _tnext[0], 'of', len(TITEMS), 'sp', _pos, 'of', len(SLINES))
```

```python
import sys, os
sys.path.insert(0, os.path.dirname(__file__))
from dsl import Asm
from gen2 import MB, env, vr, srd, srd_fin, bf16r, butterfly, lane_decomp, mk_groups, softmax_sets

NAME = os.environ.get('KNAME', 'mega_kernel')
STAMP = os.environ.get('STAMP')
OFF_H, OFF_S = 44032, 60416
PSTR = 1152
WS_PART = 8 * MB
WS_FLAG = 9 * MB + 512 * 1024
WS_STAMP = 15 * MB
WS_SIZE = 16 * MB
FORCE_SLOW = env('FORCE_SLOW', 0)
TMO = 4096

S_X, S_WQ, S_WP, S_WS = 4, 8, 12, 16
S_WO, S_W1, S_W2, S_B1, S_B2, S_OUT, S_DBG = 40, 44, 48, 52, 56, 60, 64
FAST = 3
F0, F1, F2 = 0, 1, 39
BANK = 57344
SLOT = 14336
NS1 = 11
XCH1 = NS1 * SLOT
XCH3 = 159744
CTRL = 161792
KOX = 32768
W2B = 73728
XT = W2B + 65536
LAG1 = env('LAG1', 5)
RDY_KS = env('RDY_KS', 4)
POIS_KS = env('POIS_KS', 0)
RDY_AT = env('RDY_AT', 1)
WAIT_KS = env('WAIT_KS', 4)
LT1 = env('LT1', 1)
BPOS = env('BPOS', 1)
ILV = env('ILV', 1)
PST = env('PST', 0)

TCNT = {'wo': 4, 'x': 2, 'w1': 11, 'w2': 11, 'Fh': 3, 'Fr': 4}
TITEMS = []
for _e in os.environ.get('TLIST', 'wo,x,Fh,w1').split(','):
    if _e:
        _m, _, _hi = _e.partition(':')
        TITEMS += [(_m, i) for i in range(int(_hi or TCNT[_m]))]
T_KS = [int(v) for v in os.environ.get('T_KS', '6,6,7,7,8,8,9,9,9,10,10,10,11,11,11,12,12,12,13,13').split(',') if v]
T_PA = [int(v) for v in os.environ.get('T_PA', '0,0,0,0,0,0').split(',')]
T_SL = env('T_SL', 7)
_tnext = [0]


def NT(m):
    return 'nt ' if m in os.environ.get('NTL', '').split(',') else ''


def sr(s):
    return 's[%d:%d]' % (s, s + 3)


def touch_item(a, vaddr, vdst, s0=30, s1=31):
    if _tnext[0] >= len(TITEMS):
        return False
    m, i = TITEMS[_tnext[0]]
    _tnext[0] += 1
    share_base(a, m, s0, s1)
    a('s_add_u32 s%d, s%d, %d' % (s0, s0, min(i * 4096, SREG[m][1] - 4096)))
    a('buffer_load_dword v%d, v%d, %s, s%d offen %s' % (vdst, vaddr, sr(SREG[m][0]), s0, 'sc1' if m[0] == 'F' else ''))
    return True


SCNT = {'wo': 128, 'x': 64, 'w1': 344, 'w2': 344, 'Fh': 72, 'Fr': 108}
SREG = {'wo': (S_WO, 16384), 'x': (S_X, 8192), 'w1': (S_W1, 44032), 'w2': (S_W2, 44032), 'Fh': (S_WS, 9216), 'Fr': (S_WS, 13824)}
SLINES = []
for _e in os.environ.get('SLIST', 'w2,Fr').split(','):
    if _e:
        _m, _, _lo = _e.partition(':')
        SLINES += [(_m, i) for i in range(int(_lo or 0), SCNT[_m], 2)]
SP_B = env('SP_B', 7)


def _il(n, d):
    return [int(v) for v in os.environ.get(n, d).split(',')]


SP_S = env('SP_S', 0)
SP_G = _il('SP_G', '1,0,1,0,1,0,1,0,1')
SP_H = _il('SP_H', '1,0,1,0,1,0,1,0,1')
SP_W = _il('SP_W', '2,2,1,2,1')
SP_A = _il('SP_A', '1,2,1,2,1')
SP_C = _il('SP_C', '0,0,0,0,0')
SP_Q = _il('SP_Q', '1,0,0,0,1,0,0,0,0')
SP_Q2 = _il('SP_Q2', '1,0,0,0,1,0,0,1,0')
_slots = [('C', 'st', b) for b in range(SP_S)]
for _g in range(9):
    _slots += [('W', 'g%d' % _g, b) for b in range(SP_G[_g])] + [('A', 'g%d' % _g, b) for b in range(SP_H[_g])]
for _w, _nm in enumerate(('e1', 'e2', 'o1', 'd1', 'x2')):
    for _b in range(8):
        for _k, _l in (('W', SP_W), ('A', SP_A), ('C', SP_C)):
            if _b < _l[_w]:
                _slots.append((_k, _nm, _b))
for _g in range(9):
    _slots += [('W', 'q%d' % _g, b) for b in range(SP_Q2[_g])] + [('A', 'q%d' % _g, b) for b in range(SP_Q[_g])]
SASSIGN = {}
_pos = 0
for _sl in _slots:
    _it = []
    while len(_it) < SP_B and _pos < len(SLINES):
        if _sl[0] == 'C':
            _n = min(4, SCNT[SLINES[_pos][0]] // 2 - SLINES[_pos][1] // 2)
            _it.append((SLINES[_pos][0], min(SLINES[_pos][1], SCNT[SLINES[_pos][0]] - 8)))
            _pos += _n
        else:
            _it.append(SLINES[_pos])
            _pos += 1
    SASSIGN[_sl] = _it


def share_base(a, m, r, t):
    a('s_lshr_b32 s%d, s2, 3' % r)
    if m[0] in 'xF':
        a('s_and_b32 s%d, s2, 7' % t)
        a('s_lshl_b32 s%d, s%d, 5' % (t, t))
        a('s_add_u32 s%d, s%d, s%d' % (r, r, t))
    if m[0] == 'F':
        a('s_and_b32 s%d, s%d, 1' % (t, r))
        a('s_mul_i32 s%d, s%d, %d' % (t, t, SREG[m][1]))
        a('s_lshr_b32 s%d, s%d, 1' % (r, r))
        a('s_lshl_b32 s%d, s%d, 16' % (r, r))
        a('s_add_u32 s%d, s%d, s%d' % (r, r, t))
        a('s_add_u32 s%d, s%d, %d' % (r, r, OFF_H if m == 'Fh' else 16384))
    else:
        a('s_mul_i32 s%d, s%d, %d' % (r, r, SREG[m][1]))


def sp_batches(a, kind, win, only=None):
    b = 0
    r, t, w = (30, 31, 20) if kind == 'C' else (24, 27, 35)
    while (kind, win, b) in SASSIGN:
        if SASSIGN[(kind, win, b)] and only in (None, b):
            if b and only is None:
                a('s_waitcnt lgkmcnt(0)')
            cur = None
            for m, i in SASSIGN[(kind, win, b)]:
                if cur != m:
                    share_base(a, m, r, t)
                    a('s_lshl_b32 s%d, s%d, 7' % (t, w))
                    a('s_add_u32 s%d, s%d, s%d' % (r, r, t))
                    cur = m
                a('s_buffer_load_dwordx2 s[100:101], %s, s%d offset:0x%x' % (sr(SREG[m][0]), r, i * 128 + 60))
        b += 1


def stamp(a, i, ps=None):
    if ps is not None and ps != PST:
        return
    if STAMP:
        a('s_memtime s[%d:%d]' % (68 + 2 * i, 69 + 2 * i))


def stamp_real(a, i):
    if STAMP:
        a('s_memrealtime s[%d:%d]' % (68 + 2 * i, 69 + 2 * i))


NSTAMP = 17


def stamp_store(a):
    if not STAMP:
        return
    stamp(a, 15)
    stamp_real(a, 16)
    a('s_waitcnt lgkmcnt(0)')
    a('s_mul_i32 s38, s2, 12')
    a('s_add_u32 s38, s38, s20')
    a('s_lshl_b32 s38, s38, 7')
    a('s_add_u32 s38, s38, 0x%x' % WS_STAMP)
    a('v_mov_b32 v0, 0')
    for i in range(NSTAMP):
        a('v_mov_b32 v1, s%d' % (68 + 2 * i))
        a('buffer_store_dword v1, v0, %s, s38 offen offset:%d' % (sr(S_WS), i * 4))


PBAR = {'e1': 2, 'e2': 3, 'o1': 4, 'd1': 5, 'x2': 6, 'q0': 7, 'e3': 8, 'r0': 9, 'r1': 10, 'g8': 11, 'q8': 12}


def bar(a, name):
    if getattr(a, 'isprod', 0) and name in PBAR:
        stamp(a, PBAR[name], 2)
    a('s_barrier')
    a.bars.append(name)


_uid = [0]


def uid(p):
    _uid[0] += 1
    return 'L%s%d' % (p, _uid[0])


def gstore(a, text):
    ls, le = uid('s'), uid('e')
    a('s_cmp_eq_u32 s%d, 0' % FAST)
    a('s_cbranch_scc1 %s' % ls)
    a(text)
    a('s_branch %s' % le)
    a.label(ls)
    a(text + ' sc1')
    a.label(le)
    a.vm_issued -= 1


def set_flag(a, sf, t0, t1):
    a('v_mov_b32 v%d, 1' % t0)
    a('v_mov_b32 v%d, 0' % t1)
    a('s_waitcnt vmcnt(0)')
    a('s_mov_b64 exec, 1')
    gstore(a, 'buffer_store_byte v%d, v%d, %s, s%d offen' % (t0, t1, sr(S_WS), sf))
    a('s_mov_b64 exec, -1')


def poll_flags(a, sbase, nlanes, vaddr, vt):
    a('s_mov_b64 exec, 0x%x' % ((1 << nlanes) - 1))
    a('s_mov_b32 s28, %d' % (4 * TMO))
    lp, lo = uid('p'), uid('ok')
    a.label(lp)
    a('buffer_load_dword v%d, v%d, %s, s%d offen sc1' % (vt, vaddr, sr(S_WS), sbase))
    a('s_sub_u32 s28, s28, 1')
    a('s_cbranch_scc1 %s' % lo)
    a('s_waitcnt vmcnt(0)')
    a('v_cmp_ne_u32 vcc, 0x01010101, v%d' % vt)
    a('s_cbranch_vccnz %s' % lp)
    a.label(lo)
    a('s_waitcnt vmcnt(0)')
    a('s_mov_b64 exec, -1')


WBL = env('WBL', 0)


def wbl(a, bit, wave):
    if not (WBL & bit):
        return
    l = uid('wbl')
    a('s_lshr_b32 s30, s2, 3')
    a('s_cmp_lg_u32 s30, %d' % env('WBJ', 31))
    a('s_cbranch_scc1 %s' % l)
    a('s_cmp_lg_u32 s20, %d' % wave)
    a('s_cbranch_scc1 %s' % l)
    a.raw('    buffer_wbl2 sc1')
    if bit == 2:
        a.raw('    s_waitcnt vmcnt(0)')
    a.label(l)


def code_pf(a, bit, wave):
    if not (env('CPF', 0) & bit):
        return
    l, pc = uid('cpf'), uid('pc')
    a('s_cmp_lg_u32 s20, %d' % wave)
    a('s_cbranch_scc1 %s' % l)
    a('s_getpc_b64 s[28:29]')
    a.label(pc)
    a('s_sub_u32 s28, s28, %s-%s' % (pc, NAME))
    a('s_subb_u32 s29, s29, 0')
    a('s_lshr_b32 s30, s2, 3')
    a('s_and_b32 s30, s30, 7')
    a('s_lshl_b32 s30, s30, 12')
    a('v_and_b32 v156, 63, v0')
    a('v_lshlrev_b32 v156, 6, v156')
    a('v_add_u32 v156, s30, v156')
    a('v_min_u32 v156, mega_end-%s-4, v156' % NAME)
    a.raw('    global_load_dword v156, v156, s[28:29]')
    a.label(l)


CSP = env('CSP', 0)


def unit_fix(a, dst, u):
    if CSP:
        a('v_lshrrev_b32 v10, 1, v%d' % u)
        a('s_movk_i32 s30, 448')
        a('v_mad_u32_u24 v%d, v10, s30, v%d' % (dst, dst))


def fin_rest(a):
    srd_fin(a, S_WO, 512 * 1024)
    srd_fin(a, S_W1, 512 * 2752)
    srd_fin(a, S_W2, 1376 * 1024)
    srd_fin(a, S_B1, 2752)
    srd_fin(a, S_B2, 1024)
    srd_fin(a, S_OUT, 2048 * 1024)
    srd_fin(a, S_DBG, 256)


def map64(a):
    a('s_and_b32 s30, s2, 7')
    a('s_lshr_b32 s31, s2, 3')
    a('s_lshl_b32 s21, s30, 2')
    a('s_and_b32 s22, s31, 3')
    a('s_add_u32 s21, s21, s22')
    a('s_lshr_b32 s22, s31, 2')
    if env('CBX', 1):
        a('s_and_b32 s31, s22, 3')
        a('s_cmp_eq_u32 s31, 3')
        a('s_cselect_b32 s31, 4, 0')
        a('s_xor_b32 s22, s22, s31')
    a('s_lshl_b32 s21, s21, 2')
    a('s_lshl_b32 s22, s22, 7')


def map3(a):
    a('s_and_b32 s30, s2, 7')
    a('s_lshr_b32 s31, s2, 3')
    a('s_lshl_b32 s21, s30, 1')
    a('s_and_b32 s22, s31, 1')
    a('s_add_u32 s33, s21, s22')
    a('s_lshr_b32 s34, s31, 1')
    a('s_lshl_b32 s21, s33, 7')
    a('s_min_u32 s22, s34, 14')
    a('s_mul_i32 s22, s22, 192')


G96 = mk_groups(16, '1,1,2')
GST = [lo for lo, hi in G96]
W3A = {9: 151552, 10: 139264, 11: 145408, 15: 0}
for _m in range(5):
    W3A[_m] = 6144 * _m
for _m in range(4):
    W3A[5 + _m] = 49152 + 6144 * _m
for _m in range(3):
    W3A[12 + _m] = 30720 + 6144 * _m


def a3addr(i):
    return W2B + 8192 * (i % 8)


NP4 = 22
_last = {}
for _ks in range(16):
    for _lo, _n in ((W3A[_ks], 6144), (a3addr(_ks), 8192)):
        for _p in range(_lo // 8192, (_lo + _n - 1) // 8192 + 1):
            _last[_p] = max(_last.get(_p, -1), _ks)
W4Q0 = env('W4Q0', 3)


def _free_bar(ks):
    for g in range(len(GST)):
        if GST[g] - 2 >= ks:
            return max(g, W4Q0)
    return 9


_ordp = sorted(range(19), key=lambda p: (_free_bar(_last[p]), p))
W4P = _ordp + [19, _ordp[0], _ordp[1]]
W4T = [('q%d' % _free_bar(_last[p]) if _free_bar(_last[p]) < 9 else 'e3') for p in _ordp] + ['r0', 'r0', 'r0']
NPUB0 = sum(1 for t in W4T if t[0] == 'q')
R1_AT = NPUB0 - 2

GB = (48, 72, 132)
ACC = 96
RS, GR, CSA = 120, 124, 128
ONES = 16
VW, VC, VA, VP = 8, 11, 40, 43
HKEEP = 160


def gemm96_main(a, mode, waddr, aaddr, XCH, bn, en, extra, hook, st):
    k1 = mode == 'k1'
    gstart = {lo: g for g, (lo, hi) in enumerate(G96)}
    a('s_lshl_b32 s23, s20, 4')
    a('s_add_u32 s24, s21, s23')
    a('s_xor_b32 s37, s24, 16')
    a('s_and_b32 s36, s20, 1')
    extra(a)
    a('v_lshl_add_u32 v8, v2, %d, v4' % (3 if k1 else 2))
    a('v_lshlrev_b32 v8, 6, v8')
    a('v_lshl_add_u32 v8, v5, 3, v8')
    a('v_and_b32 v15, 1, v2')
    a('v_lshlrev_b32 v15, 5, v15')
    a('s_sub_u32 s26, s20, 6')
    a('s_cmp_lt_u32 s20, 6')
    a('s_cselect_b32 s26, s20, s26')
    a('s_lshr_b32 s27, s26, 1')
    a('s_lshl_b32 s27, s27, 11')
    a('s_lshl_b32 s28, s36, 5')
    a('v_xor_b32 v15, s28, v15')
    a('v_add_u32 v%d, v8, v15' % VW)
    a('v_add_u32 v%d, s27, v%d' % (VC, VW))
    a('s_lshl_b32 s35, s20, 10')
    if k1:
        a('v_lshlrev_b32 v15, 1, v4')
        a('v_mov_b32 v14, 0x78')
        a('v_lshrrev_b32 v15, v15, v14')
        a('v_and_b32 v15, 3, v15')
        a('v_xor_b32 v15, v15, v2')
        a('v_lshlrev_b32 v15, 4, v15')
        a('v_lshl_add_u32 v15, v3, 6, v15')
        a('v_add_u32 v%d, s35, v15' % VA)
    else:
        a('v_add_u32 v%d, s35, v6' % VA)
    a('v_xor_b32 v%d, 0x400, v%d' % (VP, VA))
    for b in range(1, 3):
        for r in (VW, VC, VA, VP):
            a('v_add_u32 v%d, 0x%x, v%d' % (r + b, b * BANK, r))
    for i in range(4):
        a('v_mov_b32 v%d, 0x3f803f80' % (ONES + i))
    eoff = 256 if k1 else 1024

    def rlist(ks):
        b = GB[ks % 3]
        ab, ao = divmod(aaddr(ks), BANK)
        wb, wo = divmod(waddr(ks), BANK)
        r = ['ds_read_b128 %s, v%d offset:%d' % (vr(b, 4), VA + ab, ao)]
        for seg in range(3):
            for e in range(2):
                r.append('ds_read_b64_tr_b16 %s, v%d offset:%d' % (vr(b + 8 + 4 * seg + 2 * e, 2), VW + wb, wo + seg * 2048 + e * eoff))
            if seg == 1:
                r.append('ds_read_b128 %s, v%d offset:%d' % (vr(b + 4, 4), VP + ab, ao))
        for e in range(2):
            r.append('ds_read_b64_tr_b16 %s, v%d offset:%d' % (vr(b + 20 + 2 * e, 2), VC + wb, wo + e * eoff))
        return r

    def reads(ks):
        for r in rlist(ks):
            a(r)

    if not k1:
        a('s_waitcnt lgkmcnt(0)')
    hook(a, -2, 0)
    bar(a, bn + '0')
    stamp(a, st[0])
    reads(0)
    hook(a, -2, 1)
    bar(a, bn + '1')
    reads(1)
    for ks in range(16):
        b = GB[ks % 3]

        def cop(r):
            return '0' if ks == 0 else vr(r, 4)
        mf = []
        for p in range(2):
            for seg in range(3):
                ac = ACC + 4 * (3 * p + seg)
                mf.append('v_mfma_f32_16x16x32_bf16 %s, %s, %s, %s' % (vr(ac, 4), vr(b + 8 + 4 * seg, 4), vr(b + 4 * p, 4), cop(ac)))
        mf.append('v_mfma_f32_16x16x32_bf16 %s, %s, %s, %s' % (vr(CSA, 4), vr(b + 20, 4), vr(ONES, 4), cop(CSA)))
        if k1:
            mf.append('v_mfma_f32_16x16x32_bf16 %s, %s, %s, %s' % (vr(RS, 4), vr(ONES, 4), vr(b, 4), cop(RS)))
            mf.append('v_mfma_f32_16x16x32_bf16 %s, %s, %s, %s' % (vr(GR, 4), vr(b, 4), vr(b, 4), cop(GR)))
        a('s_waitcnt lgkmcnt(%d)' % (10 if ks < 15 else 0))
        for m in mf[:BPOS]:
            a(m)
        hook(a, ks, 0)
        rl = []
        if ks + 2 < 16:
            if ks + 2 in gstart:
                bar(a, bn + str(gstart[ks + 2]))
            rl = rlist(ks + 2)
        rest = mf[BPOS:]
        if ILV:
            per = -(-len(rl) // max(1, len(rest) - ILV + 1))
            for m in rest:
                for r in rl[:per]:
                    a(r)
                rl = rl[per:]
                a(m)
            assert not rl
            hook(a, ks, 1)
        else:
            for r in rl:
                a(r)
            hook(a, ks, 1)
            for m in rest:
                a(m)
    stamp(a, st[1])
    a('v_lshlrev_b32 v15, 4, v2')
    a('s_lshl_b32 s27, s26, 6')
    a('s_add_u32 s27, s27, 0x%x' % XCH)
    a('v_add_u32 v14, s27, v15')
    a('ds_write_b128 v14, %s' % vr(CSA, 4))

    def finish_stats(SUM, SQ, M, RD):
        a('v_mul_f32 v%d, 0x3b000000, v%d' % (SUM, SUM))
        a('v_mul_f32 v%d, 0x3b000000, v%d' % (SQ, SQ))
        a('v_fma_f32 v%d, -v%d, v%d, v%d' % (SQ, SUM, SUM, SQ))
        a('v_max_f32 v%d, 0, v%d' % (SQ, SQ))
        bf16r(a, M, SUM)
        bf16r(a, SQ, SQ)
        a('v_add_f32 v%d, 0x3727c5ac, v%d' % (SQ, SQ))
        bf16r(a, SQ, SQ)
        a('v_sqrt_f32 v%d, v%d' % (SQ, SQ))
        bf16r(a, SQ, SQ)
        a('v_rcp_f32 v%d, v%d' % (RD, SQ))

    if k1:
        SUM, SQ = 72, 73
        a('v_cmp_eq_u32 vcc, 1, v5')
        a('v_cndmask_b32 v%d, v%d, v%d, vcc' % (SQ, GR, GR + 1))
        a('v_cmp_eq_u32 vcc, 2, v5')
        a('v_cndmask_b32 v%d, v%d, v%d, vcc' % (SQ, SQ, GR + 2))
        a('v_cmp_eq_u32 vcc, 3, v5')
        a('v_cndmask_b32 v%d, v%d, v%d, vcc' % (SQ, SQ, GR + 3))
        a('v_cmp_eq_u32 vcc, v2, v4')
        a('v_cndmask_b32 v%d, 0, v%d, vcc' % (SQ, SQ))
        a('v_mov_b32 v%d, v%d' % (SUM, RS))
        butterfly(a, [('v_add_f32', SQ, 76)])
        finish_stats(SUM, SQ, 36, 37)
        a('s_lshl_b32 s27, s20, 7')
        a('s_add_u32 s27, s27, 0x%x' % (XCH + 512))
        a('v_lshlrev_b32 v74, 3, v3')
        a('v_add_u32 v75, s27, v74')
        a('ds_write_b64 v75, v[36:37]')
        a('v_xor_b32 v75, 0x80, v75')
    a('s_lshl_b32 s27, s36, 6')
    a('s_add_u32 s27, s27, 0x%x' % XCH)
    a('v_add_u32 v15, s27, v15')
    hook(a, 16, 0)
    a('s_waitcnt lgkmcnt(0)')
    bar(a, en)
    if k1:
        a('ds_read_b64 v[38:39], v75')
    for seg in range(3):
        a('ds_read_b128 %s, v15 offset:%d' % (vr(132 + 4 * seg, 4), seg * 128))
    hook(a, 16, 1)
    if not k1:
        return
    for p in range(2):
        for seg in range(3):
            if p == 0:
                a('s_waitcnt lgkmcnt(%d)' % (2 - seg))
            ac = ACC + 4 * (3 * p + seg)
            for r in range(4):
                a('v_fma_f32 v%d, -v%d, v%d, v%d' % (ac + r, 36 + 2 * p, 132 + 4 * seg + r, ac + r))
            for r in range(4):
                a('v_mul_f32 v%d, v%d, v%d' % (ac + r, 37 + 2 * p, ac + r))
    gemm96_main.finish_stats = finish_stats


S_MASK, S_PART, S_PQ = 96, 98, 99
V_PART, V_L8 = 164, 165


def part_store(a, r, cvt):
    lz, le = uid('z'), uid('e')
    a('s_bitcmp1_b32 s20, 1')
    a('s_cbranch_scc1 %s' % lz)
    if cvt:
        a('v_cvt_pk_bf16_f32 v%d, v%d, v%d' % (r, r, r + 1))
        a('v_cvt_pk_bf16_f32 v%d, v%d, v%d' % (r + 1, r + 2, r + 3))
    a('buffer_store_dwordx2 %s, v%d, %s, s%d offen sc1' % (vr(r, 2), V_L8, sr(S_WS), S_PART))
    a('s_branch %s' % le)
    a.label(lz)
    a('s_mov_b64 exec, s[%d:%d]' % (S_MASK, S_MASK + 1))
    a('buffer_store_dwordx4 %s, v%d, %s, s%d offen sc1' % (vr(r, 4), V_PART, sr(S_WS), S_PART))
    a('s_mov_b64 exec, -1')
    a.label(le)


def cons_k1(a):
    XCH = XCH1

    def extra(a):
        if LT1:
            a('s_and_b32 s30, s2, 1')
            a('s_or_b32 s30, s30, s20')
            a('s_cmp_lg_u32 s30, 0')
            a('s_cbranch_scc1 k1_nlt')
            a('s_lshr_b32 s30, s2, 3')
            a('s_mul_i32 s30, s30, %d' % (48 * 1024))
            a('v_min_u32 v15, 47, v1')
            a('v_lshlrev_b32 v15, 10, v15')
            if env('LTS', 0):
                a('s_sleep %d' % env('LTS', 0))
            a('buffer_load_dword v156, v15, %s, s30 offen offset:384' % sr(S_WQ))
            if env('LTH', 0):
                a('buffer_load_dword v156, v15, %s, s30 offen offset:448' % sr(S_WQ))
            a.label('k1_nlt')
        a('s_lshl_b32 s31, s34, 10')
        a('s_lshl_b32 s27, s36, 9')
        a('s_add_u32 s31, s31, s27')
        a('s_lshl_b32 s30, s24, 12')
        a('s_add_u32 s%d, s30, s31' % S_PQ)
        a('s_xor_b32 s29, s%d, 0x10000' % S_PQ)
        a('v_lshlrev_b32 v%d, 3, v1' % V_L8)
        for i in range(4):
            a('v_mov_b32 v%d, -1' % (28 + i))
        a('s_lshl_b32 s30, s33, 5')
        a('s_lshl_b32 s31, s34, 1')
        a('s_add_u32 s30, s30, s31')
        a('s_lshr_b32 s31, s20, 2')
        a('s_add_u32 s30, s30, s31')
        a('s_mul_i32 s30, s30, %d' % PSTR)
        a('s_add_u32 s30, s30, 0x%x' % WS_PART)
        a('s_and_b32 s31, s20, 3')
        a('s_lshl_b32 s27, s31, 9')
        a('s_lshl_b32 s28, s31, 6')
        a('s_add_u32 s28, s28, %d' % (1024 - 128))
        a('s_cmp_lt_u32 s31, 2')
        a('s_cselect_b32 s27, s27, s28')
        a('s_add_u32 s%d, s30, s27' % S_PART)
        a('v_lshlrev_b32 v%d, 4, v2' % V_PART)
        a('s_mov_b32 s%d, 0x00010001' % S_MASK)
        a('s_mov_b32 s%d, 0x00010001' % (S_MASK + 1))
        a('s_and_b32 s30, s2, 7')
        a('s_lshl_b32 s30, s30, 8')
        a('s_add_u32 s30, s30, 0x%x' % WS_FLAG)
        a('s_lshr_b32 s31, s2, 3')
        a('s_lshl_b32 s27, s20, 5')
        a('s_add_u32 s27, s27, s31')
        a('s_add_u32 s%d, s30, s27' % F0)
        a('s_and_b32 s27, s31, 3')
        a('s_lshl_b32 s27, s27, 6')
        a('s_lshr_b32 s28, s31, 2')
        a('s_lshl_b32 s28, s28, 3')
        a('s_add_u32 s27, s27, s28')
        a('s_add_u32 s27, s27, s20')
        a('s_add_u32 s27, s27, 2048')
        a('s_add_u32 s%d, s30, s27' % F1)
        a('s_and_b32 s27, s31, 1')
        a('s_lshl_b32 s27, s27, 7')
        a('s_and_b32 s28, s31, 30')
        a('s_add_u32 s27, s27, s28')
        a('s_lshr_b32 s28, s20, 1')
        a('s_lshl_b32 s28, s28, 5')
        a('s_add_u32 s27, s27, s28')
        a('s_add_u32 s27, s27, s36')
        a('s_add_u32 s27, s27, 4096')
        a('s_add_u32 s%d, s30, s27' % F2)
        fin_rest(a)
        a('v_lshrrev_b32 v157, 1, v1')
        a('v_lshlrev_b32 v157, 7, v157')
        a('v_lshlrev_b32 v24, 2, v2')
        a('v_sub_u32 v24, v3, v24')
        a('v_mov_b32 v26, 0x3f80')
        a('v_mov_b32 v27, 0x3f800000')
        a('v_cmp_eq_u32 vcc, 0, v24')
        a('v_cndmask_b32 v20, 0, v26, vcc')
        a('v_cmp_eq_u32 vcc, 1, v24')
        a('v_cndmask_b32 v21, 0, v27, vcc')
        a('v_or_b32 v20, v20, v21')
        a('v_cmp_eq_u32 vcc, 2, v24')
        a('v_cndmask_b32 v21, 0, v26, vcc')
        a('v_cmp_eq_u32 vcc, 3, v24')
        a('v_cndmask_b32 v25, 0, v27, vcc')
        a('v_or_b32 v21, v21, v25')
        a('v_lshl_add_u32 v22, v2, 2, v4')
        a('v_lshlrev_b32 v22, 5, v22')
        a('v_lshl_add_u32 v22, v5, 3, v22')
        a('s_lshl_b32 s30, s36, 9')
        a('s_add_u32 s30, s30, 0x%x' % (XCH + 2048))
        a('v_add_u32 v22, s30, v22')
        sp_batches(a, 'C', 'st')

        if POIS_KS < -2:
            poison(a)

    def poison(a):
        a('s_xor_b32 s29, s%d, 0x10000' % S_PQ)
        a('buffer_store_dwordx2 v[28:29], v%d, %s, s%d offen sc1' % (V_L8, sr(S_WS), S_PQ))
        a('buffer_store_dwordx2 v[28:29], v%d, %s, s29 offen sc1' % (V_L8, sr(S_WS)))
        part_store(a, 28, False)
        a('s_lshr_b32 s30, s2, 3')
        a('s_or_b32 s30, s30, s20')
        a('s_cmp_lg_u32 s30, 0')
        a('s_cbranch_scc1 k1_nfc')
        a('v_lshlrev_b32 v23, 11, v2')
        a('v_lshl_add_u32 v23, v3, 4, v23')
        for i in range(4):
            a('v_mov_b32 v%d, 0' % (24 + i))
        a('s_mov_b32 s30, -1')
        a('s_mov_b32 s31, 0xffff')
        a('s_mov_b64 exec, s[30:31]')
        a('buffer_store_dwordx4 v[24:27], v23, %s, s%d offen sc1' % (sr(S_WS), F0))
        a('s_mov_b64 exec, -1')
        a.label('k1_nfc')

    def hook(a, ks, ph):
        if ks == POIS_KS and ph == 1:
            poison(a)
        if ks == WAIT_KS and ph == 0:
            assert any(WAIT_KS <= k <= RDY_KS and (k + 2 in GST or k == 16) for k in range(-2, 17)) and POIS_KS < WAIT_KS
            a('s_waitcnt vmcnt(0)')
        if ks == RDY_KS and ph == 1:
            a('s_cmp_lg_u32 s20, 0')
            a('s_cbranch_scc1 c_nrdy')
            a('s_getreg_b32 s30, hwreg(HW_REG_XCC_ID, 0, 4)')
            a('s_and_b32 s31, s2, 7')
            a('s_lshl_b32 s31, s31, 5')
            if RDY_AT:
                a('s_mul_i32 s29, s30, s30')
                a('s_lshl_b32 s29, s29, 18')
                a('s_lshl_b32 s30, s30, 8')
                a('s_add_u32 s30, s30, s29')
                a('s_add_u32 s30, s30, 1')
            else:
                a('s_or_b32 s30, s30, 0x80')
                a('s_lshr_b32 s29, s2, 3')
                a('s_add_u32 s31, s31, s29')
            a('v_mov_b32 v23, s30')
            a('v_mov_b32 v24, 0')
            a('s_mov_b64 exec, 1')
            if RDY_AT:
                a('buffer_atomic_add v23, v24, %s, s31 offen' % sr(S_DBG))
            else:
                a('buffer_store_byte v23, v24, %s, s31 offen sc1' % sr(S_DBG))
            a('s_mov_b64 exec, -1')
            a.label('c_nrdy')
        for oc in range(T_KS.count(ks) if ph == 1 else 0):
            lb = uid('t')
            a('s_cmp_lg_u32 s20, %d' % ((ks + 3 * oc) & 7))
            a('s_cbranch_scc1 %s' % lb)
            touch_item(a, 157, 156)
            a.label(lb)

    gemm96_main(a, 'k1', lambda ks: (ks % NS1) * SLOT, lambda ks: (ks % NS1) * SLOT + 6144, XCH, 'g', 'e1', extra, hook, (2, 3))
    a('ds_read_b64_tr_b16 v[26:27], v22')
    PK = 144
    for t in range(6):
        a('v_cvt_pk_bf16_f32 v%d, v%d, v%d' % (PK + 2 * t, ACC + 4 * t, ACC + 4 * t + 1))
        a('v_cvt_pk_bf16_f32 v%d, v%d, v%d' % (PK + 1 + 2 * t, ACC + 4 * t + 2, ACC + 4 * t + 3))
    a('s_waitcnt lgkmcnt(0)')
    PB = 48
    for s in range(4):
        src = PK + 2 * (3 * (s & 1) + (1 - (s >> 1)))
        a('v_mfma_f32_16x16x16_bf16 %s, v[26:27], %s, 0' % (vr(PB + 4 * s, 4), vr(src, 2)))
    TV = 64
    for p in range(2):
        a('v_mfma_f32_16x16x16_bf16 %s, %s, v[20:21], 0' % (vr(TV + 4 * p, 4), vr(PK + 2 * (3 * p + 2), 2)))
    TB = 72
    for s in (2, 3, 0, 1):
        p = PB + 4 * s
        a('v_cvt_pk_bf16_f32 v%d, v%d, v%d' % (TB + 12 * s + 2, p, p + 1))
        a('v_cvt_pk_bf16_f32 v%d, v%d, v%d' % (TB + 12 * s + 3, p + 2, p + 3))
    def pq_stores():
        a('s_xor_b32 s30, s%d, 0x10000' % S_PQ)
        a('buffer_store_dwordx2 %s, v%d, %s, s%d offen sc1' % (vr(TB + 12 * 2 + 2, 2), V_L8, sr(S_WS), S_PQ))
        a('buffer_store_dwordx2 %s, v%d, %s, s30 offen sc1' % (vr(TB + 12 * 3 + 2, 2), V_L8, sr(S_WS)))
    if not env('PQL', 1):
        pq_stores()
    FB = 120
    sp_batches(a, 'C', 'e1')
    softmax_sets(a, 2, PB, TB, FB, 28)
    if env('PQL', 1):
        pq_stores()
    for p in range(2):
        for pm in range(2):
            a('v_mfma_f32_16x16x16_bf16 %s, %s, v[20:21], 0' % (vr(72 + 4 * (2 * p + pm), 4), vr(FB + 4 * p + 2 * pm, 2)))
    for p in range(2):
        a('v_cvt_pk_bf16_f32 v%d, v%d, v%d' % (88 + 2 * p, TV + 4 * p, TV + 4 * p + 1))
        a('v_cvt_pk_bf16_f32 v%d, v%d, v%d' % (89 + 2 * p, TV + 4 * p + 2, TV + 4 * p + 3))
    for i in range(4):
        a('v_cvt_pk_bf16_f32 v%d, v%d, v%d' % (92 + 2 * i, 72 + 4 * i, 73 + 4 * i))
        a('v_cvt_pk_bf16_f32 v%d, v%d, v%d' % (93 + 2 * i, 74 + 4 * i, 75 + 4 * i))
    RB = 128
    for p in range(2):
        for pm in range(2):
            r1, r2 = RB + 4 * pm, RB + 4 * (2 + pm)
            a('v_mfma_f32_16x16x16_bf16 %s, %s, %s, %s' % (vr(r1, 4), vr(92 + 2 * (2 * p + pm), 2), vr(88 + 2 * p, 2), '0' if p == 0 else vr(r1, 4)))
            a('v_mfma_f32_16x16x16_bf16 %s, %s, v[16:17], %s' % (vr(r2, 4), vr(92 + 2 * (2 * p + pm), 2), '0' if p == 0 else vr(r2, 4)))
    a('s_lshl_b32 s30, s20, 12')
    a('v_add_u32 v23, s30, v6')
    for i in range(4):
        a('ds_write_b128 v23, %s offset:%d' % (vr(RB + 4 * i, 4), i * 1024))
    a('s_lshl_b32 s30, s20, 10')
    a('v_add_u32 v24, s30, v6')
    ko_setup(a)
    a('s_waitcnt lgkmcnt(0)')
    a('v_mov_b32 v22, 0x%x' % CTRL)
    bar(a, 'e2')
    a('ds_read_b32 v23, v22')
    for m in range(4):
        a('ds_read_b128 %s, v24 offset:%d' % (vr(48 + 4 * m, 4), m * 8192))
    for m in range(1, 4):
        a('s_waitcnt lgkmcnt(%d)' % (3 - m))
        for r in range(4):
            a('v_add_f32 v%d, v%d, v%d' % (48 + r, 48 + r, 48 + 4 * m + r))
    part_store(a, 48, True)
    stamp(a, 4)
    a('s_mov_b32 s28, %d' % (64 * TMO))
    a.label('c_rw')
    a('v_readfirstlane_b32 s%d, v23' % FAST)
    a('s_sub_u32 s28, s28, 1')
    a('s_cbranch_scc1 c_rok')
    a('ds_read_b32 v23, v22')
    a('s_sleep 1')
    a('s_cmp_eq_u32 s%d, 0' % FAST)
    a('s_waitcnt lgkmcnt(0)')
    a('s_cbranch_scc1 c_rw')
    a.label('c_rok')
    a('s_lshr_b32 s%d, s%d, 1' % (FAST, FAST))


def ko_setup(a):
    a('s_lshr_b32 s21, s2, 3')
    a('s_and_b32 s22, s2, 7')
    a('s_lshl_b32 s22, s22, 3')
    a('s_add_u32 s22, s22, s20')
    a('s_lshl_b32 s22, s22, 17')
    a('s_lshl_b32 s23, s21, 9')
    a('s_add_u32 s22, s22, s23')
    a('s_add_u32 s23, s22, 0x10000')
    a('v_lshlrev_b32 v7, 3, v1')
    a('s_lshr_b32 s24, s20, 1')
    a('s_lshl_b32 s24, s24, 7')
    a('s_add_u32 s24, s24, s21')
    a('s_mul_i32 s24, s24, %d' % PSTR)
    a('s_add_u32 s24, s24, 0x%x' % WS_PART)
    a('s_and_b32 s25, s20, 1')
    a('s_lshl_b32 s26, s25, 9')
    a('s_lshl_b32 s27, s25, 6')
    a('s_add_u32 s26, s26, s24')
    a('s_add_u32 s27, s27, s24')
    a('s_add_u32 s27, s27, 1024')
    a('v_lshlrev_b32 v8, 4, v2')


def cons_ko(a):
    PB, TB, FB = 16, 24, 52
    KV, ZZ = 64, 80

    def part_loads():
        for j in range(4):
            a('s_add_u32 s30, s26, %d' % (32 * PSTR * j))
            a('s_add_u32 s31, s27, %d' % (32 * PSTR * j))
            a('buffer_load_dwordx2 %s, v7, %s, s30 offen sc1 %s' % (vr(KV + 4 * j, 2), sr(S_WS), NT('pt')))
            a('buffer_load_dwordx4 %s, v8, %s, s31 offen sc1' % (vr(ZZ + 4 * j, 4), sr(S_WS)))

    def pq_loads():
        for s in range(2):
            a('buffer_load_dwordx2 %s, v7, %s, s%d offen sc1' % (vr(TB + 12 * s + 2, 2), sr(S_WS), 22 + s))
    a('s_mov_b32 s28, %d' % TMO)
    KO_E = env('KO_E', 0)
    a.label('ko_pq')
    pq_loads()
    a('s_waitcnt vmcnt(0)')
    a.label('ko_pqc')
    a('s_sub_u32 s28, s28, 1')
    a('s_cbranch_scc1 ko_pq_ok')
    a('v_max3_u32 v9, v%d, v%d, v%d' % (TB + 2, TB + 3, TB + 14))
    a('v_max_u32 v9, v9, v%d' % (TB + 15))
    a('v_cmp_eq_u32 vcc, -1, v9')
    a('s_cbranch_vccnz ko_pq')
    a.label('ko_pq_ok')
    stamp(a, 5)
    if KO_E:
        part_loads()
    a('s_lshl_b32 s30, s20, 11')
    a('s_add_u32 s30, s30, 0x%x' % KOX)
    a('v_add_u32 v9, s30, v6')
    softmax_sets(a, 2, PB, TB, FB, 10)
    a('s_mov_b32 s28, %d' % TMO)
    if KO_E:
        a('s_branch ko_ppc')
    a.label('ko_pp')
    part_loads()
    a.label('ko_ppc')
    a('s_sub_u32 s28, s28, 1')
    a('s_cbranch_scc1 ko_pp_ok')
    a('s_waitcnt vmcnt(0)')
    a('v_max3_u32 v11, v%d, v%d, v%d' % (KV, KV + 1, KV + 4))
    a('v_max3_u32 v12, v%d, v%d, v%d' % (KV + 5, KV + 8, KV + 9))
    a('v_max3_u32 v11, v11, v%d, v%d' % (KV + 12, KV + 13))
    for i in range(0, 16, 4):
        a('v_max3_u32 v12, v12, v%d, v%d' % (ZZ + i, ZZ + i + 1))
        a('v_max3_u32 v11, v11, v%d, v%d' % (ZZ + i + 2, ZZ + i + 3))
    a('v_max_u32 v11, v11, v12')
    a('v_cmp_eq_u32 vcc, -1, v11')
    a('s_cbranch_vccnz ko_pp')
    a.label('ko_pp_ok')
    a('s_waitcnt vmcnt(0)')
    stamp(a, 6)
    for j in range(4):
        r = KV + 4 * j
        a('v_and_b32 v%d, 0xffff0000, v%d' % (r + 3, r + 1))
        a('v_lshlrev_b32 v%d, 16, v%d' % (r + 2, r + 1))
        a('v_and_b32 v%d, 0xffff0000, v%d' % (r + 1, r))
        a('v_lshlrev_b32 v%d, 16, v%d' % (r, r))
    for B in (KV, ZZ):
        for r in range(4):
            a('v_add_f32 v%d, v%d, v%d' % (B + r, B + r, B + 4 + r))
            a('v_add_f32 v%d, v%d, v%d' % (B + 8 + r, B + 8 + r, B + 12 + r))
        for r in range(4):
            a('v_add_f32 v%d, v%d, v%d' % (B + r, B + r, B + 8 + r))
    a('ds_write_b128 v9, %s' % vr(KV, 4))
    a('ds_write_b128 v9, %s offset:1024' % vr(ZZ, 4))
    a('s_waitcnt lgkmcnt(0)')
    bar(a, 'o1')
    RD = 64
    for t in range(2):
        for kz in range(2):
            for qd in range(4):
                a('ds_read_b128 %s, v6 offset:%d' % (vr(RD + 4 * (8 * t + 4 * kz + qd), 4), KOX + (2 * qd + t) * 2048 + kz * 1024))
    OPA = 128
    for t in range(2):
        for kz in range(2):
            i = 2 * t + kz
            B = RD + 16 * i
            a('s_waitcnt lgkmcnt(%d)' % (12 - 4 * i))
            for r in range(4):
                a('v_add_f32 v%d, v%d, v%d' % (B + r, B + r, B + 4 + r))
                a('v_add_f32 v%d, v%d, v%d' % (B + 8 + r, B + 8 + r, B + 12 + r))
            for r in range(4):
                a('v_add_f32 v%d, v%d, v%d' % (B + r, B + r, B + 8 + r))
            a('v_cvt_pk_bf16_f32 v%d, v%d, v%d' % (OPA + 4 * kz + 2 * t, B, B + 1))
            a('v_cvt_pk_bf16_f32 v%d, v%d, v%d' % (OPA + 4 * kz + 2 * t + 1, B + 2, B + 3))
    ND = 64
    for s in range(2):
        a('v_mfma_f32_16x16x32_bf16 %s, %s, %s, 0' % (vr(ND + 8 * s, 4), vr(OPA, 4), vr(FB + 4 * s, 4)))
        a('v_mfma_f32_16x16x32_bf16 %s, %s, %s, 0' % (vr(ND + 8 * s + 4, 4), vr(OPA + 4, 4), vr(FB + 4 * s, 4)))
    for s in range(2):
        n = ND + 8 * s
        d = n + 4
        T = 16 + 8 * s
        a('v_cvt_pk_bf16_f32 v%d, v%d, v%d' % (T, d, d))
        a('v_cvt_pk_bf16_f32 v%d, v%d, v%d' % (T + 1, n, n + 1))
        a('v_cvt_pk_bf16_f32 v%d, v%d, v%d' % (T + 2, n + 2, n + 3))
        a('v_lshlrev_b32 v%d, 16, v%d' % (T, T))
        a('v_add_f32 v%d, 0x358637bd, v%d' % (T, T))
        a('v_cvt_pk_bf16_f32 v%d, v%d, v%d' % (T, T, T))
        a('v_lshlrev_b32 v%d, 16, v%d' % (T, T))
        a('v_rcp_f32 v%d, v%d' % (T, T))
        a('v_lshlrev_b32 v%d, 16, v%d' % (T + 3, T + 1))
        a('v_and_b32 v%d, 0xffff0000, v%d' % (T + 4, T + 1))
        a('v_lshlrev_b32 v%d, 16, v%d' % (T + 5, T + 2))
        a('v_and_b32 v%d, 0xffff0000, v%d' % (T + 6, T + 2))
        for i in range(4):
            a('v_mul_f32 v%d, v%d, v%d' % (T + 3 + i, T, T + 3 + i))
        a('v_cvt_pk_bf16_f32 v%d, v%d, v%d' % (T, T + 3, T + 4))
        a('v_cvt_pk_bf16_f32 v%d, v%d, v%d' % (T + 1, T + 5, T + 6))
        gstore(a, 'buffer_store_dwordx2 %s, v7, %s, s%d offen' % (vr(T, 2), sr(S_WS), 22 + s))


def w64_addr(a, k2, WA, base):
    map64(a)
    a('s_lshr_b32 s23, s20, 1')
    a('s_add_u32 s24, s21, s23')
    a('s_and_b32 s25, s20, 1')
    a('v_lshl_add_u32 v14, v2, %d, v4' % (2 if k2 else 3))
    a('v_lshlrev_b32 v14, 7, v14')
    a('v_lshl_add_u32 v14, v5, 3, v14')
    a('v_and_b32 v15, 1, v2')
    a('v_lshlrev_b32 v15, 1, v15')
    a('v_lshrrev_b32 v13, 1, v4')
    a('v_or_b32 v15, v15, v13')
    a('s_lshl_b32 s26, s25, 1')
    a('v_xor_b32 v15, s26, v15')
    a('v_lshl_add_u32 v14, v15, 5, v14')
    a('s_lshl_b32 s26, s25, 12')
    a('s_add_u32 s26, s26, 0x%x' % base)
    a('v_add_u32 v%d, s26, v14' % WA)
    for s in range(1, 4):
        a('v_xor_b32 v%d, %d, v%d' % (WA + s, 32 * s, WA))


def cons_k2(a):
    WA, AC, AF, WB, XR = 8, 16, 32, 64, 164
    w64_addr(a, True, WA, W2B)
    a('s_lshl_b32 s26, s23, 11')
    a('s_lshl_b32 s27, s25, 6')
    a('s_add_u32 s26, s26, s27')
    a('s_add_u32 s26, s26, 0x%x' % XT)
    a('v_lshlrev_b32 v13, 7, v3')
    a('v_lshl_add_u32 v13, v2, 3, v13')
    a('v_add_u32 v13, s26, v13')
    set_flag(a, F0, 14, 15)
    bar(a, 'd1')
    stamp(a, 7)

    def wreads(i, b):
        for s in range(4):
            for e in range(2):
                a('ds_read_b64_tr_b16 %s, v%d offset:%d' % (vr(WB + 16 * b + 4 * s + 2 * e, 2), WA + s, i * 8192 + e * 2048))
    for nt in range(2):
        a('ds_read_b64 %s, v13 offset:%d' % (vr(XR + 2 * nt, 2), nt * 32))
    for i in range(6):
        wreads(i, i)
    sp_batches(a, 'C', 'd1')
    a('s_and_b32 s30, s2, 7')
    a('s_lshl_b32 s30, s30, 8')
    a('s_and_b32 s31, s24, 15')
    a('s_lshr_b32 s31, s31, 1')
    a('s_lshl_b32 s31, s31, 5')
    a('s_add_u32 s30, s30, s31')
    a('s_add_u32 s30, s30, 0x%x' % WS_FLAG)
    a('v_lshlrev_b32 v14, 2, v1')
    a('s_lshl_b32 s29, s24, 16')
    a('s_lshl_b32 s31, s25, 10')
    a('s_add_u32 s27, s29, s31')
    a('s_lshl_b32 s32, s20, 11')
    a('s_add_u32 s32, s32, 0x%x' % KOX)
    a('v_add_u32 v12, s32, v6')
    a('v_xor_b32 v13, 0x800, v12')
    poll_flags(a, 30, 8, 14, 15)
    stamp(a, 8)
    for i in range(8):
        if i and i % 2 == 0:
            a('s_add_u32 s27, s27, 4096')
        for e in range(2):
            a('buffer_load_dwordx2 %s, v7, %s, s27 offen offset:%d sc1' % (vr(AF + 4 * i + 2 * e, 2), sr(S_WS), (i % 2) * 2048 + e * 512))
    a('s_lshl_b32 s31, s22, %d' % (3 if CSP else 4))
    a('s_add_u32 s28, s29, s31')
    a('s_lshl_b32 s31, s25, %d' % (13 if CSP else 10))
    a('s_add_u32 s28, s28, s31')
    a('s_add_u32 s28, s28, 0x%x' % OFF_H)
    a('v_lshlrev_b32 v14, 4, v3')
    a('s_lshr_b32 s31, s22, 7')
    a('s_and_b32 s26, s31, 1')
    a('s_lshl_b32 s26, s26, 10')
    a('s_add_u32 s29, s29, s26')
    a('s_lshr_b32 s31, s31, 1')
    a('s_lshl_b32 s31, s31, 8')
    a('s_add_u32 s29, s29, s31')
    a('s_lshl_b32 s31, s25, 3')
    a('s_add_u32 s29, s29, s31')
    a('s_add_u32 s29, s29, 0x%x' % OFF_S)
    for i in range(8):
        b = i % 6
        lg = {0: 0, 6: 8, 7: 0}.get(i)
        a('s_waitcnt vmcnt(%d)%s' % (14 - 2 * i, '' if lg is None else ' lgkmcnt(%d)' % lg))
        for s in (2, 3, 0, 1):
            a('v_mfma_f32_16x16x32_bf16 %s, %s, %s, %s' % (vr(AC + 4 * s, 4), vr(WB + 16 * b + 4 * s, 4), vr(AF + 4 * i, 4), '0' if i == 0 else vr(AC + 4 * s, 4)))
        if i < 2:
            wreads(6 + i, i)
    stamp(a, 9)
    for s in range(2):
        a('ds_write_b128 v12, %s offset:%d' % (vr(AC + 8 + 4 * s, 4), s * 1024))
    T = 40
    for i in range(4):
        a('v_lshlrev_b32 v%d, 16, v%d' % (T + 2 * i, XR + i))
        a('v_and_b32 v%d, 0xffff0000, v%d' % (T + 2 * i + 1, XR + i))
    a('v_mov_b32 v52, 0x3f803f80')
    a('s_waitcnt lgkmcnt(0)')
    bar(a, 'x2')
    for s in range(2):
        a('ds_read_b128 %s, v13 offset:%d' % (vr(32 + 4 * s, 4), s * 1024))
    OUTR = HKEEP
    S1, S2 = 54, 55
    for s in range(2):
        a('s_waitcnt lgkmcnt(%d)' % (1 - s))
        for r in range(4):
            a('v_add_f32 v%d, v%d, v%d' % (AC + 4 * s + r, AC + 4 * s + r, 32 + 4 * s + r))
    for i in range(8):
        a('v_add_f32 v%d, v%d, v%d' % (T + i, T + i, AC + i))
    for i in range(4):
        a('v_cvt_pk_bf16_f32 v%d, v%d, v%d' % (OUTR + i, T + 2 * i, T + 2 * i + 1))
    gstore(a, 'buffer_store_dwordx4 %s, v6, %s, s28 offen' % (vr(OUTR, 4), sr(S_WS)))
    for i in range(4):
        a('v_dot2_f32_bf16 v%d, v%d, v52, %s' % (S1, OUTR + i, 'v%d' % S1 if i else '0'))
        a('v_dot2_f32_bf16 v%d, v%d, v%d, %s' % (S2, OUTR + i, OUTR + i, 'v%d' % S2 if i else '0'))
    butterfly(a, [('v_add_f32', S1, 52), ('v_add_f32', S2, 53)])
    gstore(a, 'buffer_store_dwordx2 v[54:55], v14, %s, s29 offen' % sr(S_WS))
    set_flag(a, F1, 56, 57)
    stamp(a, 10)
    sp_batches(a, 'C', 'x2')


def cons_k3(a):
    map3(a)
    STR, B1R = 20, 120

    def extra(a):
        a('v_lshlrev_b32 v46, 3, v2')
        a('s_lshl_b32 s30, s36, 5')
        a('s_add_u32 s30, s30, s22')
        for seg in range(3):
            a('buffer_load_dwordx2 %s, v46, %s, s30 offen offset:%d' % (vr(B1R + 2 * seg, 2), sr(S_B1), seg * 64))

    def hook(a, ks, ph):
        if ks == 6 and ph == 1:
            for p in range(2):
                a('s_lshl_b32 s30, s%d, 12' % (24 if p == 0 else 37))
                a('s_add_u32 s30, s30, 0x%x' % OFF_S)
                for i in range(2):
                    a('buffer_load_dwordx4 %s, v6, %s, s30 offen offset:%d sc1' % (vr(STR + 8 * p + 4 * i, 4), sr(S_WS), i * 1024))
        if ks == 13 and ph == 1:
            a('s_waitcnt vmcnt(0)')
            for p in range(2):
                b = STR + 8 * p
                a('v_add_f32 v%d, v%d, v%d' % (b, b, b + 2))
                a('v_add_f32 v%d, v%d, v%d' % (b + 1, b + 1, b + 3))
                a('v_add_f32 v%d, v%d, v%d' % (b + 4, b + 4, b + 6))
                a('v_add_f32 v%d, v%d, v%d' % (b + 5, b + 5, b + 7))
            for p in range(2):
                b = STR + 8 * p
                a('v_add_f32 v%d, v%d, v%d' % (b, b, b + 4))
                a('v_add_f32 v%d, v%d, v%d' % (b + 1, b + 1, b + 5))
            butterfly(a, [('v_add_f32', STR, STR + 2), ('v_add_f32', STR + 1, STR + 3), ('v_add_f32', STR + 8, STR + 10), ('v_add_f32', STR + 9, STR + 11)])
        if ks == 14 and ph == 1:
            gemm96_main.finish_stats(STR, STR + 1, 36, 37)
            gemm96_main.finish_stats(STR + 8, STR + 9, 38, 39)
        if ks == 15 and ph == 1:
            a('s_lshl_b32 s27, s36, 9')
            a('s_mul_i32 s25, s34, 3 * 1024')
            a('s_add_u32 s25, s25, s27')
            for p in range(2):
                a('s_lshl_b32 s%d, s%d, 12' % (28 + p, 24 if p == 0 else 37))
            a('v_and_b32 v22, 1, v2')
            a('v_cmp_eq_u32 vcc, 0, v22')
            a('v_mov_b32 v22, s28')
            a('v_mov_b32 v23, s29')
            a('v_cndmask_b32 v22, v23, v22, vcc')
            a('v_lshrrev_b32 v23, 1, v2')
            a('v_lshl_add_u32 v22, v23, 8, v22')
            a('v_lshl_add_u32 v22, v3, 4, v22')
            for seg in range(3):
                b = B1R + 2 * seg
                B = 72 + 4 * seg
                a('v_lshlrev_b32 v%d, 16, v%d' % (B, b))
                a('v_and_b32 v%d, 0xffff0000, v%d' % (B + 1, b))
                a('v_lshlrev_b32 v%d, 16, v%d' % (B + 2, b + 1))
                a('v_and_b32 v%d, 0xffff0000, v%d' % (B + 3, b + 1))

    gemm96_main(a, 'k3', lambda ks: W3A[ks], a3addr, XCH3, 'q', 'e3', extra, hook, (11, 12))
    a('s_cmp_eq_u32 s34, 15')
    a('s_cbranch_scc1 k3_done')
    for seg in range(3):
        if seg == 1:
            a('s_cmp_eq_u32 s34, 14')
            a('s_cbranch_scc1 k3_done')
        a('s_waitcnt lgkmcnt(%d)' % (2 - seg))
        B = 72 + 4 * seg
        for p in range(2):
            ac = ACC + 4 * (3 * p + seg)
            for r in range(4):
                a('v_fma_f32 v%d, -v%d, v%d, v%d' % (ac + r, 36 + 2 * p, 132 + 4 * seg + r, ac + r))
        for p in range(2):
            ac = ACC + 4 * (3 * p + seg)
            for r in range(4):
                a('v_fma_f32 v%d, v%d, v%d, v%d' % (ac + r, 37 + 2 * p, ac + r, B + r))
        for p in range(2):
            ac = ACC + 4 * (3 * p + seg)
            for r in range(4):
                a('v_mul_f32 v%d, v%d, |v%d|' % (ac + r, ac + r, ac + r))
        for p in range(2):
            ac = ACC + 4 * (3 * p + seg)
            T = 144 + 2 * (2 * seg + p)
            a('v_cvt_pk_bf16_f32 v%d, v%d, v%d' % (T, ac, ac + 1))
            a('v_cvt_pk_bf16_f32 v%d, v%d, v%d' % (T + 1, ac + 2, ac + 3))
        for p in range(2):
            T = 144 + 2 * (2 * seg + p)
            a('v_pk_max_i16 v%d, v%d, 0' % (T, T))
            a('v_pk_max_i16 v%d, v%d, 0' % (T + 1, T + 1))
        T = 144 + 4 * seg
        a('v_permlane16_swap_b32 v%d, v%d' % (T, T + 2))
        a('v_permlane16_swap_b32 v%d, v%d' % (T + 1, T + 3))
        gstore(a, 'buffer_store_dwordx4 %s, v22, %s, s25 offen offset:%d' % (vr(T, 4), sr(S_WS), seg * 1024))
    a.label('k3_done')


def cons_k4(a):
    WA, AC, WB, AF, BR = 8, 24, 40, 88, 164
    NAF = 18
    w64_addr(a, False, 16, 0)
    for s in range(4):
        a('v_mov_b32 v%d, v%d' % (WA + s, 16 + s))
    for b in (2, 1):
        for s in range(4):
            a('v_add_u32 v%d, 0x%x, v%d' % (WA + 4 * b + s, b * BANK, WA + s))

    def wreads(i):
        wb, wo = divmod(8192 * W4P[i], BANK)
        for s in range(4):
            for e in range(2):
                a('ds_read_b64_tr_b16 %s, v%d offset:%d' % (vr(WB + 16 * (i % 3) + 4 * s + 2 * e, 2), WA + 4 * wb + s, wo + e * 512))
    wreads(0)
    wreads(1)
    set_flag(a, F2, 21, 22)
    stamp(a, 13)
    a('s_lshl_b32 s27, s25, %d' % (9 if CSP else 6))
    a('s_lshr_b32 s26, s22, %d' % CSP)
    a('s_add_u32 s27, s27, s26')
    a('v_lshlrev_b32 v21, 3, v2')
    for nt in range(2):
        a('buffer_load_dwordx2 %s, v21, %s, s27 offen offset:%d' % (vr(BR + 2 * nt, 2), sr(S_B2), nt * 32))
    a('s_lshl_b32 s26, s24, 14')
    a('s_add_u32 s26, s26, s27')
    a('v_and_b32 v20, 1, v2')
    a('v_lshlrev_b32 v20, 5, v20')
    a('v_lshrrev_b32 v22, 1, v2')
    a('v_lshl_add_u32 v20, v22, 4, v20')
    a('v_lshl_add_u32 v20, v3, 10, v20')
    a('s_and_b32 s30, s2, 7')
    a('s_lshl_b32 s30, s30, 8')
    a('s_and_b32 s31, s24, 15')
    a('s_lshr_b32 s31, s31, 1')
    a('s_lshl_b32 s31, s31, 5')
    a('s_add_u32 s30, s30, s31')
    a('s_add_u32 s30, s30, 0x%x' % (WS_FLAG + 4096))
    a('v_lshlrev_b32 v22, 2, v1')
    a('s_lshl_b32 s29, s24, 16')
    a('s_lshl_b32 s31, s25, 10')
    a('s_add_u32 s29, s29, s31')
    a('s_lshl_b32 s32, s20, 11')
    assert W4P[3] == W4P[2] + 1 or True
    a('s_lshr_b32 s31, s20, 2')
    a('s_cmp_eq_u32 s31, 0')
    a('s_mov_b32 s31, 0x%x' % (8192 * W4P[3] - 8192))
    a('s_cselect_b32 s31, 0x%x, s31' % (8192 * W4P[2]))
    a('s_add_u32 s32, s32, s31')
    a('v_add_u32 v7, s32, v6')
    a('s_waitcnt lgkmcnt(0)')
    bar(a, 'r0')
    K4L = env('K4L', 0)
    poll_flags(a, 30, 7 if K4L else 8, 22, 23)
    stamp(a, 14)
    q = {}

    def aload(i):
        a('s_add_u32 s31, s29, %d' % ((i // 2) * 4096))
        q[i] = a('buffer_load_dwordx4 %s, v6, %s, s31 offen offset:%d %s' % (vr(AF + 4 * (i % NAF), 4), sr(S_WS), (i % 2) * 2048, os.environ.get('K4POL', 'sc1')))
    K4D = env('K4D', 5)
    for i in range(K4D):
        aload(i)
    for i in range(NP4):
        b = i % 3
        if i == R1_AT:
            a('s_waitcnt lgkmcnt(0)')
            bar(a, 'r1')
        a.wait_vm(q[i], ' lgkmcnt(%d)' % (8 if i + 1 < NP4 else 0))
        if K4L and i + 2 * K4D == NP4 - 1:
            a('s_mov_b64 exec, 0xff')
            a('buffer_load_dword v23, v22, %s, s30 offen sc1' % sr(S_WS))
            a('s_mov_b64 exec, -1')
        if K4L and i + K4D == NP4 - 1:
            a('s_mov_b64 exec, 0xff')
            a('v_cmp_ne_u32 vcc, 0x01010101, v23')
            a('s_mov_b64 exec, -1')
            a('s_cbranch_vccz k4_lok')
            n0 = a.vm_issued
            poll_flags(a, 30, 8, 22, 23)
            a.vm_issued = n0
            a.label('k4_lok')
        if i + K4D < NP4:
            aload(i + K4D)
        if i + 2 < NP4:
            wreads(i + 2)
        if i == NP4 - 1:
            a('s_cmp_eq_u32 s25, 1')
            a('s_cbranch_scc1 k4_skip')
        for s in (2, 3, 0, 1):
            a('v_mfma_f32_16x16x32_bf16 %s, %s, %s, %s' % (vr(AC + 4 * s, 4), vr(WB + 16 * b + 4 * s, 4), vr(AF + 4 * (i % NAF), 4), '0' if i == 0 else vr(AC + 4 * s, 4)))
    a.label('k4_skip')
    a('s_nop 7')
    for s in range(2):
        a('ds_write_b128 v7, %s offset:%d' % (vr(AC + 8 + 4 * s, 4), s * 1024))
    a('v_xor_b32 v7, 0x800, v7')
    HB = 96
    for i in range(4):
        a('v_lshlrev_b32 v%d, 16, v%d' % (HB + 2 * i, HKEEP + i))
        a('v_and_b32 v%d, 0xffff0000, v%d' % (HB + 2 * i + 1, HKEEP + i))
        a('v_lshlrev_b32 v%d, 16, v%d' % (104 + i, BR + i))
        a('v_and_b32 v%d, 0xffff0000, v%d' % (BR + i, BR + i))
    for i in range(4):
        a('v_add_f32 v%d, v%d, v%d' % (HB + 2 * i, HB + 2 * i, 104 + i))
        a('v_add_f32 v%d, v%d, v%d' % (HB + 2 * i + 1, HB + 2 * i + 1, BR + i))
    a('s_waitcnt lgkmcnt(0)')
    bar(a, 'x4')
    for s in range(2):
        a('ds_read_b128 %s, v7 offset:%d' % (vr(112 + 4 * s, 4), s * 1024))
    for s in range(2):
        a('s_waitcnt lgkmcnt(%d)' % (1 - s))
        for r in range(4):
            a('v_add_f32 v%d, v%d, v%d' % (AC + 4 * s + r, AC + 4 * s + r, 112 + 4 * s + r))
    O = 56
    for i in range(8):
        a('v_add_f32 v%d, v%d, v%d' % (HB + i, HB + i, AC + i))
    for i in range(4):
        a('v_cvt_pk_bf16_f32 v%d, v%d, v%d' % (O + i, HB + 2 * i, HB + 2 * i + 1))
    a('v_permlane16_swap_b32 v%d, v%d' % (O, O + 2))
    a('v_permlane16_swap_b32 v%d, v%d' % (O + 1, O + 3))
    a('buffer_store_dwordx4 %s, v20, %s, s26 offen' % (vr(O, 4), sr(S_OUT)))


def ring_loop(a, nk, ns, lag, per, issue, groups, bn, post=None, pre=None):
    last = {}
    issued = 0
    for j, (lo, hi) in enumerate(groups):
        while issued < nk:
            i = issued
            ok = (i < ns or (j >= 1 and groups[j - 1][0] - 2 >= i - ns)) and (i - lo + 1) * per <= 62 and (i < hi or i < lo + (lag if j < env('LAGJ', 1) or bn != 'g' else env('LAG1B', 5)))
            if not ok:
                break
            last[i] = issue(i)
            issued += 1
        assert issued >= hi, (j, issued, hi)
        if pre:
            pre(j)
        a.wait_vm(last[hi - 1])
        if bn == 'g':
            stamp(a, 3 + j, 1)
        if bn == 'q':
            stamp(a, 3 + j, 3)
        bar(a, bn + str(j))
        if post and j in post:
            post[j]()


NSTG = env('NSTG', 0)
STG_W = _il('STG_W', '0,12,6,8,8')
STG_SL = env('STG_SL', 3)
STG0 = 28


STG_P0 = env('STG_P0', 8)
STGP = list(range(STG_P0, STG_P0 + NSTG))


class Stager:
    def __init__(self, a, on):
        self.a, self.on, self.n, self.q = a, on and NSTG, 0, {}

    def setup(self):
        a = self.a
        if not self.on:
            return
        a('s_lshl_b32 s30, s35, 10')
        a('v_add_u32 v16, s30, v6')
        a('v_add_u32 v17, 0x%x, v16' % BANK)
        a('v_add_u32 v18, 0x%x, v16' % (2 * BANK))

    def load(self, win):
        a = self.a
        for c in range(STG_W[win] if self.on else 0):
            if self.n >= 4 * NSTG:
                return
            i, j = STGP[self.n // 4], 2 * (self.n % 4)
            if c and c % 2 == 0 and STG_SL:
                a('s_sleep %d' % STG_SL)
            a('s_mov_b32 s30, 0x%x' % ((i * 64 + 8 * j) * 1024))
            self.q[self.n] = a('buffer_load_dwordx4 %s, v12, %s, s30 offen' % (vr(STG0 + 4 * self.n, 4), sr(S_W2)))
            self.n += 1

    def write(self, after):
        a = self.a
        for k, i in enumerate(STGP if self.on else []):
            if W4T[i] == after:
                assert self.n >= 4 * NSTG
                a.wait_vm(max(self.q[4 * k + 3], a.vm_issued - 63))
                for e in range(4):
                    b, o = divmod(8192 * W4P[i] + 2 * e * 1024, BANK)
                    a('ds_write_b128 v%d, %s offset:%d' % (16 + b, vr(STG0 + 4 * (4 * k + e), 4), o))


def k4w_addr(a):
    a('s_lshl_b32 s31, s35, 13')
    a('s_lshr_b32 s30, s22, %d' % CSP)
    a('s_add_u32 s31, s31, s30')
    a('v_lshrrev_b32 v8, 3, v1')
    a('v_bfe_u32 v9, v1, 1, 2')
    a('v_and_b32 v10, 1, v1')
    a('v_lshlrev_b32 v10, 4, v10')
    a('v_lshl_add_u32 v8, v8, 10, v10')
    a('v_add_u32 v8, s31, v8')
    a('v_bfe_u32 v10, v1, 4, 1')
    a('v_xor_b32 v10, v9, v10')
    a('s_lshl_b32 s30, s35, 1')
    a('v_xor_b32 v10, s30, v10')
    a('v_lshl_add_u32 v12, v10, 5, v8')
    unit_fix(a, 12, 10)


def prod_w(a):
    a.label('prod_w')
    a.isprod = 1
    a.hist = []
    a.vm_issued = 0
    a.bars = []
    a('s_sub_u32 s35, s20, 8')
    a('s_lshl_b32 s32, s35, 10')

    def w96_addr(k1, wstride, reg):
        a('s_mul_i32 s31, s35, %d' % (16 * wstride))
        a('s_add_u32 s31, s31, s22')
        a('v_lshrrev_b32 v%d, 2, v1' % reg)
        a('v_mul_u32_u24 v%d, 0x%x, v%d' % (reg, wstride, reg))
        a('v_bfe_u32 v15, v1, %d, 1' % (5 if k1 else 4))
        a('v_lshlrev_b32 v15, 1, v15')
        a('v_xor_b32 v15, v15, v5')
        a('v_lshl_add_u32 v%d, v15, 4, v%d' % (reg, reg))
        a('v_add_u32 v%d, s31, v%d' % (reg, reg))
    w96_addr(True, 3072, 7)

    def wissue1(i):
        a('s_add_u32 s29, s39, %d' % i)
        a('s_and_b32 s29, s29, 15')
        a('s_mul_i32 s29, s29, %d' % (32 * 3072))
        for seg in range(3):
            a('s_add_u32 m0, s32, 0x%x' % ((i % NS1) * SLOT + seg * 2048))
            a('s_add_u32 s30, s29, 0x%x' % (seg * 1024))
            q = a('buffer_load_dwordx4 v7, %s, s30 offen %slds' % (sr(S_WQ), NT('wq')))
        if i == 2:
            a('s_mov_b32 m0, 0x%x' % (XCH1 + 2048))
            a('s_lshl_b32 s30, s34, 10')
            a('buffer_load_dwordx4 v6, %s, s30 offen lds' % sr(S_WP))
        return q
    def pre(j):
        if j == 1:
            fin_rest(a)
        if j >= 1:
            sp_batches(a, 'W', 'g%d' % (j - 1))
    ring_loop(a, 16, NS1, LAG1, 3, wissue1, G96, 'g', pre=pre)
    sp_batches(a, 'W', 'g8')
    map64(a)
    k4w_addr(a)
    a('v_bfe_u32 v10, v1, 4, 2')
    a('v_xor_b32 v10, v9, v10')
    a('v_lshl_add_u32 v11, v10, 5, v8')
    unit_fix(a, 11, 10)
    stg = Stager(a, 1)
    stg.setup()
    a('v_lshl_add_u32 v13, v9, 5, v8')
    unit_fix(a, 13, 9)
    a('s_lshl_b32 s36, s21, 14')

    def w2x():
        for i in range(8):
            for j in range(0, 8, 2):
                a('s_add_u32 m0, s32, 0x%x' % (W2B + 8192 * i + j * 1024))
                a('s_mov_b32 s30, 0x%x' % ((i * 64 + 8 * j) * 1024))
                a('buffer_load_dwordx4 v11, %s, s30 offen %slds' % (sr(S_WO), NT('wo')))
        for j in range(0, 8, 2):
            a('s_add_u32 m0, s32, 0x%x' % (XT + j * 1024))
            a('s_add_u32 s30, s36, 0x%x' % (j * 8192))
            q = a('buffer_load_dwordx4 v13, %s, s30 offen lds' % sr(S_X))
        return q
    W2AT = env('W2AT', 1)
    if W2AT == 0:
        q_w2 = w2x()
    map3(a)
    w96_addr(False, 2752, 7)
    bar(a, 'e1')
    if W2AT == 1:
        if env('W2SL', 0):
            a('s_sleep %d' % env('W2SL', 0))
        q_w2 = w2x()
    sp_batches(a, 'W', 'e1', only=0)
    stg.load(0)
    for _b in range(1, 4):
        if SASSIGN.get(('W', 'e1', _b)):
            a('s_waitcnt lgkmcnt(0)')
            sp_batches(a, 'W', 'e1', only=_b)
    bar(a, 'e2')
    if W2AT == 2:
        q_w2 = w2x()
    sp_batches(a, 'W', 'e2', only=0)
    stg.load(1)
    for _b in range(1, 4):
        if SASSIGN.get(('W', 'e2', _b)):
            a('s_waitcnt lgkmcnt(0)')
            sp_batches(a, 'W', 'e2', only=_b)
    q3 = {}

    def w3(i):
        for seg in range(3):
            a('s_add_u32 m0, s32, 0x%x' % (W3A[i] + seg * 2048))
            a('s_mov_b32 s30, 0x%x' % (i * 32 * 2752 + seg * 64))
            q3[i] = a('buffer_load_dwordx4 v7, %s, s30 offen %slds' % (sr(S_W1), NT('w1')))
    bar(a, 'o1')
    if W2AT == 3:
        q_w2 = w2x()
    W3N = env('W3N', 5)
    for i in range(W3N):
        w3(i)
    sp_batches(a, 'W', 'o1', only=0)
    stg.load(2)
    for _b in range(1, 4):
        if SASSIGN.get(('W', 'o1', _b)):
            a('s_waitcnt lgkmcnt(0)')
            sp_batches(a, 'W', 'o1', only=_b)
    a.wait_vm(q_w2)
    bar(a, 'd1')
    for i in range(W3N, 10):
        w3(i)
    sp_batches(a, 'W', 'd1', only=0)
    stg.load(3)
    for _b in range(1, 4):
        if SASSIGN.get(('W', 'd1', _b)):
            a('s_waitcnt lgkmcnt(0)')
            sp_batches(a, 'W', 'd1', only=_b)
    bar(a, 'x2')
    w3(10)
    w3(11)
    sp_batches(a, 'W', 'x2', only=0)
    stg.load(4)
    for _b in range(1, 4):
        if SASSIGN.get(('W', 'x2', _b)):
            a('s_waitcnt lgkmcnt(0)')
            sp_batches(a, 'W', 'x2', only=_b)
    q4 = {}
    nxt = [0]

    def w4(after):
        while nxt[0] < NP4 and W4T[nxt[0]] == after:
            i = nxt[0]
            n = 8 if i < NP4 - 1 else 4
            for j in range(0, n if i not in STGP else 0, 2):
                a('s_add_u32 m0, s32, 0x%x' % (8192 * W4P[i] + j * 1024))
                a('s_mov_b32 s30, 0x%x' % ((i * 64 + 8 * j) * 1024))
                q4[i] = a('buffer_load_dwordx4 v12, %s, s30 offen lds' % sr(S_W2))
            nxt[0] += 1
    for g, (lo, hi) in enumerate(G96):
        a.wait_vm(q3[hi - 1])
        stamp(a, 3 + g, 3)
        bar(a, 'q%d' % g)
        if g == 0:
            for k in (12, 13, 14):
                w3(k)
        if g == 2:
            w3(15)
        stg.write('q%d' % g)
        w4('q%d' % g)
        sp_batches(a, 'W', 'q%d' % g)
    assert 0 not in STGP and 1 not in STGP
    a.wait_vm(q4[1])
    bar(a, 'e3')
    stg.write('e3')
    if env('W4SL', 0):
        a('s_sleep %d' % env('W4SL', 0))
    w4('e3')
    a.wait_vm(max(q4[i] for i in range(NPUB0) if i in q4), ' lgkmcnt(0)' if NSTG else '')
    stamp(a, 12, 3)
    bar(a, 'r0')
    w4('r0')
    assert nxt[0] == NP4
    a('s_waitcnt vmcnt(0) lgkmcnt(0)')
    stamp(a, 13, 3)
    wbl(a, 1, 8)
    bar(a, 'r1')
    wbl(a, 2, 8)
    stamp_store(a)
    a('s_endpgm')


def prod_a(a):
    a.label('prod_a')
    a.hist = []
    a.vm_issued = 0
    a.bars = []
    nt = 4
    a('s_sub_u32 s35, s20, 10')
    a('s_mul_i32 s32, s35, %d' % (nt * 1024))
    a('s_mul_i32 s31, s35, %d' % (nt * 16))
    a('s_add_u32 s31, s31, s21')
    a('s_lshl_b32 s31, s31, 10')
    a('v_lshlrev_b32 v15, 1, v2')
    a('v_mov_b32 v14, 0x78')
    a('v_lshrrev_b32 v15, v15, v14')
    a('v_and_b32 v15, 3, v15')
    a('v_xor_b32 v15, v15, v5')
    a('v_lshrrev_b32 v7, 2, v1')
    a('v_lshlrev_b32 v7, 10, v7')
    a('v_lshl_add_u32 v7, v15, 4, v7')
    a('v_add_u32 v7, s31, v7')

    def aissue1(i):
        a('s_add_u32 s29, s39, %d' % i)
        a('s_and_b32 s29, s29, 15')
        a('s_lshl_b32 s29, s29, 6')
        for rt in range(nt):
            a('s_add_u32 m0, s32, 0x%x' % ((i % NS1) * SLOT + 6144 + rt * 1024))
            a('s_add_u32 s30, s29, 0x%x' % (rt * 16384))
            q = a('buffer_load_dwordx4 v7, %s, s30 offen %slds' % (sr(S_X), NT('x')))
        return q
    a('v_lshlrev_b32 v23, 2, v1')
    RDY_G = env('RDY_G', 9)

    def pre(j):
        if j == 1:
            fin_rest(a)
        if j >= 1:
            sp_batches(a, 'A', 'g%d' % (j - 1))
        if j == 0:
            a('v_mov_b32 v24, 0')
            a('v_mov_b32 v25, 0x%x' % CTRL)
            a('ds_write_b32 v25, v24')
            a('s_waitcnt lgkmcnt(0)')
    ring_loop(a, 16, NS1, LAG1, nt, aissue1, G96, 'g', pre=pre)
    sp_batches(a, 'A', 'g8')
    a('v_lshrrev_b32 v26, 1, v1')
    a('v_lshlrev_b32 v26, 7, v26')

    def ready_check(tag, tries):
        L = lambda n: 'pa_%s%s' % (n, tag)
        a('s_cmp_lg_u32 s20, 10')
        a('s_cbranch_scc1 %s' % L('nr'))
        a('s_cmp_lg_u32 s3, 0')
        a('s_cbranch_scc1 %s' % L('nr'))
        a('s_mov_b32 s28, %d' % tries)
        a('s_mov_b32 s29, 1')
        a('s_branch %s' % L('r1'))
        a.label(L('rp'))
        a('s_sleep 4')
        a.label(L('r1'))
        a('s_sub_u32 s28, s28, 1')
        a('s_cbranch_scc1 %s' % (L('nr') if tries < 16 else L('rd')))
        a('buffer_load_dword v22, v23, %s, 0 offen sc1' % sr(S_DBG))
        a('s_waitcnt vmcnt(0)')
        a('v_and_b32 v24, 0xff, v22')
        a('v_cmp_ne_u32 vcc, 32, v24')
        a('s_and_b32 vcc_lo, vcc_lo, 0x01010101')
        a('s_and_b32 vcc_hi, vcc_hi, 0x01010101')
        a('s_cmp_lg_u64 vcc, 0')
        a('s_cbranch_scc1 %s' % L('rp'))
        a('s_getreg_b32 s30, hwreg(HW_REG_XCC_ID, 0, 4)')
        a('s_mul_i32 s31, s30, s30')
        a('s_lshl_b32 s31, s31, 23')
        a('s_lshl_b32 s30, s30, 13')
        a('s_add_u32 s30, s30, s31')
        a('s_add_u32 s30, s30, 32')
        a('v_cmp_ne_u32 vcc, s30, v22')
        a('s_and_b32 s31, s2, 7')
        a('s_lshl_b32 s31, s31, 3')
        a('s_lshr_b64 s[26:27], vcc, s31')
        a('s_and_b32 s26, s26, 1')
        a('s_cmp_eq_u32 s26, 0')
        a('s_cselect_b32 s29, %d, 1' % (1 if FORCE_SLOW else 3))
        a.label(L('rd'))
        stamp(a, 12, 1)
        a('s_mov_b32 s3, 1')
        a('v_mov_b32 v24, s29')
        a('v_mov_b32 v25, 0x%x' % CTRL)
        a('ds_write_b32 v25, v24')
        a('s_and_b32 s30, s2, 7')
        a('s_lshl_b32 s30, s30, 8')
        a('s_add_u32 s30, s30, 0x%x' % WS_FLAG)
        a('v_and_b32 v24, 1, v1')
        a('v_lshlrev_b32 v24, 7, v24')
        a('v_bfe_u32 v25, v1, 1, 2')
        a('v_min_u32 v25, 2, v25')
        a('v_lshl_add_u32 v24, v25, 11, v24')
        a('buffer_load_dword v27, v24, %s, s30 offen sc1' % sr(S_WS))
        a.label(L('nr'))
        a.vm_issued -= 2

    def paced(n):
        if not n:
            return
        lb, le = uid('pt'), uid('pe')
        a('s_cmp_lg_u32 s20, 11')
        a('s_cbranch_scc1 %s' % lb)
        for w in range(2):
            if w:
                a('s_branch %s' % le)
                a.label(lb)
                a('s_sleep %d' % (T_SL // 2))
            m = (n + 1 - w) // 2
            for i in range(m):
                if touch_item(a, 26, 27):
                    a.vm_issued -= 1
                    if i + 1 < m:
                        a('s_sleep %d' % T_SL)
        a.label(le)
    paced(T_PA[0])
    stg = Stager(a, 0)
    stg.setup()
    bar(a, 'e1')
    sp_batches(a, 'A', 'e1', only=0)
    if T_PA[1]:
        a('s_sleep %d' % env('T_D1', 10))
    paced(T_PA[1])
    if SASSIGN.get(('A', 'e1', 1)):
        a('s_waitcnt lgkmcnt(0)')
        sp_batches(a, 'A', 'e1', only=1)
    stg.load(0)
    a('s_sleep %d' % env('RDY_SL', 8))
    ready_check('a', 1)
    bar(a, 'e2')
    ready_check('b', 4 * TMO)
    paced(T_PA[2])
    sp_batches(a, 'A', 'e2', only=0)
    stg.load(1)
    for _b in range(1, 4):
        if SASSIGN.get(('A', 'e2', _b)):
            a('s_waitcnt lgkmcnt(0)')
            sp_batches(a, 'A', 'e2', only=_b)
    bar(a, 'o1')
    paced(T_PA[3])
    sp_batches(a, 'A', 'o1', only=0)
    stg.load(2)
    for _b in range(1, 4):
        if SASSIGN.get(('A', 'o1', _b)):
            a('s_waitcnt lgkmcnt(0)')
            sp_batches(a, 'A', 'o1', only=_b)
    bar(a, 'd1')
    paced(T_PA[4])
    sp_batches(a, 'A', 'd1', only=0)
    stg.load(3)
    for _b in range(1, 4):
        if SASSIGN.get(('A', 'd1', _b)):
            a('s_waitcnt lgkmcnt(0)')
            sp_batches(a, 'A', 'd1', only=_b)
    map3(a)
    a('s_mul_i32 s31, s35, %d' % (nt * 16))
    a('s_add_u32 s31, s31, s21')
    a('s_lshl_b32 s31, s31, 12')
    a('v_add_u32 v7, s31, v6')
    a('s_and_b32 s36, s2, 7')
    a('s_lshl_b32 s36, s36, 8')
    a('s_lshr_b32 s31, s2, 3')
    a('s_and_b32 s31, s31, 1')
    a('s_lshl_b32 s31, s31, 1')
    a('s_add_u32 s31, s31, s35')
    a('s_lshl_b32 s31, s31, 6')
    a('s_add_u32 s36, s36, s31')
    a('s_add_u32 s36, s36, 0x%x' % (WS_FLAG + 2048))
    bar(a, 'x2')
    sp_batches(a, 'A', 'x2', only=0)
    poll_flags(a, 36, 16, 23, 22)
    stamp(a, 2, 3)

    def aissue3(i):
        for rt in range(nt):
            a('s_add_u32 m0, s32, 0x%x' % (a3addr(i) + rt * 1024))
            a('s_mov_b32 s30, 0x%x' % (OFF_H + rt * 65536 + i * 1024))
            q = a('buffer_load_dwordx4 v7, %s, s30 offen sc1 lds' % sr(S_WS))
        return q
    ring_loop(a, 16, 8, env('LAG3', 8), nt, aissue3, G96, 'q', pre=lambda j: (stg.write('q%d' % (j - 1)), sp_batches(a, 'A', 'q%d' % (j - 1))))
    sp_batches(a, 'A', 'q8')
    paced(T_PA[5])
    wbl(a, 4, 10)
    stamp_store(a)
    a('s_endpgm')


def gen(a):
    a.raw('.globl %s' % NAME)
    a.raw('.p2align 8')
    a.raw('.type %s,@function' % NAME)
    a.label(NAME)
    a.bars = []
    a('s_cmp_ge_u32 s2, 256')
    a('s_cbranch_scc1 mega_exit')
    stamp_real(a, 0)
    stamp(a, 1)
    for s, off in ((S_X, 0), (S_WQ, 8), (S_WP, 16), (S_WS, 88), (S_WO, 24), (S_W1, 40), (S_W2, 56), (S_B1, 48), (S_B2, 64), (S_OUT, 72), (S_DBG, 80)):
        srd(a, s, off)
    lane_decomp(a)
    a('s_add_u32 s21, s20, 8')
    a('s_sub_u32 s20, s20, 4')
    a('s_cselect_b32 s20, s21, s20')
    a('s_mov_b32 s%d, 0' % FAST)
    code_pf(a, 1, env('CPW', 0))
    a('s_and_b32 s30, s2, 7')
    a('s_lshr_b32 s31, s2, 3')
    a('s_lshr_b32 s21, s30, 1')
    a('s_lshl_b32 s21, s21, 2')
    a('s_and_b32 s22, s31, 3')
    a('s_add_u32 s33, s21, s22')
    a('s_and_b32 s21, s30, 1')
    a('s_lshl_b32 s21, s21, 3')
    a('s_lshr_b32 s22, s31, 2')
    a('s_add_u32 s34, s21, s22')
    if env('HGS', 4):
        a('s_xor_b32 s34, s34, %d' % env('HGS', 4))
    if env('HGX', 0):
        a('s_cmp_eq_u32 s22, 7')
        a('s_cselect_b32 s21, 8, 0')
        a('s_xor_b32 s34, s34, s21')
    a('s_lshl_b32 s21, s33, 7')
    a('s_lshl_b32 s22, s34, 6')
    a('s_lshl_b32 s39, s33, 1')
    a('s_add_u32 s39, s39, s34')
    a('s_lshl_b32 s39, s39, 1')
    a('s_waitcnt lgkmcnt(0)')
    srd_fin(a, S_X, 2048 * 1024)
    srd_fin(a, S_WQ, 512 * 3072)
    srd_fin(a, S_WP, 16384)
    srd_fin(a, S_WS, WS_SIZE)
    a('s_cmp_ge_u32 s20, 10')
    a('s_cbranch_scc1 prod_a')
    a('s_cmp_ge_u32 s20, 8')
    a('s_cbranch_scc1 prod_w')
    cons_k1(a)
    cons_ko(a)
    cons_k2(a)
    cons_k3(a)
    cons_k4(a)
    stamp_store(a)
    a.label('mega_exit')
    a('s_endpgm')
    bc = a.bars
    prod_w(a)
    assert a.bars == bc[:len(a.bars)], (a.bars, bc)
    prod_a(a)
    assert a.bars == bc[:len(a.bars)], (a.bars, bc)
    a.label('mega_end')


def build():
    if NAME == 'mega_kernel':
        head = '; @launch kernel=%s grid=(256,1,1) block=(768,1,1) lds=163840\n' % NAME
    else:
        head = '; @launch grid=(256,1,1) block=(768,1,1) lds=163840\n'
    head += '.amdgcn_target "amdgcn-amd-amdhsa--gfx950"\n.text\n'
    a = Asm()
    gen(a)
    d = '''.section .rodata,"a"
.p2align 6
.amdhsa_kernel %s
  .amdhsa_next_free_vgpr 168
  .amdhsa_next_free_sgpr 102
  .amdhsa_accum_offset 168
  .amdhsa_group_segment_fixed_size 0
  .amdhsa_kernarg_size 96
  .amdhsa_user_sgpr_count 2
  .amdhsa_user_sgpr_kernarg_segment_ptr 1
  .amdhsa_system_sgpr_workgroup_id_x 1
.end_amdhsa_kernel
''' % NAME
    return head + a.text() + d


if __name__ == '__main__':
    open(sys.argv[1], 'w').write(build())
    if os.environ.get('V'):
        print('W4P', W4P, 'W4T', W4T, 'NPUB0', NPUB0, 'R1_AT', R1_AT, 'touch used', _tnext[0], 'of', len(TITEMS), 'sp', _pos, 'of', len(SLINES))
```

```python
import sys, os
sys.path.insert(0, os.path.dirname(__file__))
from dsl import Asm
from gen2 import MB, env, vr, srd, srd_fin, bf16r, butterfly, lane_decomp, mk_groups, softmax_sets

NAME = os.environ.get('KNAME', 'mega_kernel')
STAMP = os.environ.get('STAMP')
OFF_H, OFF_S = 44032, 60416
PSTR = 1152
WS_PART = 8 * MB
WS_FLAG = 9 * MB + 512 * 1024
WS_STAMP = 15 * MB
WS_SIZE = 16 * MB
FORCE_SLOW = env('FORCE_SLOW', 0)
TMO = 4096

S_X, S_WQ, S_WP, S_WS = 4, 8, 12, 16
S_WO, S_W1, S_W2, S_B1, S_B2, S_OUT, S_DBG = 40, 44, 48, 52, 56, 60, 64
FAST = 3
F0, F1, F2 = 0, 1, 39
BANK = 57344
SLOT = 14336
NS1 = 11
XCH1 = NS1 * SLOT
XCH3 = 159744
CTRL = 161792
KOX = 32768
W2B = 73728
XT = W2B + 65536
LAG1 = env('LAG1', 5)
RDY_KS = env('RDY_KS', 4)
POIS_KS = env('POIS_KS', 0)
RDY_AT = env('RDY_AT', 1)
WAIT_KS = env('WAIT_KS', 4)
LT1 = env('LT1', 1)
BPOS = env('BPOS', 1)
ILV = env('ILV', 1)
PST = env('PST', 0)

TCNT = {'wo': 4, 'x': 2, 'w1': 11, 'w2': 11, 'Fh': 3, 'Fr': 4}
TITEMS = []
for _e in os.environ.get('TLIST', 'wo,x,Fh,w1').split(','):
    if _e:
        _m, _, _hi = _e.partition(':')
        TITEMS += [(_m, i) for i in range(int(_hi or TCNT[_m]))]
T_KS = [int(v) for v in os.environ.get('T_KS', '6,6,7,7,8,8,9,9,9,10,10,10,11,11,11,12,12,12,13,13').split(',') if v]
T_PA = [int(v) for v in os.environ.get('T_PA', '0,0,0,0,0,0').split(',')]
T_SL = env('T_SL', 7)
_tnext = [0]


def NT(m):
    return 'nt ' if m in os.environ.get('NTL', '').split(',') else ''


def sr(s):
    return 's[%d:%d]' % (s, s + 3)


def touch_item(a, vaddr, vdst, s0=30, s1=31):
    if _tnext[0] >= len(TITEMS):
        return False
    m, i = TITEMS[_tnext[0]]
    _tnext[0] += 1
    share_base(a, m, s0, s1)
    a('s_add_u32 s%d, s%d, %d' % (s0, s0, min(i * 4096, SREG[m][1] - 4096)))
    a('buffer_load_dword v%d, v%d, %s, s%d offen %s' % (vdst, vaddr, sr(SREG[m][0]), s0, 'sc1' if m[0] == 'F' else ''))
    return True


SCNT = {'wo': 128, 'x': 64, 'w1': 344, 'w2': 344, 'Fh': 72, 'Fr': 108}
SREG = {'wo': (S_WO, 16384), 'x': (S_X, 8192), 'w1': (S_W1, 44032), 'w2': (S_W2, 44032), 'Fh': (S_WS, 9216), 'Fr': (S_WS, 13824)}
SLINES = []
for _e in os.environ.get('SLIST', 'w2,Fr').split(','):
    if _e:
        _m, _, _lo = _e.partition(':')
        SLINES += [(_m, i) for i in range(int(_lo or 0), SCNT[_m], 2)]
SP_B = env('SP_B', 7)


def _il(n, d):
    return [int(v) for v in os.environ.get(n, d).split(',')]


SP_S = env('SP_S', 0)
SP_G = _il('SP_G', '1,0,1,0,1,0,1,0,1')
SP_H = _il('SP_H', '1,0,1,0,1,0,1,0,1')
SP_W = _il('SP_W', '2,2,1,2,1')
SP_A = _il('SP_A', '1,2,1,2,1')
SP_C = _il('SP_C', '0,0,0,0,0')
SP_Q = _il('SP_Q', '1,0,0,0,1,0,0,0,0')
SP_Q2 = _il('SP_Q2', '1,0,0,0,1,0,0,1,0')
_slots = [('C', 'st', b) for b in range(SP_S)]
for _g in range(9):
    _slots += [('W', 'g%d' % _g, b) for b in range(SP_G[_g])] + [('A', 'g%d' % _g, b) for b in range(SP_H[_g])]
for _w, _nm in enumerate(('e1', 'e2', 'o1', 'd1', 'x2')):
    for _b in range(8):
        for _k, _l in (('W', SP_W), ('A', SP_A), ('C', SP_C)):
            if _b < _l[_w]:
                _slots.append((_k, _nm, _b))
for _g in range(9):
    _slots += [('W', 'q%d' % _g, b) for b in range(SP_Q2[_g])] + [('A', 'q%d' % _g, b) for b in range(SP_Q[_g])]
SASSIGN = {}
_pos = 0
for _sl in _slots:
    _it = []
    while len(_it) < SP_B and _pos < len(SLINES):
        if _sl[0] == 'C':
            _n = min(4, SCNT[SLINES[_pos][0]] // 2 - SLINES[_pos][1] // 2)
            _it.append((SLINES[_pos][0], min(SLINES[_pos][1], SCNT[SLINES[_pos][0]] - 8)))
            _pos += _n
        else:
            _it.append(SLINES[_pos])
            _pos += 1
    SASSIGN[_sl] = _it


def share_base(a, m, r, t):
    a('s_lshr_b32 s%d, s2, 3' % r)
    if m[0] in 'xF':
        a('s_and_b32 s%d, s2, 7' % t)
        a('s_lshl_b32 s%d, s%d, 5' % (t, t))
        a('s_add_u32 s%d, s%d, s%d' % (r, r, t))
    if m[0] == 'F':
        a('s_and_b32 s%d, s%d, 1' % (t, r))
        a('s_mul_i32 s%d, s%d, %d' % (t, t, SREG[m][1]))
        a('s_lshr_b32 s%d, s%d, 1' % (r, r))
        a('s_lshl_b32 s%d, s%d, 16' % (r, r))
        a('s_add_u32 s%d, s%d, s%d' % (r, r, t))
        a('s_add_u32 s%d, s%d, %d' % (r, r, OFF_H if m == 'Fh' else 16384))
    else:
        a('s_mul_i32 s%d, s%d, %d' % (r, r, SREG[m][1]))


def sp_batches(a, kind, win, only=None):
    b = 0
    r, t, w = (30, 31, 20) if kind == 'C' else (24, 27, 35)
    while (kind, win, b) in SASSIGN:
        if SASSIGN[(kind, win, b)] and only in (None, b):
            if b and only is None:
                a('s_waitcnt lgkmcnt(0)')
            cur = None
            for m, i in SASSIGN[(kind, win, b)]:
                if cur != m:
                    share_base(a, m, r, t)
                    a('s_lshl_b32 s%d, s%d, 7' % (t, w))
                    a('s_add_u32 s%d, s%d, s%d' % (r, r, t))
                    cur = m
                a('s_buffer_load_dwordx2 s[100:101], %s, s%d offset:0x%x' % (sr(SREG[m][0]), r, i * 128 + 60))
        b += 1


def stamp(a, i, ps=None):
    if ps is not None and ps != PST:
        return
    if STAMP:
        a('s_memtime s[%d:%d]' % (68 + 2 * i, 69 + 2 * i))


def stamp_real(a, i):
    if STAMP:
        a('s_memrealtime s[%d:%d]' % (68 + 2 * i, 69 + 2 * i))


NSTAMP = 17


def stamp_store(a):
    if not STAMP:
        return
    stamp(a, 15)
    stamp_real(a, 16)
    a('s_waitcnt lgkmcnt(0)')
    a('s_mul_i32 s38, s2, 12')
    a('s_add_u32 s38, s38, s20')
    a('s_lshl_b32 s38, s38, 7')
    a('s_add_u32 s38, s38, 0x%x' % WS_STAMP)
    a('v_mov_b32 v0, 0')
    for i in range(NSTAMP):
        a('v_mov_b32 v1, s%d' % (68 + 2 * i))
        a('buffer_store_dword v1, v0, %s, s38 offen offset:%d' % (sr(S_WS), i * 4))


PBAR = {'e1': 2, 'e2': 3, 'o1': 4, 'd1': 5, 'x2': 6, 'q0': 7, 'e3': 8, 'r0': 9, 'r1': 10, 'g8': 11, 'q8': 12}


def bar(a, name):
    if getattr(a, 'isprod', 0) and name in PBAR:
        stamp(a, PBAR[name], 2)
    a('s_barrier')
    a.bars.append(name)


_uid = [0]


def uid(p):
    _uid[0] += 1
    return 'L%s%d' % (p, _uid[0])


def gstore(a, text):
    ls, le = uid('s'), uid('e')
    a('s_cmp_eq_u32 s%d, 0' % FAST)
    a('s_cbranch_scc1 %s' % ls)
    a(text)
    a('s_branch %s' % le)
    a.label(ls)
    a(text + ' sc1')
    a.label(le)
    a.vm_issued -= 1


def set_flag(a, sf, t0, t1):
    a('v_mov_b32 v%d, 1' % t0)
    a('v_mov_b32 v%d, 0' % t1)
    a('s_waitcnt vmcnt(0)')
    a('s_mov_b64 exec, 1')
    gstore(a, 'buffer_store_byte v%d, v%d, %s, s%d offen' % (t0, t1, sr(S_WS), sf))
    a('s_mov_b64 exec, -1')


def poll_flags(a, sbase, nlanes, vaddr, vt):
    a('s_mov_b64 exec, 0x%x' % ((1 << nlanes) - 1))
    a('s_mov_b32 s28, %d' % (4 * TMO))
    lp, lo = uid('p'), uid('ok')
    a.label(lp)
    a('buffer_load_dword v%d, v%d, %s, s%d offen sc1' % (vt, vaddr, sr(S_WS), sbase))
    a('s_sub_u32 s28, s28, 1')
    a('s_cbranch_scc1 %s' % lo)
    a('s_waitcnt vmcnt(0)')
    a('v_cmp_ne_u32 vcc, 0x01010101, v%d' % vt)
    a('s_cbranch_vccnz %s' % lp)
    a.label(lo)
    a('s_waitcnt vmcnt(0)')
    a('s_mov_b64 exec, -1')


WBL = env('WBL', 0)


def wbl(a, bit, wave):
    if not (WBL & bit):
        return
    l = uid('wbl')
    a('s_lshr_b32 s30, s2, 3')
    a('s_cmp_lg_u32 s30, %d' % env('WBJ', 31))
    a('s_cbranch_scc1 %s' % l)
    a('s_cmp_lg_u32 s20, %d' % wave)
    a('s_cbranch_scc1 %s' % l)
    a.raw('    buffer_wbl2 sc1')
    if bit == 2:
        a.raw('    s_waitcnt vmcnt(0)')
    a.label(l)


def code_pf(a, bit, wave):
    if not (env('CPF', 0) & bit):
        return
    l, pc = uid('cpf'), uid('pc')
    a('s_cmp_lg_u32 s20, %d' % wave)
    a('s_cbranch_scc1 %s' % l)
    a('s_getpc_b64 s[28:29]')
    a.label(pc)
    a('s_sub_u32 s28, s28, %s-%s' % (pc, NAME))
    a('s_subb_u32 s29, s29, 0')
    a('s_lshr_b32 s30, s2, 3')
    a('s_and_b32 s30, s30, 7')
    a('s_lshl_b32 s30, s30, 12')
    a('v_and_b32 v156, 63, v0')
    a('v_lshlrev_b32 v156, 6, v156')
    a('v_add_u32 v156, s30, v156')
    a('v_min_u32 v156, mega_end-%s-4, v156' % NAME)
    a.raw('    global_load_dword v156, v156, s[28:29]')
    a.label(l)


CSP = env('CSP', 0)


def unit_fix(a, dst, u):
    if CSP:
        a('v_lshrrev_b32 v10, 1, v%d' % u)
        a('s_movk_i32 s30, 448')
        a('v_mad_u32_u24 v%d, v10, s30, v%d' % (dst, dst))


QSW = env('QSW', 0)


def fin_rest(a):
    srd_fin(a, S_WO, 512 * 1024)
    srd_fin(a, S_W1, 512 * 2752)
    srd_fin(a, S_W2, 1376 * 1024)
    srd_fin(a, S_B1, 2752)
    srd_fin(a, S_B2, 1024)
    srd_fin(a, S_OUT, 2048 * 1024)
    srd_fin(a, S_DBG, 256)


def map64(a):
    a('s_and_b32 s30, s2, 7')
    a('s_lshr_b32 s31, s2, 3')
    a('s_lshl_b32 s21, s30, 2')
    a('s_and_b32 s22, s31, 3')
    a('s_add_u32 s21, s21, s22')
    a('s_lshr_b32 s22, s31, 2')
    if env('CBX', 1):
        a('s_and_b32 s31, s22, 3')
        a('s_cmp_eq_u32 s31, 3')
        a('s_cselect_b32 s31, 4, 0')
        a('s_xor_b32 s22, s22, s31')
    a('s_lshl_b32 s21, s21, 2')
    a('s_lshl_b32 s22, s22, 7')


def map3(a):
    a('s_and_b32 s30, s2, 7')
    a('s_lshr_b32 s31, s2, 3')
    a('s_lshl_b32 s21, s30, 1')
    a('s_and_b32 s22, s31, 1')
    a('s_add_u32 s33, s21, s22')
    a('s_lshr_b32 s34, s31, 1')
    a('s_lshl_b32 s21, s33, 7')
    a('s_min_u32 s22, s34, 14')
    a('s_mul_i32 s22, s22, 192')


G96 = mk_groups(16, '1,1,2')
GST = [lo for lo, hi in G96]
W3A = {9: 151552, 10: 139264, 11: 145408, 15: 0}
for _m in range(5):
    W3A[_m] = 6144 * _m
for _m in range(4):
    W3A[5 + _m] = 49152 + 6144 * _m
for _m in range(3):
    W3A[12 + _m] = 30720 + 6144 * _m


def a3addr(i):
    return W2B + 8192 * (i % 8)


NP4 = 22
_last = {}
for _ks in range(16):
    for _lo, _n in ((W3A[_ks], 6144), (a3addr(_ks), 8192)):
        for _p in range(_lo // 8192, (_lo + _n - 1) // 8192 + 1):
            _last[_p] = max(_last.get(_p, -1), _ks)
W4Q0 = env('W4Q0', 3)


def _free_bar(ks):
    for g in range(len(GST)):
        if GST[g] - 2 >= ks:
            return max(g, W4Q0)
    return 9


_ordp = sorted(range(19), key=lambda p: (_free_bar(_last[p]), p))
W4P = _ordp + [19, _ordp[0], _ordp[1]]
W4T = [('q%d' % _free_bar(_last[p]) if _free_bar(_last[p]) < 9 else 'e3') for p in _ordp] + ['r0', 'r0', 'r0']
NPUB0 = sum(1 for t in W4T if t[0] == 'q')
R1_AT = NPUB0 - 2

GB = (48, 72, 132)
ACC = 96
RS, GR, CSA = 120, 124, 128
ONES = 16
VW, VC, VA, VP = 8, 11, 40, 43
HKEEP = 160


def gemm96_main(a, mode, waddr, aaddr, XCH, bn, en, extra, hook, st):
    k1 = mode == 'k1'
    gstart = {lo: g for g, (lo, hi) in enumerate(G96)}
    a('s_lshl_b32 s23, s20, 4')
    a('s_add_u32 s24, s21, s23')
    a('s_xor_b32 s37, s24, 16')
    a('s_and_b32 s36, s20, 1')
    extra(a)
    a('v_lshl_add_u32 v8, v2, %d, v4' % (3 if k1 else 2))
    a('v_lshlrev_b32 v8, 6, v8')
    a('v_lshl_add_u32 v8, v5, 3, v8')
    a('v_and_b32 v15, 1, v2')
    a('v_lshlrev_b32 v15, 5, v15')
    a('s_sub_u32 s26, s20, 6')
    a('s_cmp_lt_u32 s20, 6')
    a('s_cselect_b32 s26, s20, s26')
    a('s_lshr_b32 s27, s26, 1')
    a('s_lshl_b32 s27, s27, 11')
    a('s_lshl_b32 s28, s36, 5')
    a('v_xor_b32 v15, s28, v15')
    a('v_add_u32 v%d, v8, v15' % VW)
    a('v_add_u32 v%d, s27, v%d' % (VC, VW))
    a('s_lshl_b32 s35, s20, 10')
    if k1:
        a('v_lshlrev_b32 v15, 1, v4')
        a('v_mov_b32 v14, 0x78')
        a('v_lshrrev_b32 v15, v15, v14')
        a('v_and_b32 v15, 3, v15')
        a('v_xor_b32 v15, v15, v2')
        a('v_lshlrev_b32 v15, 4, v15')
        a('v_lshl_add_u32 v15, v3, 6, v15')
        a('v_add_u32 v%d, s35, v15' % VA)
    else:
        a('v_add_u32 v%d, s35, v6' % VA)
    a('v_xor_b32 v%d, 0x400, v%d' % (VP, VA))
    for b in range(1, 3):
        for r in (VW, VC, VA, VP):
            a('v_add_u32 v%d, 0x%x, v%d' % (r + b, b * BANK, r))
    for i in range(4):
        a('v_mov_b32 v%d, 0x3f803f80' % (ONES + i))
    eoff = 256 if k1 else 1024

    def rlist(ks):
        b = GB[ks % 3]
        ab, ao = divmod(aaddr(ks), BANK)
        wb, wo = divmod(waddr(ks), BANK)
        r = ['ds_read_b128 %s, v%d offset:%d' % (vr(b, 4), VA + ab, ao)]
        for seg in range(3):
            for e in range(2):
                r.append('ds_read_b64_tr_b16 %s, v%d offset:%d' % (vr(b + 8 + 4 * seg + 2 * e, 2), VW + wb, wo + seg * 2048 + e * eoff))
            if seg == 1:
                r.append('ds_read_b128 %s, v%d offset:%d' % (vr(b + 4, 4), VP + ab, ao))
        for e in range(2):
            r.append('ds_read_b64_tr_b16 %s, v%d offset:%d' % (vr(b + 20 + 2 * e, 2), VC + wb, wo + e * eoff))
        return r

    def reads(ks):
        for r in rlist(ks):
            a(r)

    if not k1:
        a('s_waitcnt lgkmcnt(0)')
    hook(a, -2, 0)
    bar(a, bn + '0')
    stamp(a, st[0])
    reads(0)
    hook(a, -2, 1)
    bar(a, bn + '1')
    reads(1)
    for ks in range(16):
        b = GB[ks % 3]

        def cop(r):
            return '0' if ks == 0 else vr(r, 4)
        mf = []
        for p in range(2):
            for seg in range(3):
                ac = ACC + 4 * (3 * p + seg)
                mf.append('v_mfma_f32_16x16x32_bf16 %s, %s, %s, %s' % (vr(ac, 4), vr(b + 8 + 4 * seg, 4), vr(b + 4 * p, 4), cop(ac)))
        mf.append('v_mfma_f32_16x16x32_bf16 %s, %s, %s, %s' % (vr(CSA, 4), vr(b + 20, 4), vr(ONES, 4), cop(CSA)))
        if k1:
            mf.append('v_mfma_f32_16x16x32_bf16 %s, %s, %s, %s' % (vr(RS, 4), vr(ONES, 4), vr(b, 4), cop(RS)))
            mf.append('v_mfma_f32_16x16x32_bf16 %s, %s, %s, %s' % (vr(GR, 4), vr(b, 4), vr(b, 4), cop(GR)))
        a('s_waitcnt lgkmcnt(%d)' % (10 if ks < 15 else 0))
        for m in mf[:BPOS]:
            a(m)
        hook(a, ks, 0)
        rl = []
        if ks + 2 < 16:
            if ks + 2 in gstart:
                bar(a, bn + str(gstart[ks + 2]))
            rl = rlist(ks + 2)
        rest = mf[BPOS:]
        if ILV:
            per = -(-len(rl) // max(1, len(rest) - ILV + 1))
            for m in rest:
                for r in rl[:per]:
                    a(r)
                rl = rl[per:]
                a(m)
            assert not rl
            hook(a, ks, 1)
        else:
            for r in rl:
                a(r)
            hook(a, ks, 1)
            for m in rest:
                a(m)
    stamp(a, st[1])
    a('v_lshlrev_b32 v15, 4, v2')
    a('s_lshl_b32 s27, s26, 6')
    a('s_add_u32 s27, s27, 0x%x' % XCH)
    a('v_add_u32 v14, s27, v15')
    a('ds_write_b128 v14, %s' % vr(CSA, 4))

    def finish_stats(SUM, SQ, M, RD):
        a('v_mul_f32 v%d, 0x3b000000, v%d' % (SUM, SUM))
        a('v_mul_f32 v%d, 0x3b000000, v%d' % (SQ, SQ))
        a('v_fma_f32 v%d, -v%d, v%d, v%d' % (SQ, SUM, SUM, SQ))
        a('v_max_f32 v%d, 0, v%d' % (SQ, SQ))
        bf16r(a, M, SUM)
        bf16r(a, SQ, SQ)
        a('v_add_f32 v%d, 0x3727c5ac, v%d' % (SQ, SQ))
        bf16r(a, SQ, SQ)
        a('v_sqrt_f32 v%d, v%d' % (SQ, SQ))
        bf16r(a, SQ, SQ)
        a('v_rcp_f32 v%d, v%d' % (RD, SQ))

    if k1:
        SUM, SQ = 72, 73
        a('v_cmp_eq_u32 vcc, 1, v5')
        a('v_cndmask_b32 v%d, v%d, v%d, vcc' % (SQ, GR, GR + 1))
        a('v_cmp_eq_u32 vcc, 2, v5')
        a('v_cndmask_b32 v%d, v%d, v%d, vcc' % (SQ, SQ, GR + 2))
        a('v_cmp_eq_u32 vcc, 3, v5')
        a('v_cndmask_b32 v%d, v%d, v%d, vcc' % (SQ, SQ, GR + 3))
        a('v_cmp_eq_u32 vcc, v2, v4')
        a('v_cndmask_b32 v%d, 0, v%d, vcc' % (SQ, SQ))
        a('v_mov_b32 v%d, v%d' % (SUM, RS))
        butterfly(a, [('v_add_f32', SQ, 76)])
        finish_stats(SUM, SQ, 36, 37)
        a('s_lshl_b32 s27, s20, 7')
        a('s_add_u32 s27, s27, 0x%x' % (XCH + 512))
        a('v_lshlrev_b32 v74, 3, v3')
        a('v_add_u32 v75, s27, v74')
        a('ds_write_b64 v75, v[36:37]')
        a('v_xor_b32 v75, 0x80, v75')
    a('s_lshl_b32 s27, s36, 6')
    a('s_add_u32 s27, s27, 0x%x' % XCH)
    a('v_add_u32 v15, s27, v15')
    hook(a, 16, 0)
    a('s_waitcnt lgkmcnt(0)')
    bar(a, en)
    if k1:
        a('ds_read_b64 v[38:39], v75')
    for seg in range(3):
        a('ds_read_b128 %s, v15 offset:%d' % (vr(132 + 4 * seg, 4), seg * 128))
    hook(a, 16, 1)
    if not k1:
        return
    for p in range(2):
        for seg in range(3):
            if p == 0:
                a('s_waitcnt lgkmcnt(%d)' % (2 - seg))
            ac = ACC + 4 * (3 * p + seg)
            for r in range(4):
                a('v_fma_f32 v%d, -v%d, v%d, v%d' % (ac + r, 36 + 2 * p, 132 + 4 * seg + r, ac + r))
            for r in range(4):
                a('v_mul_f32 v%d, v%d, v%d' % (ac + r, 37 + 2 * p, ac + r))
    gemm96_main.finish_stats = finish_stats


S_MASK, S_PART, S_PQ = 96, 98, 99
V_PART, V_L8 = 164, 165


def part_store(a, r, cvt):
    lz, le = uid('z'), uid('e')
    a('s_bitcmp1_b32 s20, 1')
    a('s_cbranch_scc1 %s' % lz)
    if cvt:
        a('v_cvt_pk_bf16_f32 v%d, v%d, v%d' % (r, r, r + 1))
        a('v_cvt_pk_bf16_f32 v%d, v%d, v%d' % (r + 1, r + 2, r + 3))
    a('buffer_store_dwordx2 %s, v%d, %s, s%d offen sc1' % (vr(r, 2), V_L8, sr(S_WS), S_PART))
    a('s_branch %s' % le)
    a.label(lz)
    a('s_mov_b64 exec, s[%d:%d]' % (S_MASK, S_MASK + 1))
    a('buffer_store_dwordx4 %s, v%d, %s, s%d offen sc1' % (vr(r, 4), V_PART, sr(S_WS), S_PART))
    a('s_mov_b64 exec, -1')
    a.label(le)


def cons_k1(a):
    XCH = XCH1

    def extra(a):
        if LT1:
            a('s_and_b32 s30, s2, 1')
            a('s_or_b32 s30, s30, s20')
            a('s_cmp_lg_u32 s30, 0')
            a('s_cbranch_scc1 k1_nlt')
            a('s_lshr_b32 s30, s2, 3')
            a('s_mul_i32 s30, s30, %d' % (48 * 1024))
            a('v_min_u32 v15, 47, v1')
            a('v_lshlrev_b32 v15, 10, v15')
            if env('LTS', 0):
                a('s_sleep %d' % env('LTS', 0))
            a('buffer_load_dword v156, v15, %s, s30 offen offset:384' % sr(S_WQ))
            if env('LTH', 0):
                a('buffer_load_dword v156, v15, %s, s30 offen offset:448' % sr(S_WQ))
            a.label('k1_nlt')
        a('s_lshl_b32 s31, s34, 10')
        a('s_lshl_b32 s27, s36, 9')
        a('s_add_u32 s31, s31, s27')
        a('s_lshl_b32 s30, s24, 12')
        a('s_add_u32 s%d, s30, s31' % S_PQ)
        if QSW:
            a('s_xor_b32 s%d, s%d, 0x1000' % (S_PQ, S_PQ))
        a('s_xor_b32 s29, s%d, 0x10000' % S_PQ)
        a('v_lshlrev_b32 v%d, 3, v1' % V_L8)
        for i in range(4):
            a('v_mov_b32 v%d, -1' % (28 + i))
        a('s_lshl_b32 s30, s33, 5')
        a('s_lshl_b32 s31, s34, 1')
        a('s_add_u32 s30, s30, s31')
        a('s_lshr_b32 s31, s20, 2')
        a('s_add_u32 s30, s30, s31')
        a('s_mul_i32 s30, s30, %d' % PSTR)
        a('s_add_u32 s30, s30, 0x%x' % WS_PART)
        a('s_and_b32 s31, s20, 3')
        a('s_lshl_b32 s27, s31, 9')
        a('s_lshl_b32 s28, s31, 6')
        a('s_add_u32 s28, s28, %d' % (1024 - 128))
        a('s_cmp_lt_u32 s31, 2')
        a('s_cselect_b32 s27, s27, s28')
        a('s_add_u32 s%d, s30, s27' % S_PART)
        a('v_lshlrev_b32 v%d, 4, v2' % V_PART)
        a('s_mov_b32 s%d, 0x00010001' % S_MASK)
        a('s_mov_b32 s%d, 0x00010001' % (S_MASK + 1))
        a('s_and_b32 s30, s2, 7')
        a('s_lshl_b32 s30, s30, 8')
        a('s_add_u32 s30, s30, 0x%x' % WS_FLAG)
        a('s_lshr_b32 s31, s2, 3')
        a('s_lshl_b32 s27, s20, 5')
        a('s_add_u32 s27, s27, s31')
        a('s_add_u32 s%d, s30, s27' % F0)
        a('s_and_b32 s27, s31, 3')
        a('s_lshl_b32 s27, s27, 6')
        a('s_lshr_b32 s28, s31, 2')
        a('s_lshl_b32 s28, s28, 3')
        a('s_add_u32 s27, s27, s28')
        a('s_add_u32 s27, s27, s20')
        a('s_add_u32 s27, s27, 2048')
        a('s_add_u32 s%d, s30, s27' % F1)
        a('s_and_b32 s27, s31, 1')
        a('s_lshl_b32 s27, s27, 7')
        a('s_and_b32 s28, s31, 30')
        a('s_add_u32 s27, s27, s28')
        a('s_lshr_b32 s28, s20, 1')
        a('s_lshl_b32 s28, s28, 5')
        a('s_add_u32 s27, s27, s28')
        a('s_add_u32 s27, s27, s36')
        a('s_add_u32 s27, s27, 4096')
        a('s_add_u32 s%d, s30, s27' % F2)
        fin_rest(a)
        a('v_lshrrev_b32 v157, 1, v1')
        a('v_lshlrev_b32 v157, 7, v157')
        a('v_lshlrev_b32 v24, 2, v2')
        a('v_sub_u32 v24, v3, v24')
        a('v_mov_b32 v26, 0x3f80')
        a('v_mov_b32 v27, 0x3f800000')
        a('v_cmp_eq_u32 vcc, 0, v24')
        a('v_cndmask_b32 v20, 0, v26, vcc')
        a('v_cmp_eq_u32 vcc, 1, v24')
        a('v_cndmask_b32 v21, 0, v27, vcc')
        a('v_or_b32 v20, v20, v21')
        a('v_cmp_eq_u32 vcc, 2, v24')
        a('v_cndmask_b32 v21, 0, v26, vcc')
        a('v_cmp_eq_u32 vcc, 3, v24')
        a('v_cndmask_b32 v25, 0, v27, vcc')
        a('v_or_b32 v21, v21, v25')
        a('v_lshl_add_u32 v22, v2, 2, v4')
        a('v_lshlrev_b32 v22, 5, v22')
        a('v_lshl_add_u32 v22, v5, 3, v22')
        a('s_lshl_b32 s30, s36, 9')
        a('s_add_u32 s30, s30, 0x%x' % (XCH + 2048))
        a('v_add_u32 v22, s30, v22')
        sp_batches(a, 'C', 'st')

        if POIS_KS < -2:
            poison(a)

    def poison(a):
        a('s_xor_b32 s29, s%d, 0x10000' % S_PQ)
        a('buffer_store_dwordx2 v[28:29], v%d, %s, s%d offen sc1' % (V_L8, sr(S_WS), S_PQ))
        a('buffer_store_dwordx2 v[28:29], v%d, %s, s29 offen sc1' % (V_L8, sr(S_WS)))
        part_store(a, 28, False)
        a('s_lshr_b32 s30, s2, 3')
        a('s_or_b32 s30, s30, s20')
        a('s_cmp_lg_u32 s30, 0')
        a('s_cbranch_scc1 k1_nfc')
        a('v_lshlrev_b32 v23, 11, v2')
        a('v_lshl_add_u32 v23, v3, 4, v23')
        for i in range(4):
            a('v_mov_b32 v%d, 0' % (24 + i))
        a('s_mov_b32 s30, -1')
        a('s_mov_b32 s31, 0xffff')
        a('s_mov_b64 exec, s[30:31]')
        a('buffer_store_dwordx4 v[24:27], v23, %s, s%d offen sc1' % (sr(S_WS), F0))
        a('s_mov_b64 exec, -1')
        a.label('k1_nfc')

    def hook(a, ks, ph):
        if ks == POIS_KS and ph == 1:
            poison(a)
        if ks == WAIT_KS and ph == 0:
            assert any(WAIT_KS <= k <= RDY_KS and (k + 2 in GST or k == 16) for k in range(-2, 17)) and POIS_KS < WAIT_KS
            a('s_waitcnt vmcnt(0)')
        if ks == RDY_KS and ph == 1:
            a('s_cmp_lg_u32 s20, 0')
            a('s_cbranch_scc1 c_nrdy')
            a('s_getreg_b32 s30, hwreg(HW_REG_XCC_ID, 0, 4)')
            a('s_and_b32 s31, s2, 7')
            a('s_lshl_b32 s31, s31, 5')
            if RDY_AT:
                a('s_mul_i32 s29, s30, s30')
                a('s_lshl_b32 s29, s29, 18')
                a('s_lshl_b32 s30, s30, 8')
                a('s_add_u32 s30, s30, s29')
                a('s_add_u32 s30, s30, 1')
            else:
                a('s_or_b32 s30, s30, 0x80')
                a('s_lshr_b32 s29, s2, 3')
                a('s_add_u32 s31, s31, s29')
            a('v_mov_b32 v23, s30')
            a('v_mov_b32 v24, 0')
            a('s_mov_b64 exec, 1')
            if RDY_AT:
                a('buffer_atomic_add v23, v24, %s, s31 offen' % sr(S_DBG))
            else:
                a('buffer_store_byte v23, v24, %s, s31 offen sc1' % sr(S_DBG))
            a('s_mov_b64 exec, -1')
            a.label('c_nrdy')
        for oc in range(T_KS.count(ks) if ph == 1 else 0):
            lb = uid('t')
            a('s_cmp_lg_u32 s20, %d' % ((ks + 3 * oc) & 7))
            a('s_cbranch_scc1 %s' % lb)
            touch_item(a, 157, 156)
            a.label(lb)

    gemm96_main(a, 'k1', lambda ks: (ks % NS1) * SLOT, lambda ks: (ks % NS1) * SLOT + 6144, XCH, 'g', 'e1', extra, hook, (2, 3))
    a('ds_read_b64_tr_b16 v[26:27], v22')
    if QSW:
        a('ds_read_b64_tr_b16 v[24:25], v22 offset:1024')
    PK = 144
    for t in range(6):
        a('v_cvt_pk_bf16_f32 v%d, v%d, v%d' % (PK + 2 * t, ACC + 4 * t, ACC + 4 * t + 1))
        a('v_cvt_pk_bf16_f32 v%d, v%d, v%d' % (PK + 1 + 2 * t, ACC + 4 * t + 2, ACC + 4 * t + 3))
    a('s_waitcnt lgkmcnt(0)')
    PB = 48
    for s in range(4):
        src = PK + 2 * (3 * (s & 1) + (1 - (s >> 1)))
        a('v_mfma_f32_16x16x16_bf16 %s, %s, %s, 0' % (vr(PB + 4 * s, 4), 'v[24:25]' if QSW and s >= 2 else 'v[26:27]', vr(src, 2)))
    TV = 64
    for p in range(2):
        a('v_mfma_f32_16x16x16_bf16 %s, %s, v[20:21], 0' % (vr(TV + 4 * p, 4), vr(PK + 2 * (3 * p + 2), 2)))
    TB = 72
    for s in (2, 3, 0, 1):
        p = PB + 4 * s
        a('v_cvt_pk_bf16_f32 v%d, v%d, v%d' % (TB + 12 * s + 2, p, p + 1))
        a('v_cvt_pk_bf16_f32 v%d, v%d, v%d' % (TB + 12 * s + 3, p + 2, p + 3))
    def pq_stores():
        a('s_xor_b32 s30, s%d, 0x10000' % S_PQ)
        a('buffer_store_dwordx2 %s, v%d, %s, s%d offen sc1' % (vr(TB + 12 * 2 + 2, 2), V_L8, sr(S_WS), S_PQ))
        a('buffer_store_dwordx2 %s, v%d, %s, s30 offen sc1' % (vr(TB + 12 * 3 + 2, 2), V_L8, sr(S_WS)))
    if not env('PQL', 1):
        pq_stores()
    FB = 120
    sp_batches(a, 'C', 'e1')
    softmax_sets(a, 2, PB, TB, FB, 28)
    if env('PQL', 1):
        pq_stores()
    for p in range(2):
        for pm in range(2):
            a('v_mfma_f32_16x16x16_bf16 %s, %s, v[20:21], 0' % (vr(72 + 4 * (2 * p + pm), 4), vr(FB + 4 * p + 2 * pm, 2)))
    for p in range(2):
        a('v_cvt_pk_bf16_f32 v%d, v%d, v%d' % (88 + 2 * p, TV + 4 * p, TV + 4 * p + 1))
        a('v_cvt_pk_bf16_f32 v%d, v%d, v%d' % (89 + 2 * p, TV + 4 * p + 2, TV + 4 * p + 3))
    for i in range(4):
        a('v_cvt_pk_bf16_f32 v%d, v%d, v%d' % (92 + 2 * i, 72 + 4 * i, 73 + 4 * i))
        a('v_cvt_pk_bf16_f32 v%d, v%d, v%d' % (93 + 2 * i, 74 + 4 * i, 75 + 4 * i))
    RB = 128
    for p in range(2):
        for pm in range(2):
            r1, r2 = RB + 4 * pm, RB + 4 * (2 + pm)
            a('v_mfma_f32_16x16x16_bf16 %s, %s, %s, %s' % (vr(r1, 4), vr(92 + 2 * (2 * p + pm), 2), vr(88 + 2 * p, 2), '0' if p == 0 else vr(r1, 4)))
            a('v_mfma_f32_16x16x16_bf16 %s, %s, v[16:17], %s' % (vr(r2, 4), vr(92 + 2 * (2 * p + pm), 2), '0' if p == 0 else vr(r2, 4)))
    a('s_lshl_b32 s30, s20, 12')
    a('v_add_u32 v23, s30, v6')
    for i in range(4):
        a('ds_write_b128 v23, %s offset:%d' % (vr(RB + 4 * i, 4), i * 1024))
    a('s_lshl_b32 s30, s20, 10')
    a('v_add_u32 v24, s30, v6')
    ko_setup(a)
    a('s_waitcnt lgkmcnt(0)')
    a('v_mov_b32 v22, 0x%x' % CTRL)
    bar(a, 'e2')
    a('ds_read_b32 v23, v22')
    for m in range(4):
        a('ds_read_b128 %s, v24 offset:%d' % (vr(48 + 4 * m, 4), m * 8192))
    for m in range(1, 4):
        a('s_waitcnt lgkmcnt(%d)' % (3 - m))
        for r in range(4):
            a('v_add_f32 v%d, v%d, v%d' % (48 + r, 48 + r, 48 + 4 * m + r))
    part_store(a, 48, True)
    stamp(a, 4)
    a('s_mov_b32 s28, %d' % (64 * TMO))
    a.label('c_rw')
    a('v_readfirstlane_b32 s%d, v23' % FAST)
    a('s_sub_u32 s28, s28, 1')
    a('s_cbranch_scc1 c_rok')
    a('ds_read_b32 v23, v22')
    a('s_sleep 1')
    a('s_cmp_eq_u32 s%d, 0' % FAST)
    a('s_waitcnt lgkmcnt(0)')
    a('s_cbranch_scc1 c_rw')
    a.label('c_rok')
    a('s_lshr_b32 s%d, s%d, 1' % (FAST, FAST))


def ko_setup(a):
    a('s_lshr_b32 s21, s2, 3')
    a('s_and_b32 s22, s2, 7')
    a('s_lshl_b32 s22, s22, 3')
    a('s_add_u32 s22, s22, s20')
    a('s_lshl_b32 s22, s22, 17')
    a('s_lshl_b32 s23, s21, 9')
    a('s_add_u32 s22, s22, s23')
    a('s_add_u32 s23, s22, 0x10000')
    a('v_lshlrev_b32 v7, 3, v1')
    a('s_lshr_b32 s24, s20, 1')
    a('s_lshl_b32 s24, s24, 7')
    a('s_add_u32 s24, s24, s21')
    a('s_mul_i32 s24, s24, %d' % PSTR)
    a('s_add_u32 s24, s24, 0x%x' % WS_PART)
    a('s_and_b32 s25, s20, 1')
    a('s_lshl_b32 s26, s25, 9')
    a('s_lshl_b32 s27, s25, 6')
    a('s_add_u32 s26, s26, s24')
    a('s_add_u32 s27, s27, s24')
    a('s_add_u32 s27, s27, 1024')
    a('v_lshlrev_b32 v8, 4, v2')


def cons_ko(a):
    PB, TB, FB = 16, 24, 52
    KV, ZZ = 64, 80

    def part_loads():
        for j in range(4):
            a('s_add_u32 s30, s26, %d' % (32 * PSTR * j))
            a('s_add_u32 s31, s27, %d' % (32 * PSTR * j))
            a('buffer_load_dwordx2 %s, v7, %s, s30 offen sc1 %s' % (vr(KV + 4 * j, 2), sr(S_WS), NT('pt')))
            a('buffer_load_dwordx4 %s, v8, %s, s31 offen sc1' % (vr(ZZ + 4 * j, 4), sr(S_WS)))

    def pq_loads():
        for s in range(2):
            a('buffer_load_dwordx2 %s, v7, %s, s%d offen sc1' % (vr(TB + 12 * s + 2, 2), sr(S_WS), 22 + s))
    a('s_mov_b32 s28, %d' % TMO)
    KO_E = env('KO_E', 0)
    a.label('ko_pq')
    pq_loads()
    a('s_waitcnt vmcnt(0)')
    a.label('ko_pqc')
    a('s_sub_u32 s28, s28, 1')
    a('s_cbranch_scc1 ko_pq_ok')
    a('v_max3_u32 v9, v%d, v%d, v%d' % (TB + 2, TB + 3, TB + 14))
    a('v_max_u32 v9, v9, v%d' % (TB + 15))
    a('v_cmp_eq_u32 vcc, -1, v9')
    a('s_cbranch_vccnz ko_pq')
    a.label('ko_pq_ok')
    stamp(a, 5)
    if KO_E:
        part_loads()
    a('s_lshl_b32 s30, s20, 11')
    a('s_add_u32 s30, s30, 0x%x' % KOX)
    a('v_add_u32 v9, s30, v6')
    softmax_sets(a, 2, PB, TB, FB, 10)
    a('s_mov_b32 s28, %d' % TMO)
    if KO_E:
        a('s_branch ko_ppc')
    a.label('ko_pp')
    part_loads()
    a.label('ko_ppc')
    a('s_sub_u32 s28, s28, 1')
    a('s_cbranch_scc1 ko_pp_ok')
    a('s_waitcnt vmcnt(0)')
    a('v_max3_u32 v11, v%d, v%d, v%d' % (KV, KV + 1, KV + 4))
    a('v_max3_u32 v12, v%d, v%d, v%d' % (KV + 5, KV + 8, KV + 9))
    a('v_max3_u32 v11, v11, v%d, v%d' % (KV + 12, KV + 13))
    for i in range(0, 16, 4):
        a('v_max3_u32 v12, v12, v%d, v%d' % (ZZ + i, ZZ + i + 1))
        a('v_max3_u32 v11, v11, v%d, v%d' % (ZZ + i + 2, ZZ + i + 3))
    a('v_max_u32 v11, v11, v12')
    a('v_cmp_eq_u32 vcc, -1, v11')
    a('s_cbranch_vccnz ko_pp')
    a.label('ko_pp_ok')
    a('s_waitcnt vmcnt(0)')
    stamp(a, 6)
    for j in range(4):
        r = KV + 4 * j
        a('v_and_b32 v%d, 0xffff0000, v%d' % (r + 3, r + 1))
        a('v_lshlrev_b32 v%d, 16, v%d' % (r + 2, r + 1))
        a('v_and_b32 v%d, 0xffff0000, v%d' % (r + 1, r))
        a('v_lshlrev_b32 v%d, 16, v%d' % (r, r))
    for B in (KV, ZZ):
        for r in range(4):
            a('v_add_f32 v%d, v%d, v%d' % (B + r, B + r, B + 4 + r))
            a('v_add_f32 v%d, v%d, v%d' % (B + 8 + r, B + 8 + r, B + 12 + r))
        for r in range(4):
            a('v_add_f32 v%d, v%d, v%d' % (B + r, B + r, B + 8 + r))
    a('ds_write_b128 v9, %s' % vr(KV, 4))
    a('ds_write_b128 v9, %s offset:1024' % vr(ZZ, 4))
    a('s_waitcnt lgkmcnt(0)')
    bar(a, 'o1')
    RD = 64
    for t in range(2):
        for kz in range(2):
            for qd in range(4):
                a('ds_read_b128 %s, v6 offset:%d' % (vr(RD + 4 * (8 * t + 4 * kz + qd), 4), KOX + (2 * qd + t) * 2048 + kz * 1024))
    OPA = 128
    for t in range(2):
        for kz in range(2):
            i = 2 * t + kz
            B = RD + 16 * i
            a('s_waitcnt lgkmcnt(%d)' % (12 - 4 * i))
            for r in range(4):
                a('v_add_f32 v%d, v%d, v%d' % (B + r, B + r, B + 4 + r))
                a('v_add_f32 v%d, v%d, v%d' % (B + 8 + r, B + 8 + r, B + 12 + r))
            for r in range(4):
                a('v_add_f32 v%d, v%d, v%d' % (B + r, B + r, B + 8 + r))
            a('v_cvt_pk_bf16_f32 v%d, v%d, v%d' % (OPA + 4 * kz + 2 * t, B, B + 1))
            a('v_cvt_pk_bf16_f32 v%d, v%d, v%d' % (OPA + 4 * kz + 2 * t + 1, B + 2, B + 3))
    ND = 64
    for s in range(2):
        a('v_mfma_f32_16x16x32_bf16 %s, %s, %s, 0' % (vr(ND + 8 * s, 4), vr(OPA, 4), vr(FB + 4 * s, 4)))
        a('v_mfma_f32_16x16x32_bf16 %s, %s, %s, 0' % (vr(ND + 8 * s + 4, 4), vr(OPA + 4, 4), vr(FB + 4 * s, 4)))
    for s in range(2):
        n = ND + 8 * s
        d = n + 4
        T = 16 + 8 * s
        a('v_cvt_pk_bf16_f32 v%d, v%d, v%d' % (T, d, d))
        a('v_cvt_pk_bf16_f32 v%d, v%d, v%d' % (T + 1, n, n + 1))
        a('v_cvt_pk_bf16_f32 v%d, v%d, v%d' % (T + 2, n + 2, n + 3))
        a('v_lshlrev_b32 v%d, 16, v%d' % (T, T))
        a('v_add_f32 v%d, 0x358637bd, v%d' % (T, T))
        a('v_cvt_pk_bf16_f32 v%d, v%d, v%d' % (T, T, T))
        a('v_lshlrev_b32 v%d, 16, v%d' % (T, T))
        a('v_rcp_f32 v%d, v%d' % (T, T))
        a('v_lshlrev_b32 v%d, 16, v%d' % (T + 3, T + 1))
        a('v_and_b32 v%d, 0xffff0000, v%d' % (T + 4, T + 1))
        a('v_lshlrev_b32 v%d, 16, v%d' % (T + 5, T + 2))
        a('v_and_b32 v%d, 0xffff0000, v%d' % (T + 6, T + 2))
        for i in range(4):
            a('v_mul_f32 v%d, v%d, v%d' % (T + 3 + i, T, T + 3 + i))
        a('v_cvt_pk_bf16_f32 v%d, v%d, v%d' % (T, T + 3, T + 4))
        a('v_cvt_pk_bf16_f32 v%d, v%d, v%d' % (T + 1, T + 5, T + 6))
        gstore(a, 'buffer_store_dwordx2 %s, v7, %s, s%d offen' % (vr(T, 2), sr(S_WS), 22 + s))


def w64_addr(a, k2, WA, base):
    map64(a)
    a('s_lshr_b32 s23, s20, 1')
    a('s_add_u32 s24, s21, s23')
    a('s_and_b32 s25, s20, 1')
    a('v_lshl_add_u32 v14, v2, %d, v4' % (2 if k2 else 3))
    a('v_lshlrev_b32 v14, 7, v14')
    a('v_lshl_add_u32 v14, v5, 3, v14')
    a('v_and_b32 v15, 1, v2')
    a('v_lshlrev_b32 v15, 1, v15')
    a('v_lshrrev_b32 v13, 1, v4')
    a('v_or_b32 v15, v15, v13')
    a('s_lshl_b32 s26, s25, 1')
    a('v_xor_b32 v15, s26, v15')
    a('v_lshl_add_u32 v14, v15, 5, v14')
    a('s_lshl_b32 s26, s25, 12')
    a('s_add_u32 s26, s26, 0x%x' % base)
    a('v_add_u32 v%d, s26, v14' % WA)
    for s in range(1, 4):
        a('v_xor_b32 v%d, %d, v%d' % (WA + s, 32 * s, WA))


def cons_k2(a):
    WA, AC, AF, WB, XR = 8, 16, 32, 64, 164
    w64_addr(a, True, WA, W2B)
    a('s_lshl_b32 s26, s23, 11')
    a('s_lshl_b32 s27, s25, 6')
    a('s_add_u32 s26, s26, s27')
    a('s_add_u32 s26, s26, 0x%x' % XT)
    a('v_lshlrev_b32 v13, 7, v3')
    a('v_lshl_add_u32 v13, v2, 3, v13')
    a('v_add_u32 v13, s26, v13')
    set_flag(a, F0, 14, 15)
    bar(a, 'd1')
    stamp(a, 7)

    def wreads(i, b):
        for s in range(4):
            for e in range(2):
                a('ds_read_b64_tr_b16 %s, v%d offset:%d' % (vr(WB + 16 * b + 4 * s + 2 * e, 2), WA + s, i * 8192 + e * 2048))
    for nt in range(2):
        a('ds_read_b64 %s, v13 offset:%d' % (vr(XR + 2 * nt, 2), nt * 32))
    for i in range(6):
        wreads(i, i)
    sp_batches(a, 'C', 'd1')
    a('s_and_b32 s30, s2, 7')
    a('s_lshl_b32 s30, s30, 8')
    a('s_and_b32 s31, s24, 15')
    a('s_lshr_b32 s31, s31, 1')
    a('s_lshl_b32 s31, s31, 5')
    a('s_add_u32 s30, s30, s31')
    a('s_add_u32 s30, s30, 0x%x' % WS_FLAG)
    a('v_lshlrev_b32 v14, 2, v1')
    a('s_lshl_b32 s29, s24, 16')
    a('s_lshl_b32 s31, s25, 10')
    a('s_add_u32 s27, s29, s31')
    a('s_lshl_b32 s32, s20, 11')
    a('s_add_u32 s32, s32, 0x%x' % KOX)
    a('v_add_u32 v12, s32, v6')
    a('v_xor_b32 v13, 0x800, v12')
    poll_flags(a, 30, 8, 14, 15)
    stamp(a, 8)
    for i in range(8):
        if i and i % 2 == 0:
            a('s_add_u32 s27, s27, 4096')
        for e in range(2):
            a('buffer_load_dwordx2 %s, v7, %s, s27 offen offset:%d sc1' % (vr(AF + 4 * i + 2 * e, 2), sr(S_WS), (i % 2) * 2048 + e * 512))
    a('s_lshl_b32 s31, s22, %d' % (3 if CSP else 4))
    a('s_add_u32 s28, s29, s31')
    a('s_lshl_b32 s31, s25, %d' % (13 if CSP else 10))
    a('s_add_u32 s28, s28, s31')
    a('s_add_u32 s28, s28, 0x%x' % OFF_H)
    a('v_lshlrev_b32 v14, 4, v3')
    a('s_lshr_b32 s31, s22, 7')
    a('s_and_b32 s26, s31, 1')
    a('s_lshl_b32 s26, s26, 10')
    a('s_add_u32 s29, s29, s26')
    a('s_lshr_b32 s31, s31, 1')
    a('s_lshl_b32 s31, s31, 8')
    a('s_add_u32 s29, s29, s31')
    a('s_lshl_b32 s31, s25, 3')
    a('s_add_u32 s29, s29, s31')
    a('s_add_u32 s29, s29, 0x%x' % OFF_S)
    for i in range(8):
        b = i % 6
        lg = {0: 0, 6: 8, 7: 0}.get(i)
        a('s_waitcnt vmcnt(%d)%s' % (14 - 2 * i, '' if lg is None else ' lgkmcnt(%d)' % lg))
        for s in (2, 3, 0, 1):
            a('v_mfma_f32_16x16x32_bf16 %s, %s, %s, %s' % (vr(AC + 4 * s, 4), vr(WB + 16 * b + 4 * s, 4), vr(AF + 4 * i, 4), '0' if i == 0 else vr(AC + 4 * s, 4)))
        if i < 2:
            wreads(6 + i, i)
    stamp(a, 9)
    for s in range(2):
        a('ds_write_b128 v12, %s offset:%d' % (vr(AC + 8 + 4 * s, 4), s * 1024))
    T = 40
    for i in range(4):
        a('v_lshlrev_b32 v%d, 16, v%d' % (T + 2 * i, XR + i))
        a('v_and_b32 v%d, 0xffff0000, v%d' % (T + 2 * i + 1, XR + i))
    a('v_mov_b32 v52, 0x3f803f80')
    a('s_waitcnt lgkmcnt(0)')
    bar(a, 'x2')
    for s in range(2):
        a('ds_read_b128 %s, v13 offset:%d' % (vr(32 + 4 * s, 4), s * 1024))
    OUTR = HKEEP
    S1, S2 = 54, 55
    for s in range(2):
        a('s_waitcnt lgkmcnt(%d)' % (1 - s))
        for r in range(4):
            a('v_add_f32 v%d, v%d, v%d' % (AC + 4 * s + r, AC + 4 * s + r, 32 + 4 * s + r))
    for i in range(8):
        a('v_add_f32 v%d, v%d, v%d' % (T + i, T + i, AC + i))
    for i in range(4):
        a('v_cvt_pk_bf16_f32 v%d, v%d, v%d' % (OUTR + i, T + 2 * i, T + 2 * i + 1))
    gstore(a, 'buffer_store_dwordx4 %s, v6, %s, s28 offen' % (vr(OUTR, 4), sr(S_WS)))
    for i in range(4):
        a('v_dot2_f32_bf16 v%d, v%d, v52, %s' % (S1, OUTR + i, 'v%d' % S1 if i else '0'))
        a('v_dot2_f32_bf16 v%d, v%d, v%d, %s' % (S2, OUTR + i, OUTR + i, 'v%d' % S2 if i else '0'))
    butterfly(a, [('v_add_f32', S1, 52), ('v_add_f32', S2, 53)])
    gstore(a, 'buffer_store_dwordx2 v[54:55], v14, %s, s29 offen' % sr(S_WS))
    set_flag(a, F1, 56, 57)
    stamp(a, 10)
    sp_batches(a, 'C', 'x2')


def cons_k3(a):
    map3(a)
    STR, B1R = 20, 120

    def extra(a):
        a('v_lshlrev_b32 v46, 3, v2')
        a('s_lshl_b32 s30, s36, 5')
        a('s_add_u32 s30, s30, s22')
        for seg in range(3):
            a('buffer_load_dwordx2 %s, v46, %s, s30 offen offset:%d' % (vr(B1R + 2 * seg, 2), sr(S_B1), seg * 64))

    def hook(a, ks, ph):
        if ks == 6 and ph == 1:
            for p in range(2):
                a('s_lshl_b32 s30, s%d, 12' % (24 if p == 0 else 37))
                a('s_add_u32 s30, s30, 0x%x' % OFF_S)
                for i in range(2):
                    a('buffer_load_dwordx4 %s, v6, %s, s30 offen offset:%d sc1' % (vr(STR + 8 * p + 4 * i, 4), sr(S_WS), i * 1024))
        if ks == 13 and ph == 1:
            a('s_waitcnt vmcnt(0)')
            for p in range(2):
                b = STR + 8 * p
                a('v_add_f32 v%d, v%d, v%d' % (b, b, b + 2))
                a('v_add_f32 v%d, v%d, v%d' % (b + 1, b + 1, b + 3))
                a('v_add_f32 v%d, v%d, v%d' % (b + 4, b + 4, b + 6))
                a('v_add_f32 v%d, v%d, v%d' % (b + 5, b + 5, b + 7))
            for p in range(2):
                b = STR + 8 * p
                a('v_add_f32 v%d, v%d, v%d' % (b, b, b + 4))
                a('v_add_f32 v%d, v%d, v%d' % (b + 1, b + 1, b + 5))
            butterfly(a, [('v_add_f32', STR, STR + 2), ('v_add_f32', STR + 1, STR + 3), ('v_add_f32', STR + 8, STR + 10), ('v_add_f32', STR + 9, STR + 11)])
        if ks == 14 and ph == 1:
            gemm96_main.finish_stats(STR, STR + 1, 36, 37)
            gemm96_main.finish_stats(STR + 8, STR + 9, 38, 39)
        if ks == 15 and ph == 1:
            a('s_lshl_b32 s27, s36, 9')
            a('s_mul_i32 s25, s34, 3 * 1024')
            a('s_add_u32 s25, s25, s27')
            for p in range(2):
                a('s_lshl_b32 s%d, s%d, 12' % (28 + p, 24 if p == 0 else 37))
            a('v_and_b32 v22, 1, v2')
            a('v_cmp_eq_u32 vcc, 0, v22')
            a('v_mov_b32 v22, s28')
            a('v_mov_b32 v23, s29')
            a('v_cndmask_b32 v22, v23, v22, vcc')
            a('v_lshrrev_b32 v23, 1, v2')
            a('v_lshl_add_u32 v22, v23, 8, v22')
            a('v_lshl_add_u32 v22, v3, 4, v22')
            for seg in range(3):
                b = B1R + 2 * seg
                B = 72 + 4 * seg
                a('v_lshlrev_b32 v%d, 16, v%d' % (B, b))
                a('v_and_b32 v%d, 0xffff0000, v%d' % (B + 1, b))
                a('v_lshlrev_b32 v%d, 16, v%d' % (B + 2, b + 1))
                a('v_and_b32 v%d, 0xffff0000, v%d' % (B + 3, b + 1))

    gemm96_main(a, 'k3', lambda ks: W3A[ks], a3addr, XCH3, 'q', 'e3', extra, hook, (11, 12))
    a('s_cmp_eq_u32 s34, 15')
    a('s_cbranch_scc1 k3_done')
    for seg in range(3):
        if seg == 1:
            a('s_cmp_eq_u32 s34, 14')
            a('s_cbranch_scc1 k3_done')
        a('s_waitcnt lgkmcnt(%d)' % (2 - seg))
        B = 72 + 4 * seg
        for p in range(2):
            ac = ACC + 4 * (3 * p + seg)
            for r in range(4):
                a('v_fma_f32 v%d, -v%d, v%d, v%d' % (ac + r, 36 + 2 * p, 132 + 4 * seg + r, ac + r))
        for p in range(2):
            ac = ACC + 4 * (3 * p + seg)
            for r in range(4):
                a('v_fma_f32 v%d, v%d, v%d, v%d' % (ac + r, 37 + 2 * p, ac + r, B + r))
        for p in range(2):
            ac = ACC + 4 * (3 * p + seg)
            for r in range(4):
                a('v_mul_f32 v%d, v%d, |v%d|' % (ac + r, ac + r, ac + r))
        for p in range(2):
            ac = ACC + 4 * (3 * p + seg)
            T = 144 + 2 * (2 * seg + p)
            a('v_cvt_pk_bf16_f32 v%d, v%d, v%d' % (T, ac, ac + 1))
            a('v_cvt_pk_bf16_f32 v%d, v%d, v%d' % (T + 1, ac + 2, ac + 3))
        for p in range(2):
            T = 144 + 2 * (2 * seg + p)
            a('v_pk_max_i16 v%d, v%d, 0' % (T, T))
            a('v_pk_max_i16 v%d, v%d, 0' % (T + 1, T + 1))
        T = 144 + 4 * seg
        a('v_permlane16_swap_b32 v%d, v%d' % (T, T + 2))
        a('v_permlane16_swap_b32 v%d, v%d' % (T + 1, T + 3))
        gstore(a, 'buffer_store_dwordx4 %s, v22, %s, s25 offen offset:%d' % (vr(T, 4), sr(S_WS), seg * 1024))
    a.label('k3_done')


def cons_k4(a):
    WA, AC, WB, AF, BR = 8, 24, 40, 88, 164
    NAF = 18
    w64_addr(a, False, 16, 0)
    for s in range(4):
        a('v_mov_b32 v%d, v%d' % (WA + s, 16 + s))
    for b in (2, 1):
        for s in range(4):
            a('v_add_u32 v%d, 0x%x, v%d' % (WA + 4 * b + s, b * BANK, WA + s))

    def wreads(i):
        wb, wo = divmod(8192 * W4P[i], BANK)
        for s in range(4):
            for e in range(2):
                a('ds_read_b64_tr_b16 %s, v%d offset:%d' % (vr(WB + 16 * (i % 3) + 4 * s + 2 * e, 2), WA + 4 * wb + s, wo + e * 512))
    wreads(0)
    wreads(1)
    set_flag(a, F2, 21, 22)
    stamp(a, 13)
    a('s_lshl_b32 s27, s25, %d' % (9 if CSP else 6))
    a('s_lshr_b32 s26, s22, %d' % CSP)
    a('s_add_u32 s27, s27, s26')
    a('v_lshlrev_b32 v21, 3, v2')
    for nt in range(2):
        a('buffer_load_dwordx2 %s, v21, %s, s27 offen offset:%d' % (vr(BR + 2 * nt, 2), sr(S_B2), nt * 32))
    a('s_lshl_b32 s26, s24, 14')
    a('s_add_u32 s26, s26, s27')
    a('v_and_b32 v20, 1, v2')
    a('v_lshlrev_b32 v20, 5, v20')
    a('v_lshrrev_b32 v22, 1, v2')
    a('v_lshl_add_u32 v20, v22, 4, v20')
    a('v_lshl_add_u32 v20, v3, 10, v20')
    a('s_and_b32 s30, s2, 7')
    a('s_lshl_b32 s30, s30, 8')
    a('s_and_b32 s31, s24, 15')
    a('s_lshr_b32 s31, s31, 1')
    a('s_lshl_b32 s31, s31, 5')
    a('s_add_u32 s30, s30, s31')
    a('s_add_u32 s30, s30, 0x%x' % (WS_FLAG + 4096))
    a('v_lshlrev_b32 v22, 2, v1')
    a('s_lshl_b32 s29, s24, 16')
    a('s_lshl_b32 s31, s25, 10')
    a('s_add_u32 s29, s29, s31')
    a('s_lshl_b32 s32, s20, 11')
    assert W4P[3] == W4P[2] + 1 or True
    a('s_lshr_b32 s31, s20, 2')
    a('s_cmp_eq_u32 s31, 0')
    a('s_mov_b32 s31, 0x%x' % (8192 * W4P[3] - 8192))
    a('s_cselect_b32 s31, 0x%x, s31' % (8192 * W4P[2]))
    a('s_add_u32 s32, s32, s31')
    a('v_add_u32 v7, s32, v6')
    a('s_waitcnt lgkmcnt(0)')
    bar(a, 'r0')
    K4L = env('K4L', 0)
    poll_flags(a, 30, 7 if K4L else 8, 22, 23)
    stamp(a, 14)
    q = {}

    def aload(i):
        a('s_add_u32 s31, s29, %d' % ((i // 2) * 4096))
        q[i] = a('buffer_load_dwordx4 %s, v6, %s, s31 offen offset:%d %s' % (vr(AF + 4 * (i % NAF), 4), sr(S_WS), (i % 2) * 2048, os.environ.get('K4POL', 'sc1')))
    K4D = env('K4D', 5)
    for i in range(K4D):
        aload(i)
    for i in range(NP4):
        b = i % 3
        if i == R1_AT:
            a('s_waitcnt lgkmcnt(0)')
            bar(a, 'r1')
        a.wait_vm(q[i], ' lgkmcnt(%d)' % (8 if i + 1 < NP4 else 0))
        if K4L and i + 2 * K4D == NP4 - 1:
            a('s_mov_b64 exec, 0xff')
            a('buffer_load_dword v23, v22, %s, s30 offen sc1' % sr(S_WS))
            a('s_mov_b64 exec, -1')
        if K4L and i + K4D == NP4 - 1:
            a('s_mov_b64 exec, 0xff')
            a('v_cmp_ne_u32 vcc, 0x01010101, v23')
            a('s_mov_b64 exec, -1')
            a('s_cbranch_vccz k4_lok')
            n0 = a.vm_issued
            poll_flags(a, 30, 8, 22, 23)
            a.vm_issued = n0
            a.label('k4_lok')
        if i + K4D < NP4:
            aload(i + K4D)
        if i + 2 < NP4:
            wreads(i + 2)
        if i == NP4 - 1:
            a('s_cmp_eq_u32 s25, 1')
            a('s_cbranch_scc1 k4_skip')
        for s in (2, 3, 0, 1):
            a('v_mfma_f32_16x16x32_bf16 %s, %s, %s, %s' % (vr(AC + 4 * s, 4), vr(WB + 16 * b + 4 * s, 4), vr(AF + 4 * (i % NAF), 4), '0' if i == 0 else vr(AC + 4 * s, 4)))
    a.label('k4_skip')
    a('s_nop 7')
    for s in range(2):
        a('ds_write_b128 v7, %s offset:%d' % (vr(AC + 8 + 4 * s, 4), s * 1024))
    a('v_xor_b32 v7, 0x800, v7')
    HB = 96
    for i in range(4):
        a('v_lshlrev_b32 v%d, 16, v%d' % (HB + 2 * i, HKEEP + i))
        a('v_and_b32 v%d, 0xffff0000, v%d' % (HB + 2 * i + 1, HKEEP + i))
        a('v_lshlrev_b32 v%d, 16, v%d' % (104 + i, BR + i))
        a('v_and_b32 v%d, 0xffff0000, v%d' % (BR + i, BR + i))
    for i in range(4):
        a('v_add_f32 v%d, v%d, v%d' % (HB + 2 * i, HB + 2 * i, 104 + i))
        a('v_add_f32 v%d, v%d, v%d' % (HB + 2 * i + 1, HB + 2 * i + 1, BR + i))
    a('s_waitcnt lgkmcnt(0)')
    bar(a, 'x4')
    for s in range(2):
        a('ds_read_b128 %s, v7 offset:%d' % (vr(112 + 4 * s, 4), s * 1024))
    for s in range(2):
        a('s_waitcnt lgkmcnt(%d)' % (1 - s))
        for r in range(4):
            a('v_add_f32 v%d, v%d, v%d' % (AC + 4 * s + r, AC + 4 * s + r, 112 + 4 * s + r))
    O = 56
    for i in range(8):
        a('v_add_f32 v%d, v%d, v%d' % (HB + i, HB + i, AC + i))
    for i in range(4):
        a('v_cvt_pk_bf16_f32 v%d, v%d, v%d' % (O + i, HB + 2 * i, HB + 2 * i + 1))
    a('v_permlane16_swap_b32 v%d, v%d' % (O, O + 2))
    a('v_permlane16_swap_b32 v%d, v%d' % (O + 1, O + 3))
    a('buffer_store_dwordx4 %s, v20, %s, s26 offen' % (vr(O, 4), sr(S_OUT)))


def ring_loop(a, nk, ns, lag, per, issue, groups, bn, post=None, pre=None):
    last = {}
    issued = 0
    for j, (lo, hi) in enumerate(groups):
        while issued < nk:
            i = issued
            ok = (i < ns or (j >= 1 and groups[j - 1][0] - 2 >= i - ns)) and (i - lo + 1) * per <= 62 and (i < hi or i < lo + (lag if j < env('LAGJ', 1) or bn != 'g' else env('LAG1B', 5)))
            if not ok:
                break
            last[i] = issue(i)
            issued += 1
        assert issued >= hi, (j, issued, hi)
        if pre:
            pre(j)
        a.wait_vm(last[hi - 1])
        if bn == 'g':
            stamp(a, 3 + j, 1)
        if bn == 'q':
            stamp(a, 3 + j, 3)
        bar(a, bn + str(j))
        if post and j in post:
            post[j]()


NSTG = env('NSTG', 0)
STG_W = _il('STG_W', '0,12,6,8,8')
STG_SL = env('STG_SL', 3)
STG0 = 28


STG_P0 = env('STG_P0', 8)
STGP = list(range(STG_P0, STG_P0 + NSTG))


class Stager:
    def __init__(self, a, on):
        self.a, self.on, self.n, self.q = a, on and NSTG, 0, {}

    def setup(self):
        a = self.a
        if not self.on:
            return
        a('s_lshl_b32 s30, s35, 10')
        a('v_add_u32 v16, s30, v6')
        a('v_add_u32 v17, 0x%x, v16' % BANK)
        a('v_add_u32 v18, 0x%x, v16' % (2 * BANK))

    def load(self, win):
        a = self.a
        for c in range(STG_W[win] if self.on else 0):
            if self.n >= 4 * NSTG:
                return
            i, j = STGP[self.n // 4], 2 * (self.n % 4)
            if c and c % 2 == 0 and STG_SL:
                a('s_sleep %d' % STG_SL)
            a('s_mov_b32 s30, 0x%x' % ((i * 64 + 8 * j) * 1024))
            self.q[self.n] = a('buffer_load_dwordx4 %s, v12, %s, s30 offen' % (vr(STG0 + 4 * self.n, 4), sr(S_W2)))
            self.n += 1

    def write(self, after):
        a = self.a
        for k, i in enumerate(STGP if self.on else []):
            if W4T[i] == after:
                assert self.n >= 4 * NSTG
                a.wait_vm(max(self.q[4 * k + 3], a.vm_issued - 63))
                for e in range(4):
                    b, o = divmod(8192 * W4P[i] + 2 * e * 1024, BANK)
                    a('ds_write_b128 v%d, %s offset:%d' % (16 + b, vr(STG0 + 4 * (4 * k + e), 4), o))


def k4w_addr(a):
    a('s_lshl_b32 s31, s35, 13')
    a('s_lshr_b32 s30, s22, %d' % CSP)
    a('s_add_u32 s31, s31, s30')
    a('v_lshrrev_b32 v8, 3, v1')
    a('v_bfe_u32 v9, v1, 1, 2')
    a('v_and_b32 v10, 1, v1')
    a('v_lshlrev_b32 v10, 4, v10')
    a('v_lshl_add_u32 v8, v8, 10, v10')
    a('v_add_u32 v8, s31, v8')
    a('v_bfe_u32 v10, v1, 4, 1')
    a('v_xor_b32 v10, v9, v10')
    a('s_lshl_b32 s30, s35, 1')
    a('v_xor_b32 v10, s30, v10')
    a('v_lshl_add_u32 v12, v10, 5, v8')
    unit_fix(a, 12, 10)


def prod_w(a):
    a.label('prod_w')
    a.isprod = 1
    a.hist = []
    a.vm_issued = 0
    a.bars = []
    a('s_sub_u32 s35, s20, 8')
    a('s_lshl_b32 s32, s35, 10')

    def w96_addr(k1, wstride, reg):
        a('s_mul_i32 s31, s35, %d' % (16 * wstride))
        a('s_add_u32 s31, s31, s22')
        a('v_lshrrev_b32 v%d, 2, v1' % reg)
        a('v_mul_u32_u24 v%d, 0x%x, v%d' % (reg, wstride, reg))
        a('v_bfe_u32 v15, v1, %d, 1' % (5 if k1 else 4))
        a('v_lshlrev_b32 v15, 1, v15')
        a('v_xor_b32 v15, v15, v5')
        a('v_lshl_add_u32 v%d, v15, 4, v%d' % (reg, reg))
        a('v_add_u32 v%d, s31, v%d' % (reg, reg))
    w96_addr(True, 3072, 7)
    if QSW:
        a('v_xor_b32 v14, 0x100, v7')

    def wissue1(i):
        a('s_add_u32 s29, s39, %d' % i)
        a('s_and_b32 s29, s29, 15')
        a('s_mul_i32 s29, s29, %d' % (32 * 3072))
        for seg in range(3):
            a('s_add_u32 m0, s32, 0x%x' % ((i % NS1) * SLOT + seg * 2048))
            a('s_add_u32 s30, s29, 0x%x' % (seg * 1024))
            q = a('buffer_load_dwordx4 v%d, %s, s30 offen %slds' % (14 if QSW and seg == 0 else 7, sr(S_WQ), NT('wq')))
        if i == 2:
            if QSW:
                a('s_add_u32 m0, s32, 0x%x' % (XCH1 + 2048))
                a('s_lshl_b32 s30, s35, 2')
                a('s_xor_b32 s30, s30, s34')
                a('s_lshl_b32 s30, s30, 10')
            else:
                a('s_mov_b32 m0, 0x%x' % (XCH1 + 2048))
                a('s_lshl_b32 s30, s34, 10')
            a('buffer_load_dwordx4 v6, %s, s30 offen lds' % sr(S_WP))
        return q
    def pre(j):
        if j == 1:
            fin_rest(a)
        if j >= 1:
            sp_batches(a, 'W', 'g%d' % (j - 1))
    ring_loop(a, 16, NS1, LAG1, 3, wissue1, G96, 'g', pre=pre)
    sp_batches(a, 'W', 'g8')
    map64(a)
    k4w_addr(a)
    a('v_bfe_u32 v10, v1, 4, 2')
    a('v_xor_b32 v10, v9, v10')
    a('v_lshl_add_u32 v11, v10, 5, v8')
    unit_fix(a, 11, 10)
    stg = Stager(a, 1)
    stg.setup()
    a('v_lshl_add_u32 v13, v9, 5, v8')
    unit_fix(a, 13, 9)
    a('s_lshl_b32 s36, s21, 14')

    def w2x():
        for i in range(8):
            for j in range(0, 8, 2):
                a('s_add_u32 m0, s32, 0x%x' % (W2B + 8192 * i + j * 1024))
                a('s_mov_b32 s30, 0x%x' % ((i * 64 + 8 * j) * 1024))
                a('buffer_load_dwordx4 v11, %s, s30 offen %slds' % (sr(S_WO), NT('wo')))
        for j in range(0, 8, 2):
            a('s_add_u32 m0, s32, 0x%x' % (XT + j * 1024))
            a('s_add_u32 s30, s36, 0x%x' % (j * 8192))
            q = a('buffer_load_dwordx4 v13, %s, s30 offen lds' % sr(S_X))
        return q
    W2AT = env('W2AT', 1)
    if W2AT == 0:
        q_w2 = w2x()
    map3(a)
    w96_addr(False, 2752, 7)
    bar(a, 'e1')
    if W2AT == 1:
        if env('W2SL', 0):
            a('s_sleep %d' % env('W2SL', 0))
        q_w2 = w2x()
    sp_batches(a, 'W', 'e1', only=0)
    stg.load(0)
    for _b in range(1, 4):
        if SASSIGN.get(('W', 'e1', _b)):
            a('s_waitcnt lgkmcnt(0)')
            sp_batches(a, 'W', 'e1', only=_b)
    bar(a, 'e2')
    if W2AT == 2:
        q_w2 = w2x()
    sp_batches(a, 'W', 'e2', only=0)
    stg.load(1)
    for _b in range(1, 4):
        if SASSIGN.get(('W', 'e2', _b)):
            a('s_waitcnt lgkmcnt(0)')
            sp_batches(a, 'W', 'e2', only=_b)
    q3 = {}

    def w3(i):
        for seg in range(3):
            a('s_add_u32 m0, s32, 0x%x' % (W3A[i] + seg * 2048))
            a('s_mov_b32 s30, 0x%x' % (i * 32 * 2752 + seg * 64))
            q3[i] = a('buffer_load_dwordx4 v7, %s, s30 offen %slds' % (sr(S_W1), NT('w1')))
    bar(a, 'o1')
    if W2AT == 3:
        q_w2 = w2x()
    W3N = env('W3N', 5)
    for i in range(W3N):
        w3(i)
    sp_batches(a, 'W', 'o1', only=0)
    stg.load(2)
    for _b in range(1, 4):
        if SASSIGN.get(('W', 'o1', _b)):
            a('s_waitcnt lgkmcnt(0)')
            sp_batches(a, 'W', 'o1', only=_b)
    a.wait_vm(q_w2)
    bar(a, 'd1')
    for i in range(W3N, 10):
        w3(i)
    sp_batches(a, 'W', 'd1', only=0)
    stg.load(3)
    for _b in range(1, 4):
        if SASSIGN.get(('W', 'd1', _b)):
            a('s_waitcnt lgkmcnt(0)')
            sp_batches(a, 'W', 'd1', only=_b)
    bar(a, 'x2')
    w3(10)
    w3(11)
    sp_batches(a, 'W', 'x2', only=0)
    stg.load(4)
    for _b in range(1, 4):
        if SASSIGN.get(('W', 'x2', _b)):
            a('s_waitcnt lgkmcnt(0)')
            sp_batches(a, 'W', 'x2', only=_b)
    q4 = {}
    nxt = [0]

    def w4(after):
        while nxt[0] < NP4 and W4T[nxt[0]] == after:
            i = nxt[0]
            n = 8 if i < NP4 - 1 else 4
            for j in range(0, n if i not in STGP else 0, 2):
                a('s_add_u32 m0, s32, 0x%x' % (8192 * W4P[i] + j * 1024))
                a('s_mov_b32 s30, 0x%x' % ((i * 64 + 8 * j) * 1024))
                q4[i] = a('buffer_load_dwordx4 v12, %s, s30 offen lds' % sr(S_W2))
            nxt[0] += 1
    for g, (lo, hi) in enumerate(G96):
        a.wait_vm(q3[hi - 1])
        stamp(a, 3 + g, 3)
        bar(a, 'q%d' % g)
        if g == 0:
            for k in (12, 13, 14):
                w3(k)
        if g == 2:
            w3(15)
        stg.write('q%d' % g)
        w4('q%d' % g)
        sp_batches(a, 'W', 'q%d' % g)
    assert 0 not in STGP and 1 not in STGP
    a.wait_vm(q4[1])
    bar(a, 'e3')
    stg.write('e3')
    if env('W4SL', 0):
        a('s_sleep %d' % env('W4SL', 0))
    w4('e3')
    a.wait_vm(max(q4[i] for i in range(NPUB0) if i in q4), ' lgkmcnt(0)' if NSTG else '')
    stamp(a, 12, 3)
    bar(a, 'r0')
    w4('r0')
    assert nxt[0] == NP4
    a('s_waitcnt vmcnt(0) lgkmcnt(0)')
    stamp(a, 13, 3)
    wbl(a, 1, 8)
    bar(a, 'r1')
    wbl(a, 2, 8)
    stamp_store(a)
    a('s_endpgm')


def prod_a(a):
    a.label('prod_a')
    a.hist = []
    a.vm_issued = 0
    a.bars = []
    nt = 4
    a('s_sub_u32 s35, s20, 10')
    a('s_mul_i32 s32, s35, %d' % (nt * 1024))
    a('s_mul_i32 s31, s35, %d' % (nt * 16))
    a('s_add_u32 s31, s31, s21')
    a('s_lshl_b32 s31, s31, 10')
    a('v_lshlrev_b32 v15, 1, v2')
    a('v_mov_b32 v14, 0x78')
    a('v_lshrrev_b32 v15, v15, v14')
    a('v_and_b32 v15, 3, v15')
    a('v_xor_b32 v15, v15, v5')
    a('v_lshrrev_b32 v7, 2, v1')
    a('v_lshlrev_b32 v7, 10, v7')
    a('v_lshl_add_u32 v7, v15, 4, v7')
    a('v_add_u32 v7, s31, v7')

    def aissue1(i):
        a('s_add_u32 s29, s39, %d' % i)
        a('s_and_b32 s29, s29, 15')
        a('s_lshl_b32 s29, s29, 6')
        for rt in range(nt):
            a('s_add_u32 m0, s32, 0x%x' % ((i % NS1) * SLOT + 6144 + rt * 1024))
            a('s_add_u32 s30, s29, 0x%x' % (rt * 16384))
            q = a('buffer_load_dwordx4 v7, %s, s30 offen %slds' % (sr(S_X), NT('x')))
        return q
    a('v_lshlrev_b32 v23, 2, v1')
    RDY_G = env('RDY_G', 9)

    def pre(j):
        if j == 1:
            fin_rest(a)
        if j >= 1:
            sp_batches(a, 'A', 'g%d' % (j - 1))
        if j == 0:
            a('v_mov_b32 v24, 0')
            a('v_mov_b32 v25, 0x%x' % CTRL)
            a('ds_write_b32 v25, v24')
            a('s_waitcnt lgkmcnt(0)')
    ring_loop(a, 16, NS1, LAG1, nt, aissue1, G96, 'g', pre=pre)
    sp_batches(a, 'A', 'g8')
    a('v_lshrrev_b32 v26, 1, v1')
    a('v_lshlrev_b32 v26, 7, v26')

    def ready_check(tag, tries):
        L = lambda n: 'pa_%s%s' % (n, tag)
        a('s_cmp_lg_u32 s20, 10')
        a('s_cbranch_scc1 %s' % L('nr'))
        a('s_cmp_lg_u32 s3, 0')
        a('s_cbranch_scc1 %s' % L('nr'))
        a('s_mov_b32 s28, %d' % tries)
        a('s_mov_b32 s29, 1')
        a('s_branch %s' % L('r1'))
        a.label(L('rp'))
        a('s_sleep 4')
        a.label(L('r1'))
        a('s_sub_u32 s28, s28, 1')
        a('s_cbranch_scc1 %s' % (L('nr') if tries < 16 else L('rd')))
        a('buffer_load_dword v22, v23, %s, 0 offen sc1' % sr(S_DBG))
        a('s_waitcnt vmcnt(0)')
        a('v_and_b32 v24, 0xff, v22')
        a('v_cmp_ne_u32 vcc, 32, v24')
        a('s_and_b32 vcc_lo, vcc_lo, 0x01010101')
        a('s_and_b32 vcc_hi, vcc_hi, 0x01010101')
        a('s_cmp_lg_u64 vcc, 0')
        a('s_cbranch_scc1 %s' % L('rp'))
        a('s_getreg_b32 s30, hwreg(HW_REG_XCC_ID, 0, 4)')
        a('s_mul_i32 s31, s30, s30')
        a('s_lshl_b32 s31, s31, 23')
        a('s_lshl_b32 s30, s30, 13')
        a('s_add_u32 s30, s30, s31')
        a('s_add_u32 s30, s30, 32')
        a('v_cmp_ne_u32 vcc, s30, v22')
        a('s_and_b32 s31, s2, 7')
        a('s_lshl_b32 s31, s31, 3')
        a('s_lshr_b64 s[26:27], vcc, s31')
        a('s_and_b32 s26, s26, 1')
        a('s_cmp_eq_u32 s26, 0')
        a('s_cselect_b32 s29, %d, 1' % (1 if FORCE_SLOW else 3))
        a.label(L('rd'))
        stamp(a, 12, 1)
        a('s_mov_b32 s3, 1')
        a('v_mov_b32 v24, s29')
        a('v_mov_b32 v25, 0x%x' % CTRL)
        a('ds_write_b32 v25, v24')
        a('s_and_b32 s30, s2, 7')
        a('s_lshl_b32 s30, s30, 8')
        a('s_add_u32 s30, s30, 0x%x' % WS_FLAG)
        a('v_and_b32 v24, 1, v1')
        a('v_lshlrev_b32 v24, 7, v24')
        a('v_bfe_u32 v25, v1, 1, 2')
        a('v_min_u32 v25, 2, v25')
        a('v_lshl_add_u32 v24, v25, 11, v24')
        a('buffer_load_dword v27, v24, %s, s30 offen sc1' % sr(S_WS))
        a.label(L('nr'))
        a.vm_issued -= 2

    def paced(n):
        if not n:
            return
        lb, le = uid('pt'), uid('pe')
        a('s_cmp_lg_u32 s20, 11')
        a('s_cbranch_scc1 %s' % lb)
        for w in range(2):
            if w:
                a('s_branch %s' % le)
                a.label(lb)
                a('s_sleep %d' % (T_SL // 2))
            m = (n + 1 - w) // 2
            for i in range(m):
                if touch_item(a, 26, 27):
                    a.vm_issued -= 1
                    if i + 1 < m:
                        a('s_sleep %d' % T_SL)
        a.label(le)
    paced(T_PA[0])
    stg = Stager(a, 0)
    stg.setup()
    bar(a, 'e1')
    sp_batches(a, 'A', 'e1', only=0)
    if T_PA[1]:
        a('s_sleep %d' % env('T_D1', 10))
    paced(T_PA[1])
    if SASSIGN.get(('A', 'e1', 1)):
        a('s_waitcnt lgkmcnt(0)')
        sp_batches(a, 'A', 'e1', only=1)
    stg.load(0)
    a('s_sleep %d' % env('RDY_SL', 8))
    ready_check('a', 1)
    bar(a, 'e2')
    ready_check('b', 4 * TMO)
    paced(T_PA[2])
    sp_batches(a, 'A', 'e2', only=0)
    stg.load(1)
    for _b in range(1, 4):
        if SASSIGN.get(('A', 'e2', _b)):
            a('s_waitcnt lgkmcnt(0)')
            sp_batches(a, 'A', 'e2', only=_b)
    bar(a, 'o1')
    paced(T_PA[3])
    sp_batches(a, 'A', 'o1', only=0)
    stg.load(2)
    for _b in range(1, 4):
        if SASSIGN.get(('A', 'o1', _b)):
            a('s_waitcnt lgkmcnt(0)')
            sp_batches(a, 'A', 'o1', only=_b)
    bar(a, 'd1')
    paced(T_PA[4])
    sp_batches(a, 'A', 'd1', only=0)
    stg.load(3)
    for _b in range(1, 4):
        if SASSIGN.get(('A', 'd1', _b)):
            a('s_waitcnt lgkmcnt(0)')
            sp_batches(a, 'A', 'd1', only=_b)
    map3(a)
    a('s_mul_i32 s31, s35, %d' % (nt * 16))
    a('s_add_u32 s31, s31, s21')
    a('s_lshl_b32 s31, s31, 12')
    a('v_add_u32 v7, s31, v6')
    a('s_and_b32 s36, s2, 7')
    a('s_lshl_b32 s36, s36, 8')
    a('s_lshr_b32 s31, s2, 3')
    a('s_and_b32 s31, s31, 1')
    a('s_lshl_b32 s31, s31, 1')
    a('s_add_u32 s31, s31, s35')
    a('s_lshl_b32 s31, s31, 6')
    a('s_add_u32 s36, s36, s31')
    a('s_add_u32 s36, s36, 0x%x' % (WS_FLAG + 2048))
    bar(a, 'x2')
    sp_batches(a, 'A', 'x2', only=0)
    poll_flags(a, 36, 16, 23, 22)
    stamp(a, 2, 3)

    def aissue3(i):
        for rt in range(nt):
            a('s_add_u32 m0, s32, 0x%x' % (a3addr(i) + rt * 1024))
            a('s_mov_b32 s30, 0x%x' % (OFF_H + rt * 65536 + i * 1024))
            q = a('buffer_load_dwordx4 v7, %s, s30 offen sc1 lds' % sr(S_WS))
        return q
    ring_loop(a, 16, 8, env('LAG3', 8), nt, aissue3, G96, 'q', pre=lambda j: (stg.write('q%d' % (j - 1)), sp_batches(a, 'A', 'q%d' % (j - 1))))
    sp_batches(a, 'A', 'q8')
    paced(T_PA[5])
    wbl(a, 4, 10)
    stamp_store(a)
    a('s_endpgm')


def gen(a):
    a.raw('.globl %s' % NAME)
    a.raw('.p2align 8')
    a.raw('.type %s,@function' % NAME)
    a.label(NAME)
    a.bars = []
    a('s_cmp_ge_u32 s2, 256')
    a('s_cbranch_scc1 mega_exit')
    stamp_real(a, 0)
    stamp(a, 1)
    for s, off in ((S_X, 0), (S_WQ, 8), (S_WP, 16), (S_WS, 88), (S_WO, 24), (S_W1, 40), (S_W2, 56), (S_B1, 48), (S_B2, 64), (S_OUT, 72), (S_DBG, 80)):
        srd(a, s, off)
    lane_decomp(a)
    a('s_add_u32 s21, s20, 8')
    a('s_sub_u32 s20, s20, 4')
    a('s_cselect_b32 s20, s21, s20')
    a('s_mov_b32 s%d, 0' % FAST)
    code_pf(a, 1, env('CPW', 0))
    a('s_and_b32 s30, s2, 7')
    a('s_lshr_b32 s31, s2, 3')
    a('s_lshr_b32 s21, s30, 1')
    a('s_lshl_b32 s21, s21, 2')
    a('s_and_b32 s22, s31, 3')
    a('s_add_u32 s33, s21, s22')
    a('s_and_b32 s21, s30, 1')
    a('s_lshl_b32 s21, s21, 3')
    a('s_lshr_b32 s22, s31, 2')
    a('s_add_u32 s34, s21, s22')
    if env('HGS', 4):
        a('s_xor_b32 s34, s34, %d' % env('HGS', 4))
    if env('HGX', 0):
        a('s_cmp_eq_u32 s22, 7')
        a('s_cselect_b32 s21, 8, 0')
        a('s_xor_b32 s34, s34, s21')
    a('s_lshl_b32 s21, s33, 7')
    a('s_lshl_b32 s22, s34, 6')
    a('s_lshl_b32 s39, s33, 1')
    a('s_add_u32 s39, s39, s34')
    a('s_lshl_b32 s39, s39, 1')
    a('s_waitcnt lgkmcnt(0)')
    srd_fin(a, S_X, 2048 * 1024)
    srd_fin(a, S_WQ, 512 * 3072)
    srd_fin(a, S_WP, 16384)
    srd_fin(a, S_WS, WS_SIZE)
    a('s_cmp_ge_u32 s20, 10')
    a('s_cbranch_scc1 prod_a')
    a('s_cmp_ge_u32 s20, 8')
    a('s_cbranch_scc1 prod_w')
    cons_k1(a)
    cons_ko(a)
    cons_k2(a)
    cons_k3(a)
    cons_k4(a)
    stamp_store(a)
    a.label('mega_exit')
    a('s_endpgm')
    bc = a.bars
    prod_w(a)
    assert a.bars == bc[:len(a.bars)], (a.bars, bc)
    prod_a(a)
    assert a.bars == bc[:len(a.bars)], (a.bars, bc)
    a.label('mega_end')


def build():
    if NAME == 'mega_kernel':
        head = '; @launch kernel=%s grid=(256,1,1) block=(768,1,1) lds=163840\n' % NAME
    else:
        head = '; @launch grid=(256,1,1) block=(768,1,1) lds=163840\n'
    head += '.amdgcn_target "amdgcn-amd-amdhsa--gfx950"\n.text\n'
    a = Asm()
    gen(a)
    d = '''.section .rodata,"a"
.p2align 6
.amdhsa_kernel %s
  .amdhsa_next_free_vgpr 168
  .amdhsa_next_free_sgpr 102
  .amdhsa_accum_offset 168
  .amdhsa_group_segment_fixed_size 0
  .amdhsa_kernarg_size 96
  .amdhsa_user_sgpr_count 2
  .amdhsa_user_sgpr_kernarg_segment_ptr 1
  .amdhsa_system_sgpr_workgroup_id_x 1
.end_amdhsa_kernel
''' % NAME
    return head + a.text() + d


if __name__ == '__main__':
    open(sys.argv[1], 'w').write(build())
    if os.environ.get('V'):
        print('W4P', W4P, 'W4T', W4T, 'NPUB0', NPUB0, 'R1_AT', R1_AT, 'touch used', _tnext[0], 'of', len(TITEMS), 'sp', _pos, 'of', len(SLINES))
```
